```python
import torch

def _softmax(x, axis=-1):
    return torch.softmax(x, dim=axis)

def _gelu(x):
    return torch.nn.functional.gelu(x, approximate='tanh')

def _silu(x):
    return torch.nn.functional.silu(x)

def _sigmoid(x):
    return torch.sigmoid(x)

def _layernorm(x, axis=-1, eps=1e-05):
    m = x.mean(dim=axis, keepdim=True)
    v = x.var(dim=axis, keepdim=True, unbiased=False)
    return (x - m) / torch.sqrt(v + eps)

def _scatter_add(tgt, idx, src, axis=0):
    return tgt.clone().index_add_(axis, idx, src)

def _segment_sum(src, seg, n):
    out = torch.zeros((n,) + src.shape[1:], dtype=src.dtype)
    return out.index_add_(0, seg, src)

def _pad(x, pw):
    flat = tuple((v for pair in reversed(pw) for v in pair))
    return torch.nn.functional.pad(x, flat)
kernel_name = 'interleave_layers__sliding_local_dilated__memory_aug_recurrent_mem_tr__prompt'

def setup_inputs():

    _w = lambda a: (lambda t: t.to(torch.bfloat16) if t.is_floating_point() else t)(torch.as_tensor(a))

    def _A_setup():
        B, S, D = (1, 2048, 512)
        return {'x': _w((lambda *s: torch.randn(*s, dtype=torch.bfloat16) * 0.05)(B, S, D)), 'wqkv': _w((lambda *s: torch.randn(*s, dtype=torch.bfloat16) * 0.05)(D, 3 * D)), 'wo': _w((lambda *s: torch.randn(*s, dtype=torch.bfloat16) * 0.05)(D, D))}
    _A_in = _A_setup()

    def _B_setup():
        B, S, Dm = (1, 2048, 512)
        H, Dh = (32, 128)
        M, seg = (8, 32)
        seg = min(seg, S)
        S = S // seg * seg
        return {'x': _w((lambda *s: torch.randn(*s, dtype=torch.bfloat16) * 0.05)(B, S, Dm)), 'mem0': _w((lambda *s: torch.randn(*s, dtype=torch.bfloat16) * 0.8)(B, M, Dm)), 'Wq': _w((lambda *s: torch.randn(*s, dtype=torch.bfloat16) * 1.6)(Dm, H, Dh) * Dm ** (-0.5)), 'Wk': _w((lambda *s: torch.randn(*s, dtype=torch.bfloat16) * 1.6)(Dm, H, Dh) * Dm ** (-0.5)), 'Wv': _w((lambda *s: torch.randn(*s, dtype=torch.bfloat16) * 0.8)(Dm, H, Dh) * Dm ** (-0.5)), 'Wo': _w((lambda *s: torch.randn(*s, dtype=torch.bfloat16) * 0.8)(H, Dh, Dm) * (H * Dh) ** (-0.5)), 'seg_len': seg}
    _B_in = _B_setup()
    return {'A_x': _A_in['x'], 'A_wqkv': _A_in['wqkv'], 'A_wo': _A_in['wo'], 'B_x': _B_in['x'], 'B_mem0': _B_in['mem0'], 'B_Wq': _B_in['Wq'], 'B_Wk': _B_in['Wk'], 'B_Wv': _B_in['Wv'], 'B_Wo': _B_in['Wo'], 'B_seg_len': _B_in['seg_len']}

def reference(A_x, A_wqkv, A_wo, B_x, B_mem0, B_Wq, B_Wk, B_Wv, B_Wo, B_seg_len):

    def _A_ref(x, wqkv, wo):
        B, S, D = x.shape
        H = 32
        Dh = D // H
        W, dil = (8, 2)
        qkv = (lambda x, *d: x.permute(*d))((x @ wqkv).reshape(B, S, 3, H, Dh), 2, 0, 3, 1, 4)
        q, k, v = (qkv[0], qkv[1], qkv[2])
        scale = Dh ** (-0.5)
        pos = torch.arange(S)
        off = torch.arange(W) * dil
        idx = pos[:, None] - off[None, :]
        mask = idx >= 0
        idx_c = torch.where(mask, idx, 0).reshape(-1)
        kg = k[:, :, idx_c, :].reshape(B, H, S, W, Dh)
        vg = v[:, :, idx_c, :].reshape(B, H, S, W, Dh)
        logits = torch.einsum('bhsd,bhswd->bhsw', q, kg) * scale
        logits = torch.where(mask[None, None, :, :], logits, -1000000000.0)
        attn = _softmax(logits, axis=-1)
        o = torch.einsum('bhsw,bhswd->bhsd', attn, vg)
        return (lambda x, *d: x.permute(*d))(o, 0, 2, 1, 3).reshape(B, S, D) @ wo

    def _B_ref(x, mem0, Wq, Wk, Wv, Wo, seg_len):
        B, S, Dm = x.shape
        H, Dh = (Wq.shape[1], Wq.shape[2])
        M = mem0.shape[1]
        scale = Dh ** (-0.5)
        n_seg = S // seg_len
        L = M + seg_len
        idx = torch.arange(L)
        mask = (idx[:, None] < M) | (idx[:, None] >= idx[None, :])
        mem = mem0
        outs = []
        for s in range(n_seg):
            xs = x[:, s * seg_len:(s + 1) * seg_len, :].clone()
            h = torch.concatenate([mem, xs], axis=1)
            q = torch.einsum('btd,dhe->bhte', h, Wq)
            k = torch.einsum('btd,dhe->bhte', h, Wk)
            v = torch.einsum('btd,dhe->bhte', h, Wv)
            scores = torch.einsum('bhqe,bhke->bhqk', q, k) * scale
            scores = torch.where(mask[None, None], scores, -1000000000.0)
            p = _softmax(scores, axis=-1)
            o = torch.einsum('bhqk,bhke->bhqe', p, v)
            o = torch.einsum('bhte,hed->btd', o, Wo)
            mem = o[:, :M, :].clone()
            outs.append(o[:, M:, :])
        return torch.concatenate(outs, axis=1)
    x = A_x
    x = x + _A_ref(_layernorm(x, axis=-1), A_wqkv, A_wo)
    x = x + _B_ref(_layernorm(x, axis=-1), B_mem0, B_Wq, B_Wk, B_Wv, B_Wo, B_seg_len)
    x = x + _A_ref(_layernorm(x, axis=-1), A_wqkv, A_wo)
    x = x + _B_ref(_layernorm(x, axis=-1), B_mem0, B_Wq, B_Wk, B_Wv, B_Wo, B_seg_len)
    return x
```

```python
from fw import *
from layout import *
SPIN = 1 << 18
sIDX=4; sW=5; sL=6; sS=7; sWS=8; sIN=10; sFL=12; sNEED=14; sISS=15; sSPIN=16; sT=17; sT2=18; sT3=19
sOUT=20; sAX1=22; sAX2=24; sOWN=26; sM0=28; sP=30; sTO=32
def base(k, dst, off_fn, extra=None):
    k(f"s_mul_i32 s{sT2}, s{sL}, {off_fn(1) - off_fn(0)}")
    k(f"s_add_u32 s{sT2}, s{sT2}, {off_fn(0)}")
    if extra:
        k(extra)
        k(f"s_add_u32 s{sT2}, s{sT2}, s{sT}")
    k(f"s_add_u32 s{dst}, s{sWS}, s{sT2}\ns_addc_u32 s{dst+1}, s{sWS+1}, 0")
def adv(k, pair, n):
    k(f"s_add_u32 s{pair}, s{pair}, {n}\ns_addc_u32 s{pair+1}, s{pair+1}, 0")
def timeout_block(k, lab, code):
    k.label(lab)
    k(f"""
    s_load_dwordx2 s[{sP}:{sP+1}], s[0:1], {KA_DBG}
    s_waitcnt lgkmcnt(0)
    s_mov_b64 exec, 1
    v_mov_b32 v2, {128 + 4*code}
    v_mov_b32 v3, s{sS}
    v_add_u32 v3, 0x10000, v3
    global_store_dword v2, v3, s[{sP}:{sP+1}] sc1
    s_waitcnt vmcnt(0)
    s_endpgm
    """)
def poll_block(k, vflg, vtmp, tolab, flagbase=sFL, need=sNEED):
    lab = k.lab('Lp')
    k(f"s_mov_b32 s{sSPIN}, 0")
    k.label(lab)
    k(f"""
    global_load_dword v{vtmp}, v{vflg}, s[{flagbase}:{flagbase+1}] sc1
    s_add_u32 s{sSPIN}, s{sSPIN}, 1
    s_cmp_gt_u32 s{sSPIN}, {SPIN}
    s_cbranch_scc1 {tolab}
    s_waitcnt vmcnt(0)
    v_cmp_gt_u32 vcc, s{need}, v{vtmp}
    s_cbranch_vccnz {lab}
    """)
def publish(k, vzero_lane0, vtmp, val_sgpr):
    sk = k.lab('Lpub')
    k(f"""
    s_cmp_lg_u32 s{sW}, 0
    s_cbranch_scc1 {sk}
    v_mov_b32 v{vtmp}, s{val_sgpr}
    s_mov_b64 exec, 1
    global_store_dword v{vzero_lane0}, v{vtmp}, s[{sOWN}:{sOWN+1}] sc1
    s_mov_b64 exec, -1
    """)
    k.label(sk)

def skeleton(k, name, code, nitems, set_need, issue_dma, item_start, compute, epilogue, vflg, vtmp, vL16, toggle):
    TO = k.lab('Lto' + name); LOOP = k.lab('Lit' + name)
    k(f"s_mov_b32 s{sS}, 0\ns_mov_b32 s{sT3}, 0")
    set_need(k)
    poll_block(k, vflg, vtmp, TO)
    issue_dma(k)
    k("s_waitcnt vmcnt(0)\ns_barrier")
    k.label(LOOP)
    toggle(k)
    k(f"s_add_u32 s{sT3}, s{sS}, 1")
    set_need(k)
    k(f"s_cmp_ge_u32 s{sT3}, {nitems}\ns_cselect_b32 s{sISS}, 1, 0")
    item_start(k)
    k(f"global_load_dword v{vtmp}, v{vflg}, s[{sFL}:{sFL+1}] sc1")
    def hook(n):
        sk = k.lab('Lhk')
        k(f"s_cmp_lg_u32 s{sISS}, 0\ns_cbranch_scc1 {sk}")
        k(f"s_waitcnt vmcnt(0)\nv_cmp_gt_u32 vcc, s{sNEED}, v{vtmp}")
        nr = k.lab('Lnr')
        k(f"s_cbranch_vccnz {nr}")
        issue_dma(k)
        k(f"s_mov_b32 s{sISS}, 1\ns_branch {sk}")
        k.label(nr)
        k(f"global_load_dword v{vtmp}, v{vflg}, s[{sFL}:{sFL+1}] sc1")
        k.label(sk)
    compute(k, hook)
    epilogue(k)
    k("s_waitcnt vmcnt(0)\ns_barrier")
    k(f"s_add_u32 s{sS}, s{sS}, 1")
    publish(k, vL16, vtmp, sS)
    sk = k.lab('Llate')
    k(f"s_cmp_lg_u32 s{sISS}, 0\ns_cbranch_scc1 {sk}")
    poll_block(k, vflg, vtmp, TO)
    issue_dma(k)
    k.label(sk)
    k(f"""
    s_waitcnt vmcnt(0)
    s_barrier
    s_cmp_lt_u32 s{sS}, {nitems}
    s_cbranch_scc1 {LOOP}
    s_endpgm
    """)
    timeout_block(k, TO, code)
```

```python
import re

def v(i, n=1):
    return f"v{i}" if n == 1 else f"v[{i}:{i+n-1}]"
def a(i, n=1):
    return f"a{i}" if n == 1 else f"a[{i}:{i+n-1}]"
def s(i, n=1):
    return f"s{i}" if n == 1 else f"s[{i}:{i+n-1}]"

class Asm:
    def __init__(self):
        self.lines = []
        self.nlab = 0
    def __call__(self, text):
        for l in text.strip('\n').split('\n'):
            l = l.strip()
            if l:
                self.lines.append(l)
    def lab(self, base='L'):
        self.nlab += 1
        return f"{base}_{self.nlab}"
    def label(self, name):
        self.lines.append(name + ":")
    def nop(self, n):
        while n > 0:
            k = min(n, 16)
            self.lines.append(f"s_nop {k-1}")
            n -= k
    def text(self):
        out = []
        for l in self.lines:
            if l.endswith(':') or l.startswith('.') or l.startswith(';'):
                out.append(l)
            else:
                out.append("    " + l)
        return '\n'.join(out) + '\n'

REG = re.compile(r'^(-|abs\()?\s*([vas])(\d+)\)?$')
RNG = re.compile(r'^(-)?([vas])\[(\d+):(\d+)\]$')
def regs(op):
    op = op.strip()
    m = REG.match(op)
    if m: return {(m.group(2), int(m.group(3)))}
    m = RNG.match(op)
    if m: return {(m.group(2), i) for i in range(int(m.group(3)), int(m.group(4)) + 1)}
    if op == 'vcc': return {('s', 'vcc')}
    if op == 'exec': return {('s', 'exec')}
    if op == 'm0': return {('s', 'm0')}
    return set()

def split_ops(rest):
    ops = []; cur = ''; depth = 0
    for ch in rest:
        if ch in '[(': depth += 1
        if ch in '])': depth -= 1
        if ch == ',' and depth == 0:
            ops.append(cur.strip()); cur = ''
        else:
            cur += ch
    if cur.strip(): ops.append(cur.strip())
    mods = ''
    if ops:
        parts = ops[-1].split()
        if len(parts) > 1:
            ops[-1] = parts[0]; mods = ' '.join(parts[1:])
    return ops, mods

TRANS = ('v_exp_f32', 'v_log_f32', 'v_rcp_f32', 'v_rsq_f32', 'v_sqrt_f32', 'v_sin_f32', 'v_cos_f32', 'v_rcp_iflag_f32')
def passes(mn):
    if '32x32x' in mn: return 8
    if '16x16x' in mn: return 4
    if '4x4x' in mn: return 2
    raise ValueError(mn)

class Ins:
    __slots__ = ('text','mn','kind','dst','src','srcC','srcAB','dpp','data','addr','states','mods','wide')
def parse(line):
    line = line.split(';')[0].strip()
    if not line or line.endswith(':') or line.startswith('.'):
        return None
    parts = line.split(None, 1)
    mn = parts[0]; rest = parts[1] if len(parts) > 1 else ''
    ops, mods = split_ops(rest)
    i = Ins(); i.text = line; i.mn = mn; i.mods = mods
    i.dst = set(); i.src = set(); i.srcC = set(); i.srcAB = set(); i.data = set(); i.addr = set()
    i.dpp = ('dpp' in mn) or any(k in mods for k in ('quad_perm', 'row_', 'wave_'))
    i.states = 1; i.wide = False
    R = [regs(o) for o in ops]
    if mn == 's_nop':
        i.kind = 'nop'; i.states = int(ops[0], 0) + 1
    elif mn.startswith('v_mfma'):
        i.kind = 'mfma'; i.dst = R[0]; i.srcAB = R[1] | R[2]; i.srcC = R[3]; i.src = i.srcAB | i.srcC
    elif mn.startswith('v_smfmac'):
        i.kind = 'mfma'; i.dst = R[0]; i.srcAB = R[1] | R[2] | R[3]; i.srcC = R[0]; i.src = i.srcAB | i.srcC
    elif mn.startswith('v_'):
        i.kind = 'valu'
        if mn.startswith('v_cmp'):
            i.dst = R[0]; i.src = set().union(*R[1:])
        elif mn.startswith('v_permlane') and 'swap' in mn:
            i.dst = R[0] | R[1]; i.src = R[0] | R[1]
        elif mn.startswith(('v_add_co', 'v_sub_co', 'v_addc_co', 'v_subb_co', 'v_mad_u64')):
            i.dst = R[0] | R[1]; i.src = set().union(*R[2:])
        elif mn.startswith(('v_fmac', 'v_dot2c', 'v_pk_fmac')):
            i.dst = R[0]; i.src = set().union(*R)
        elif mn == 'v_nop':
            pass
        else:
            i.dst = R[0]; i.src = set().union(*R[1:]) if len(R) > 1 else set()
            if i.dpp: i.src |= R[0]
        if mn.startswith('v_cndmask') and len(ops) == 3: i.src |= {('s', 'vcc')}
    elif mn.startswith('ds_'):
        i.kind = 'ds'
        if mn.startswith('ds_read') or mn.startswith('ds_bpermute') or mn.startswith('ds_swizzle') or mn.startswith('ds_permute'):
            i.dst = R[0]; i.addr = set().union(*R[1:])
        else:
            i.addr = R[0]; i.data = set().union(*R[1:])
        i.src = i.addr | i.data
    elif mn.startswith('global_') or mn.startswith('buffer_'):
        i.kind = 'vmem'
        if mn.startswith('global_load_lds'):
            i.addr = set().union(*R)
        elif mn.startswith('global_load'):
            i.dst = R[0]; i.addr = set().union(*R[1:])
        elif mn.startswith('global_store'):
            i.addr = R[0] | (R[2] if len(R) > 2 else set()); i.data = R[1]
            i.wide = ('x3' in mn or 'x4' in mn)
        elif mn.startswith('global_atomic'):
            if 'sc0' in mods:
                i.dst = R[0]; i.addr = R[1] | (R[3] if len(R) > 3 else set()); i.data = R[2]
            else:
                i.addr = R[0] | (R[2] if len(R) > 2 else set()); i.data = R[1]
        elif mn.startswith('buffer_load'):
            if 'lds' in mods.split():
                i.addr = set().union(*R)
            else:
                i.dst = R[0]; i.addr = set().union(*R[1:])
        elif mn.startswith('buffer_store'):
            i.data = R[0]; i.addr = set().union(*R[1:]); i.wide = ('x3' in mn or 'x4' in mn)
        elif mn.startswith('buffer_'):
            pass
        i.src = i.addr | i.data
    elif mn.startswith('s_'):
        i.kind = 'salu'
        if mn.startswith(('s_cmp', 's_cbranch', 's_branch', 's_waitcnt', 's_barrier', 's_endpgm', 's_sleep', 's_setprio', 's_bitcmp')):
            i.src = set().union(*R) if R else set()
        else:
            i.dst = R[0] if R else set(); i.src = set().union(*R[1:]) if len(R) > 1 else set()
    else:
        raise ValueError("unknown instr: " + line)
    return i

def check(lines, name=''):
    ins = []
    for l in lines:
        p = parse(l)
        if p is not None: ins.append(p)
    errs = []
    N = len(ins)
    LOOK = 24
    for j, c in enumerate(ins):
        dist = 0
        for k in range(j - 1, max(-1, j - LOOK - 1), -1):
            p = ins[k]
            need = 0; why = ''
            vd = {r for r in p.dst if r[0] in 'va'}
            sd = {r for r in p.dst if r[0] == 's'}
            def upd(n, w):
                nonlocal need, why
                if n > need: need, why = n, w
            if p.kind == 'valu':
                if c.kind == 'mfma' and vd & c.src: upd(2, 'VALU->MFMA')
                if c.kind == 'valu' and c.mn.startswith('v_permlane') and vd & c.src: upd(2, 'VALU->permlane')
                if c.kind == 'valu' and c.dpp and vd & c.src: upd(2, 'VALU->DPP')
                if c.mn.startswith(('v_readlane', 'v_readfirstlane')) and vd & c.src: upd(1, 'VALU->readlane')
                if p.mn.startswith(TRANS) and c.kind == 'valu' and not c.mn.startswith(TRANS) and vd & c.src: upd(1, 'trans->VALU')
                if p.mn.startswith(TRANS) and c.kind in ('mfma',) and vd & c.src: upd(2, 'trans->mfma')
                if sd:
                    if c.kind == 'valu' and sd & c.src: upd(2, 'VALU sgpr->VALU const')
                    if c.kind == 'vmem' and sd & c.addr: upd(5, 'VALU sgpr->VMEM')
                    if c.kind == 'salu' and sd & c.src and not c.mn.startswith('s_cbranch'): upd(1, 'VALU sgpr->SALU (pad)')
            if p.kind == 'valu' and p.mn.startswith('v_dot'):
                if vd & (c.src | c.dst):
                    if c.mn == p.mn:
                        ops_c, _ = split_ops(c.text.split(None, 1)[1])
                        ab = regs(ops_c[1]) | regs(ops_c[2])
                        if vd & ab: upd(3, 'DOT->DOT A/B')
                    else: upd(3, 'DOT->other')
            if p.kind == 'mfma':
                ps = passes(p.mn)
                big = {2: 5, 4: 8, 8: 12, 16: 20}[ps]
                ovl = {2: 4, 4: 6, 8: 10, 16: 18}[ps]
                war = {2: 1, 4: 3, 8: 7, 16: 15}[ps]
                if c.kind == 'valu' and vd & (c.src | c.dst): upd(big, 'MFMA->VALU')
                if c.kind in ('ds', 'vmem') and vd & (c.src | c.dst): upd(big, 'MFMA->mem')
                if c.kind == 'mfma':
                    if vd & c.srcAB: upd(big, 'MFMA->MFMA A/B')
                    if vd & c.srcC:
                        if vd == c.srcC and c.mn == p.mn: upd(0 if ps >= 4 else 2, '')
                        else: upd(ovl, 'MFMA->MFMA C overlap')
                    elif vd & c.dst and vd != c.dst: upd(ovl, 'MFMA WAW overlap')
                if c.kind == 'valu' and p.srcC & c.dst: upd(war, 'MFMA srcC WAR')
            if p.kind == 'vmem' and p.wide:
                if p.data & c.dst:
                    upd(2 if c.kind == 'valu' else 1, 'wide store WAR')
            if p.kind == 'salu' and ('s', 'm0') in p.dst and c.kind == 'vmem' and ('lds' in c.mn or 'lds' in c.mods.split()): upd(1, 'M0->LDS DMA')
            if p.kind == 'salu' and ('s', 'exec') in p.dst and c.kind == 'valu' and c.dpp: upd(0, '')
            extra = 0
            if p.kind == 'mfma' and k + 1 <= j and ins[k+1].kind == 'mfma':
                extra = passes(p.mn) - 1
            if need > dist + extra:
                errs.append(f"[{name}] need {need} have {dist} ({why}):\n    P: {p.text}\n    C: {c.text}")
            dist += p.states + extra
            if dist >= 24: break
    return errs
```

```python
S=2048; D=512; NSEG=64; H=32
FLAGS = 0x0
def MB(l):  return 0x10000 + l*0x90000
def PA(l):  return 0x200000 + l*0x100000
def XR(l):  return 0x400000 + l*0x200000
def XNA(l): return 0x800000 + l*0x200000
def OA(l):  return 0xC00000 + l*0x200000
def X1(l):  return 0x1000000 + l*0x200000
def ST1(l): return 0x1400000 + l*0x40000
def KM(l):  return 0x1800000 + l*0x400000
def VM(l):  return 0x2000000 + l*0x400000
def QT(l):  return 0x3000000 + l*0x1000000
def KT(l):  return 0x5000000 + l*0x1000000
def VT(l):  return 0x7000000 + l*0x1000000
def OT(l):  return 0x9000000 + l*0x1000000
def PT(l):  return 0xB000000 + l*0x1000000
WS_END = 0xD000000
KA_X=0; KA_WQKV=8; KA_WOA=16; KA_BX=24; KA_MEM0=32; KA_WQ=40; KA_WK=48; KA_WV=56; KA_WO=64; KA_SEG=72; KA_OUT=80; KA_DBG=88; KA_WS=96
def F_R(l):   return FLAGS + 0x0000 + l*0x100
def F_TA(l):  return FLAGS + 0x0800 + l*0x100
def F_TW(l):  return FLAGS + 0x0A00 + l*0x100
def F_T4(l):  return FLAGS + 0x1000 + l*0x200
def F_T5(l):  return FLAGS + 0x1400 + l*0x100
def F_T6(l):  return FLAGS + 0x1600 + l*0x100
def F_T3(l):  return FLAGS + 0x2000 + l*0x1000
DIAG = 0x8000
```

```python
import sys
from fw import *
from layout import *
import common as C
import roleR, rolesG, rolesA

KD = """.amdhsa_kernel {name}
.amdhsa_next_free_vgpr {vgpr}
.amdhsa_next_free_sgpr 102
.amdhsa_accum_offset {acc}
.amdhsa_group_segment_fixed_size 0
.amdhsa_kernarg_size 104
.amdhsa_user_sgpr_count 2
.amdhsa_user_sgpr_kernarg_segment_ptr 1
.amdhsa_system_sgpr_workgroup_id_x 1
.amdhsa_float_denorm_mode_32 3
.end_amdhsa_kernel"""

def entry(k, name):
    k(f".globl {name}\n.p2align 8\n.type {name},@function")
    k.label(name)

def common_entry(k, END):
    k(f"""
    s_load_dwordx2 s[8:9], s[0:1], {KA_WS}
    v_readfirstlane_b32 s5, v0
    s_nop 1
    s_lshr_b32 s5, s5, 6
    s_waitcnt lgkmcnt(0)
    """)

def ticket(k, key_code, tag):
    k(key_code)
    k(f"""
    s_load_dwordx2 s[46:47], s[0:1], {KA_DBG}
    s_waitcnt lgkmcnt(0)
    s_cmp_lg_u32 s5, 0
    s_cbranch_scc1 L_tk{tag}
    s_mov_b64 exec, 1
    v_mov_b32 v1, s33
    v_lshlrev_b32 v1, 2, v1
    v_mov_b32 v2, 1
    global_atomic_add v3, v1, v2, s[46:47] sc0 sc1
    s_waitcnt vmcnt(0)
    v_mov_b32 v1, 0
    ds_write_b32 v1, v3
    s_waitcnt lgkmcnt(0)
    s_mov_b64 exec, -1
L_tk{tag}:
    s_barrier
    v_mov_b32 v1, 0
    ds_read_b32 v3, v1
    s_waitcnt lgkmcnt(0)
    v_readfirstlane_b32 s4, v3
    s_barrier
    """)

ROLES = ['R', 'T3q', 'T3v', 'TW', 'T5', 'TA', 'T4', 'T6']
def emit_roles(k, use_flags=True, stamp=0):
    errs = []
    def role(label, fn):
        n0 = len(k.lines)
        k.label(label)
        fn()
        errs.extend(check(k.lines[n0:], label))
    def R():
        roleR.emit_R_prologue(k, 6)
        roleR.emit_R_loop(k, True, use_flags, stamp)
    role('ROLE_R', R)
    role('ROLE_T3q', lambda: rolesG.emit_T3(k, False))
    role('ROLE_T3v', lambda: rolesG.emit_T3(k, True))
    role('ROLE_TW', lambda: rolesG.emit_TW(k))
    role('ROLE_T5', lambda: rolesG.emit_T5(k))
    role('ROLE_TA', lambda: rolesA.emit_TA(k))
    role('ROLE_T4', lambda: rolesA.emit_T4(k))
    role('ROLE_T6', lambda: rolesA.emit_T6(k))
    return errs

def build(mode, stamp=0):
    k = Asm()
    kernels = []
    launches = [("k0_kernel", 256, 1024)]
    if mode == 'serial':
        seq = [('TA', 8), ('TW', 2), ('T3', 48), ('R', 256), ('T4', 16), ('T5', 16), ('T6', 4)]
        for l in range(2):
            for r, n in seq:
                launches.append((f"s{r}{l}_kernel", n, 163840))
    else:
        launches.append(("mega_kernel", 256, 163840))
    hdr = [f"; @launch kernel={n} grid=({g},1,1) block=(256,1,1) lds={lds}" for n, g, lds in launches]
    k.lines.extend(hdr)
    k('.amdgcn_target "amdgcn-amd-amdhsa--gfx950"\n.text')
    entry(k, "k0_kernel")
    n0 = len(k.lines)
    rolesA.emit_K0(k)
    errs = check(k.lines[n0:], 'K0')
    kernels.append(("k0_kernel", 64, 64))
    if mode == 'serial':
        for (name, g, lds) in launches[1:]:
            r = name[1:-8]; l = int(name[-8])
            entry(k, name)
            k(f"s_cmp_ge_u32 s2, {g}\ns_cbranch_scc1 L_exit_{name}")
            common_entry(k, None)
            k(f"s_mov_b32 s6, {l}")
            if r == 'R':
                k(f"s_getreg_b32 s33, hwreg(HW_REG_XCC_ID, 0, 4)\ns_cmp_lg_u32 s33, 0\ns_cbranch_scc1 L_exit_{name}")
                ticket(k, "s_mov_b32 s33, 0", name)
                k(f"s_cmp_ge_u32 s4, 32\ns_cbranch_scc1 L_exit_{name}\ns_branch ROLE_R")
            elif r == 'T3':
                k(f"s_mov_b32 s4, s2\ns_cmp_ge_u32 s4, 32\ns_cbranch_scc1 L_v_{name}\ns_branch ROLE_T3q\nL_v_{name}:\ns_branch ROLE_T3v")
            else:
                k(f"s_mov_b32 s4, s2\ns_branch ROLE_{r}")
            k(f"L_exit_{name}:\ns_endpgm")
            kernels.append((name, 512, 256))
    else:
        name = "mega_kernel"
        entry(k, name)
        k(f"s_cmp_ge_u32 s2, 256\ns_cbranch_scc1 L_exit_m")
        common_entry(k, None)
        k("s_getreg_b32 s34, hwreg(HW_REG_XCC_ID, 0, 4)\ns_and_b32 s34, s34, 7")
        ticket(k, "s_mov_b32 s33, s34", 'm')
        k(f"""
        s_cmp_ge_u32 s4, 32
        s_cbranch_scc1 L_exit_m
        s_cmp_ge_u32 s34, 2
        s_cbranch_scc1 L_d1
        s_mov_b32 s6, s34
        s_branch ROLE_R
L_d1:
        s_cmp_ge_u32 s34, 6
        s_cbranch_scc1 L_d2
        s_sub_u32 s6, s34, 2
        s_lshr_b32 s6, s6, 1
        s_and_b32 s33, s34, 1
        s_cmp_lg_u32 s33, 0
        s_cbranch_scc1 L_d1b
        s_branch ROLE_T3q
L_d1b:
        s_cmp_ge_u32 s4, 16
        s_cbranch_scc1 L_d1c
        s_add_u32 s4, s4, 32
        s_branch ROLE_T3v
L_d1c:
        s_sub_u32 s4, s4, 16
        s_branch ROLE_T5
L_d2:
        s_sub_u32 s6, s34, 6
        s_cmp_ge_u32 s4, 16
        s_cbranch_scc1 L_d2b
        s_branch ROLE_T4
L_d2b:
        s_cmp_ge_u32 s4, 24
        s_cbranch_scc1 L_d2c
        s_sub_u32 s4, s4, 16
        s_branch ROLE_TA
L_d2c:
        s_cmp_ge_u32 s4, 26
        s_cbranch_scc1 L_d2d
        s_sub_u32 s4, s4, 24
        s_branch ROLE_TW
L_d2d:
        s_cmp_ge_u32 s4, 30
        s_cbranch_scc1 L_exit_m
        s_sub_u32 s4, s4, 26
        s_branch ROLE_T6
L_exit_m:
        s_endpgm
        """)
        kernels.append((name, 512, 256))
    errs += emit_roles(k, True, stamp)
    k('.section .rodata,"a"')
    for name, vg, acc in kernels:
        k(".p2align 6")
        k(KD.format(name=name, vgpr=vg, acc=acc))
    k(".text")
    return k.text(), errs

if __name__ == '__main__':
    mode = sys.argv[1] if len(sys.argv) > 1 else 'serial'
    txt, errs = build(mode)
    for e in errs: print(e)
    open(f"mega_{mode}.s", "w").write(txt)
    import drv
    asm, co = drv.build(f"mega_{mode}.s", "x", 13)
    from cdna_launch import address_register_problem, parse_launch_list, launch_list_kernel_names
    print("bytes", len(txt))
    print("check:", address_register_problem(co, None, launch_list_kernel_names(parse_launch_list(asm))))
```

```python
from fw import *
from layout import *

WOI=0; MSTG=131072; QKT=139520; KTL=143616; VTL=151808; OX=MSTG
SPIN = 1 << 18

sH=4; sW=5; sS=7
sWS=8
sMBr=10; sMBw=12; sPA=14
sKT=22; sVT0=24; sVT1=26; sKM=28; sVM=30
sFL=32
sMO=34; sMMB=36; sMKM=38
sC=40; sT=41; sT2=42; sT3=43; sSpin=44; sP0=46
sFK=48; sFV=49
sErr=50
sM0K=51; sM0V=52
sFR=54
vL16=0; vMW=1; vMR=2; vQW=3; vKW=4; vQR0=5; vQR1=6; vKR=7; vVR=8; vOW=9; vOR=10; vWO=11
vPAS=12; vPAL=13; vMBS=14; vKMS=15; vVMS=16; vVTG=17; vIDX=18; vBIAS=19
aQ=20; aK=24; aV=28
vM=32; vK=96
WV=128

def wreg(mu, ks, d0=0, n=8):
    if mu == 0: return a(8*ks + d0, n)
    if mu == 1: return a(128 + 8*ks + d0, n)
    return v(WV + 8*ks + d0, n)

def timeout_exit(k, code, lab):
    k.label(lab)
    k(f"""
    s_load_dwordx2 s[{sP0}:{sP0+1}], s[0:1], {KA_DBG}
    s_waitcnt lgkmcnt(0)
    s_mov_b64 exec, 1
    v_mov_b32 v32, {128 + 4*code}
    v_mov_b32 v33, s{sS}
    v_add_u32 v33, 0x10000, v33
    global_store_dword v32, v33, s[{sP0}:{sP0+1}] sc1
    s_waitcnt vmcnt(0)
    s_endpgm
    """)

def emit_R_prologue(k, l_sgpr):
    k(f"""
    v_and_b32 v40, 63, v0          ; l
    v_and_b32 v41, 15, v40         ; i / n
    v_lshrrev_b32 v42, 4, v40      ; g
    v_lshlrev_b32 v{vL16}, 4, v40
    """)
    L, I, G = 40, 41, 42
    T1, T2, T3 = 43, 44, 45
    for par in (0, 1):
        k(f"""
        v_add_u32 v{T1}, {4*par}, v{G}
        v_lshlrev_b32 v{T1}, 1, v{T1}
        v_xor_b32 v{T1}, v{T1}, v{I}
        v_lshlrev_b32 v{T1}, 4, v{T1}
        v_lshlrev_b32 v{T2}, 13, v{G}
        v_add_u32 v{46+par}, v{T1}, v{T2}
        """)
    k(f"""
    v_lshrrev_b32 v{T1}, 2, v{I}
    v_lshl_add_u32 v{T1}, v{G}, 2, v{T1}      ; row_l = 4g + i/4   (0..15)
    v_and_b32 v{T2}, 7, v{T1}
    v_lshlrev_b32 v{T2}, 1, v{T2}             ; swz
    v_and_b32 v{T3}, 3, v{I}
    v_lshrrev_b32 v{T3}, 1, v{T3}             ; (i%4)/2
    s_lshl_b32 s{sT}, s{sW}, 2
    v_add_u32 v{T3}, s{sT}, v{T3}             ; c(b=0)
    """)
    for b in (0, 1):
        k(f"""
        v_add_u32 v48, {2*b}, v{T3}
        v_xor_b32 v48, v48, v{T2}
        v_lshlrev_b32 v48, 4, v48
        v_lshl_add_u32 v48, v{T1}, 8, v48
        v_and_b32 v49, 1, v{I}
        v_lshl_add_u32 v{50+b}, v49, 3, v48
        v_add_u32 v{52+b}, 0x10000, v{50+b}
        """)
    for mu, ka in ((0, KA_WQ), (1, KA_WK), (2, KA_WV)):
        k(f"s_load_dwordx2 s[{sP0}:{sP0+1}], s[0:1], {ka}")
        k(f"""
        s_lshl_b32 s{sT}, s{sH}, 8           ; h*256
        s_lshl_b32 s{sT2}, s{sW}, 20         ; w*128 rows*8192
        s_add_u32 s{sT}, s{sT}, s{sT2}
        s_lshl_b32 s{sT3}, s{sW}, 15
        s_waitcnt lgkmcnt(0)
        s_add_u32 s{sP0}, s{sP0}, s{sT}
        s_addc_u32 s{sP0+1}, s{sP0+1}, 0
        """)
        for u in range(32):
            k(f"s_mov_b32 m0, s{sT3}")
            k(f"s_add_u32 s{sT3}, s{sT3}, 1024")
            k(f"global_load_lds_dwordx4 v{46 + (u % 2)}, s[{sP0}:{sP0+1}]")
            k(f"s_add_u32 s{sP0}, s{sP0}, 32768\ns_addc_u32 s{sP0+1}, s{sP0+1}, 0")
        k("s_waitcnt vmcnt(0)\ns_barrier")
        for ks in range(16):
            for kh in (0, 1):
                for b in (0, 1):
                    base = (50 if ks < 8 else 52) + b
                    off = (ks % 8) * 8192 + kh * 4096
                    t = 56 + 2 * (2 * kh + b)
                    k(f"ds_read_b64_tr_b16 {v(t,2)}, v{base} offset:{off}")
            k("s_waitcnt lgkmcnt(0)")
            for kh in (0, 1):
                for b in (0, 1):
                    t = 56 + 2 * (2 * kh + b)
                    for j in (0, 1):
                        d = 4 * kh + b + 2 * j
                        dst = wreg(mu, ks, d, 1)
                        if mu < 2: k(f"v_accvgpr_write_b32 {dst}, v{t+j}")
                        else: k(f"v_mov_b32 {dst}, v{t+j}")
        k("s_barrier")
    STG = 131072
    k(f"""
    v_lshrrev_b32 v{T1}, 2, v{I}
    v_lshl_add_u32 v{T1}, v{G}, 2, v{T1}      ; row_l = 4g + i/4
    v_and_b32 v{T2}, 7, v{T1}
    v_lshlrev_b32 v{T2}, 1, v{T2}             ; swz
    v_and_b32 v{T3}, 3, v{I}
    v_lshrrev_b32 v{T3}, 1, v{T3}
    s_lshl_b32 s{sT}, s{sW}, 4
    v_add_u32 v{T3}, s{sT}, v{T3}             ; c0 = 16w + (i%4)/2
    v_lshlrev_b32 v54, 10, v{T1}              ; row*1024
    v_and_b32 v49, 1, v{I}
    v_lshl_add_u32 v54, v49, 3, v54
    v_add_u32 v54, {STG}, v54
    s_lshl_b32 s{sT}, s{sW}, 15
    v_add_u32 v55, s{sT}, v{vL16}
    """)
    for ks in range(4):
        k(f"s_load_dwordx2 s[{sP0}:{sP0+1}], s[0:1], {KA_WO}")
        k(f"""
        s_lshl_b32 s{sT}, s{sH}, 17          ; h*128*1024
        s_lshl_b32 s{sT2}, s{sW}, 13         ; w*8 rows*1024
        s_add_u32 s{sT}, s{sT}, s{sT2}
        s_add_u32 s{sT}, s{sT}, {ks*32*1024}
        s_add_u32 s{sT3}, s{sT2}, {STG}
        s_waitcnt lgkmcnt(0)
        s_add_u32 s{sP0}, s{sP0}, s{sT}
        s_addc_u32 s{sP0+1}, s{sP0+1}, 0
        """)
        for u in range(8):
            k(f"v_xor_b32 v56, {u << 1}, v{L}")
            k(f"v_lshlrev_b32 v56, 4, v56")
            k(f"s_mov_b32 m0, s{sT3}")
            k(f"s_add_u32 s{sT3}, s{sT3}, 1024")
            k(f"global_load_lds_dwordx4 v56, s[{sP0}:{sP0+1}]")
            k(f"s_add_u32 s{sP0}, s{sP0}, 1024\ns_addc_u32 s{sP0+1}, s{sP0+1}, 0")
        k("s_waitcnt vmcnt(0)\ns_barrier")
        for cb in range(4):
            for kh in (0, 1):
                for b in (0, 1):
                    t = 56 + 2 * (2 * kh + b)
                    k(f"v_add_u32 v72, {4*cb + 2*b}, v{T3}")
                    k(f"v_xor_b32 v72, v72, v{T2}")
                    k(f"v_lshl_add_u32 v72, v72, 4, v54")
                    k(f"ds_read_b64_tr_b16 {v(t,2)}, v72 offset:{kh*16*1024}")
            k("s_waitcnt lgkmcnt(0)")
            for kh in (0, 1):
                for b in (0, 1):
                    t = 56 + 2 * (2 * kh + b)
                    for j in (0, 1):
                        d = 4 * kh + b + 2 * j
                        k(f"v_mov_b32 v{64+d}, v{t+j}")
            for half in (0, 1):
                k(f"ds_write_b128 v55, {v(64+4*half,4)} offset:{(cb*4+ks)*2048 + half*1024}")
            k("s_waitcnt lgkmcnt(0)")
        k("s_barrier")
    k(f"""
    v_and_b32 v{T1}, 7, v{I}                  ; i%8
    v_lshrrev_b32 v{T2}, 1, v{G}              ; g/2
    v_and_b32 v{T3}, 1, v{G}                  ; g%2
    s_mul_i32 s{sT}, s{sW}, 2112
    s_add_u32 s{sT}, s{sT}, {MSTG}
    v_add_u32 v{vMW}, s{sT}, v{vL16}
    ; vMR = MSTG + (i%8)*1056 + g*16
    v_mul_u32_u24 v48, 1056, v{T1}
    v_lshl_add_u32 v48, v{G}, 4, v48
    v_add_u32 v{vMR}, {MSTG}, v48
    ; vOR = OX + (i%8)*288 + g*16
    v_mul_u32_u24 v48, 288, v{T1}
    v_lshl_add_u32 v48, v{G}, 4, v48
    v_add_u32 v{vOR}, {OX}, v48
    v_mul_u32_u24 v48, 288, v{T1}
    v_lshl_add_u32 v48, v{G}, 3, v48
    s_lshl_b32 s{sT}, s{sW}, 6
    s_add_u32 s{sT}, s{sT}, {OX}
    v_add_u32 v{vOW}, s{sT}, v48
    ; f = 32w + 16*(g/2) + n
    s_lshl_b32 s{sT}, s{sW}, 5
    v_lshl_add_u32 v48, v{T2}, 4, v{I}
    v_add_u32 v48, s{sT}, v48                 ; f
    ; vQW = QKT + f*32 + ((g%2 + n/4)%4)*8
    v_lshrrev_b32 v49, 2, v{I}
    v_add_u32 v49, v49, v{T3}
    v_and_b32 v49, 3, v49
    v_lshlrev_b32 v49, 3, v49
    v_lshl_add_u32 v49, v48, 5, v49
    v_add_u32 v{vQW}, {QKT}, v49
    v_xor_b32 v{vKW}, 16, v{vQW}
    ; vVMS = f*16 + (g%2)*8
    v_lshlrev_b32 v49, 3, v{T3}
    v_lshl_add_u32 v{vVMS}, v48, 4, v49
    """)
    for hf, dst in ((0, vQR0), (1, vQR1)):
        k(f"""
        v_lshrrev_b32 v48, 2, v{I}
        v_lshl_add_u32 v48, v{G}, 3, v48
        v_add_u32 v48, {4*hf}, v48              ; 8g + 4hf + i/4
        v_and_b32 v49, 3, v{I}
        v_lshl_add_u32 v49, v{G}, 1, v49
        v_add_u32 v49, {hf}, v49
        v_and_b32 v49, 3, v49
        v_lshlrev_b32 v49, 3, v49
        v_lshl_add_u32 v49, v48, 5, v49
        v_add_u32 v{dst}, {QKT}, v49
        """)
    k(f"""
    v_lshlrev_b32 v48, 9, v{G}
    v_lshl_add_u32 v48, v{I}, 4, v48
    v_add_u32 v{vKR}, {KTL}, v48
    s_lshl_b32 s{sT}, s{sW}, 11
    s_add_u32 s{sT}, s{sT}, {VTL}
    v_add_u32 v{vVR}, s{sT}, v48
    ; vWO = w*32768 + l*16
    s_lshl_b32 s{sT}, s{sW}, 15
    v_add_u32 v{vWO}, s{sT}, v{vL16}
    ; vPAS = w*131072 + h*4096 + (g/2)*512 + (g%2)*256 + n*16   == w*131072 + h*4096 + g-part
    v_lshlrev_b32 v48, 9, v{T2}
    v_lshl_add_u32 v48, v{T3}, 8, v48
    v_lshl_add_u32 v48, v{I}, 4, v48
    s_lshl_b32 s{sT}, s{sW}, 17
    s_lshl_b32 s{sT2}, s{sH}, 12
    s_add_u32 s{sT}, s{sT}, s{sT2}
    v_add_u32 v{vPAS}, s{sT}, v48
    ; vPAL = (j/8)*131072 + hq*4096 + ((j%8)/2)*1024 + (j%2)*512 + rh*256 + (8ch+q8)*16
    s_lshr_b32 s{sT}, s{sH}, 3
    s_lshl_b32 s{sT}, s{sT}, 17
    s_and_b32 s{sT2}, s{sH}, 7
    s_lshl_b32 s{sT2}, s{sT2}, 9               ; cb*1024 + jlo*512 == (j%8)*512
    s_add_u32 s{sT}, s{sT}, s{sT2}
    s_and_b32 s{sT2}, s{sW}, 1
    s_lshl_b32 s{sT2}, s{sT2}, 8               ; rh*256
    s_add_u32 s{sT}, s{sT}, s{sT2}
    s_lshr_b32 s{sT2}, s{sW}, 1
    s_lshl_b32 s{sT2}, s{sT2}, 7               ; ch*128
    s_add_u32 s{sT}, s{sT}, s{sT2}
    v_lshrrev_b32 v48, 3, v{L}                 ; hq
    v_lshlrev_b32 v48, 12, v48
    v_and_b32 v49, 7, v{L}                     ; q8
    v_lshl_add_u32 v48, v49, 4, v48
    v_add_u32 v{vPAL}, s{sT}, v48
    s_and_b32 s{sT2}, s{sW}, 1
    s_lshl_b32 s{sT2}, s{sT2}, 12
    s_lshl_b32 s{sT}, s{sH}, 5
    s_add_u32 s{sT}, s{sT}, s{sT2}
    s_lshr_b32 s{sT2}, s{sW}, 1
    s_lshl_b32 s{sT2}, s{sT2}, 4
    s_add_u32 s{sT}, s{sT}, s{sT2}
    v_lshlrev_b32 v48, 10, v{G}
    v_lshl_add_u32 v48, v49, 1, v48
    v_add_u32 v{vMBS}, s{sT}, v48
    ; vKMS = ((4w + g)*8 + (n-8))*16
    s_lshl_b32 s{sT}, s{sW}, 9
    v_lshlrev_b32 v48, 7, v{G}
    v_lshl_add_u32 v48, v{T1}, 4, v48
    v_add_u32 v{vKMS}, s{sT}, v48
    ; vVTG = (l/32)*2048 + (l%32)*16
    v_lshrrev_b32 v48, 5, v{L}
    v_lshlrev_b32 v48, 11, v48
    v_and_b32 v49, 31, v{L}
    v_lshl_add_u32 v{vVTG}, v49, 4, v48
    v_mov_b32 v{vIDX}, 0x44444444
    v_mov_b32 v48, 0xeeeeeeee
    v_cmp_lt_u32 vcc, 7, v{I}
    s_nop 1
    v_cndmask_b32 v{vIDX}, v{vIDX}, v48, vcc
    v_mov_b32 v{vBIAS}, 0
    v_mov_b32 v48, 0xff800000
    v_cmp_gt_u32 vcc, 2, v{G}
    s_nop 1
    v_cndmask_b32 v{vBIAS}, v{vBIAS}, v48, vcc
    """)
    def base(dst, off_fn, extra_code):
        k(f"s_mul_i32 s{sT2}, s{l_sgpr}, {off_fn(1) - off_fn(0)}")
        k(f"s_add_u32 s{sT2}, s{sT2}, {off_fn(0)}")
        k(extra_code)
        k(f"s_add_u32 s{sT2}, s{sT2}, s{sT}")
        k(f"s_add_u32 s{dst}, s{sWS}, s{sT2}\ns_addc_u32 s{dst+1}, s{sWS+1}, 0")
    base(sMBr, MB, f"s_lshl_b32 s{sT}, s{sW}, 11")
    base(sMBw, MB, f"s_mov_b32 s{sT}, 8192")
    for i in range(4):
        base(sPA + 2*i, PA, f"s_mov_b32 s{sT}, {i*32768}")
    base(sKT, KT, f"s_lshl_b32 s{sT}, s{sH}, 13\ns_lshl_b32 s{sT3}, s{sW}, 11\ns_add_u32 s{sT}, s{sT}, s{sT3}")
    base(sVT0, VT, f"s_lshl_b32 s{sT}, s{sH}, 13\ns_lshl_b32 s{sT3}, s{sW}, 9\ns_add_u32 s{sT}, s{sT}, s{sT3}")
    k(f"s_add_u32 s{sVT1}, s{sVT0}, 4096\ns_addc_u32 s{sVT1+1}, s{sVT0+1}, 0")
    base(sKM, KM, f"s_lshl_b32 s{sT}, s{sH}, 11")
    base(sVM, VM, f"s_lshl_b32 s{sT}, s{sH}, 11")
    k(f"""
    s_mov_b32 s{sFL}, s{sWS}
    s_mov_b32 s{sFL+1}, s{sWS+1}
    s_mul_i32 s{sT}, s{l_sgpr}, {F_T3(1)-F_T3(0)}
    s_add_u32 s{sT}, s{sT}, {F_T3(0)}
    s_lshr_b32 s{sT2}, s{sH}, 1
    s_lshl_b32 s{sT2}, s{sT2}, 2
    s_add_u32 s{sT}, s{sT}, s{sT2}
    s_add_u32 s{sFK}, s{sT}, {16*4}
    s_add_u32 s{sFV}, s{sT}, {32*4}
    s_mul_i32 s{sT}, s{l_sgpr}, {F_R(1)-F_R(0)}
    s_add_u32 s{sT}, s{sT}, {F_R(0)}
    s_lshl_b32 s{sT2}, s{sH}, 2
    s_add_u32 s{sT}, s{sT}, s{sT2}
    s_add_u32 s{sFR}, s{sWS}, s{sT}
    s_addc_u32 s{sFR+1}, s{sWS+1}, 0
    s_mov_b32 s{sMO}, 0x00ff00ff
    s_mov_b32 s{sMO+1}, 0x00ff00ff
    s_mov_b32 s{sMMB}, 0x00550055
    s_mov_b32 s{sMMB+1}, 0x00550055
    s_mov_b32 s{sMKM}, 0xff00ff00
    s_mov_b32 s{sMKM+1}, 0xff00ff00
    s_mov_b32 s{sC}, 0x3e0293ee                ; 128^-0.5 * log2(e)
    s_lshl_b32 s{sM0K}, s{sW}, 11
    s_add_u32 s{sM0V}, s{sM0K}, {VTL}
    s_add_u32 s{sM0K}, s{sM0K}, {KTL}
    s_mov_b32 s{sS}, 0
    """)

def wait_flag(k, off_sgpr, need_sgpr, tolab):
    lab = k.lab('Lfw')
    k(f"s_mov_b32 s{sSpin}, 0")
    k.label(lab)
    k(f"""
    v_mov_b32 v49, s{off_sgpr}
    global_load_dword v48, v49, s[{sFL}:{sFL+1}] sc1
    s_add_u32 s{sSpin}, s{sSpin}, 1
    s_cmp_gt_u32 s{sSpin}, {SPIN}
    s_cbranch_scc1 {tolab}
    s_waitcnt vmcnt(0)
    v_cmp_gt_u32 vcc, s{need_sgpr}, v48
    s_cbranch_vccnz {lab}
    """)

NST = 12
OPT = dict(nokm=False, nodma=False, kmflag='sc1')
def emit_R_loop(k, fast, use_flags, stamp=False):
    st = "" if fast else "sc1"
    def ST(i):
        if stamp == 2:
            k(f"s_memtime s[62:63]\ns_waitcnt lgkmcnt(0)\ns_sub_u32 s65, s62, s64\ns_mov_b32 s64, s62\ns_add_u32 s{70+i}, s{70+i}, s65")
    TO = k.lab('Lto'); LOOP = k.lab('Lstep'); DONE = k.lab('Ldone')
    if use_flags:
        k(f"s_mov_b32 s{sT}, 1")
        wait_flag(k, sFK, sT, TO)
    k(f"""
    s_mov_b32 m0, s{sM0K}
    s_nop 0
    global_load_lds_dwordx4 v{vL16}, s[{sKT}:{sKT+1}] sc1
    global_load_lds_dwordx4 v{vL16}, s[{sKT}:{sKT+1}] offset:1024 sc1
    s_add_u32 s{sKT}, s{sKT}, 262144
    s_addc_u32 s{sKT+1}, s{sKT+1}, 0
    s_waitcnt vmcnt(0)
    s_barrier
    """)
    for r in range(aQ, aQ + 12): k(f"v_mov_b32 v{r}, 0")
    if stamp:
        k("s_memtime s[60:61]\ns_waitcnt lgkmcnt(0)\ns_mov_b32 s64, s60")
        for i in range(NST): k(f"s_mov_b32 s{70+i}, 0")
    k.label(LOOP)
    for t in range(2):
        for ks in range(4):
            k(f"ds_read_b128 {v(vK + (t*4+ks)*4, 4)}, v{vKR} offset:{ks*2048 + t*256}")
    PB = k.lab('LpollB')
    k(f"s_mov_b32 s{sSpin}, 0")
    k.label(PB)
    k(f"""
    global_load_dwordx4 {v(vM,4)}, v{vL16}, s[{sMBr}:{sMBr+1}] sc1
    global_load_dwordx4 {v(vM+4,4)}, v{vL16}, s[{sMBr}:{sMBr+1}] offset:1024 sc1
    s_add_u32 s{sSpin}, s{sSpin}, 1
    s_cmp_gt_u32 s{sSpin}, {SPIN}
    s_cbranch_scc1 {TO}
    s_waitcnt vmcnt(0)
    v_max3_u32 v{vM+8}, v{vM}, v{vM+1}, v{vM+2}
    v_max3_u32 v{vM+9}, v{vM+3}, v{vM+4}, v{vM+5}
    v_max3_u32 v{vM+8}, v{vM+8}, v{vM+6}, v{vM+7}
    v_max_u32 v{vM+8}, v{vM+8}, v{vM+9}
    v_cmp_eq_u32 vcc, -1, v{vM+8}
    s_cbranch_vccnz {PB}
    ds_write_b128 v{vMW}, {v(vM,4)}
    ds_write_b128 v{vMW}, {v(vM+4,4)} offset:1056
    """)
    ST(0)
    if use_flags:
        k(f"s_add_u32 s{sT}, s{sS}, 1")
        wait_flag(k, sFV, sT, TO)
        k(f"s_add_u32 s{sT}, s{sS}, 2\ns_min_u32 s{sT}, s{sT}, {NSEG}")
        wait_flag(k, sFK, sT, TO)
    k(f"""
    s_waitcnt lgkmcnt(0)
    s_barrier
    """)
    ST(1)
    def mread(ks): k(f"ds_read_b128 {v(vM+4*ks,4)}, v{vMR} offset:{ks*64}")
    def smf(acc, ks, mu): k(f"v_smfmac_f32_16x16x64_bf16 {v(acc,4)}, {v(vM+4*ks,4)}, {wreg(mu,ks)}, v{vIDX}")
    for ks in range(8): mread(ks)
    side = []
    if use_flags:
        skf = k.lab('Lskf')
        k(f"s_cmp_lg_u32 s{sW}, 0\ns_cbranch_scc1 {skf}\nv_mov_b32 v95, s{sS}\ns_mov_b64 exec, 1\nglobal_store_dword v{vL16}, v95, s[{sFR}:{sFR+1}] sc1\ns_mov_b64 exec, -1\n{skf}:")
    skipk = k.lab('Lskipk')
    side.append(f"s_cmp_ge_u32 s{sS}, {NSEG-1}\ns_cbranch_scc1 {skipk}\ns_mov_b32 m0, s{sM0K}\ns_nop 0\n"
                f"global_load_lds_dwordx4 v{vL16}, s[{sKT}:{sKT+1}] sc1\nglobal_load_lds_dwordx4 v{vL16}, s[{sKT}:{sKT+1}] offset:1024 sc1\n{skipk}:\n"
                f"s_add_u32 s{sKT}, s{sKT}, 262144\ns_addc_u32 s{sKT+1}, s{sKT+1}, 0")
    side.append(f"s_mov_b32 m0, s{sM0V}\ns_nop 0\nglobal_load_lds_dwordx4 v{vVTG}, s[{sVT0}:{sVT0+1}] sc1\n"
                f"s_add_u32 s{sT}, s{sM0V}, 1024\ns_mov_b32 m0, s{sT}\ns_nop 0\nglobal_load_lds_dwordx4 v{vVTG}, s[{sVT1}:{sVT1+1}] sc1")
    side.append(f"s_add_u32 s{sVT0}, s{sVT0}, 262144\ns_addc_u32 s{sVT0+1}, s{sVT0+1}, 0\ns_add_u32 s{sVT1}, s{sVT1}, 262144\ns_addc_u32 s{sVT1+1}, s{sVT1+1}, 0")
    if OPT['nodma']: side = []
    for ks in range(16):
        k(f"s_waitcnt lgkmcnt({min(7, 15-ks)})")
        smf(aQ, ks, 0)
        if ks + 8 < 16: mread(ks + 8)
        smf(aK, ks, 1)
        if ks >= 1 and side: k(side.pop(0))
    assert not side
    ST(2)
    smf(aV, 0, 2); smf(aV, 1, 2)
    k.nop(5)
    k(f"""
    v_cvt_pk_bf16_f32 v{aQ}, v{aQ}, v{aQ+1}
    v_cvt_pk_bf16_f32 v{aQ+1}, v{aQ+2}, v{aQ+3}
    v_cvt_pk_bf16_f32 v{aK}, v{aK}, v{aK+1}
    v_cvt_pk_bf16_f32 v{aK+1}, v{aK+2}, v{aK+3}
    ds_write_b64 v{vQW}, {v(aQ,2)}
    ds_write_b64 v{vKW}, {v(aK,2)}
    """)
    for ks in (2, 3, 4, 5): smf(aV, ks, 2)
    k("s_waitcnt lgkmcnt(0)\ns_barrier")
    ST(3)
    QK = vM
    for ks in range(4):
        k(f"ds_read_b64_tr_b16 {v(QK+4*ks,2)}, v{vQR0} offset:{ks*1024}")
        k(f"ds_read_b64_tr_b16 {v(QK+4*ks+2,2)}, v{vQR1} offset:{ks*1024}")
    for ks in (6, 7, 8, 9): smf(aV, ks, 2)
    SM = vM + 16; S0 = vM + 20; S1 = vM + 24
    for ks in range(4):
        k(f"s_waitcnt lgkmcnt({6 - 2*ks})")
        c = lambda r: ("0" if ks == 0 else v(r, 4))
        q = v(QK + 4*ks, 4)
        k(f"v_mfma_f32_16x16x32_bf16 {v(S0,4)}, {v(vK + ks*4,4)}, {q}, {c(S0)}")
        k(f"v_mfma_f32_16x16x32_bf16 {v(S1,4)}, {v(vK + 16 + ks*4,4)}, {q}, {c(S1)}")
        k(f"v_mfma_f32_16x16x32_bf16 {v(SM,4)}, {q}, {q}, {c(SM)}")
    ST(4)
    kml = [k.lab('Lkm') for _ in range(4)]; kme = k.lab('Lkme')
    k(f"s_mov_b64 exec, s[{sMKM}:{sMKM+1}]")
    for ww in range(4):
        if ww < 3:
            k(f"s_cmp_lg_u32 s{sW}, {ww}\ns_cbranch_scc1 {kml[ww]}")
        if not OPT['nokm']: k(f"global_store_dwordx4 v{vKMS}, {v(QK+4*ww,4)}, s[{sKM}:{sKM+1}] {OPT['kmflag']}")
        if ww < 3:
            k(f"s_branch {kme}")
            k.label(kml[ww])
    k.label(kme)
    k("s_mov_b64 exec, -1")
    smf(aV, 10, 2); smf(aV, 11, 2)
    def woread(slot_reg, cb, ks):
        for half in (0, 1):
            k(f"ds_read_b128 {v(slot_reg+4*half,4)}, v{vWO} offset:{(cb*4+ks)*2048 + half*1024}")
    wo_ops = [(cb, ks) for ks in range(4) for cb in range(4)]
    slots = [vK, vK+8, vK+16, vK+24, vM+32, vM+40, vM+48, vM+56]
    for n in range(2): woread(slots[n], *wo_ops[n])
    MX = vM + 28; TMP = vM + 29; NM = vM + 30; NMM = vM + 31
    k.nop(2)
    k(f"""
    v_max3_f32 v{MX}, v{S0}, v{S0+1}, v{S0+2}
    v_max3_f32 v{TMP}, v{SM}, v{SM+1}, v{SM+2}
    v_max3_f32 v{MX}, v{MX}, v{S0+3}, v{S1}
    v_max_f32 v{TMP}, v{TMP}, v{SM+3}
    v_max3_f32 v{MX}, v{MX}, v{S1+1}, v{S1+2}
    v_add_f32 v{TMP}, v{TMP}, v{vBIAS}
    v_max3_f32 v{MX}, v{MX}, v{S1+3}, v{TMP}
    """)
    smf(aV, 12, 2)
    k(f"""
    v_mov_b32 v{TMP}, v{MX}
    s_nop 1
    v_permlane32_swap_b32 v{MX}, v{TMP}
    v_max_f32 v{MX}, v{MX}, v{TMP}
    """)
    woread(slots[2], *wo_ops[2])
    k(f"""
    v_mov_b32 v{TMP}, v{MX}
    s_nop 1
    v_permlane16_swap_b32 v{MX}, v{TMP}
    v_max_f32 v{MX}, v{MX}, v{TMP}
    v_mul_f32 v{NM}, s{sC}, v{MX}
    v_sub_f32 v{NM}, 0, v{NM}
    v_add_f32 v{NMM}, v{NM}, v{vBIAS}
    """)
    smf(aV, 13, 2)
    for r in range(4): k(f"v_fma_f32 v{S0+r}, v{S0+r}, s{sC}, v{NM}")
    for r in range(4): k(f"v_exp_f32 v{S0+r}, v{S0+r}")
    smf(aV, 14, 2)
    for r in range(4): k(f"v_fma_f32 v{S1+r}, v{S1+r}, s{sC}, v{NM}")
    woread(slots[3], *wo_ops[3])
    for r in range(4): k(f"v_exp_f32 v{S1+r}, v{S1+r}")
    smf(aV, 15, 2)
    for r in range(4): k(f"v_fma_f32 v{SM+r}, v{SM+r}, s{sC}, v{NMM}")
    k("s_waitcnt vmcnt(%d)" % (0 if OPT['nokm'] else 1))
    for ft in range(2):
        k(f"ds_read_b128 {v(aQ+4*ft,4)}, v{vVR} offset:{ft*256}")
    for r in range(4): k(f"v_exp_f32 v{SM+r}, v{SM+r}")
    P = vM; Z = vM + 6; O0 = vM + 8; O1 = vM + 12
    k(f"""
    v_cvt_pk_bf16_f32 v{P}, v{S0}, v{S0+1}
    v_cvt_pk_bf16_f32 v{P+1}, v{S0+2}, v{S0+3}
    v_cvt_pk_bf16_f32 v{P+2}, v{S1}, v{S1+1}
    v_cvt_pk_bf16_f32 v{P+3}, v{S1+2}, v{S1+3}
    v_cvt_pk_bf16_f32 v{P+4}, v{SM}, v{SM+1}
    v_cvt_pk_bf16_f32 v{P+5}, v{SM+2}, v{SM+3}
    v_mov_b32 v{Z}, 0
    v_mov_b32 v{Z+1}, 0
    v_cvt_pk_bf16_f32 v{aV}, v{aV}, v{aV+1}
    v_cvt_pk_bf16_f32 v{aV+1}, v{aV+2}, v{aV+3}
    """)
    k("s_waitcnt lgkmcnt(0)")
    ST(5)
    k(f"""
    v_mfma_f32_16x16x32_bf16 {v(O1,4)}, {v(aQ+4,4)}, {v(P,4)}, 0
    v_mfma_f32_16x16x32_bf16 {v(O0,4)}, {v(aQ,4)}, {v(P,4)}, 0
    v_mfma_f32_16x16x16_bf16 {v(O1,4)}, {v(aV,2)}, {v(P+4,2)}, {v(O1,4)}
    v_permlane32_swap_b32 v{P+4}, v{Z}
    v_permlane32_swap_b32 v{P+5}, v{Z+1}
    """)
    woread(slots[4], *wo_ops[4])
    k(f"v_mfma_f32_16x16x16_bf16 {v(O0,4)}, {v(aV,2)}, {v(Z,2)}, {v(O0,4)}")
    Lr = MX
    k(f"""
    v_add_f32 v{S0}, v{S0}, v{S0+1}
    v_add_f32 v{S0+2}, v{S0+2}, v{S0+3}
    v_add_f32 v{S1}, v{S1}, v{S1+1}
    v_add_f32 v{S1+2}, v{S1+2}, v{S1+3}
    v_add_f32 v{SM}, v{SM}, v{SM+1}
    v_add_f32 v{SM+2}, v{SM+2}, v{SM+3}
    v_add_f32 v{S0}, v{S0}, v{S0+2}
    v_add_f32 v{S1}, v{S1}, v{S1+2}
    v_add_f32 v{SM}, v{SM}, v{SM+2}
    v_add_f32 v{S0}, v{S0}, v{S1}
    v_add_f32 v{Lr}, v{S0}, v{SM}
    """)
    if not OPT['nokm']: k(f"global_store_dwordx2 v{vVMS}, {v(aV,2)}, s[{sVM}:{sVM+1}] {OPT['kmflag']}")
    k(f"""
    v_mov_b32 v{TMP}, v{Lr}
    s_nop 1
    v_permlane32_swap_b32 v{Lr}, v{TMP}
    v_add_f32 v{Lr}, v{Lr}, v{TMP}
    v_mov_b32 v{TMP}, v{Lr}
    s_nop 1
    v_permlane16_swap_b32 v{Lr}, v{TMP}
    v_add_f32 v{Lr}, v{Lr}, v{TMP}
    v_rcp_f32 v{Lr}, v{Lr}
    """)
    woread(slots[5], *wo_ops[5])
    for r in range(8): k(f"v_mul_f32 v{O0+r}, v{O0+r}, v{Lr}")
    k(f"""
    v_cvt_pk_bf16_f32 v{O0}, v{O0}, v{O0+1}
    v_cvt_pk_bf16_f32 v{O0+1}, v{O0+2}, v{O0+3}
    v_cvt_pk_bf16_f32 v{O1}, v{O1}, v{O1+1}
    v_cvt_pk_bf16_f32 v{O1+1}, v{O1+2}, v{O1+3}
    s_mov_b64 exec, s[{sMO}:{sMO+1}]
    ds_write_b64 v{vOW}, {v(O0,2)}
    ds_write_b64 v{vOW}, {v(O1,2)} offset:32
    s_mov_b64 exec, -1
    """)
    ACC = vM
    for r in range(8): k(f"v_mov_b32 v{ACC+r}, 0")
    k("s_waitcnt lgkmcnt(0)\ns_barrier")
    ST(6)
    OO = vM + 16
    for ks in range(4): k(f"ds_read_b128 {v(OO+4*ks,4)}, v{vOR} offset:{ks*64}")
    woread(slots[6], *wo_ops[6]); woread(slots[7], *wo_ops[7])
    for r in range(8, 16): k(f"v_mov_b32 v{ACC+r}, 0")
    issued = ['o0', 'o1', 'o2', 'o3', 'w6', 'w6', 'w7', 'w7']
    def retire_until(idx):
        n = len(issued) - 1 - idx
        k(f"s_waitcnt lgkmcnt({n})")
        del issued[:idx+1]
    for n, (cb, ks) in enumerate(wo_ops):
        need = {f'o{ks}', f'w{n}'}
        idxs = [i for i, nme in enumerate(issued) if nme in need]
        if idxs: retire_until(max(idxs))
        k(f"v_smfmac_f32_16x16x64_bf16 {v(ACC+4*cb,4)}, {v(OO+4*ks,4)}, {v(slots[n%8],8)}, v{vIDX}")
        if n + 8 < 16:
            if len(issued) + 2 > 15: retire_until(len(issued) + 2 - 15 - 1)
            woread(slots[n % 8], *wo_ops[n + 8]); issued += [f'w{n+8}', f'w{n+8}']
    ST(7)
    k.nop(8)
    for cb in range(4):
        k(f"global_store_dwordx4 v{vPAS}, {v(ACC+4*cb,4)}, s[{sPA}:{sPA+1}] offset:{cb*1024} {st}")
    k(f"""
    v_xor_b32 v{vPAS}, 0x80000, v{vPAS}
    s_add_u32 s{sKM}, s{sKM}, 65536
    s_addc_u32 s{sKM+1}, s{sKM+1}, 0
    s_add_u32 s{sVM}, s{sVM}, 65536
    s_addc_u32 s{sVM+1}, s{sVM+1}, 0
    s_add_u32 s{sMBr}, s{sMBr}, 8192
    s_addc_u32 s{sMBr+1}, s{sMBr+1}, 0
    """)
    SEN = vM + 32
    for r in range(4): k(f"v_mov_b32 v{SEN+r}, -1")
    for r in range(aQ, aQ + 12): k(f"v_mov_b32 v{r}, 0")
    PAo = k.lab('LpollA'); X = OO
    k(f"s_mov_b32 s{sSpin}, 0")
    k.label(PAo)
    for i in range(4):
        k(f"global_load_dwordx4 {v(X+4*i,4)}, v{vPAL}, s[{sPA+2*i}:{sPA+2*i+1}] sc1")
    T0 = vM + 36; T1r = vM + 37
    k(f"""
    s_add_u32 s{sSpin}, s{sSpin}, 1
    s_cmp_gt_u32 s{sSpin}, {SPIN}
    s_cbranch_scc1 {TO}
    s_waitcnt vmcnt(0)
    v_max3_u32 v{T0}, v{X}, v{X+1}, v{X+2}
    v_max3_u32 v{T1r}, v{X+3}, v{X+4}, v{X+5}
    v_max3_u32 v{T0}, v{T0}, v{X+6}, v{X+7}
    v_max3_u32 v{T1r}, v{T1r}, v{X+8}, v{X+9}
    v_max3_u32 v{T0}, v{T0}, v{X+10}, v{X+11}
    v_max3_u32 v{T1r}, v{T1r}, v{X+12}, v{X+13}
    v_max3_u32 v{T0}, v{T0}, v{X+14}, v{X+15}
    v_max_u32 v{T0}, v{T0}, v{T1r}
    v_cmp_eq_u32 vcc, -1, v{T0}
    s_cbranch_vccnz {PAo}
    """)
    ST(8)
    for r in range(4): k(f"v_add_f32 v{X+r}, v{X+r}, v{X+4+r}")
    for r in range(4): k(f"v_add_f32 v{X+8+r}, v{X+8+r}, v{X+12+r}")
    for r in range(4): k(f"v_add_f32 v{X+r}, v{X+r}, v{X+8+r}")
    k("s_nop 1")
    for r in range(4): k(f"v_add_f32_dpp v{X+r}, v{X+r}, v{X+r} row_ror:8 row_mask:0xf bank_mask:0xf")
    k(f"""
    s_nop 1
    v_permlane16_swap_b32 v{X}, v{X+1}
    v_permlane16_swap_b32 v{X+2}, v{X+3}
    v_add_f32 v{X}, v{X}, v{X+1}
    v_add_f32 v{X+2}, v{X+2}, v{X+3}
    s_nop 1
    v_permlane32_swap_b32 v{X}, v{X+2}
    v_add_f32 v{X}, v{X}, v{X+2}
    s_nop 1
    v_mov_b32_dpp v{X+1}, v{X} quad_perm:[1,0,3,2] row_mask:0xf bank_mask:0xf
    v_cvt_pk_bf16_f32 v{X}, v{X}, v{X+1}
    v_min_u32 v{X}, 0xfffffffe, v{X}
    s_mov_b64 exec, s[{sMMB}:{sMMB+1}]
    global_store_dword v{vMBS}, v{X}, s[{sMBw}:{sMBw+1}] {st}
    s_mov_b64 exec, -1
    """)
    for i in range(4):
        k(f"global_store_dwordx4 v{vPAL}, {v(SEN,4)}, s[{sPA+2*i}:{sPA+2*i+1}] {st}")
    k(f"""
    v_xor_b32 v{vPAL}, 0x80000, v{vPAL}
    """)
    ST(9)
    k(f"""
    s_add_u32 s{sMBw}, s{sMBw}, 8192
    s_addc_u32 s{sMBw+1}, s{sMBw+1}, 0
    s_add_u32 s{sS}, s{sS}, 1
    s_cmp_lt_u32 s{sS}, {NSEG}
    s_cbranch_scc1 {LOOP}
    """)
    if stamp:
        k(f"""
        s_memtime s[62:63]
        s_waitcnt lgkmcnt(0)
        s_sub_u32 s62, s62, s60
        s_load_dwordx2 s[{sP0}:{sP0+1}], s[0:1], {KA_DBG}
        s_waitcnt lgkmcnt(0)
        v_mov_b32 v48, 0
        v_mov_b32 v49, s62
        s_mov_b64 exec, 1
        global_store_dword v48, v49, s[{sP0}:{sP0+1}] offset:4 sc1
        """)
        if stamp == 2:
            k(f"s_or_b32 s65, s{sH}, s{sW}\ns_cmp_lg_u32 s65, 0\ns_cbranch_scc1 Lnost")
            for i in range(NST):
                k(f"v_mov_b32 v49, s{70+i}\nglobal_store_dword v48, v49, s[{sP0}:{sP0+1}] offset:{32+4*i} sc1")
            k("Lnost:")
        k("s_mov_b64 exec, -1")
    if use_flags:
        k(f"""
        s_waitcnt vmcnt(0)
        s_barrier
        v_mov_b32 v95, s{sS}
        s_mov_b64 exec, 1
        global_store_dword v{vL16}, v95, s[{sFR}:{sFR+1}] sc1
        """)
    k("s_waitcnt vmcnt(0)\ns_endpgm")
    timeout_exit(k, 0 if fast else 1, TO)
```

```python
from common import *
ONES=0x3f803f80
NINF=0xff800000
import struct, math
def f2u(x): return struct.unpack('<I', struct.pack('<f', x))[0]
CA = f2u(0.25*math.log2(math.e))
CB = f2u(128**-0.5*math.log2(math.e))

def xlane(k, op, r, tmp):
    for sw in ('32', '16'):
        k(f"v_mov_b32 v{tmp}, v{r}\ns_nop 1\nv_permlane{sw}_swap_b32 v{r}, v{tmp}\n{op} v{r}, v{r}, v{tmp}")

def emit_TA(k):
    vL=0; vRD=1; vFLG=2; vTMP=3; vA=8
    sHA=33; sC=34
    k(f"""
    s_lshl_b32 s{sHA}, s{sIDX}, 2
    s_add_u32 s{sHA}, s{sHA}, s{sW}
    v_and_b32 v40, 63, v0
    v_and_b32 v41, 15, v40        ; i / n
    v_lshrrev_b32 v42, 4, v40     ; g
    ; DMA lane offset: row l/8 (stride 3072), chunk l%8
    v_lshrrev_b32 v45, 3, v40
    v_mul_u32_u24 v45, 3072, v45
    v_and_b32 v46, 7, v40
    v_lshl_add_u32 v45, v46, 4, v45
    ; tr address: row 8g + i/4 ; bytes 32w + 8*(i%4)
    v_lshrrev_b32 v46, 2, v41
    v_lshl_add_u32 v46, v42, 3, v46
    v_lshlrev_b32 v46, 7, v46
    v_and_b32 v47, 3, v41
    v_lshl_add_u32 v46, v47, 3, v46
    s_lshl_b32 s{sT2}, s{sW}, 5
    v_add_u32 v46, s{sT2}, v46
    """)
    for mu in range(3):
        k(f"s_load_dwordx2 s[{sP}:{sP+1}], s[0:1], {KA_WQKV}")
        k(f"""
        s_lshl_b32 s{sT}, s{sIDX}, 7
        s_add_u32 s{sT}, s{sT}, {mu*1024}
        s_mul_i32 s{sT2}, s{sW}, {128*3072}
        s_add_u32 s{sT}, s{sT}, s{sT2}
        s_lshl_b32 s{sT3}, s{sW}, 14
        s_waitcnt lgkmcnt(0)
        s_add_u32 s{sP}, s{sP}, s{sT}
        s_addc_u32 s{sP+1}, s{sP+1}, 0
        """)
        for u in range(16):
            k(f"s_mov_b32 m0, s{sT3}\ns_add_u32 s{sT3}, s{sT3}, 1024\nglobal_load_lds_dwordx4 v45, s[{sP}:{sP+1}]")
            adv(k, sP, 8*3072)
        k("s_waitcnt vmcnt(0)\ns_barrier")
        n = 0
        for ks in range(16):
            for hf in range(2):
                k(f"ds_read_b64_tr_b16 {a((mu*16+ks)*4 + 2*hf, 2)}, v46 offset:{ks*4096 + hf*512}")
                n += 1
                if n % 8 == 0: k("s_waitcnt lgkmcnt(0)")
        k("s_waitcnt lgkmcnt(0)\ns_barrier")
    k(f"""
    v_lshlrev_b32 v{vL}, 4, v40
    v_lshlrev_b32 v{vRD}, 9, v42
    v_lshl_add_u32 v{vRD}, v41, 4, v{vRD}
    v_xor_b32 v{vRD}, 0x8000, v{vRD}
    s_lshl_b32 s{sM0}, s{sW}, 13
    v_and_b32 v4, 1, v40
    v_lshlrev_b32 v4, 2, v4
    v_add_u32 v4, {F_T6(0)}, v4               ; + parity*8
    s_mov_b32 s{sFL}, s{sWS}
    s_mov_b32 s{sFL+1}, s{sWS+1}
    s_mov_b32 s{sC}, {CA}
    """)
    base(k, sOWN, F_TA, f"s_lshl_b32 s{sT}, s{sIDX}, 2")
    base(k, sIN, XNA, f"s_lshl_b32 s{sT}, s{sW}, 13")
    base(k, sOUT, OA, f"s_lshl_b32 s{sT}, s{sHA}, 10")
    ACC=32
    QP=56
    KP=60
    VP=66
    SP=72; SC=76
    PP=80
    LL=84; OO=88
    OP=92
    BP=96; BC=100; BP0=104
    ON=108
    MX=112; TM=113
    k(f"v_lshlrev_b32 v48, 2, v42")
    for t, B in ((0, BP), (1, BC)):
        for r in range(4):
            k(f"""
            v_add_u32 v49, {r - (16 if t == 0 else 0) + 64}, v48      ; key offset + 64
            v_add_u32 v50, 64, v41
            v_sub_u32 v49, v50, v49                ; diff
            v_and_b32 v50, 0xfffffff1, v49         ; zero iff diff in 0,2,..,14
            v_mov_b32 v{B+r}, {NINF}
            v_cmp_eq_u32 vcc, 0, v50
            s_nop 1
            v_cndmask_b32 v{B+r}, v{B+r}, 0, vcc
            """.replace(f"v_cndmask_b32 v{B+r}, v{B+r}, 0, vcc", f"v_mov_b32 v51, 0\n v_cndmask_b32 v{B+r}, v{B+r}, v51, vcc"))
    for r in range(4): k(f"v_mov_b32 v{BP0+r}, {NINF}\nv_mov_b32 v{ON+r}, {ONES}")
    for r in range(2): k(f"v_mov_b32 v{KP+r}, 0\nv_mov_b32 v{VP+r}, 0")
    def set_need(k):
        k(f"s_add_u32 s{sNEED}, s{sT3}, 1\ns_mul_i32 s{sNEED}, s{sNEED}, s{sL}\ns_and_b32 s{sT}, s{sT3}, 1\ns_lshl_b32 s{sT}, s{sT}, 3\nv_add_u32 v{vFLG}, s{sT}, v4")
    def dma(k):
        for blk in range(2):
            k(f"s_add_u32 s{sT}, s{sM0}, {blk*4096}\ns_mov_b32 m0, s{sT}\ns_nop 0")
            for u in range(4): k(f"global_load_lds_dwordx4 v{vL}, s[{sIN}:{sIN+1}] offset:{u*1024} sc1")
            adv(k, sIN, 4096 if blk == 0 else 32768 - 4096)
    def toggle(k): k(f"v_xor_b32 v{vRD}, 0x8000, v{vRD}\ns_xor_b32 s{sM0}, s{sM0}, 0x8000")
    def comp(k, hook):
        def rd(ks):
            for tt in range(2): k(f"ds_read_b128 {v(vA + 8*(ks%3) + 4*tt,4)}, v{vRD} offset:{ks*2048 + tt*256}")
        rd(0); rd(1)
        for ks in range(16):
            if ks + 2 < 16: rd(ks + 2)
            k(f"s_waitcnt lgkmcnt({2*min(2, 15-ks)})")
            for tt in range(2):
                x = v(vA + 8*(ks % 3) + 4*tt, 4)
                for mu in range(3):
                    acc = v(ACC + 8*mu + 4*tt, 4); c = "0" if ks == 0 else acc; w = a((mu*16+ks)*4, 4)
                    if mu < 2: k(f"v_mfma_f32_16x16x32_bf16 {acc}, {w}, {x}, {c}")
                    else: k(f"v_mfma_f32_16x16x32_bf16 {acc}, {x}, {w}, {c}")
            if ks == 5: hook(0)
            if ks == 10: hook(1)
        k.nop(8)
    def epilogue(k):
        for tt in range(2):
            for mu, dst in ((0, QP + 2*tt), (1, KP + 2 + 2*tt), (2, VP + 2 + 2*tt)):
                b = ACC + 8*mu + 4*tt
                k(f"v_cvt_pk_bf16_f32 v{dst}, v{b}, v{b+1}\nv_cvt_pk_bf16_f32 v{dst+1}, v{b+2}, v{b+3}")
        for tt in range(2):
            k("s_nop 1")
            k(f"v_mfma_f32_16x16x16_bf16 {v(SP,4)}, {v(KP+2*tt,2)}, {v(QP+2*tt,2)}, 0")
            k(f"v_mfma_f32_16x16x16_bf16 {v(SC,4)}, {v(KP+2+2*tt,2)}, {v(QP+2*tt,2)}, 0")
            k.nop(8)
            bp = BP0 if tt == 0 else BP
            for r in range(4): k(f"v_fma_f32 v{SP+r}, v{SP+r}, s{sC}, v{bp+r}")
            for r in range(4): k(f"v_fma_f32 v{SC+r}, v{SC+r}, s{sC}, v{BC+r}")
            k(f"""
            v_max3_f32 v{MX}, v{SP}, v{SP+1}, v{SP+2}
            v_max3_f32 v{MX}, v{MX}, v{SP+3}, v{SC}
            v_max3_f32 v{MX}, v{MX}, v{SC+1}, v{SC+2}
            v_max_f32 v{MX}, v{MX}, v{SC+3}
            """)
            xlane(k, 'v_max_f32', MX, TM)
            for r in range(8): k(f"v_sub_f32 v{SP+r}, v{SP+r}, v{MX}")
            for r in range(8): k(f"v_exp_f32 v{SP+r}, v{SP+r}")
            k("s_nop 0")
            for q in range(4): k(f"v_cvt_pk_bf16_f32 v{PP+q}, v{SP+2*q}, v{SP+2*q+1}")
            k("s_nop 1")
            k(f"v_mfma_f32_16x16x32_bf16 {v(LL,4)}, {v(ON,4)}, {v(PP,4)}, 0")
            k(f"v_mfma_f32_16x16x32_bf16 {v(OO,4)}, {v(VP+2*tt,4)}, {v(PP,4)}, 0")
            k.nop(7)
            k(f"v_rcp_f32 v{LL}, v{LL}\ns_nop 0")
            for r in range(4): k(f"v_mul_f32 v{OO+r}, v{OO+r}, v{LL}")
            k(f"v_cvt_pk_bf16_f32 v{OP+2*tt}, v{OO}, v{OO+1}\nv_cvt_pk_bf16_f32 v{OP+2*tt+1}, v{OO+2}, v{OO+3}")
        k(f"""
        s_nop 1
        v_permlane16_swap_b32 v{OP}, v{OP+2}
        v_permlane16_swap_b32 v{OP+1}, v{OP+3}
        global_store_dwordx4 v{vL}, {v(OP,4)}, s[{sOUT}:{sOUT+1}] sc1
        v_mov_b32 v{KP}, v{KP+4}
        v_mov_b32 v{KP+1}, v{KP+5}
        v_mov_b32 v{VP}, v{VP+4}
        v_mov_b32 v{VP+1}, v{VP+5}
        """)
        for r in range(4): k(f"v_mov_b32 v{BP0+r}, v{BP+r}")
        adv(k, sOUT, 32768)
    skeleton(k, 'TA', 4, NSEG, set_need, dma, lambda k: None, comp, epilogue, vFLG, vTMP, vL, toggle)

def emit_T4(k):
    sH=33; sPAR=34; sC=35
    sQ=36; sK=38; sV=40; sKM=42; sVM=44; sO=46
    vL=0; vFLG=2; vTMP=3; vQA=4; vQB=5; vKMA=6; vVA=7; vVMA=8
    Q=16; KK=48; KM_=80; V=96; VM_=128
    SM=144; S0=148; S1=152; PT_=156; PM=160; LL=164; MX=168; TM=169
    OO=172
    OP=204
    BM=208; BD=212; ON=216
    TO = k.lab('LtoT4'); LOOP = k.lab('LitT4')
    k(f"""
    s_lshl_b32 s{sT}, s{sIDX}, 2
    s_add_u32 s{sT}, s{sT}, s{sW}
    s_lshr_b32 s{sH}, s{sT}, 1
    s_and_b32 s{sPAR}, s{sT}, 1
    v_and_b32 v240, 63, v0
    v_and_b32 v241, 15, v240      ; n / i
    v_lshrrev_b32 v242, 4, v240   ; g
    v_lshlrev_b32 v{vL}, 4, v240
    v_lshlrev_b32 v{vQA}, 9, v242
    v_lshl_add_u32 v{vQA}, v241, 4, v{vQA}      ; g*512 + n*16
    v_add_u32 v{vQB}, 4096, v{vQA}
    v_and_b32 v243, 7, v241
    v_lshlrev_b32 v{vKMA}, 7, v242
    v_lshl_add_u32 v{vKMA}, v243, 4, v{vKMA}     ; g*128 + (i%8)*16
    v_lshlrev_b32 v{vVA}, 11, v242
    v_lshl_add_u32 v{vVA}, v241, 4, v{vVA}       ; g*2048 + i*16
    v_and_b32 v243, 1, v242
    v_lshlrev_b32 v{vVMA}, 3, v243
    v_lshl_add_u32 v{vVMA}, v241, 4, v{vVMA}     ; i*16 + (g%2)*8
    s_mov_b32 s{sFL}, s{sWS}
    s_mov_b32 s{sFL+1}, s{sWS+1}
    s_mov_b32 s{sC}, {CB}
    s_mul_i32 s{sT}, s{sL}, {F_R(1)-F_R(0)}
    s_add_u32 s{sT}, s{sT}, {F_R(0)}
    s_lshl_b32 s{sT2}, s{sH}, 2
    s_add_u32 s{sT}, s{sT}, s{sT2}
    v_mov_b32 v{vFLG}, s{sT}
    s_mul_i32 s{sT}, s{sL}, {F_T3(1)-F_T3(0)}
    s_add_u32 s{sT}, s{sT}, {F_T3(0)}
    s_lshr_b32 s{sT2}, s{sH}, 1
    s_lshl_b32 s{sT2}, s{sT2}, 2
    s_add_u32 s{sT}, s{sT}, s{sT2}
    v_mov_b32 v243, s{sT}
    v_and_b32 v244, 1, v240
    v_cmp_eq_u32 vcc, 1, v244
    s_nop 1
    v_cndmask_b32 v{vFLG}, v{vFLG}, v243, vcc
    """)
    base(k, sOWN, F_T4, f"s_lshl_b32 s{sT}, s{sH}, 3\ns_lshl_b32 s{sT3}, s{sPAR}, 2\ns_add_u32 s{sT}, s{sT}, s{sT3}")
    big = f"s_lshl_b32 s{sT}, s{sH}, 13\ns_lshl_b32 s{sT3}, s{sPAR}, 18\ns_add_u32 s{sT}, s{sT}, s{sT3}"
    small = f"s_lshl_b32 s{sT}, s{sH}, 11\ns_lshl_b32 s{sT3}, s{sPAR}, 16\ns_add_u32 s{sT}, s{sT}, s{sT3}"
    base(k, sQ, QT, big); base(k, sK, KT, big); base(k, sV, VT, big); base(k, sO, OT, big)
    base(k, sKM, KM, small); base(k, sVM, VM, small)
    k(f"v_mov_b32 v243, {NINF}\nv_mov_b32 v244, 0")
    for r in range(4):
        k(f"""
        v_cmp_gt_u32 vcc, 2, v242
        s_nop 1
        v_cndmask_b32 v{BM+r}, v243, v244, vcc
        v_lshlrev_b32 v245, 2, v242
        v_add_u32 v245, {r}, v245
        v_cmp_le_u32 vcc, v245, v241
        s_nop 1
        v_cndmask_b32 v{BD+r}, v243, v244, vcc
        v_mov_b32 v{ON+r}, {ONES}
        """)
    k(f"s_mov_b32 s{sS}, s{sPAR}")
    k.label(LOOP)
    k(f"s_add_u32 s{sNEED}, s{sS}, 1")
    poll_block(k, vFLG, vTMP, TO)
    def qaddr(ks): return (vQA, ks*2048) if ks < 2 else (vQB, (ks-2)*2048)
    for ks in range(4):
        va, off = qaddr(ks)
        for qt in range(2):
            k(f"global_load_dwordx4 {v(Q + (qt*4+ks)*4,4)}, v{va}, s[{sQ}:{sQ+1}] offset:{off + qt*256} sc1")
        k(f"global_load_dwordx4 {v(KM_ + ks*4,4)}, v{vKMA}, s[{sKM}:{sKM+1}] offset:{ks*512} sc1")
        for t in range(2):
            k(f"global_load_dwordx4 {v(KK + (t*4+ks)*4,4)}, v{va}, s[{sK}:{sK+1}] offset:{off + t*256} sc1")
    for ft in range(8):
        k(f"global_load_dwordx4 {v(V + ft*4,4)}, v{vVA}, s[{sV}:{sV+1}] offset:{ft*256} sc1")
        k(f"global_load_dwordx2 {v(VM_ + ft*2,2)}, v{vVMA}, s[{sVM}:{sVM+1}] offset:{ft*256} sc1")
    for p in (sQ, sK, sV): adv(k, p, 2*262144)
    for p in (sKM, sVM): adv(k, p, 2*65536)
    k("s_waitcnt vmcnt(16)")
    for qt in range(2):
        for ks in range(4):
            q = v(Q + (qt*4+ks)*4, 4)
            c = lambda r: "0" if ks == 0 else v(r, 4)
            k(f"v_mfma_f32_16x16x32_bf16 {v(SM,4)}, {v(KM_+ks*4,4)}, {q}, {c(SM)}")
            k(f"v_mfma_f32_16x16x32_bf16 {v(S0,4)}, {v(KK+ks*4,4)}, {q}, {c(S0)}")
            if qt == 1: k(f"v_mfma_f32_16x16x32_bf16 {v(S1,4)}, {v(KK+16+ks*4,4)}, {q}, {c(S1)}")
        k.nop(8)
        n = 8 if qt == 0 else 12
        for r in range(4): k(f"v_fma_f32 v{SM+r}, v{SM+r}, s{sC}, v{BM+r}")
        if qt == 0:
            for r in range(4): k(f"v_fma_f32 v{S0+r}, v{S0+r}, s{sC}, v{BD+r}")
        else:
            for r in range(4): k(f"v_mul_f32 v{S0+r}, s{sC}, v{S0+r}")
            for r in range(4): k(f"v_fma_f32 v{S1+r}, v{S1+r}, s{sC}, v{BD+r}")
        k(f"v_max3_f32 v{MX}, v{SM}, v{SM+1}, v{SM+2}")
        i = 3
        while i < n:
            if i + 1 < n: k(f"v_max3_f32 v{MX}, v{MX}, v{SM+i}, v{SM+i+1}"); i += 2
            else: k(f"v_max_f32 v{MX}, v{MX}, v{SM+i}"); i += 1
        xlane(k, 'v_max_f32', MX, TM)
        for r in range(n): k(f"v_sub_f32 v{SM+r}, v{SM+r}, v{MX}")
        for r in range(n): k(f"v_exp_f32 v{SM+r}, v{SM+r}")
        k("s_nop 0")
        k(f"v_cvt_pk_bf16_f32 v{PM}, v{SM}, v{SM+1}\nv_cvt_pk_bf16_f32 v{PM+1}, v{SM+2}, v{SM+3}")
        k(f"v_cvt_pk_bf16_f32 v{PT_}, v{S0}, v{S0+1}\nv_cvt_pk_bf16_f32 v{PT_+1}, v{S0+2}, v{S0+3}")
        if qt == 1: k(f"v_cvt_pk_bf16_f32 v{PT_+2}, v{S1}, v{S1+1}\nv_cvt_pk_bf16_f32 v{PT_+3}, v{S1+2}, v{S1+3}")
        if qt == 0: k("s_waitcnt vmcnt(0)")
        k("s_nop 1")
        if qt == 0: k(f"v_mfma_f32_16x16x16_bf16 {v(LL,4)}, {v(ON,2)}, {v(PT_,2)}, 0")
        else: k(f"v_mfma_f32_16x16x32_bf16 {v(LL,4)}, {v(ON,4)}, {v(PT_,4)}, 0")
        for ft in range(8):
            o = v(OO + 4*ft, 4)
            if qt == 0: k(f"v_mfma_f32_16x16x16_bf16 {o}, {v(V+4*ft,2)}, {v(PT_,2)}, 0")
            else: k(f"v_mfma_f32_16x16x32_bf16 {o}, {v(V+4*ft,4)}, {v(PT_,4)}, 0")
        k(f"v_mfma_f32_16x16x16_bf16 {v(LL,4)}, {v(ON,2)}, {v(PM,2)}, {v(LL,4)}")
        for ft in range(8):
            o = v(OO + 4*ft, 4)
            k(f"v_mfma_f32_16x16x16_bf16 {o}, {v(VM_+2*ft,2)}, {v(PM,2)}, {o}")
        k(f"v_rcp_f32 v{LL}, v{LL}")
        k.nop(8)
        for u in range(4):
            b = OO + 8*u
            for r in range(8): k(f"v_mul_f32 v{b+r}, v{b+r}, v{LL}")
            d = OP
            for q in range(4): k(f"v_cvt_pk_bf16_f32 v{b+q}, v{b+2*q}, v{b+2*q+1}")
            va, off = qaddr(u)
            k(f"global_store_dwordx4 v{va}, {v(b,4)}, s[{sO}:{sO+1}] offset:{off + qt*256} sc1")
        k("s_nop 1")
    adv(k, sO, 2*262144)
    k(f"""
    s_waitcnt vmcnt(0)
    s_add_u32 s{sT}, s{sS}, 1
    v_mov_b32 v{vTMP}, s{sT}
    s_mov_b64 exec, 1
    global_store_dword v{vL}, v{vTMP}, s[{sOWN}:{sOWN+1}] sc1
    s_mov_b64 exec, -1
    s_add_u32 s{sS}, s{sS}, 2
    s_cmp_lt_u32 s{sS}, {NSEG}
    s_cbranch_scc1 {LOOP}
    s_endpgm
    """)
    timeout_block(k, TO, 6)

def ln_stats(k, packed, npk, SUM, SQ, tmp, reduce_code):
    k(f"v_mov_b32 v{SUM}, 0\nv_mov_b32 v{SQ}, 0\ns_mov_b32 s{sT}, {ONES}")
    for q in range(npk):
        k(f"v_dot2_f32_bf16 v{SUM}, v{packed+q}, s{sT}, v{SUM}\nv_dot2_f32_bf16 v{SQ}, v{packed+q}, v{packed+q}, v{SQ}")
    k.nop(3)
    reduce_code()
    k(f"""
    v_mul_f32 v{SUM}, 0x3b000000, v{SUM}
    v_mul_f32 v{SQ}, 0x3b000000, v{SQ}
    v_fma_f32 v{SQ}, -v{SUM}, v{SUM}, v{SQ}
    v_max_f32 v{SQ}, 0, v{SQ}
    v_add_f32 v{SQ}, 0x3727c5ac, v{SQ}
    v_rsq_f32 v{SQ}, v{SQ}
    s_nop 0
    """)
def ln_apply(k, packed, npk, MEAN, RSTD, out, t0, t1):
    for q in range(npk):
        k(f"""
        v_lshlrev_b32 v{t0}, 16, v{packed+q}
        v_and_b32 v{t1}, 0xffff0000, v{packed+q}
        v_sub_f32 v{t0}, v{t0}, v{MEAN}
        v_sub_f32 v{t1}, v{t1}, v{MEAN}
        v_mul_f32 v{t0}, v{t0}, v{RSTD}
        v_mul_f32 v{t1}, v{t1}, v{RSTD}
        v_cvt_pk_bf16_f32 v{out+q}, v{t0}, v{t1}
        """)

def emit_T6(k):
    sPAR=33; sHF=34; sPT=36
    sX1=44; sXR=46; sXN=48; sOutP=50
    vL=0; vFLG=2; vTMP=3; vPA=4; vXA=5; vOA=6; vLW=7; vLR=8
    P=16
    X=144
    XN=160
    SUM=176; SQ=177; T0=178; T1=179; R4=180
    TO = k.lab('LtoT6'); LOOP = k.lab('LitT6')
    k(f"""
    s_lshr_b32 s{sPAR}, s{sIDX}, 1
    s_and_b32 s{sHF}, s{sIDX}, 1
    v_and_b32 v240, 63, v0
    v_and_b32 v241, 15, v240          ; tok
    v_lshrrev_b32 v242, 4, v240       ; l/16
    s_lshl_b32 s{sT}, s{sW}, 2
    v_add_u32 v243, s{sT}, v242       ; cg 0..15
    s_lshl_b32 s{sT}, s{sHF}, 4
    v_add_u32 v244, s{sT}, v241
    v_lshlrev_b32 v{vL}, 4, v240
    v_lshlrev_b32 v{vPA}, 12, v243
    v_lshl_add_u32 v{vPA}, v244, 4, v{vPA}
    v_lshlrev_b32 v{vXA}, 11, v243
    v_lshl_add_u32 v{vXA}, v244, 4, v{vXA}
    v_lshlrev_b32 v{vOA}, 10, v244
    v_lshl_add_u32 v{vOA}, v243, 6, v{vOA}
    s_lshl_b32 s{sT}, s{sW}, 7
    v_lshlrev_b32 v{vLR}, 3, v241
    v_add_u32 v{vLW}, s{sT}, v{vLR}
    s_mul_i32 s{sT}, s{sL}, {F_T5(1)-F_T5(0)}
    s_add_u32 s{sT}, s{sT}, {F_T5(0)}
    v_lshlrev_b32 v{vFLG}, 2, v241
    v_add_u32 v{vFLG}, s{sT}, v{vFLG}
    s_mov_b32 s{sFL}, s{sWS}
    s_mov_b32 s{sFL+1}, s{sWS+1}
    """)
    base(k, sOWN, F_T6, f"s_lshl_b32 s{sT}, s{sIDX}, 2")
    for kq in range(4):
        base(k, sPT + 2*kq, PT, f"s_lshl_b32 s{sT}, s{sPAR}, 18\ns_add_u32 s{sT}, s{sT}, {kq*65536}")
    base(k, sX1, X1, f"s_lshl_b32 s{sT}, s{sPAR}, 15")
    l1 = lambda l: XR(1)
    base(k, sXR, l1, f"s_lshl_b32 s{sT}, s{sPAR}, 15")
    l2 = lambda l: XNA(1)
    base(k, sXN, l2, f"s_lshl_b32 s{sT}, s{sPAR}, 15")
    k(f"""
    s_load_dwordx2 s[{sOutP}:{sOutP+1}], s[0:1], {KA_OUT}
    s_lshl_b32 s{sT}, s{sPAR}, 15
    s_waitcnt lgkmcnt(0)
    s_add_u32 s{sOutP}, s{sOutP}, s{sT}
    s_addc_u32 s{sOutP+1}, s{sOutP+1}, 0
    s_mov_b32 s{sS}, s{sPAR}
    """)
    k.label(LOOP)
    k(f"s_add_u32 s{sNEED}, s{sS}, 1")
    poll_block(k, vFLG, vTMP, TO)
    for j in range(4):
        k(f"global_load_dwordx4 {v(X+4*j,4)}, v{vXA}, s[{sX1}:{sX1+1}] offset:{j*512} sc1")
    for kq in range(4):
        for j in range(8):
            k(f"global_load_dwordx4 {v(P+32*kq+4*j,4)}, v{vPA}, s[{sPT+2*kq}:{sPT+2*kq+1}] offset:{j*512} sc1")
        adv(k, sPT + 2*kq, 2*262144)
    adv(k, sX1, 2*32768)
    k("s_waitcnt vmcnt(16)")
    for r in range(32): k(f"v_add_f32 v{P+r}, v{P+r}, v{P+32+r}")
    k("s_waitcnt vmcnt(0)")
    for r in range(32): k(f"v_add_f32 v{P+64+r}, v{P+64+r}, v{P+96+r}")
    for r in range(32): k(f"v_add_f32 v{P+r}, v{P+r}, v{P+64+r}")
    for q in range(16):
        k(f"""
        v_lshlrev_b32 v{T0}, 16, v{X+q}
        v_and_b32 v{T1}, 0xffff0000, v{X+q}
        v_add_f32 v{T0}, v{T0}, v{P+2*q}
        v_add_f32 v{T1}, v{T1}, v{P+2*q+1}
        v_cvt_pk_bf16_f32 v{X+q}, v{T0}, v{T1}
        """)
    lo = k.lab('Lt6o'); le = k.lab('Lt6e')
    k(f"s_cmp_lg_u32 s{sL}, 0\ns_cbranch_scc1 {lo}")
    for j in range(4):
        k(f"global_store_dwordx4 v{vXA}, {v(X+4*j,4)}, s[{sXR}:{sXR+1}] offset:{j*512} sc1")
    def red():
        xlane(k, 'v_add_f32', SUM, T0); xlane(k, 'v_add_f32', SQ, T0)
        k(f"ds_write_b64 v{vLW}, v[{SUM}:{SQ}]\ns_waitcnt lgkmcnt(0)\ns_barrier")
        for w in range(4): k(f"ds_read_b64 {v(R4+2*w,2)}, v{vLR} offset:{w*128}")
        k(f"""
        s_waitcnt lgkmcnt(0)
        v_add_f32 v{R4}, v{R4}, v{R4+2}
        v_add_f32 v{R4+1}, v{R4+1}, v{R4+3}
        v_add_f32 v{R4+4}, v{R4+4}, v{R4+6}
        v_add_f32 v{R4+5}, v{R4+5}, v{R4+7}
        v_add_f32 v{SUM}, v{R4}, v{R4+4}
        v_add_f32 v{SQ}, v{R4+1}, v{R4+5}
        """)
    ln_stats(k, X, 16, SUM, SQ, T0, red)
    ln_apply(k, X, 16, SUM, SQ, XN, T0, T1)
    for j in range(4):
        k(f"global_store_dwordx4 v{vXA}, {v(XN+4*j,4)}, s[{sXN}:{sXN+1}] offset:{j*512} sc1")
    k(f"s_branch {le}")
    k.label(lo)
    for j in range(4):
        k(f"global_store_dwordx4 v{vOA}, {v(X+4*j,4)}, s[{sOutP}:{sOutP+1}] offset:{j*16}")
    k.label(le)
    adv(k, sXR, 2*32768); adv(k, sXN, 2*32768); adv(k, sOutP, 2*32768)
    k("s_waitcnt vmcnt(0)\ns_barrier")
    k(f"s_add_u32 s{sT3}, s{sS}, 1")
    publish(k, vL, vTMP, sT3)
    k(f"""
    s_add_u32 s{sS}, s{sS}, 2
    s_cmp_lt_u32 s{sS}, {NSEG}
    s_cbranch_scc1 {LOOP}
    s_waitcnt vmcnt(0)
    s_endpgm
    """)
    timeout_block(k, TO, 7)

def emit_K0(k):
    END = k.lab('Lk0e')
    vXA=4; vCA=5; vLW=6; vLR=7; X=16; XN=24; SUM=32; SQ=33; T0=34; T1=35; R4=36
    k(f"""
    s_cmp_ge_u32 s2, 256
    s_cbranch_scc1 {END}
    s_load_dwordx2 s[{sWS}:{sWS+1}], s[0:1], {KA_WS}
    s_load_dwordx2 s[10:11], s[0:1], {KA_X}
    s_load_dwordx2 s[12:13], s[0:1], {KA_MEM0}
    v_readfirstlane_b32 s{sW}, v0
    s_nop 1
    s_lshr_b32 s{sW}, s{sW}, 6
    v_and_b32 v40, 63, v0
    v_and_b32 v41, 7, v40            ; tok
    v_lshrrev_b32 v42, 3, v40
    s_lshl_b32 s{sT}, s{sW}, 3
    v_add_u32 v42, s{sT}, v42
    s_lshl_b32 s{sT}, s2, 3
    v_add_u32 v43, s{sT}, v41
    v_lshlrev_b32 v{vXA}, 10, v43
    v_lshl_add_u32 v{vXA}, v42, 5, v{vXA}
    v_lshrrev_b32 v44, 5, v43
    v_lshlrev_b32 v44, 15, v44                ; seg*32768
    v_and_b32 v45, 31, v43
    v_lshl_add_u32 v44, v45, 4, v44
    v_lshl_add_u32 v{vCA}, v42, 10, v44
    s_lshl_b32 s{sT}, s{sW}, 6
    v_lshlrev_b32 v{vLR}, 3, v41
    v_add_u32 v{vLW}, s{sT}, v{vLR}
    s_waitcnt lgkmcnt(0)
    global_load_dwordx4 {v(X,4)}, v{vXA}, s[10:11]
    global_load_dwordx4 {v(X+4,4)}, v{vXA}, s[10:11] offset:16
    ; fills
    v_mov_b32 v48, -1
    v_mov_b32 v49, -1
    v_mov_b32 v50, -1
    v_mov_b32 v51, -1
    v_lshlrev_b32 v52, 4, v0                  ; tid*16
    s_lshl_b32 s{sT}, s2, 13
    s_add_u32 s{sT}, s{sT}, {PA(0)}
    v_add_u32 v53, s{sT}, v52
    global_store_dwordx4 v53, v[48:51], s[{sWS}:{sWS+1}]
    v_add_u32 v53, 4096, v53
    global_store_dwordx4 v53, v[48:51], s[{sWS}:{sWS+1}]
    s_lshr_b32 s{sT}, s2, 7
    s_mul_i32 s{sT}, s{sT}, {MB(1)-MB(0)}
    s_and_b32 s{sT2}, s2, 127
    s_lshl_b32 s{sT2}, s{sT2}, 12
    s_add_u32 s{sT}, s{sT}, s{sT2}
    s_add_u32 s{sT}, s{sT}, {MB(0)+8192}
    v_add_u32 v53, s{sT}, v52
    global_store_dwordx4 v53, v[48:51], s[{sWS}:{sWS+1}]
    """)
    nf = k.lab('Lnf'); nm = k.lab('Lnm')
    k(f"""
    s_cmp_lg_u32 s{sW}, 0
    s_cbranch_scc1 {nf}
    v_mov_b32 v54, 0
    v_lshlrev_b32 v55, 2, v40
    s_lshl_b32 s{sT}, s2, 8
    v_add_u32 v55, s{sT}, v55
    global_store_dword v55, v54, s[{sWS}:{sWS+1}]
    """)
    k.label(nf)
    k(f"""
    s_cmp_ge_u32 s2, 4
    s_cbranch_scc1 {nm}
    s_and_b32 s{sT}, s2, 1
    s_lshl_b32 s{sT}, s{sT}, 12
    v_add_u32 v56, s{sT}, v52
    global_load_dwordx4 v[60:63], v56, s[12:13]
    s_lshr_b32 s{sT}, s2, 1
    s_mul_i32 s{sT}, s{sT}, {MB(1)-MB(0)}
    s_add_u32 s{sT}, s{sT}, {MB(0)}
    v_add_u32 v56, s{sT}, v56
    s_waitcnt vmcnt(0)
    global_store_dwordx4 v56, v[60:63], s[{sWS}:{sWS+1}]
    """)
    k.label(nm)
    k(f"""
    s_waitcnt vmcnt(0)
    v_add_u32 v53, {XR(0)}, v{vCA}
    global_store_dwordx4 v53, {v(X,4)}, s[{sWS}:{sWS+1}]
    global_store_dwordx4 v53, {v(X+4,4)}, s[{sWS}:{sWS+1}] offset:512
    """)
    def red():
        for val in (SUM, SQ):
            k(f"s_nop 1\nv_add_f32_dpp v{val}, v{val}, v{val} row_ror:8 row_mask:0xf bank_mask:0xf")
            xlane(k, 'v_add_f32', val, T0)
        k(f"ds_write_b64 v{vLW}, v[{SUM}:{SQ}]\ns_waitcnt lgkmcnt(0)\ns_barrier")
        for w in range(4): k(f"ds_read_b64 {v(R4+2*w,2)}, v{vLR} offset:{w*64}")
        k(f"""
        s_waitcnt lgkmcnt(0)
        v_add_f32 v{R4}, v{R4}, v{R4+2}
        v_add_f32 v{R4+1}, v{R4+1}, v{R4+3}
        v_add_f32 v{R4+4}, v{R4+4}, v{R4+6}
        v_add_f32 v{R4+5}, v{R4+5}, v{R4+7}
        v_add_f32 v{SUM}, v{R4}, v{R4+4}
        v_add_f32 v{SQ}, v{R4+1}, v{R4+5}
        """)
    ln_stats(k, X, 8, SUM, SQ, T0, red)
    ln_apply(k, X, 8, SUM, SQ, XN, T0, T1)
    k(f"""
    v_add_u32 v53, {XNA(0)}, v{vCA}
    global_store_dwordx4 v53, {v(XN,4)}, s[{sWS}:{sWS+1}]
    global_store_dwordx4 v53, {v(XN+4,4)}, s[{sWS}:{sWS+1}] offset:512
    s_waitcnt vmcnt(0)
    """)
    k.label(END)
    k("s_endpgm")
```

```python
from common import *
vL=0; vRD=1; vFLG=2; vTMP=3; vA=8; vACC=32
ONES=0x3f803f80

def lane_ids(k):
    k(f"""
    v_and_b32 v40, 63, v0
    v_and_b32 v41, 31, v40
    v_lshrrev_b32 v42, 5, v40
    v_and_b32 v43, 15, v40
    v_lshrrev_b32 v44, 4, v40
    """)

def load_W64(k, ka, row_stride, col_byte_code):
    k(f"""
    v_lshrrev_b32 v45, 3, v40
    v_mul_u32_u24 v45, {row_stride}, v45
    v_and_b32 v46, 7, v40
    v_lshl_add_u32 v45, v46, 4, v45
    ; tr read address: rows 8*kh + i/4 ; cols 16*(gamma%2) + 4*(i%4)
    v_lshrrev_b32 v46, 2, v43
    v_lshl_add_u32 v46, v42, 3, v46         ; 8kh + i/4
    v_lshlrev_b32 v46, 7, v46               ; *128
    v_and_b32 v47, 1, v44
    v_lshl_add_u32 v46, v47, 5, v46         ; + 32B*(gamma%2)
    v_and_b32 v47, 3, v43
    v_lshl_add_u32 v46, v47, 3, v46         ; + 8B*(i%4)
    s_lshl_b32 s{sT2}, s{sW}, 15
    v_add_u32 v46, s{sT2}, v46
    """)
    for rnd in range(2):
        k(f"s_load_dwordx2 s[{sP}:{sP+1}], s[0:1], {ka}")
        k(col_byte_code)
        k(f"""
        s_add_u32 s{sT}, s{sT}, {rnd*256*row_stride}
        s_lshl_b32 s{sT3}, s{sW}, 15
        s_waitcnt lgkmcnt(0)
        s_add_u32 s{sP}, s{sP}, s{sT}
        s_addc_u32 s{sP+1}, s{sP+1}, 0
        """)
        for u in range(32):
            k(f"s_mov_b32 m0, s{sT3}\ns_add_u32 s{sT3}, s{sT3}, 1024\nglobal_load_lds_dwordx4 v45, s[{sP}:{sP+1}]")
            adv(k, sP, 8*row_stride)
        k("s_waitcnt vmcnt(0)")
        n = 0
        for ksl in range(16):
            ks = rnd*16 + ksl
            for ct in range(2):
                for hf in range(2):
                    r = (ct*32 + ks)*4 + 2*hf
                    k(f"ds_read_b64_tr_b16 {a(r,2)}, v46 offset:{(16*ksl + 4*hf)*128 + ct*64}")
                    n += 1
                    if n % 8 == 0: k("s_waitcnt lgkmcnt(0)")
        k("s_waitcnt lgkmcnt(0)")

def gemm64_compute(k, hook, wA):
    def rd(ks): k(f"ds_read_b128 {v(vA + 4*(ks%4),4)}, v{vRD} offset:{ks*1024}")
    for ks in range(3): rd(ks)
    for ks in range(32):
        if ks + 3 < 32: rd(ks + 3)
        k(f"s_waitcnt lgkmcnt({min(3, 31-ks)})")
        x = v(vA + 4*(ks % 4), 4)
        for ct in range(2):
            w = a((ct*32 + ks)*4, 4); acc = v(vACC + 16*ct, 16)
            c = "0" if ks == 0 else acc
            if wA: k(f"v_mfma_f32_32x32x16_bf16 {acc}, {w}, {x}, {c}")
            else: k(f"v_mfma_f32_32x32x16_bf16 {acc}, {x}, {w}, {c}")
        if ks == 10: hook(0)
        if ks == 21: hook(1)

def toggle32k(k):
    k(f"v_xor_b32 v{vRD}, 0x8000, v{vRD}\ns_xor_b32 s{sM0}, s{sM0}, 0x8000")
def dma_linear(k, nkb, item_stride):
    for blk in range(nkb // 4):
        k(f"s_add_u32 s{sT}, s{sM0}, {blk*4096}\ns_mov_b32 m0, s{sT}\ns_nop 0")
        for u in range(4):
            k(f"global_load_lds_dwordx4 v{vL}, s[{sIN}:{sIN+1}] offset:{u*1024} sc1")
        adv(k, sIN, 4096 if blk < nkb // 4 - 1 else item_stride - (nkb - 4) * 1024)
def dma32k(k): dma_linear(k, 8, 32768)

def init_bufs32k(k):
    k(f"""
    v_lshlrev_b32 v{vL}, 4, v40
    v_xor_b32 v{vRD}, 0x8000, v{vL}
    s_lshl_b32 s{sM0}, s{sW}, 13
    """)

def emit_T3(k, vtype):
    name = 'T3v' if vtype else 'T3q'
    sHH = 33; sMU = 34
    k(f"""
    s_lshr_b32 s{sMU}, s{sIDX}, 4
    s_and_b32 s{sT}, s{sIDX}, 15
    s_lshl_b32 s{sT}, s{sT}, 1
    s_lshr_b32 s{sT2}, s{sW}, 1
    s_add_u32 s{sHH}, s{sT}, s{sT2}          ; head
    """)
    lane_ids(k)
    colcode = f"s_lshl_b32 s{sT}, s{sHH}, 8\ns_and_b32 s{sT2}, s{sW}, 1\ns_lshl_b32 s{sT2}, s{sT2}, 7\ns_add_u32 s{sT}, s{sT}, s{sT2}"
    if vtype:
        load_W64(k, KA_WV, 8192, colcode)
    else:
        lq = k.lab('Lq'); le = k.lab('Le')
        k(f"s_cmp_lg_u32 s{sMU}, 0\ns_cbranch_scc1 {lq}")
        load_W64(k, KA_WQ, 8192, colcode)
        k(f"s_branch {le}")
        k.label(lq)
        load_W64(k, KA_WK, 8192, colcode)
        k.label(le)
    vCS = 64
    for r in range(4): k(f"v_mov_b32 v{vA+r}, {ONES}")
    k("s_nop 1")
    for ks in range(32):
        for ct in range(2):
            w = a((ct*32 + ks)*4, 4); acc = v(vCS + 16*ct, 16); c = "0" if ks == 0 else acc
            if not vtype: k(f"v_mfma_f32_32x32x16_bf16 {acc}, {w}, {v(vA,4)}, {c}")
            else: k(f"v_mfma_f32_32x32x16_bf16 {acc}, {v(vA,4)}, {w}, {c}")
    k.nop(12)
    k("s_barrier")
    init_bufs32k(k)
    k(f"""
    s_mul_i32 s{sT}, s{sL}, {F_TW(1)-F_TW(0)}
    s_add_u32 s{sT}, s{sT}, {F_TW(0)}
    v_and_b32 v{vFLG}, 1, v40
    v_lshlrev_b32 v{vFLG}, 2, v{vFLG}
    v_add_u32 v{vFLG}, s{sT}, v{vFLG}
    s_mov_b32 s{sFL}, s{sWS}
    s_mov_b32 s{sFL+1}, s{sWS+1}
    """)
    base(k, sOWN, F_T3, f"s_lshl_b32 s{sT}, s{sIDX}, 2")
    base(k, sIN, X1, f"s_lshl_b32 s{sT}, s{sW}, 13")
    base(k, sAX1, ST1)
    def outbase(fn):
        base(k, sOUT, fn, f"s_lshl_b32 s{sT}, s{sHH}, 13\ns_and_b32 s{sT3}, s{sW}, 1\ns_lshl_b32 s{sT3}, s{sT3}, {10 if vtype else 12}\ns_add_u32 s{sT}, s{sT}, s{sT3}")
    if vtype: outbase(VT)
    else:
        lq = k.lab('Lq'); le = k.lab('Le')
        k(f"s_cmp_lg_u32 s{sMU}, 0\ns_cbranch_scc1 {lq}")
        outbase(QT); k(f"s_branch {le}"); k.label(lq); outbase(KT); k.label(le)
    vST = 4
    vVS0 = 5; vVS1 = 6; vSC = 7
    k(f"""
    v_lshlrev_b32 v{vST}, 10, v42
    v_lshl_add_u32 v{vST}, v41, 3, v{vST}
    v_lshlrev_b32 v{vVS0}, 11, v42
    v_lshl_add_u32 v{vVS0}, v41, 4, v{vVS0}
    v_add_u32 v{vVS1}, 4096, v{vVS0}
    s_lshl_b32 s{sT}, s{sW}, 8
    s_add_u32 s{sT}, s{sT}, 65536
    v_lshlrev_b32 v{vSC}, 2, v41
    v_add_u32 v{vSC}, s{sT}, v{vSC}
    v_lshlrev_b32 v45, 4, v42
    v_add_u32 v45, s{sT}, v45
    v_mov_b32 v31, v45
    """)
    vSR = 31
    vS = 24
    RS = 96; MR = 97
    def set_need(k): k(f"s_add_u32 s{sNEED}, s{sT3}, 1")
    def item_start(k):
        for p in range(4):
            k(f"global_load_dwordx2 {v(100+2*p,2)}, v{vST}, s[{sAX1}:{sAX1+1}] offset:{p*256} sc1")
        adv(k, sAX1, 2048)
    def compute(k, hook): gemm64_compute(k, hook, not vtype)
    def epilogue(k):
        k(f"""
        s_waitcnt vmcnt(0)
        v_add_f32 v100, v100, v102
        v_add_f32 v101, v101, v103
        v_add_f32 v104, v104, v106
        v_add_f32 v105, v105, v107
        v_add_f32 v100, v100, v104
        v_add_f32 v101, v101, v105
        v_mov_b32 v102, v100
        v_mov_b32 v103, v101
        s_nop 1
        v_permlane32_swap_b32 v100, v102
        v_permlane32_swap_b32 v101, v103
        v_add_f32 v100, v100, v102
        v_add_f32 v101, v101, v103
        v_mul_f32 v100, 0x3b000000, v100        ; mean
        v_mul_f32 v101, 0x3b000000, v101        ; E[x^2]
        v_fma_f32 v101, -v100, v100, v101       ; var
        v_max_f32 v101, 0, v101
        v_add_f32 v101, 0x3727c5ac, v101        ; + 1e-5
        v_rsq_f32 v{RS}, v101
        s_nop 0
        v_mul_f32 v{MR}, v100, v{RS}
        """)
        if not vtype:
            for r in range(32):
                k(f"v_mul_f32 v{vACC+r}, v{vACC+r}, v{RS}")
                k(f"v_fma_f32 v{vACC+r}, -v{MR}, v{vCS+r}, v{vACC+r}")
            for ct in range(2):
                for jp in range(2):
                    b = vACC + 16*ct + 8*jp; d = 100 + 4*(2*ct+jp)
                    for q in range(4): k(f"v_cvt_pk_bf16_f32 v{d+q}, v{b+2*q}, v{b+2*q+1}")
                    k("s_nop 1")
                    k(f"v_permlane32_swap_b32 v{d}, v{d+2}\nv_permlane32_swap_b32 v{d+1}, v{d+3}")
                    k(f"global_store_dwordx4 v{vL}, {v(d,4)}, s[{sOUT}:{sOUT+1}] offset:{(4*ct+2*jp)*512} sc1")
        else:
            k(f"""
            ds_write_b32 v{vSC}, v{RS}
            ds_write_b32 v{vSC}, v{MR} offset:128
            s_waitcnt lgkmcnt(0)
            """)
            for jj in range(4):
                k(f"ds_read_b128 {v(100+4*jj,4)}, v{vSR} offset:{jj*32}")
                k(f"ds_read_b128 {v(116+4*jj,4)}, v{vSR} offset:{128+jj*32}")
            k("s_waitcnt lgkmcnt(0)")
            for ct in range(2):
                cs = vCS + 16*ct
                for R in range(16):
                    r = vACC + 16*ct + R
                    k(f"v_mul_f32 v{r}, v{r}, v{100+R}")
                    k(f"v_fma_f32 v{r}, -v{116+R}, v{cs}, v{r}")
            for ct in range(2):
                for aa in range(2):
                    d = 132 + 4*(2*ct+aa); b0 = vACC + 16*ct + 4*aa; b1 = b0 + 8
                    k(f"v_cvt_pk_bf16_f32 v{d}, v{b0}, v{b0+1}\nv_cvt_pk_bf16_f32 v{d+1}, v{b0+2}, v{b0+3}")
                    k(f"v_cvt_pk_bf16_f32 v{d+2}, v{b1}, v{b1+1}\nv_cvt_pk_bf16_f32 v{d+3}, v{b1+2}, v{b1+3}")
                    k(f"global_store_dwordx4 v{vVS1 if aa else vVS0}, {v(d,4)}, s[{sOUT}:{sOUT+1}] offset:{ct*512} sc1")
        adv(k, sOUT, 262144)
    def comp2(k, hook):
        compute(k, hook); k.nop(12)
    skeleton(k, name, 2, NSEG, set_need, dma32k, item_start, comp2, epilogue, vFLG, vTMP, vL, toggle32k)

def emit_TW(k):
    lane_ids(k)
    load_W64(k, KA_WOA, 1024, f"s_lshl_b32 s{sT}, s{sIDX}, 9\ns_lshl_b32 s{sT2}, s{sW}, 7\ns_add_u32 s{sT}, s{sT}, s{sT2}")
    k("s_barrier")
    init_bufs32k(k)
    k(f"""
    s_mul_i32 s{sT}, s{sL}, {F_TA(1)-F_TA(0)}
    s_add_u32 s{sT}, s{sT}, {F_TA(0)}
    v_and_b32 v{vFLG}, 7, v40
    v_lshlrev_b32 v{vFLG}, 2, v{vFLG}
    v_add_u32 v{vFLG}, s{sT}, v{vFLG}
    s_mov_b32 s{sFL}, s{sWS}
    s_mov_b32 s{sFL+1}, s{sWS+1}
    """)
    base(k, sOWN, F_TW, f"s_lshl_b32 s{sT}, s{sIDX}, 2")
    base(k, sIN, OA, f"s_lshl_b32 s{sT}, s{sW}, 13")
    colx = f"s_lshl_b32 s{sT}, s{sIDX}, 14\ns_lshl_b32 s{sT3}, s{sW}, 12\ns_add_u32 s{sT}, s{sT}, s{sT3}"
    base(k, sAX1, XR, colx)
    base(k, sOUT, X1, colx)
    base(k, sAX2, ST1, f"s_lshl_b32 s{sT}, s{sIDX}, 2\ns_add_u32 s{sT}, s{sT}, s{sW}\ns_lshl_b32 s{sT}, s{sT}, 8")
    vX = 4; vSS = 5
    k(f"""
    v_lshlrev_b32 v{vX}, 4, v41
    v_lshl_add_u32 v{vX}, v42, 3, v{vX}      ; n*16 + hi*8
    v_lshlrev_b32 v{vSS}, 3, v41             ; n*8
    """)
    def set_need(k): k(f"s_add_u32 s{sNEED}, s{sT3}, 1")
    def item_start(k):
        for ct in range(2):
            for jj in range(4):
                k(f"global_load_dwordx2 {v(64+2*(4*ct+jj),2)}, v{vX}, s[{sAX1}:{sAX1+1}] offset:{(4*ct+jj)*512} sc1")
        adv(k, sAX1, 32768)
    def comp2(k, hook):
        gemm64_compute(k, hook, True); k.nop(12)
    def epilogue(k):
        k("s_waitcnt vmcnt(0)")
        k("v_mov_b32 v96, 0\nv_mov_b32 v97, 0")
        k(f"s_mov_b32 s{sT}, {ONES}")
        for ct in range(2):
            for jj in range(4):
                x = 64 + 2*(4*ct+jj); b = vACC + 16*ct + 4*jj
                k(f"""
                v_lshlrev_b32 v98, 16, v{x}
                v_and_b32 v99, 0xffff0000, v{x}
                v_add_f32 v{b}, v{b}, v98
                v_add_f32 v{b+1}, v{b+1}, v99
                v_lshlrev_b32 v98, 16, v{x+1}
                v_and_b32 v99, 0xffff0000, v{x+1}
                v_add_f32 v{b+2}, v{b+2}, v98
                v_add_f32 v{b+3}, v{b+3}, v99
                v_cvt_pk_bf16_f32 v{x}, v{b}, v{b+1}
                v_cvt_pk_bf16_f32 v{x+1}, v{b+2}, v{b+3}
                global_store_dwordx2 v{vX}, {v(x,2)}, s[{sOUT}:{sOUT+1}] offset:{(4*ct+jj)*512} sc1
                v_dot2_f32_bf16 v96, v{x}, s{sT}, v96
                v_dot2_f32_bf16 v97, v{x}, v{x}, v97
                v_dot2_f32_bf16 v96, v{x+1}, s{sT}, v96
                v_dot2_f32_bf16 v97, v{x+1}, v{x+1}, v97
                """)
        k(f"""
        s_nop 2
        v_mov_b32 v98, v96
        v_mov_b32 v99, v97
        s_nop 1
        v_permlane32_swap_b32 v96, v98
        v_permlane32_swap_b32 v97, v99
        v_add_f32 v96, v96, v98
        v_add_f32 v97, v97, v99
        s_mov_b64 exec, 0xffffffff
        global_store_dwordx2 v{vSS}, v[96:97], s[{sAX2}:{sAX2+1}] sc1
        s_mov_b64 exec, -1
        """)
        adv(k, sAX2, 2048)
        adv(k, sOUT, 32768)
    skeleton(k, 'TW', 3, NSEG, set_need, dma32k, item_start, comp2, epilogue, vFLG, vTMP, vL, toggle32k)

def emit_T5(k):
    sKQ = 33; sNQ = 34
    k(f"s_lshr_b32 s{sKQ}, s{sIDX}, 2\ns_and_b32 s{sNQ}, s{sIDX}, 3")
    lane_ids(k)
    k(f"""
    v_lshrrev_b32 v45, 2, v40
    v_lshlrev_b32 v45, 10, v45
    v_and_b32 v46, 3, v40
    v_lshl_add_u32 v45, v46, 4, v45          ; dma lane offset: row l/4, chunk l%4
    ; tr address: row = 4*kh + i/4 ; col bytes 32*(gamma%2) + 8*(i%4)
    v_lshrrev_b32 v46, 2, v43
    v_lshl_add_u32 v46, v42, 2, v46
    v_lshlrev_b32 v46, 6, v46
    v_and_b32 v47, 1, v44
    v_lshl_add_u32 v46, v47, 5, v46
    v_and_b32 v47, 3, v43
    v_lshl_add_u32 v46, v47, 3, v46
    s_lshl_b32 s{sT2}, s{sW}, 15
    v_add_u32 v46, s{sT2}, v46
    """)
    for rnd in range(2):
        k(f"s_load_dwordx2 s[{sP}:{sP+1}], s[0:1], {KA_WO}")
        k(f"""
        s_lshl_b32 s{sT}, s{sKQ}, 20
        s_lshl_b32 s{sT2}, s{sNQ}, 8
        s_add_u32 s{sT}, s{sT}, s{sT2}
        s_lshl_b32 s{sT2}, s{sW}, 6
        s_add_u32 s{sT}, s{sT}, s{sT2}
        s_add_u32 s{sT}, s{sT}, {rnd*512*1024}
        s_lshl_b32 s{sT3}, s{sW}, 15
        s_waitcnt lgkmcnt(0)
        s_add_u32 s{sP}, s{sP}, s{sT}
        s_addc_u32 s{sP+1}, s{sP+1}, 0
        """)
        for u in range(32):
            k(f"s_mov_b32 m0, s{sT3}\ns_add_u32 s{sT3}, s{sT3}, 1024\nglobal_load_lds_dwordx4 v45, s[{sP}:{sP+1}]")
            adv(k, sP, 16*1024)
        k("s_waitcnt vmcnt(0)")
        n = 0
        for ksl in range(32):
            ks = rnd*32 + ksl
            hl = ksl // 8; u = (ksl // 2) % 4; gb = 2 * (ks % 2)
            for aa in range(2):
                row = hl*128 + 32*u + 16*aa + 4*gb
                k(f"ds_read_b64_tr_b16 {a(ks*4 + 2*aa, 2)}, v46 offset:{row*64}")
                n += 1
                if n % 8 == 0: k("s_waitcnt lgkmcnt(0)")
        k("s_waitcnt lgkmcnt(0)")
    k("s_barrier")
    k(f"""
    v_lshlrev_b32 v{vL}, 4, v40
    v_xor_b32 v{vRD}, 0x10000, v{vL}
    s_lshl_b32 s{sM0}, s{sW}, 14
    s_mul_i32 s{sT}, s{sL}, {F_T4(1)-F_T4(0)}
    s_add_u32 s{sT}, s{sT}, {F_T4(0)}
    s_lshl_b32 s{sT2}, s{sKQ}, 6
    s_add_u32 s{sT}, s{sT}, s{sT2}
    v_and_b32 v4, 7, v40
    v_lshlrev_b32 v4, 3, v4
    v_add_u32 v4, s{sT}, v4
    s_mov_b32 s{sFL}, s{sWS}
    s_mov_b32 s{sFL+1}, s{sWS+1}
    """)
    base(k, sOWN, F_T5, f"s_lshl_b32 s{sT}, s{sIDX}, 2")
    base(k, sIN, OT, f"s_lshl_b32 s{sT}, s{sKQ}, 16\ns_lshl_b32 s{sT3}, s{sW}, 14\ns_add_u32 s{sT}, s{sT}, s{sT3}")
    base(k, sOUT, PT, f"s_lshl_b32 s{sT}, s{sKQ}, 16\ns_lshl_b32 s{sT3}, s{sNQ}, 14\ns_add_u32 s{sT}, s{sT}, s{sT3}\ns_lshl_b32 s{sT3}, s{sW}, 12\ns_add_u32 s{sT}, s{sT}, s{sT3}")
    def set_need(k):
        k(f"s_add_u32 s{sNEED}, s{sT3}, 1\ns_and_b32 s{sT}, s{sT3}, 1\ns_lshl_b32 s{sT}, s{sT}, 2\nv_add_u32 v{vFLG}, s{sT}, v4")
    def dma(k): dma_linear(k, 16, 262144)
    def toggle(k): k(f"v_xor_b32 v{vRD}, 0x10000, v{vRD}\ns_xor_b32 s{sM0}, s{sM0}, 0x10000")
    def comp(k, hook):
        def rd(ks): k(f"ds_read_b128 {v(vA + 4*(ks%4),4)}, v{vRD} offset:{ks*1024}")
        for ks in range(3): rd(ks)
        for ks in range(64):
            if ks + 3 < 64: rd(ks + 3)
            k(f"s_waitcnt lgkmcnt({min(3, 63-ks)})")
            acc = v(vACC, 16); c = "0" if ks == 0 else acc
            k(f"v_mfma_f32_32x32x16_bf16 {acc}, {a(ks*4,4)}, {v(vA + 4*(ks%4),4)}, {c}")
            if ks == 20: hook(0)
            if ks == 42: hook(1)
        k.nop(12)
    def epilogue(k):
        for jj in range(4):
            k(f"global_store_dwordx4 v{vL}, {v(vACC+4*jj,4)}, s[{sOUT}:{sOUT+1}] offset:{jj*1024} sc1")
        adv(k, sOUT, 262144)
    skeleton(k, 'T5', 5, NSEG, set_need, dma, lambda k: None, comp, epilogue, vFLG, vTMP, vL, toggle)
```

```python
import sys, mega
name = "interleave_layers__sliding_local_dilated__memory_aug_recurrent_mem_tr__prompt"
mode = sys.argv[1] if len(sys.argv) > 1 else 'concurrent'
dst = sys.argv[2] if len(sys.argv) > 2 else f"cdna_kernels/{name}.s"
for a_ in sys.argv[3:]:
    kk, vv = a_.split('=')
    if kk == 'swapr': mega.SWAPR[0] = int(vv)
    if kk == 'tlb': mega.TLBPF[0] = int(vv)
    if kk == 'pf': mega.CODEPF[0] = int(vv)
    if kk == 'out': mega.rolesA.OUTFLAG[0] = vv.replace('none', '')
txt, errs = mega.build(mode)
assert not errs, errs
hdr = """; Pipelined multi-role persistent kernel (hand-written generator output).
; kernarg: x, wqkv, wo, B_x(unused), mem0, Wq, Wk, Wv, Wo, seg_len(=32), out, debug, ws
"""
open(dst, "w").write(hdr + txt)
print("written", dst, len(hdr + txt))
```

```python
from fw import *
from layout import *
SPIN = 1 << 18
sIDX=4; sW=5; sL=6; sS=7; sWS=8; sIN=10; sFL=12; sNEED=14; sISS=15; sSPIN=16; sT=17; sT2=18; sT3=19
sOUT=20; sAX1=22; sAX2=24; sOWN=26; sM0=28; sP=30; sTO=32
def base(k, dst, off_fn, extra=None):
    k(f"s_mul_i32 s{sT2}, s{sL}, {off_fn(1) - off_fn(0)}")
    k(f"s_add_u32 s{sT2}, s{sT2}, {off_fn(0)}")
    if extra:
        k(extra)
        k(f"s_add_u32 s{sT2}, s{sT2}, s{sT}")
    k(f"s_add_u32 s{dst}, s{sWS}, s{sT2}\ns_addc_u32 s{dst+1}, s{sWS+1}, 0")
def adv(k, pair, n):
    k(f"s_add_u32 s{pair}, s{pair}, {n}\ns_addc_u32 s{pair+1}, s{pair+1}, 0")
def timeout_block(k, lab, code):
    k.label(lab)
    k(f"""
    s_load_dwordx2 s[{sP}:{sP+1}], s[0:1], {KA_DBG}
    s_waitcnt lgkmcnt(0)
    s_mov_b64 exec, 1
    v_mov_b32 v2, {128 + 4*code}
    v_mov_b32 v3, s{sS}
    v_add_u32 v3, 0x10000, v3
    global_store_dword v2, v3, s[{sP}:{sP+1}] sc1
    s_waitcnt vmcnt(0)
    s_endpgm
    """)
def poll_block(k, vflg, vtmp, tolab, flagbase=sFL, need=sNEED):
    lab = k.lab('Lp')
    k(f"s_mov_b32 s{sSPIN}, 0")
    k.label(lab)
    k(f"""
    global_load_dword v{vtmp}, v{vflg}, s[{flagbase}:{flagbase+1}] sc1
    s_add_u32 s{sSPIN}, s{sSPIN}, 1
    s_cmp_gt_u32 s{sSPIN}, {SPIN}
    s_cbranch_scc1 {tolab}
    s_waitcnt vmcnt(0)
    v_cmp_gt_u32 vcc, s{need}, v{vtmp}
    s_cbranch_vccnz {lab}
    """)
def publish(k, vzero_lane0, vtmp, val_sgpr, wave0_only=False):
    sk = k.lab('Lpub')
    if wave0_only: k(f"s_cmp_lg_u32 s{sW}, 0\ns_cbranch_scc1 {sk}")
    k(f"""
    v_mov_b32 v{vtmp}, s{val_sgpr}
    s_mov_b64 exec, 1
    global_store_dword v{vzero_lane0}, v{vtmp}, s[{sOWN}:{sOWN+1}] sc1
    s_mov_b64 exec, -1
    """)
    k.label(sk)

sPEND = 35
def skeleton(k, name, code, nitems, set_need, issue_dma, item_start, compute, epilogue, vflg, vtmp, vL16, toggle, nst):
    TO = k.lab('Lto' + name); LOOP = k.lab('Lit' + name)
    vpub = vtmp + 4 if False else vtmp
    k(f"s_mov_b32 s{sS}, 0\ns_mov_b32 s{sT3}, 0\ns_mov_b32 s{sPEND}, 0")
    mark(k, 1)
    set_need(k)
    poll_block(k, vflg, vtmp, TO)
    mark(k, 2)
    issue_dma(k)
    k("s_waitcnt vmcnt(0)\ns_barrier")
    k.label(LOOP)
    toggle(k)
    k(f"s_add_u32 s{sT3}, s{sS}, 1")
    set_need(k)
    k(f"s_cmp_ge_u32 s{sT3}, {nitems}\ns_cselect_b32 s{sISS}, 1, 0")
    item_start(k)
    k(f"global_load_dword v{vtmp}, v{vflg}, s[{sFL}:{sFL+1}] sc1")
    def hook(n):
        sk = k.lab('Lhk')
        if n == 0:
            np_ = k.lab('Lnp')
            k("s_waitcnt vmcnt(0)")
            k(f"v_cmp_gt_u32 vcc, s{sNEED}, v{vtmp}")
            k(f"s_cmp_eq_u32 s{sPEND}, 0\ns_cbranch_scc1 {np_}")
            publish(k, vL16, vtmp, sS)
            k(f"s_mov_b32 s{sPEND}, 0")
            k.label(np_)
            k(f"s_cmp_lg_u32 s{sISS}, 0\ns_cbranch_scc1 {sk}")
        else:
            k(f"s_cmp_lg_u32 s{sISS}, 0\ns_cbranch_scc1 {sk}")
            k(f"s_waitcnt vmcnt(0)\nv_cmp_gt_u32 vcc, s{sNEED}, v{vtmp}")
        nr = k.lab('Lnr')
        k(f"s_cbranch_vccnz {nr}")
        issue_dma(k)
        k(f"s_mov_b32 s{sISS}, 1\ns_branch {sk}")
        k.label(nr)
        k(f"global_load_dword v{vtmp}, v{vflg}, s[{sFL}:{sFL+1}] sc1")
        k.label(sk)
    compute(k, hook)
    epilogue(k)
    k(f"s_add_u32 s{sS}, s{sS}, 1")
    late = k.lab('Llate'); join = k.lab('Ljoin')
    k(f"""
    s_cmp_ge_u32 s{sS}, {nitems}
    s_cbranch_scc1 {late}
    s_cmp_eq_u32 s{sISS}, 0
    s_cbranch_scc1 {late}
    s_waitcnt vmcnt({nst})
    s_mov_b32 s{sPEND}, 1
    s_branch {join}
    """)
    k.label(late)
    k("s_waitcnt vmcnt(0)")
    publish(k, vL16, vtmp, sS)
    k(f"s_cmp_ge_u32 s{sS}, {nitems}\ns_cbranch_scc1 {join}")
    poll_block(k, vflg, vtmp, TO)
    issue_dma(k)
    k("s_waitcnt vmcnt(0)")
    k.label(join)
    mark(k, 3, 1)
    mark(k, 4, 32)
    k(f"""
    s_barrier
    s_cmp_lt_u32 s{sS}, {nitems}
    s_cbranch_scc1 {LOOP}
    """)
    mark(k, 5)
    diag_dump(k, 2, 3)
    k("s_waitcnt vmcnt(0)\ns_endpgm")
    timeout_block(k, TO, code)

GATE = dict(T3=None, T5=None, TW=None, TA=None)
def wait_start(k, vaddr, vtmp, flag_off, need=1, gate0=None):
    sk = k.lab('Lws'); to = k.lab('Lwsto'); go = k.lab('Lwsg')
    k(f"""
    v_mov_b32 v{vaddr}, {flag_off}
    s_cmp_lg_u32 s{sL}, 0
    s_cbranch_scc1 {go}
    """)
    if gate0 is None: k(f"s_branch {sk}")
    else: k(f"v_mov_b32 v{vaddr}, {gate0}")
    k.label(go)
    k(f"""
    s_mov_b32 s{sFL}, s{sWS}
    s_mov_b32 s{sFL+1}, s{sWS+1}
    s_mov_b32 s{sNEED}, {need}
    s_mov_b32 s{sS}, 0
    """)
    poll_block(k, vaddr, vtmp, to)
    k(f"s_branch {sk}")
    timeout_block(k, to, 8)
    k.label(sk)
```

```python
import re

def v(i, n=1):
    return f"v{i}" if n == 1 else f"v[{i}:{i+n-1}]"
def a(i, n=1):
    return f"a{i}" if n == 1 else f"a[{i}:{i+n-1}]"
def s(i, n=1):
    return f"s{i}" if n == 1 else f"s[{i}:{i+n-1}]"

class Asm:
    def __init__(self):
        self.lines = []
        self.nlab = 0
    def __call__(self, text):
        for l in text.strip('\n').split('\n'):
            l = l.strip()
            if l:
                self.lines.append(l)
    def lab(self, base='L'):
        self.nlab += 1
        return f"{base}_{self.nlab}"
    def label(self, name):
        self.lines.append(name + ":")
    def nop(self, n):
        while n > 0:
            k = min(n, 16)
            self.lines.append(f"s_nop {k-1}")
            n -= k
    def text(self):
        out = []
        for l in self.lines:
            if l.endswith(':') or l.startswith('.') or l.startswith(';'):
                out.append(l)
            else:
                out.append("    " + l)
        return '\n'.join(out) + '\n'

REG = re.compile(r'^(-|abs\()?\s*([vas])(\d+)\)?$')
RNG = re.compile(r'^(-)?([vas])\[(\d+):(\d+)\]$')
def regs(op):
    op = op.strip()
    m = REG.match(op)
    if m: return {(m.group(2), int(m.group(3)))}
    m = RNG.match(op)
    if m: return {(m.group(2), i) for i in range(int(m.group(3)), int(m.group(4)) + 1)}
    if op == 'vcc': return {('s', 'vcc')}
    if op == 'exec': return {('s', 'exec')}
    if op == 'm0': return {('s', 'm0')}
    return set()

def split_ops(rest):
    ops = []; cur = ''; depth = 0
    for ch in rest:
        if ch in '[(': depth += 1
        if ch in '])': depth -= 1
        if ch == ',' and depth == 0:
            ops.append(cur.strip()); cur = ''
        else:
            cur += ch
    if cur.strip(): ops.append(cur.strip())
    mods = ''
    if ops:
        parts = ops[-1].split()
        if len(parts) > 1:
            ops[-1] = parts[0]; mods = ' '.join(parts[1:])
    return ops, mods

TRANS = ('v_exp_f32', 'v_log_f32', 'v_rcp_f32', 'v_rsq_f32', 'v_sqrt_f32', 'v_sin_f32', 'v_cos_f32', 'v_rcp_iflag_f32')
def passes(mn):
    if '32x32x' in mn: return 8
    if '16x16x' in mn: return 4
    if '4x4x' in mn: return 2
    raise ValueError(mn)

class Ins:
    __slots__ = ('text','mn','kind','dst','src','srcC','srcAB','dpp','data','addr','states','mods','wide')
def parse(line):
    line = line.split(';')[0].strip()
    if not line or line.endswith(':') or line.startswith('.'):
        return None
    parts = line.split(None, 1)
    mn = parts[0]; rest = parts[1] if len(parts) > 1 else ''
    ops, mods = split_ops(rest)
    i = Ins(); i.text = line; i.mn = mn; i.mods = mods
    i.dst = set(); i.src = set(); i.srcC = set(); i.srcAB = set(); i.data = set(); i.addr = set()
    i.dpp = ('dpp' in mn) or any(k in mods for k in ('quad_perm', 'row_', 'wave_'))
    i.states = 1; i.wide = False
    R = [regs(o) for o in ops]
    if mn == 's_nop':
        i.kind = 'nop'; i.states = int(ops[0], 0) + 1
    elif mn.startswith('v_mfma'):
        i.kind = 'mfma'; i.dst = R[0]; i.srcAB = R[1] | R[2]; i.srcC = R[3]; i.src = i.srcAB | i.srcC
    elif mn.startswith('v_smfmac'):
        i.kind = 'mfma'; i.dst = R[0]; i.srcAB = R[1] | R[2] | R[3]; i.srcC = R[0]; i.src = i.srcAB | i.srcC
    elif mn.startswith('v_'):
        i.kind = 'valu'
        if mn.startswith('v_cmp'):
            i.dst = R[0]; i.src = set().union(*R[1:])
        elif mn.startswith('v_permlane') and 'swap' in mn:
            i.dst = R[0] | R[1]; i.src = R[0] | R[1]
        elif mn.startswith(('v_add_co', 'v_sub_co', 'v_addc_co', 'v_subb_co', 'v_mad_u64')):
            i.dst = R[0] | R[1]; i.src = set().union(*R[2:])
        elif mn.startswith(('v_fmac', 'v_dot2c', 'v_pk_fmac')):
            i.dst = R[0]; i.src = set().union(*R)
        elif mn == 'v_nop':
            pass
        else:
            i.dst = R[0]; i.src = set().union(*R[1:]) if len(R) > 1 else set()
            if i.dpp: i.src |= R[0]
        if mn.startswith('v_cndmask') and len(ops) == 3: i.src |= {('s', 'vcc')}
    elif mn.startswith('ds_'):
        i.kind = 'ds'
        if mn.startswith('ds_read') or mn.startswith('ds_bpermute') or mn.startswith('ds_swizzle') or mn.startswith('ds_permute'):
            i.dst = R[0]; i.addr = set().union(*R[1:])
        else:
            i.addr = R[0]; i.data = set().union(*R[1:])
        i.src = i.addr | i.data
    elif mn.startswith('global_') or mn.startswith('buffer_'):
        i.kind = 'vmem'
        if mn.startswith('global_load_lds'):
            i.addr = set().union(*R)
        elif mn.startswith('global_load'):
            i.dst = R[0]; i.addr = set().union(*R[1:])
        elif mn.startswith('global_store'):
            i.addr = R[0] | (R[2] if len(R) > 2 else set()); i.data = R[1]
            i.wide = ('x3' in mn or 'x4' in mn)
        elif mn.startswith('global_atomic'):
            if 'sc0' in mods:
                i.dst = R[0]; i.addr = R[1] | (R[3] if len(R) > 3 else set()); i.data = R[2]
            else:
                i.addr = R[0] | (R[2] if len(R) > 2 else set()); i.data = R[1]
        elif mn.startswith('buffer_load'):
            if 'lds' in mods.split():
                i.addr = set().union(*R)
            else:
                i.dst = R[0]; i.addr = set().union(*R[1:])
        elif mn.startswith('buffer_store'):
            i.data = R[0]; i.addr = set().union(*R[1:]); i.wide = ('x3' in mn or 'x4' in mn)
        elif mn.startswith('buffer_'):
            pass
        i.src = i.addr | i.data
    elif mn.startswith('s_'):
        i.kind = 'salu'
        if mn.startswith(('s_cmp', 's_cbranch', 's_branch', 's_waitcnt', 's_barrier', 's_endpgm', 's_sleep', 's_setprio', 's_bitcmp')):
            i.src = set().union(*R) if R else set()
        else:
            i.dst = R[0] if R else set(); i.src = set().union(*R[1:]) if len(R) > 1 else set()
    else:
        raise ValueError("unknown instr: " + line)
    return i

def check(lines, name=''):
    ins = []
    for l in lines:
        p = parse(l)
        if p is not None: ins.append(p)
    errs = []
    N = len(ins)
    LOOK = 24
    for j, c in enumerate(ins):
        dist = 0
        for k in range(j - 1, max(-1, j - LOOK - 1), -1):
            p = ins[k]
            need = 0; why = ''
            vd = {r for r in p.dst if r[0] in 'va'}
            sd = {r for r in p.dst if r[0] == 's'}
            def upd(n, w):
                nonlocal need, why
                if n > need: need, why = n, w
            if p.kind == 'valu':
                if c.kind == 'mfma' and vd & c.src: upd(2, 'VALU->MFMA')
                if c.kind == 'valu' and c.mn.startswith('v_permlane') and vd & c.src: upd(2, 'VALU->permlane')
                if c.kind == 'valu' and c.dpp and vd & c.src: upd(2, 'VALU->DPP')
                if c.mn.startswith(('v_readlane', 'v_readfirstlane')) and vd & c.src: upd(1, 'VALU->readlane')
                if p.mn.startswith(TRANS) and c.kind == 'valu' and not c.mn.startswith(TRANS) and vd & c.src: upd(1, 'trans->VALU')
                if p.mn.startswith(TRANS) and c.kind in ('mfma',) and vd & c.src: upd(2, 'trans->mfma')
                if sd:
                    if c.kind == 'valu' and sd & c.src: upd(2, 'VALU sgpr->VALU const')
                    if c.kind == 'vmem' and sd & c.addr: upd(5, 'VALU sgpr->VMEM')
                    if c.kind == 'salu' and sd & c.src and not c.mn.startswith('s_cbranch'): upd(1, 'VALU sgpr->SALU (pad)')
            if p.kind == 'valu' and p.mn.startswith('v_dot'):
                if vd & (c.src | c.dst):
                    if c.mn == p.mn:
                        ops_c, _ = split_ops(c.text.split(None, 1)[1])
                        ab = regs(ops_c[1]) | regs(ops_c[2])
                        if vd & ab: upd(3, 'DOT->DOT A/B')
                    else: upd(3, 'DOT->other')
            if p.kind == 'mfma':
                ps = passes(p.mn)
                big = {2: 5, 4: 8, 8: 12, 16: 20}[ps]
                ovl = {2: 4, 4: 6, 8: 10, 16: 18}[ps]
                war = {2: 1, 4: 3, 8: 7, 16: 15}[ps]
                if c.kind == 'valu' and vd & (c.src | c.dst): upd(big, 'MFMA->VALU')
                if c.kind in ('ds', 'vmem') and vd & (c.src | c.dst): upd(big, 'MFMA->mem')
                if c.kind == 'mfma':
                    if vd & c.srcAB: upd(big, 'MFMA->MFMA A/B')
                    if vd & c.srcC:
                        if vd == c.srcC and c.mn == p.mn: upd(0 if ps >= 4 else 2, '')
                        else: upd(ovl, 'MFMA->MFMA C overlap')
                    elif vd & c.dst and vd != c.dst: upd(ovl, 'MFMA WAW overlap')
                if c.kind == 'valu' and p.srcC & c.dst: upd(war, 'MFMA srcC WAR')
            if p.kind == 'vmem' and p.wide:
                if p.data & c.dst:
                    upd(2 if c.kind == 'valu' else 1, 'wide store WAR')
            if p.kind == 'salu' and ('s', 'm0') in p.dst and c.kind == 'vmem' and ('lds' in c.mn or 'lds' in c.mods.split()): upd(1, 'M0->LDS DMA')
            if p.kind == 'salu' and ('s', 'exec') in p.dst and c.kind == 'valu' and c.dpp: upd(0, '')
            extra = 0
            if p.kind == 'mfma' and k + 1 <= j and ins[k+1].kind == 'mfma':
                extra = passes(p.mn) - 1
            if need > dist + extra:
                errs.append(f"[{name}] need {need} have {dist} ({why}):\n    P: {p.text}\n    C: {c.text}")
            dist += p.states + extra
            if dist >= 24: break
    return errs

DIAGON = [False]
def mark(k, i, first_only=None):
    if not DIAGON[0]: return
    sk = None
    if first_only is not None:
        sk = k.lab('Lmk')
        k(f"s_cmp_lg_u32 s7, {first_only}\ns_cbranch_scc1 {sk}")
    k(f"s_memrealtime s[94:95]\ns_waitcnt lgkmcnt(0)\ns_mov_b32 s{80+i}, s94")
    if sk: k.label(sk)
def diag_dump(k, vt0, vt1):
    if not DIAGON[0]: return
    sk = k.lab('Ldd')
    k(f"s_cmp_lg_u32 s5, 0\ns_cbranch_scc1 {sk}\ns_mov_b64 exec, 1\nv_mov_b32 v{vt0}, 0")
    for i in range(10):
        k(f"v_mov_b32 v{vt1}, s{80+i}\nglobal_store_dword v{vt0}, v{vt1}, s[90:91] offset:{4*i} sc1")
    k("s_mov_b64 exec, -1")
    k.label(sk)
```

```python
import sys
from fw import *
from layout import *
import common as C
import roleR4 as roleR, rolesG, rolesA

KD = """.amdhsa_kernel {name}
.amdhsa_next_free_vgpr {vgpr}
.amdhsa_next_free_sgpr 102
.amdhsa_accum_offset {acc}
.amdhsa_group_segment_fixed_size 0
.amdhsa_kernarg_size 104
.amdhsa_user_sgpr_count 2
.amdhsa_user_sgpr_kernarg_segment_ptr 1
.amdhsa_system_sgpr_workgroup_id_x 1
.amdhsa_float_denorm_mode_32 3
.end_amdhsa_kernel"""

def entry(k, name):
    k(f".globl {name}\n.p2align 8\n.type {name},@function")
    k.label(name)

def common_entry(k, END):
    k(f"""
    s_load_dwordx2 s[8:9], s[0:1], {KA_WS}
    v_readfirstlane_b32 s5, v0
    s_nop 1
    s_lshr_b32 s5, s5, 6
    s_waitcnt lgkmcnt(0)
    """)

def ticket(k, key_code, tag):
    k(key_code)
    k(f"""
    s_load_dwordx2 s[46:47], s[0:1], {KA_DBG}
    s_waitcnt lgkmcnt(0)
    s_cmp_lg_u32 s5, 0
    s_cbranch_scc1 L_tk{tag}
    s_mov_b64 exec, 1
    v_mov_b32 v1, s33
    v_lshlrev_b32 v1, 2, v1
    v_mov_b32 v2, 1
    global_atomic_add v3, v1, v2, s[46:47] sc0 sc1
    s_waitcnt vmcnt(0)
    v_mov_b32 v1, 0
    ds_write_b32 v1, v3
    s_waitcnt lgkmcnt(0)
    s_mov_b64 exec, -1
L_tk{tag}:
    s_barrier
    v_mov_b32 v1, 0
    ds_read_b32 v3, v1
    s_waitcnt lgkmcnt(0)
    v_readfirstlane_b32 s4, v3
    s_barrier
    """)

ROLES = ['R', 'T3q', 'T3v', 'TW', 'T5', 'TA', 'T4', 'T6']
def emit_roles(k, use_flags=True, stamp=0):
    errs = []
    def role(label, fn):
        n0 = len(k.lines)
        k.label(label)
        fn()
        errs.extend(check(k.lines[n0:], label))
    def R():
        roleR.emit_R_prologue(k, 6)
        roleR.emit_R_loop(k, True, use_flags, stamp)
    role('ROLE_R', R)
    role('ROLE_T3q', lambda: rolesG.emit_T3(k, False))
    role('ROLE_T3v', lambda: rolesG.emit_T3(k, True))
    role('ROLE_TW', lambda: rolesG.emit_TW(k))
    role('ROLE_T5', lambda: rolesG.emit_T5(k))
    role('ROLE_TA', lambda: rolesA.emit_TA(k))
    role('ROLE_T4', lambda: rolesA.emit_T4(k))
    role('ROLE_T6', lambda: rolesA.emit_T6(k))
    return errs

def build(mode, stamp=0, diag=False):
    DIAGON[0] = diag
    k = Asm()
    kernels = []
    launches = [("k0_kernel", 256, 1024)]
    if mode == 'serial':
        seq = [('TA', 8), ('TW', 2), ('T3', 48), ('R', 256), ('T4', 16), ('T5', 16), ('T6', 4)]
        for l in range(2):
            for r, n in seq:
                launches.append((f"s{r}{l}_kernel", n, 163840))
    else:
        launches.append(("mega_kernel", 256, 163840))
    hdr = [f"; @launch kernel={n} grid=({g},1,1) block=(256,1,1) lds={lds}" for n, g, lds in launches]
    k.lines.extend(hdr)
    k('.amdgcn_target "amdgcn-amd-amdhsa--gfx950"\n.text')
    entry(k, "k0_kernel")
    n0 = len(k.lines)
    rolesA.emit_K0(k)
    errs = check(k.lines[n0:], 'K0')
    kernels.append(("k0_kernel", 64, 64))
    if mode == 'serial':
        k.label("CODE_BEGIN")
        for (name, g, lds) in launches[1:]:
            r = name[1:-8]; l = int(name[-8])
            entry(k, name)
            k(f"s_cmp_ge_u32 s2, {g}\ns_cbranch_scc1 L_exit_{name}")
            common_entry(k, None)
            k(f"s_mov_b32 s6, {l}")
            if r == 'R':
                k(f"s_getreg_b32 s33, hwreg(HW_REG_XCC_ID, 0, 4)\ns_cmp_lg_u32 s33, 0\ns_cbranch_scc1 L_exit_{name}")
                ticket(k, "s_mov_b32 s33, 0", name)
                k(f"s_cmp_ge_u32 s4, 32\ns_cbranch_scc1 L_exit_{name}\ns_branch ROLE_R")
            elif r == 'T3':
                k(f"s_mov_b32 s4, s2\ns_cmp_ge_u32 s4, 32\ns_cbranch_scc1 L_v_{name}\ns_branch ROLE_T3q\nL_v_{name}:\ns_branch ROLE_T3v")
            else:
                k(f"s_mov_b32 s4, s2\ns_branch ROLE_{r}")
            k(f"L_exit_{name}:\ns_endpgm")
            kernels.append((name, 512, 256))
    else:
        name = "mega_kernel"
        k.label("CODE_BEGIN")
        entry(k, name)
        k(f"s_cmp_ge_u32 s2, 256\ns_cbranch_scc1 L_exit_m")
        common_entry(k, None)
        k("s_getreg_b32 s34, hwreg(HW_REG_XCC_ID, 0, 4)\ns_and_b32 s34, s34, 7")
        if diag:
            k("s_memrealtime s[94:95]\ns_waitcnt lgkmcnt(0)\ns_mov_b32 s80, s94")
        ticket(k, "s_mov_b32 s33, s34", 'm')
        if diag:
            k(f"s_lshl_b32 s92, s34, 5\ns_add_u32 s92, s92, s4\ns_lshl_b32 s92, s92, 6\ns_add_u32 s92, s92, {DIAG}\ns_add_u32 s90, s8, s92\ns_addc_u32 s91, s9, 0")
            for i in range(1, 10): k(f"s_mov_b32 s{80+i}, 0")
        k(f"""
        s_cmp_ge_u32 s4, 32
        s_cbranch_scc1 L_exit_m
        s_cmp_ge_u32 s34, 2
        s_cbranch_scc1 L_d1
        s_mov_b32 s6, s34
        s_branch ROLE_R
L_d1:
        s_cmp_ge_u32 s34, 6
        s_cbranch_scc1 L_d2
        s_sub_u32 s6, s34, 2
        s_lshr_b32 s6, s6, 1
        s_and_b32 s33, s34, 1
        s_cmp_lg_u32 s33, 0
        s_cbranch_scc1 L_d1b
        s_branch ROLE_T3q
L_d1b:
        s_cmp_ge_u32 s4, 16
        s_cbranch_scc1 L_d1c
        s_add_u32 s4, s4, 32
        s_branch ROLE_T3v
L_d1c:
        s_sub_u32 s4, s4, 16
        s_branch ROLE_T5
L_d2:
        s_sub_u32 s6, s34, 6
        s_cmp_ge_u32 s4, 16
        s_cbranch_scc1 L_d2b
        s_branch ROLE_T4
L_d2b:
        s_cmp_ge_u32 s4, 24
        s_cbranch_scc1 L_d2c
        s_sub_u32 s4, s4, 16
        s_branch ROLE_TA
L_d2c:
        s_cmp_ge_u32 s4, 26
        s_cbranch_scc1 L_d2d
        s_sub_u32 s4, s4, 24
        s_branch ROLE_TW
L_d2d:
        s_cmp_ge_u32 s4, 30
        s_cbranch_scc1 L_exit_m
        s_sub_u32 s4, s4, 26
        s_branch ROLE_T6
L_exit_m:
        s_endpgm
        """)
        kernels.append((name, 512, 256))
    errs += emit_roles(k, True, stamp)
    k.label("CODE_END")
    k('.section .rodata,"a"')
    for name, vg, acc in kernels:
        k(".p2align 6")
        k(KD.format(name=name, vgpr=vg, acc=acc))
    k(".text")
    return k.text(), errs

if __name__ == '__main__':
    mode = sys.argv[1] if len(sys.argv) > 1 else 'serial'
    txt, errs = build(mode)
    for e in errs: print(e)
    open(f"mega_{mode}.s", "w").write(txt)
    import drv
    asm, co = drv.build(f"mega_{mode}.s", "x", 13)
    from cdna_launch import address_register_problem, parse_launch_list, launch_list_kernel_names
    print("bytes", len(txt))
    print("check:", address_register_problem(co, None, launch_list_kernel_names(parse_launch_list(asm))))
```

```python
from fw import *
from layout import *
WOI=0; MSTG=131072; QKT=139520; KTL=143616; VTL=151808; OX=MSTG
SPIN = 1 << 18
SLOT = 0x40000
sH=4; sW=5; sS=7
sWS=8
sMBr=10; sMBw=12; sPA=14; sPA1=16
sKT=18; sVT=20; sKM=22; sVM=24
sFL=26
sMO=28; sMMB=30; sMKM=32; sMF0=34
sC=36; sT=37; sT2=38; sT3=39; sSpin=40
sP0=42
sFKv=44; sFVv=45
sM0K=46; sM0V=47
sFR=48
sSL=50; sSH=51
sMBD=52
sMF3=34
vL16=0; vMW=1; vMR=2; vQW=3; vFLG=4; vQR0=5; vQR1=6; vKR=7; vVR=8; vOW=9; vOR=10; vWO=11
vPAS=12; vPAL=13; vMBS=14; vKMS=15; vVMS=16; vSP=17; vIDX=18; vBIAS=19
aQ=20; aK=24; aV=28
vM=32; vK=96
WV=128
OPT = dict(kmflag='sc1', ackA='0', ackB='0')

def wreg(mu, ks, d0=0, n=8):
    if mu == 0: return a(8*ks + d0, n)
    if mu == 1: return a(128 + 8*ks + d0, n)
    return v(WV + 8*ks + d0, n)

def timeout_exit(k, code, lab):
    k.label(lab)
    k(f"""
    s_load_dwordx2 s[{sP0}:{sP0+1}], s[0:1], {KA_DBG}
    s_waitcnt lgkmcnt(0)
    s_mov_b64 exec, 1
    v_mov_b32 v32, {128 + 4*code}
    v_mov_b32 v33, s{sS}
    v_add_u32 v33, 0x10000, v33
    global_store_dword v32, v33, s[{sP0}:{sP0+1}] sc1
    s_waitcnt vmcnt(0)
    s_endpgm
    """)

def emit_R_prologue(k, l_sgpr):
    L, I, G = 40, 41, 42
    T1, T2, T3 = 43, 44, 45
    sk = k.lab('Lws'); lp = k.lab('Lwsp'); to = k.lab('Lwsto')
    k(f"""
    s_cmp_eq_u32 s{l_sgpr}, 0
    s_cbranch_scc1 {sk}
    s_mov_b32 s{sSpin}, 0
    s_mov_b32 s{sS}, 0
    v_mov_b32 v2, {F_R(0)}
{lp}:
    global_load_dword v3, v2, s[{sWS}:{sWS+1}] sc1
    s_add_u32 s{sSpin}, s{sSpin}, 1
    s_cmp_gt_u32 s{sSpin}, {SPIN}
    s_cbranch_scc1 {to}
    s_waitcnt vmcnt(0)
    v_cmp_gt_u32 vcc, 1, v3
    s_cbranch_vccnz {lp}
    s_branch {sk}
    """)
    timeout_exit(k, 9, to)
    k.label(sk)
    k(f"""
    v_and_b32 v40, 63, v0
    v_and_b32 v41, 15, v40
    v_lshrrev_b32 v42, 4, v40
    v_lshlrev_b32 v{vL16}, 4, v40
    """)
    for par in (0, 1):
        k(f"""
        v_add_u32 v{T1}, {4*par}, v{G}
        v_lshlrev_b32 v{T1}, 1, v{T1}
        v_xor_b32 v{T1}, v{T1}, v{I}
        v_lshlrev_b32 v{T1}, 4, v{T1}
        v_lshlrev_b32 v{T2}, 13, v{G}
        v_add_u32 v{46+par}, v{T1}, v{T2}
        """)
    k(f"""
    v_lshrrev_b32 v{T1}, 2, v{I}
    v_lshl_add_u32 v{T1}, v{G}, 2, v{T1}
    v_and_b32 v{T2}, 7, v{T1}
    v_lshlrev_b32 v{T2}, 1, v{T2}
    v_and_b32 v{T3}, 3, v{I}
    v_lshrrev_b32 v{T3}, 1, v{T3}
    s_lshl_b32 s{sT}, s{sW}, 2
    v_add_u32 v{T3}, s{sT}, v{T3}
    """)
    for b in (0, 1):
        k(f"""
        v_add_u32 v48, {2*b}, v{T3}
        v_xor_b32 v48, v48, v{T2}
        v_lshlrev_b32 v48, 4, v48
        v_lshl_add_u32 v48, v{T1}, 8, v48
        v_and_b32 v49, 1, v{I}
        v_lshl_add_u32 v{50+b}, v49, 3, v48
        v_add_u32 v{52+b}, 0x10000, v{50+b}
        """)
    def dma_half(ka, half):
        k(f"s_load_dwordx2 s[{sP0}:{sP0+1}], s[0:1], {ka}")
        k(f"""
        s_lshl_b32 s{sT}, s{sH}, 8
        s_lshl_b32 s{sT2}, s{sW}, 19          ; w*64 rows*8192
        s_add_u32 s{sT}, s{sT}, s{sT2}
        s_add_u32 s{sT}, s{sT}, {half*256*8192}
        s_lshl_b32 s{sT3}, s{sW}, 14
        s_add_u32 s{sT3}, s{sT3}, {half*65536}
        s_waitcnt lgkmcnt(0)
        s_add_u32 s{sP0}, s{sP0}, s{sT}
        s_addc_u32 s{sP0+1}, s{sP0+1}, 0
        """)
        for u in range(16):
            k(f"s_mov_b32 m0, s{sT3}")
            k(f"s_add_u32 s{sT3}, s{sT3}, 1024")
            k(f"global_load_lds_dwordx4 v{46 + (u % 2)}, s[{sP0}:{sP0+1}]")
            k(f"s_add_u32 s{sP0}, s{sP0}, 32768\ns_addc_u32 s{sP0+1}, s{sP0+1}, 0")
    def read_half(mu, half):
        for ksl in range(8):
            ks = half*8 + ksl
            for kh in (0, 1):
                for b in (0, 1):
                    base = (50 if half == 0 else 52) + b
                    off = ksl * 8192 + kh * 4096
                    t = 56 + 2 * (2 * kh + b)
                    k(f"ds_read_b64_tr_b16 {v(t,2)}, v{base} offset:{off}")
            k("s_waitcnt lgkmcnt(0)")
            for kh in (0, 1):
                for b in (0, 1):
                    t = 56 + 2 * (2 * kh + b)
                    for j in (0, 1):
                        d = 4 * kh + b + 2 * j
                        dst = wreg(mu, ks, d, 1)
                        if mu < 2: k(f"v_accvgpr_write_b32 {dst}, v{t+j}")
                        else: k(f"v_mov_b32 {dst}, v{t+j}")
    seq = [(mu, ka, h) for mu, ka in ((0, KA_WQ), (1, KA_WK), (2, KA_WV)) for h in (0, 1)]
    dma_half(seq[0][1], 0)
    dma_half(seq[1][1], 1)
    for n, (mu, ka, h) in enumerate(seq):
        k("s_waitcnt vmcnt(16)\ns_barrier" if n + 1 < len(seq) else "s_waitcnt vmcnt(0)\ns_barrier")
        read_half(mu, h)
        k("s_barrier")
        if n + 2 < len(seq): dma_half(seq[n+2][1], seq[n+2][2])
    STG = 131072
    k(f"""
    v_lshrrev_b32 v{T1}, 2, v{I}
    v_lshl_add_u32 v{T1}, v{G}, 2, v{T1}
    v_and_b32 v{T2}, 7, v{T1}
    v_lshlrev_b32 v{T2}, 1, v{T2}
    v_and_b32 v{T3}, 3, v{I}
    v_lshrrev_b32 v{T3}, 1, v{T3}
    s_lshl_b32 s{sT}, s{sW}, 4
    v_add_u32 v{T3}, s{sT}, v{T3}
    v_lshlrev_b32 v54, 10, v{T1}
    v_and_b32 v49, 1, v{I}
    v_lshl_add_u32 v54, v49, 3, v54
    v_add_u32 v54, {STG}, v54
    s_lshl_b32 s{sT}, s{sW}, 15
    v_add_u32 v55, s{sT}, v{vL16}
    """)
    for ks in range(4):
        k(f"s_load_dwordx2 s[{sP0}:{sP0+1}], s[0:1], {KA_WO}")
        k(f"""
        s_lshl_b32 s{sT}, s{sH}, 17
        s_lshl_b32 s{sT2}, s{sW}, 13
        s_add_u32 s{sT}, s{sT}, s{sT2}
        s_add_u32 s{sT}, s{sT}, {ks*32*1024}
        s_add_u32 s{sT3}, s{sT2}, {STG}
        s_waitcnt lgkmcnt(0)
        s_add_u32 s{sP0}, s{sP0}, s{sT}
        s_addc_u32 s{sP0+1}, s{sP0+1}, 0
        """)
        for u in range(8):
            k(f"v_xor_b32 v56, {u << 1}, v{L}")
            k(f"v_lshlrev_b32 v56, 4, v56")
            k(f"s_mov_b32 m0, s{sT3}")
            k(f"s_add_u32 s{sT3}, s{sT3}, 1024")
            k(f"global_load_lds_dwordx4 v56, s[{sP0}:{sP0+1}]")
            k(f"s_add_u32 s{sP0}, s{sP0}, 1024\ns_addc_u32 s{sP0+1}, s{sP0+1}, 0")
        k("s_waitcnt vmcnt(0)\ns_barrier")
        for cb in range(4):
            for kh in (0, 1):
                for b in (0, 1):
                    t = 56 + 2 * (2 * kh + b)
                    k(f"v_add_u32 v72, {4*cb + 2*b}, v{T3}")
                    k(f"v_xor_b32 v72, v72, v{T2}")
                    k(f"v_lshl_add_u32 v72, v72, 4, v54")
                    k(f"ds_read_b64_tr_b16 {v(t,2)}, v72 offset:{kh*16*1024}")
            k("s_waitcnt lgkmcnt(0)")
            for kh in (0, 1):
                for b in (0, 1):
                    t = 56 + 2 * (2 * kh + b)
                    for j in (0, 1):
                        d = 4 * kh + b + 2 * j
                        k(f"v_mov_b32 v{64+d}, v{t+j}")
            for half in (0, 1):
                k(f"ds_write_b128 v55, {v(64+4*half,4)} offset:{(cb*4+ks)*2048 + half*1024}")
            k("s_waitcnt lgkmcnt(0)")
        k("s_barrier")
    k(f"""
    v_and_b32 v{T1}, 7, v{I}                  ; i%8
    v_lshrrev_b32 v{T2}, 1, v{G}              ; g/2
    v_and_b32 v{T3}, 1, v{G}                  ; g%2
    s_mul_i32 s{sT}, s{sW}, 2112
    s_add_u32 s{sT}, s{sT}, {MSTG}
    v_add_u32 v{vMW}, s{sT}, v{vL16}
    v_mul_u32_u24 v48, 1056, v{T1}
    v_lshl_add_u32 v48, v{G}, 4, v48
    v_add_u32 v{vMR}, {MSTG}, v48
    v_mul_u32_u24 v48, 288, v{T1}
    v_lshl_add_u32 v48, v{G}, 4, v48
    v_add_u32 v{vOR}, {OX}, v48
    v_mul_u32_u24 v48, 288, v{T1}
    v_lshl_add_u32 v48, v{G}, 3, v48
    s_lshl_b32 s{sT}, s{sW}, 6
    s_add_u32 s{sT}, s{sT}, {OX}
    v_add_u32 v{vOW}, s{sT}, v48
    s_lshl_b32 s{sT}, s{sW}, 5
    v_lshl_add_u32 v48, v{T2}, 4, v{I}
    v_add_u32 v48, s{sT}, v48                 ; f
    v_lshrrev_b32 v49, 2, v{I}
    v_add_u32 v49, v49, v{T3}
    v_and_b32 v49, 3, v49
    v_lshlrev_b32 v49, 3, v49
    v_lshl_add_u32 v49, v48, 5, v49
    v_add_u32 v{vQW}, {QKT}, v49
    v_lshlrev_b32 v49, 3, v{T3}
    v_lshl_add_u32 v{vVMS}, v48, 4, v49
    """)
    for hf, dst in ((0, vQR0), (1, vQR1)):
        k(f"""
        v_lshrrev_b32 v48, 2, v{I}
        v_lshl_add_u32 v48, v{G}, 3, v48
        v_add_u32 v48, {4*hf}, v48
        v_and_b32 v49, 3, v{I}
        v_lshl_add_u32 v49, v{G}, 1, v49
        v_add_u32 v49, {hf}, v49
        v_and_b32 v49, 3, v49
        v_lshlrev_b32 v49, 3, v49
        v_lshl_add_u32 v49, v48, 5, v49
        v_add_u32 v{dst}, {QKT}, v49
        """)
    k(f"""
    v_lshlrev_b32 v48, 9, v{G}
    v_lshl_add_u32 v48, v{I}, 4, v48
    v_add_u32 v{vKR}, {KTL}, v48
    s_lshl_b32 s{sT}, s{sW}, 11
    s_add_u32 s{sT}, s{sT}, {VTL}
    v_add_u32 v{vVR}, s{sT}, v48
    s_lshl_b32 s{sT}, s{sW}, 15
    v_add_u32 v{vWO}, s{sT}, v{vL16}
    ; vPAS = w*65536 + h*2048 + (g/2)*512 + (n/8)*256 + (g%2)*128 + (n%8)*16
    v_lshlrev_b32 v48, 9, v{T2}
    v_lshl_add_u32 v48, v{T3}, 7, v48
    v_lshl_add_u32 v48, v{T1}, 4, v48
    v_lshrrev_b32 v49, 3, v{I}
    v_lshl_add_u32 v48, v49, 8, v48
    s_lshl_b32 s{sT}, s{sW}, 16
    s_lshl_b32 s{sT2}, s{sH}, 11
    s_add_u32 s{sT}, s{sT}, s{sT2}
    v_add_u32 v{vPAS}, s{sT}, v48
    ; vPAL = (j/8)*65536 + hg*2048 + (j%8)*256 + (4w + u4)*16
    s_lshr_b32 s{sT}, s{sH}, 3
    s_lshl_b32 s{sT}, s{sT}, 16
    s_and_b32 s{sT2}, s{sH}, 7
    s_lshl_b32 s{sT2}, s{sT2}, 8
    s_add_u32 s{sT}, s{sT}, s{sT2}
    s_lshl_b32 s{sT2}, s{sW}, 6
    s_add_u32 s{sT}, s{sT}, s{sT2}
    v_lshrrev_b32 v48, 2, v{L}                 ; hg
    v_lshlrev_b32 v48, 11, v48
    v_and_b32 v49, 3, v{L}                     ; u4
    v_lshl_add_u32 v48, v49, 4, v48
    v_add_u32 v{vPAL}, s{sT}, v48
    ; vMBS = (4rh + rho)*1024 + 2*(128wc + 64ac + 16jlo + 8nh + 4(w%2)) + 2*(32b + u4)
    s_lshr_b32 s{sT}, s{sW}, 1
    s_lshl_b32 s{sT}, s{sT}, 12                ; rh*4096
    s_lshr_b32 s{sT2}, s{sH}, 3
    s_lshl_b32 s{sT2}, s{sT2}, 8               ; 2*128*wc
    s_add_u32 s{sT}, s{sT}, s{sT2}
    s_lshr_b32 s{sT2}, s{sH}, 2
    s_and_b32 s{sT2}, s{sT2}, 1
    s_lshl_b32 s{sT2}, s{sT2}, 7               ; 2*64*ac
    s_add_u32 s{sT}, s{sT}, s{sT2}
    s_and_b32 s{sT2}, s{sH}, 3
    s_lshl_b32 s{sT2}, s{sT2}, 4               ; 2*8*(j%4) = 2*(16jlo + 8nh)
    s_add_u32 s{sT}, s{sT}, s{sT2}
    s_and_b32 s{sT2}, s{sW}, 1
    s_lshl_b32 s{sT2}, s{sT2}, 3               ; 2*4*(w%2)
    s_add_u32 s{sT}, s{sT}, s{sT2}
    v_lshrrev_b32 v50, 2, v{I}                 ; hq = (l%16)/4
    v_lshlrev_b32 v48, 10, v50
    v_lshl_add_u32 v48, v49, 1, v48            ; hq*1024 + 2*u4
    v_lshl_add_u32 v48, v{G}, 6, v48           ; + 2*32*b  (b = l/16)
    v_add_u32 v{vMBS}, s{sT}, v48
    s_lshl_b32 s{sT}, s{sW}, 9
    v_lshlrev_b32 v48, 7, v{G}
    v_lshl_add_u32 v48, v{T1}, 4, v48
    v_add_u32 v{vKMS}, s{sT}, v48
    v_mov_b32 v{vIDX}, 0x44444444
    v_mov_b32 v48, 0xeeeeeeee
    v_cmp_lt_u32 vcc, 7, v{I}
    s_nop 1
    v_cndmask_b32 v{vIDX}, v{vIDX}, v48, vcc
    v_mov_b32 v{vBIAS}, 0
    v_mov_b32 v48, 0xff800000
    v_cmp_gt_u32 vcc, 2, v{G}
    s_nop 1
    v_cndmask_b32 v{vBIAS}, v{vBIAS}, v48, vcc
    """)
    def base(dst, off_fn, extra_code):
        k(f"s_mul_i32 s{sT2}, s{l_sgpr}, {off_fn(1) - off_fn(0)}")
        k(f"s_add_u32 s{sT2}, s{sT2}, {off_fn(0)}")
        k(extra_code)
        k(f"s_add_u32 s{sT2}, s{sT2}, s{sT}")
        k(f"s_add_u32 s{dst}, s{sWS}, s{sT2}\ns_addc_u32 s{dst+1}, s{sWS+1}, 0")
    base(sMBr, MB, f"s_lshl_b32 s{sT}, s{sW}, 11")
    base(sMBw, MB, f"s_mov_b32 s{sT}, 8192")
    k(f"s_mov_b32 s{sMBD}, 8192")
    base(sPA, PA, f"s_mov_b32 s{sT}, 0")
    base(sPA1, PA, f"s_mov_b32 s{sT}, 32768")
    base(sKT, KT, f"s_lshl_b32 s{sT}, s{sH}, 13\ns_lshl_b32 s{sT3}, s{sW}, 11\ns_add_u32 s{sT}, s{sT}, s{sT3}")
    base(sVT, VT, f"s_lshl_b32 s{sT}, s{sH}, 13\ns_lshl_b32 s{sT3}, s{sW}, 11\ns_add_u32 s{sT}, s{sT}, s{sT3}")
    base(sKM, KM, f"s_lshl_b32 s{sT}, s{sH}, 11")
    base(sVM, VM, f"s_lshl_b32 s{sT}, s{sH}, 11")
    base(sFL, F_T3, f"s_lshl_b32 s{sT}, s{sH}, 7")
    base(sFR, F_R, f"s_lshl_b32 s{sT}, s{sH}, 2")
    k(f"""
    s_mov_b32 s{sMO}, 0x00ff00ff
    s_mov_b32 s{sMO+1}, 0x00ff00ff
    s_mov_b32 s{sMMB}, 0x55555555
    s_mov_b32 s{sMMB+1}, 0
    s_mov_b32 s{sMKM}, 0xff00ff00
    s_mov_b32 s{sMKM+1}, 0xff00ff00
    s_mov_b32 s{sMF0}, 0xf0f0f0f0
    s_mov_b32 s{sMF0+1}, 0xf0f0f0f0
    s_mov_b32 s{sC}, 0x3e0293ee
    s_mov_b32 s{sSL}, 0x00003f80
    s_mov_b32 s{sSH}, 0x3f800000
    s_lshl_b32 s{sM0K}, s{sW}, 11
    s_add_u32 s{sM0V}, s{sM0K}, {VTL}
    s_add_u32 s{sM0K}, s{sM0K}, {KTL}
    s_mov_b32 s{sS}, 0
    s_mov_b32 s{sFKv}, 0
    s_mov_b32 s{sFVv}, 0
    """)

NST = 15
STNAMES = []
def emit_R_loop(k, fast, use_flags, stamp=False):
    st = "" if fast else "sc1"
    STN = [0]
    def ST(name):
        if stamp == 2 and name in OPT.get('stamps', name):
            i = STN[0]; STN[0] += 1
            assert i < 15
            STNAMES.append(name)
            k(f"s_memtime s[{54+2*i}:{55+2*i}]")
    def ST_collect():
        if stamp == 2:
            n = STN[0]
            k("s_waitcnt lgkmcnt(0)")
            for i in range(n):
                prev = "s53" if i == 0 else f"s{54+2*(i-1)}"
                k(f"s_sub_u32 s{55+2*i}, s{54+2*i}, {prev}")
            for i in range(n):
                k(f"s_add_u32 s{84+i}, s{84+i}, s{55+2*i}")
            k(f"s_mov_b32 s53, s{54+2*(n-1)}")
    TO = k.lab('Lto'); LOOP = k.lab('Lstep')
    def read_flags():
        k(f"""
        v_readlane_b32 s{sFKv}, v{vFLG}, 0
        v_readlane_b32 s{sT3}, v{vFLG}, 1
        v_readlane_b32 s{sFVv}, v{vFLG}, 2
        v_readlane_b32 s{sP0}, v{vFLG}, 3
        s_nop 0
        s_min_u32 s{sFKv}, s{sFKv}, s{sT3}
        s_min_u32 s{sFVv}, s{sFVv}, s{sP0}
        """)
    def flag_spin(needk, needv):
        lab = k.lab('Lfs'); ok = k.lab('Lfsok')
        k(f"s_mov_b32 s{sSpin}, 0")
        k.label(lab)
        k(f"""
        s_cmp_ge_u32 s{sFKv}, s{needk}
        s_cselect_b32 s{sT3}, 1, 0
        s_cmp_ge_u32 s{sFVv}, s{needv}
        s_cselect_b32 s{sT3}, s{sT3}, 0
        s_cmp_lg_u32 s{sT3}, 0
        s_cbranch_scc1 {ok}
        s_mov_b64 exec, 15
        global_load_dword v{vFLG}, v{vL16}, s[{sFL}:{sFL+1}] sc1
        s_mov_b64 exec, -1
        s_add_u32 s{sSpin}, s{sSpin}, 1
        {'s_add_u32 s86, s86, 1' if DIAGON[0] else ''}
        s_cmp_gt_u32 s{sSpin}, {SPIN}
        s_cbranch_scc1 {TO}
        s_waitcnt vmcnt(0)
        """)
        read_flags()
        k(f"s_branch {lab}")
        k.label(ok)
    mark(k, 1)
    if DIAGON[0]: k("s_mov_b32 s86, 0")
    if use_flags:
        k(f"s_mov_b32 s{sT}, 1\ns_mov_b32 s{sT2}, 0")
        flag_spin(sT, sT2)
    k(f"""
    s_mov_b32 m0, s{sM0K}
    s_nop 0
    global_load_lds_dwordx4 v{vL16}, s[{sKT}:{sKT+1}] sc1
    global_load_lds_dwordx4 v{vL16}, s[{sKT}:{sKT+1}] offset:1024 sc1
    s_add_u32 s{sKT}, s{sKT}, 262144
    s_addc_u32 s{sKT+1}, s{sKT+1}, 0
    s_waitcnt vmcnt(0)
    s_barrier
    """)
    mark(k, 2)
    if DIAGON[0]: k("s_memtime s[96:97]\ns_waitcnt lgkmcnt(0)\ns_mov_b32 s87, s96")
    if stamp:
        k("s_memtime s[100:101]\ns_waitcnt lgkmcnt(0)\ns_mov_b32 s53, s100\ns_mov_b32 s99, s100")
        for i in range(NST): k(f"s_mov_b32 s{84+i}, 0")
        k("s_mov_b32 s82, 0\ns_mov_b32 s83, 0")
    def step(par):
        SEN = vM + 60
        RA = vM + 59
        for t in range(2):
            for ks in range(4):
                k(f"ds_read_b128 {v(vK + (t*4+ks)*4, 4)}, v{vKR} offset:{ks*2048 + t*256}")
        for r in range(aQ, aQ + 12): k(f"v_mov_b32 v{r}, 0")
        k(f"v_mov_b32 v{SEN}, -1")
        if use_flags:
            read_flags()
            k(f"s_add_u32 s{sT}, s{sS}, 2\ns_min_u32 s{sT}, s{sT}, {NSEG}\ns_add_u32 s{sT2}, s{sS}, 1")
            flag_spin(sT, sT2)
        k(f"s_mov_b32 m0, s{sM0V}")
        ST('top')
        if OPT['ackB'] != 'n': k(f"s_waitcnt vmcnt({OPT['ackB']})")
        PB = k.lab('LpollB')
        k(f"s_mov_b32 s{sSpin}, 0")
        k.label(PB)
        k(f"""
        global_load_dwordx4 {v(vM,4)}, v{vL16}, s[{sMBr}:{sMBr+1}] sc1
        global_load_dwordx4 {v(vM+4,4)}, v{vL16}, s[{sMBr}:{sMBr+1}] offset:1024 sc1
        s_add_u32 s{sSpin}, s{sSpin}, 1
        {'s_add_u32 s98, s98, 1' if stamp == 2 and False else ''}
        s_cmp_gt_u32 s{sSpin}, {SPIN}
        s_cbranch_scc1 {TO}
        s_waitcnt vmcnt(0)
        ds_write_b128 v{vMW}, {v(vM,4)}
        ds_write_b128 v{vMW}, {v(vM+4,4)} offset:1056
        v_max3_u32 v{vM+8}, v{vM}, v{vM+1}, v{vM+2}
        v_max3_u32 v{vM+9}, v{vM+3}, v{vM+4}, v{vM+5}
        v_max3_u32 v{vM+8}, v{vM+8}, v{vM+6}, v{vM+7}
        v_max_u32 v{vM+8}, v{vM+8}, v{vM+9}
        v_cmp_eq_u32 vcc, -1, v{vM+8}
        s_cbranch_vccnz {PB}
        """)
        ST('pollB')
        if stamp: k(f"s_add_u32 s82, s82, s{sSpin}")
        k(f"global_load_lds_dwordx4 v{vL16}, s[{sVT}:{sVT+1}] sc1")
        k(f"global_load_lds_dwordx4 v{vL16}, s[{sVT}:{sVT+1}] offset:1024 sc1")
        k("s_waitcnt lgkmcnt(0)\ns_barrier")
        ST('bar1')
        def mread(ks): k(f"ds_read_b128 {v(vM+4*ks,4)}, v{vMR} offset:{ks*64}")
        def smf(acc, ks, mu): k(f"v_smfmac_f32_16x16x64_bf16 {v(acc,4)}, {v(vM+4*ks,4)}, {wreg(mu,ks)}, v{vIDX}")
        for ks in range(8): mread(ks)
        k(f"s_mov_b64 exec, s[{sMMB}:{sMMB+1}]\nglobal_store_dword v{vMBS}, v{SEN}, s[{sMBw}:{sMBw+1}] {st}\ns_mov_b64 exec, -1")
        side = []
        skipk = k.lab('Lskipk')
        if use_flags:
            skf = k.lab('Lskf')
            side.append(f"s_cmp_lg_u32 s{sW}, 0\ns_cbranch_scc1 {skf}\nv_mov_b32 v{vFLG}, s{sS}\ns_mov_b64 exec, 1\nglobal_store_dword v{vL16}, v{vFLG}, s[{sFR}:{sFR+1}] sc1\ns_mov_b64 exec, -1\n{skf}:")
        side.append(f"s_mov_b32 m0, s{sM0K}\ns_nop 0\nglobal_load_lds_dwordx4 v{vL16}, s[{sKT}:{sKT+1}] sc1\nglobal_load_lds_dwordx4 v{vL16}, s[{sKT}:{sKT+1}] offset:1024 sc1")
        side.append(f"s_add_u32 s{sKT}, s{sKT}, 262144\ns_addc_u32 s{sKT+1}, s{sKT+1}, 0")
        side.append(f"s_add_u32 s{sVT}, s{sVT}, 262144\ns_addc_u32 s{sVT+1}, s{sVT+1}, 0")
        for ks in range(16):
            k(f"s_waitcnt lgkmcnt({min(7, 15-ks)})")
            smf(aQ, ks, 0)
            if ks + 8 < 16: mread(ks + 8)
            smf(aK, ks, 1)
            if ks >= 8 and side: k(side.pop(0))
        assert not side, side
        ST('qk')
        smf(aV, 0, 2); smf(aV, 1, 2)
        k(f"""
        v_cvt_pk_bf16_f32 v{aQ}, v{aQ}, v{aQ+1}
        v_cvt_pk_bf16_f32 v{aQ+1}, v{aQ+2}, v{aQ+3}
        v_xor_b32 v{aQ+2}, 16, v{vQW}
        v_cvt_pk_bf16_f32 v{aK}, v{aK}, v{aK+1}
        v_cvt_pk_bf16_f32 v{aK+1}, v{aK+2}, v{aK+3}
        ds_write_b64 v{vQW}, {v(aQ,2)}
        ds_write_b64 v{aQ+2}, {v(aK,2)}
        global_store_dwordx2 v{vVMS}, {v(aK,2)}, s[{sKM}:{sKM+1}] {OPT['kmflag']}
        """)
        for ks in (2, 3, 4, 5): smf(aV, ks, 2)
        k("s_waitcnt lgkmcnt(0)\ns_barrier")
        ST('bar2')
        QK = vM
        for ks in range(4):
            k(f"ds_read_b64_tr_b16 {v(QK+4*ks,2)}, v{vQR0} offset:{ks*1024}")
            k(f"ds_read_b64_tr_b16 {v(QK+4*ks+2,2)}, v{vQR1} offset:{ks*1024}")
        smf(aV, 6, 2)
        k("s_waitcnt vmcnt(4)")
        for ft in range(2):
            k(f"ds_read_b128 {v(aQ+4*ft,4)}, v{vVR} offset:{ft*256}")
        for ks in (7, 8, 9): smf(aV, ks, 2)
        def woread(slot_reg, cb, ks):
            for half in (0, 1):
                k(f"ds_read_b128 {v(slot_reg+4*half,4)}, v{vWO} offset:{(cb*4+ks)*2048 + half*1024}")
        wo_ops = [(cb, ks) for ks in range(4) for cb in (0, 1)] + [(cb, ks) for ks in range(4) for cb in (2, 3)]
        slots = [vK, vK+16, vK+8, vK+24, vM+40, vM+48, vM+56, vM+32]
        SM = vM + 16; S0 = vM + 20; S1 = vM + 24
        outstanding = 10
        for ks in range(4):
            extra = 4 if ks >= 2 else 0
            k(f"s_waitcnt lgkmcnt({10 - 2*(ks+1) + extra})")
            c = lambda r: ("0" if ks == 0 else v(r, 4))
            q = v(QK + 4*ks, 4)
            k(f"v_mfma_f32_16x16x32_bf16 {v(S0,4)}, {v(vK + ks*4,4)}, {q}, {c(S0)}")
            k(f"v_mfma_f32_16x16x32_bf16 {v(S1,4)}, {v(vK + 16 + ks*4,4)}, {q}, {c(S1)}")
            k(f"v_mfma_f32_16x16x32_bf16 {v(SM,4)}, {q}, {q}, {c(SM)}")
            if ks == 1:
                woread(slots[0], *wo_ops[0]); woread(slots[1], *wo_ops[1])
        ST('scores')
        woread(slots[2], *wo_ops[2])
        smf(aV, 10, 2)
        woread(slots[3], *wo_ops[3])
        smf(aV, 11, 2)
        if use_flags:
            k(f"s_mov_b64 exec, 15\nglobal_load_dword v{vFLG}, v{vL16}, s[{sFL}:{sFL+1}] sc1\ns_mov_b64 exec, -1")
        MX = vM + 28; TMP = vM + 29; NM = vM + 30; NMM = vM + 31
        k(f"""
        v_max3_f32 v{MX}, v{S0}, v{S0+1}, v{S0+2}
        s_nop 0
        v_max3_f32 v{TMP}, v{SM}, v{SM+1}, v{SM+2}
        v_max3_f32 v{NM}, v{S0+3}, v{S1}, v{S1+1}
        v_max_f32 v{TMP}, v{TMP}, v{SM+3}
        v_max3_f32 v{MX}, v{MX}, v{S1+2}, v{S1+3}
        v_add_f32 v{TMP}, v{TMP}, v{vBIAS}
        v_max3_f32 v{MX}, v{MX}, v{NM}, v{TMP}
        s_nop 0
        v_mov_b32 v{TMP}, v{MX}
        """)
        smf(aV, 12, 2)
        k(f"""
        s_nop 0
        v_permlane32_swap_b32 v{MX}, v{TMP}
        v_max_f32 v{MX}, v{MX}, v{TMP}
        v_mov_b32 v{TMP}, v{MX}
        """)
        smf(aV, 13, 2)
        k(f"""
        s_nop 0
        v_permlane16_swap_b32 v{MX}, v{TMP}
        v_max_f32 v{MX}, v{MX}, v{TMP}
        v_mul_f32 v{NM}, -v{MX}, s{sC}
        """)
        smf(aV, 14, 2)
        k(f"v_add_f32 v{NMM}, v{NM}, v{vBIAS}")
        for r in range(4): k(f"v_fma_f32 v{S0+r}, v{S0+r}, s{sC}, v{NM}")
        smf(aV, 15, 2)
        for r in range(4): k(f"v_exp_f32 v{S0+r}, v{S0+r}")
        for r in range(4): k(f"v_fma_f32 v{S1+r}, v{S1+r}, s{sC}, v{NM}")
        for r in range(4): k(f"v_exp_f32 v{S1+r}, v{S1+r}")
        for r in range(4): k(f"v_fma_f32 v{SM+r}, v{SM+r}, s{sC}, v{NMM}")
        P = vM; Z = vM + 6; O0 = vM + 8; O1 = vM + 12
        ON = vM + 32
        LL = vM + 36
        for r in range(4): k(f"v_exp_f32 v{SM+r}, v{SM+r}")
        k(f"""
        v_mov_b32 v{ON}, 0x3f803f80
        v_mov_b32 v{ON+1}, 0x3f803f80
        v_cvt_pk_bf16_f32 v{P}, v{S0}, v{S0+1}
        v_cvt_pk_bf16_f32 v{P+1}, v{S0+2}, v{S0+3}
        v_cvt_pk_bf16_f32 v{P+2}, v{S1}, v{S1+1}
        v_cvt_pk_bf16_f32 v{P+3}, v{S1+2}, v{S1+3}
        v_mov_b32 v{ON+2}, 0x3f803f80
        v_mov_b32 v{ON+3}, 0x3f803f80
        v_cvt_pk_bf16_f32 v{P+4}, v{SM}, v{SM+1}
        v_cvt_pk_bf16_f32 v{P+5}, v{SM+2}, v{SM+3}
        """)
        k("s_waitcnt lgkmcnt(8)")
        ST('softmax')
        k(f"""
        v_mfma_f32_16x16x32_bf16 {v(LL,4)}, {v(ON,4)}, {v(P,4)}, 0
        v_mfma_f32_16x16x32_bf16 {v(O1,4)}, {v(aQ+4,4)}, {v(P,4)}, 0
        v_mfma_f32_16x16x32_bf16 {v(O0,4)}, {v(aQ,4)}, {v(P,4)}, 0
        v_cvt_pk_bf16_f32 v{aV}, v{aV}, v{aV+1}
        v_cvt_pk_bf16_f32 v{aV+1}, v{aV+2}, v{aV+3}
        v_mfma_f32_16x16x16_bf16 {v(LL,4)}, {v(ON,2)}, {v(P+4,2)}, {v(LL,4)}
        v_mov_b32 v{Z}, 0
        v_mov_b32 v{Z+1}, 0
        v_mfma_f32_16x16x16_bf16 {v(O1,4)}, {v(aV,2)}, {v(P+4,2)}, {v(O1,4)}
        v_permlane32_swap_b32 v{P+4}, v{Z}
        v_permlane32_swap_b32 v{P+5}, v{Z+1}
        """)
        k("s_waitcnt lgkmcnt(4)")
        woread(slots[4], *wo_ops[4])
        k(f"v_mfma_f32_16x16x16_bf16 {v(O0,4)}, {v(aV,2)}, {v(Z,2)}, {v(O0,4)}")
        woread(slots[5], *wo_ops[5])
        k(f"v_rcp_f32 v{MX}, v{LL}")
        k(f"global_store_dwordx2 v{vVMS}, {v(aV,2)}, s[{sVM}:{sVM+1}] {OPT['kmflag']}")
        woread(slots[6], *wo_ops[6])
        k("s_nop 1")
        ST('pv')
        for r in range(0, 8, 2): k(f"v_pk_mul_f32 v[{O0+r}:{O0+r+1}], v[{O0+r}:{O0+r+1}], v[{MX}:{MX+1}] op_sel_hi:[1,0]")
        k(f"""
        v_cvt_pk_bf16_f32 v{O0}, v{O0}, v{O0+1}
        v_cvt_pk_bf16_f32 v{O0+1}, v{O0+2}, v{O0+3}
        v_cvt_pk_bf16_f32 v{O1}, v{O1}, v{O1+1}
        v_cvt_pk_bf16_f32 v{O1+1}, v{O1+2}, v{O1+3}
        s_mov_b64 exec, s[{sMO}:{sMO+1}]
        ds_write_b64 v{vOW}, {v(O0,2)}
        ds_write_b64 v{vOW}, {v(O1,2)} offset:32
        s_mov_b64 exec, -1
        """)
        woread(slots[7], *wo_ops[7])
        ACC = vM
        for r in range(8): k(f"v_mov_b32 v{ACC+r}, 0")
        k(f"s_waitcnt vmcnt({3 if use_flags else 2}) lgkmcnt(2)\ns_barrier")
        ST('bar3')
        OO = vM + 16
        for ks in range(4): k(f"ds_read_b128 {v(OO+4*ks,4)}, v{vOR} offset:{ks*64}")
        for r in range(8, 16): k(f"v_mov_b32 v{ACC+r}, 0")
        issued = ['w7', 'w7', 'o0', 'o1', 'o2', 'o3']
        def retire_until(idx):
            n = len(issued) - 1 - idx
            k(f"s_waitcnt lgkmcnt({n})")
            del issued[:idx+1]
        def cvt_store(aa):
            b = ACC + 8*aa
            for q in range(4): k(f"v_cvt_pk_bf16_f32 v{b+q}, v{b+2*q}, v{b+2*q+1}")
            for q in range(4):
                if par: k(f"v_or_b32 v{b+q}, 1, v{b+q}")
                else: k(f"v_and_b32 v{b+q}, -2, v{b+q}")
            k(f"global_store_dwordx4 v{vPAS}, {v(b,4)}, s[{sPA}:{sPA+1}] offset:{aa*1024} {st}")
        for n, (cb, ks) in enumerate(wo_ops):
            need = {f'o{ks}', f'w{n}'}
            idxs = [i for i, nme in enumerate(issued) if nme in need]
            if idxs: retire_until(max(idxs))
            k(f"v_smfmac_f32_16x16x64_bf16 {v(ACC+4*cb,4)}, {v(OO+4*ks,4)}, {v(slots[n%8],8)}, v{vIDX}")
            if n + 8 < 16:
                if len(issued) + 2 > 15: retire_until(len(issued) + 2 - 15 - 1)
                woread(slots[n % 8], *wo_ops[n + 8]); issued += [f'w{n+8}', f'w{n+8}']
            if n == 11: cvt_store(0)
        ST('wo')
        SEL = vK
        k(f"""
        s_add_u32 s{sKM}, s{sKM}, 65536
        s_addc_u32 s{sKM+1}, s{sKM+1}, 0
        s_add_u32 s{sVM}, s{sVM}, 65536
        s_addc_u32 s{sVM+1}, s{sVM+1}, 0
        s_ashr_i32 s{sT}, s{sMBD}, 31
        s_nop 1
        """)
        cvt_store(1)
        k(f"""
        s_add_u32 s{sMBr}, s{sMBr}, s{sMBD}
        s_addc_u32 s{sMBr+1}, s{sMBr+1}, s{sT}
        """)
        for d in range(4): k(f"v_mov_b32 v{SEL+d}, 0")
        for d in range(4):
            lo = (0x0001000100010001 << (2*d)); hi = (0x0001000100010001 << (2*d+1))
            k(f"s_mov_b32 s{sP0}, {hex(lo & 0xffffffff)}\ns_mov_b32 s{sP0+1}, {hex(lo & 0xffffffff)}\ns_mov_b64 exec, s[{sP0}:{sP0+1}]\nv_mov_b32 v{SEL+d}, 0x00003f80")
            k(f"s_lshl_b64 exec, exec, 1\nv_mov_b32 v{SEL+d}, 0x3f800000")
        k("s_mov_b64 exec, -1")
        ST('pastore')
        if OPT['ackA'] != 'n': k(f"s_waitcnt vmcnt({OPT['ackA']})")
        ST('ackA')
        PAo = k.lab('LpollA'); X = OO
        k(f"s_mov_b32 s{sSpin}, 0")
        k.label(PAo)
        T0 = vM + 36; T1r = vM + 37
        ck3 = 'v_bitop3_b32' if par else 'v_or3_b32'; bo = ' bitop3:0x80' if par else ''; ck2 = 'v_and_b32' if par else 'v_or_b32'
        k(f"""
        global_load_dwordx4 {v(X,4)}, v{vPAL}, s[{sPA}:{sPA+1}] sc1
        global_load_dwordx4 {v(X+4,4)}, v{vPAL}, s[{sPA1}:{sPA1+1}] sc1
        s_add_u32 s{sSpin}, s{sSpin}, 1
        s_cmp_gt_u32 s{sSpin}, {SPIN}
        s_cbranch_scc1 {TO}
        s_waitcnt vmcnt(0)
        {ck3} v{T0}, v{X}, v{X+1}, v{X+2}{bo}
        {ck3} v{T1r}, v{X+3}, v{X+4}, v{X+5}{bo}
        {ck3} v{T0}, v{T0}, v{X+6}, v{X+7}{bo}
        {ck2} v{T0}, v{T0}, v{T1r}
        v_and_b32 v{T0}, 1, v{T0}
        v_cmp_ne_u32 vcc, {par}, v{T0}
        s_cbranch_vccnz {PAo}
        """)
        ST('pollA')
        if stamp: k(f"s_add_u32 s83, s83, s{sSpin}")
        A = X + 8
        k(f"""
        v_mfma_f32_16x16x32_bf16 {v(A,4)}, {v(SEL,4)}, {v(X,4)}, 0
        v_mfma_f32_16x16x32_bf16 {v(A,4)}, {v(SEL,4)}, {v(X+4,4)}, {v(A,4)}
        s_sub_u32 s{sMBD}, 0, s{sMBD}
        s_nop 6
        """)
        for rot in (8, 4):
            for r in range(4): k(f"v_add_f32_dpp v{A+r}, v{A+r}, v{A+r} row_ror:{rot} row_mask:0xf bank_mask:0xf")
        k(f"""
        v_cndmask_b32 v{A}, v{A}, v{A+1}, s[{sMF0}:{sMF0+1}]
        v_cndmask_b32 v{A+2}, v{A+2}, v{A+3}, s[{sMF0}:{sMF0+1}]
        v_cndmask_b32 v{A}, v{A}, v{A+2}, s[{sMKM}:{sMKM+1}]
        s_nop 1
        v_mov_b32_dpp v{A+1}, v{A} quad_perm:[1,0,3,2] row_mask:0xf bank_mask:0xf
        v_cvt_pk_bf16_f32 v{A}, v{A}, v{A+1}
        v_min_u32 v{A}, 0xfffffffe, v{A}
        s_mov_b64 exec, s[{sMMB}:{sMMB+1}]
        global_store_dword v{vMBS}, v{A}, s[{sMBw}:{sMBw+1}] {st}
        s_mov_b64 exec, -1
        """)
        ST('reduce')
        ST_collect()
        k(f"""
        s_ashr_i32 s{sT}, s{sMBD}, 31
        s_add_u32 s{sMBw}, s{sMBw}, s{sMBD}
        s_addc_u32 s{sMBw+1}, s{sMBw+1}, s{sT}
        """)

    k.label(LOOP)
    STN[0] = 0
    step(0)
    k(f"s_add_u32 s{sS}, s{sS}, 1")
    STN[0] = 0
    n0 = len(STNAMES)
    step(1)
    del STNAMES[n0:]
    k(f"s_add_u32 s{sS}, s{sS}, 1")
    mark(k, 3, 2); mark(k, 4, 32)
    k(f"""
    s_cmp_lt_u32 s{sS}, {NSEG}
    s_cbranch_scc1 {LOOP}
    """)
    mark(k, 5)
    if DIAGON[0]: k("s_memtime s[96:97]\ns_waitcnt lgkmcnt(0)\ns_sub_u32 s87, s96, s87")
    diag_dump(k, 48, 49)
    if stamp:
        k(f"""
        s_memtime s[100:101]
        s_waitcnt lgkmcnt(0)
        s_sub_u32 s100, s100, s99
        s_load_dwordx2 s[{sP0}:{sP0+1}], s[0:1], {KA_DBG}
        s_waitcnt lgkmcnt(0)
        v_mov_b32 v48, 0
        v_mov_b32 v49, s100
        s_mov_b64 exec, 1
        global_store_dword v48, v49, s[{sP0}:{sP0+1}] offset:36 sc1
        s_lshl_b32 s100, s{sH}, 2
        s_add_u32 s100, s100, s{sW}
        s_lshl_b32 s100, s100, 3
        v_mov_b32 v48, s100
        v_mov_b32 v50, s82
        v_mov_b32 v51, s83
        global_store_dwordx2 v48, v[50:51], s[{sWS}:{sWS+1}] offset:{0x800} sc1
        v_mov_b32 v48, 0
        """)
        if stamp == 2:
            lb = k.lab('Lnost')
            k(f"s_or_b32 s81, s{sH}, s{sW}\ns_or_b32 s81, s81, s6\ns_cmp_lg_u32 s81, 0\ns_cbranch_scc1 {lb}")
            for i in range(NST):
                k(f"v_mov_b32 v49, s{84+i}\nglobal_store_dword v48, v49, s[{sP0}:{sP0+1}] offset:{40+4*i} sc1")
            k.label(lb)
        k("s_mov_b64 exec, -1")
    if use_flags:
        k(f"""
        s_waitcnt vmcnt(0)
        s_barrier
        v_mov_b32 v95, s{sS}
        s_mov_b64 exec, 1
        global_store_dword v{vL16}, v95, s[{sFR}:{sFR+1}] sc1
        """)
    k("s_waitcnt vmcnt(0)\ns_endpgm")
    timeout_exit(k, 0 if fast else 1, TO)
```

```python
from common import *
ONES=0x3f803f80
NINF=0xff800000
import struct, math
def f2u(x): return struct.unpack('<I', struct.pack('<f', x))[0]
CA = f2u(0.25*math.log2(math.e))
CB = f2u(128**-0.5*math.log2(math.e))

def xlane(k, op, r, tmp):
    for sw in ('32', '16'):
        k(f"v_mov_b32 v{tmp}, v{r}\ns_nop 1\nv_permlane{sw}_swap_b32 v{r}, v{tmp}\n{op} v{r}, v{r}, v{tmp}")

def emit_TA(k):
    vL=0; vRD=1; vFLG=2; vTMP=3; vA=8
    sHA=33; sC=34
    k(f"""
    s_lshl_b32 s{sHA}, s{sIDX}, 2
    s_add_u32 s{sHA}, s{sHA}, s{sW}
    v_and_b32 v40, 63, v0
    v_and_b32 v41, 15, v40        ; i / n
    v_lshrrev_b32 v42, 4, v40     ; g
    ; DMA lane offset: row l/8 (stride 3072), chunk l%8
    v_lshrrev_b32 v45, 3, v40
    v_mul_u32_u24 v45, 3072, v45
    v_and_b32 v46, 7, v40
    v_lshl_add_u32 v45, v46, 4, v45
    ; tr address: row 8g + i/4 ; bytes 32w + 8*(i%4)
    v_lshrrev_b32 v46, 2, v41
    v_lshl_add_u32 v46, v42, 3, v46
    v_lshlrev_b32 v46, 7, v46
    v_and_b32 v47, 3, v41
    v_lshl_add_u32 v46, v47, 3, v46
    s_lshl_b32 s{sT2}, s{sW}, 5
    v_add_u32 v46, s{sT2}, v46
    """)
    wait_start(k, 2, 3, F_R(0), 1)
    for mu in range(3):
        k(f"s_load_dwordx2 s[{sP}:{sP+1}], s[0:1], {KA_WQKV}")
        k(f"""
        s_lshl_b32 s{sT}, s{sIDX}, 7
        s_add_u32 s{sT}, s{sT}, {mu*1024}
        s_mul_i32 s{sT2}, s{sW}, {128*3072}
        s_add_u32 s{sT}, s{sT}, s{sT2}
        s_lshl_b32 s{sT3}, s{sW}, 14
        s_waitcnt lgkmcnt(0)
        s_add_u32 s{sP}, s{sP}, s{sT}
        s_addc_u32 s{sP+1}, s{sP+1}, 0
        """)
        for u in range(16):
            k(f"s_mov_b32 m0, s{sT3}\ns_add_u32 s{sT3}, s{sT3}, 1024\nglobal_load_lds_dwordx4 v45, s[{sP}:{sP+1}]")
            adv(k, sP, 8*3072)
        mark(k, 6) if mu == 0 else None
        k("s_waitcnt vmcnt(0)\ns_barrier")
        mark(k, 7 + mu) if mu < 3 else None
        n = 0
        for ks in range(16):
            for hf in range(2):
                k(f"ds_read_b64_tr_b16 {a((mu*16+ks)*4 + 2*hf, 2)}, v46 offset:{ks*4096 + hf*512}")
                n += 1
                if n % 8 == 0: k("s_waitcnt lgkmcnt(0)")
        k("s_waitcnt lgkmcnt(0)\ns_barrier")
    k(f"""
    v_lshlrev_b32 v{vL}, 4, v40
    v_lshlrev_b32 v{vRD}, 9, v42
    v_lshl_add_u32 v{vRD}, v41, 4, v{vRD}
    v_xor_b32 v{vRD}, 0x8000, v{vRD}
    s_lshl_b32 s{sM0}, s{sW}, 13
    v_and_b32 v4, 1, v40
    v_lshlrev_b32 v4, 2, v4
    v_add_u32 v4, {F_T6(0)}, v4               ; + parity*8
    s_mov_b32 s{sFL}, s{sWS}
    s_mov_b32 s{sFL+1}, s{sWS+1}
    s_mov_b32 s{sC}, {CA}
    """)
    base(k, sOWN, F_TA, f"s_lshl_b32 s{sT}, s{sHA}, 2")
    base(k, sIN, XNA, f"s_lshl_b32 s{sT}, s{sW}, 13")
    base(k, sOUT, OA, f"s_lshl_b32 s{sT}, s{sHA}, 10")
    ACC=32
    QP=56
    KP=60
    VP=66
    SP=72; SC=76
    PP=80
    LL=84; OO=88
    OP=92
    BP=96; BC=100; BP0=104
    ON=108
    MX=112; TM=113
    k(f"v_lshlrev_b32 v48, 2, v42")
    for t, B in ((0, BP), (1, BC)):
        for r in range(4):
            k(f"""
            v_add_u32 v49, {r - (16 if t == 0 else 0) + 64}, v48      ; key offset + 64
            v_add_u32 v50, 64, v41
            v_sub_u32 v49, v50, v49                ; diff
            v_and_b32 v50, 0xfffffff1, v49         ; zero iff diff in 0,2,..,14
            v_mov_b32 v{B+r}, {NINF}
            v_cmp_eq_u32 vcc, 0, v50
            s_nop 1
            v_cndmask_b32 v{B+r}, v{B+r}, 0, vcc
            """.replace(f"v_cndmask_b32 v{B+r}, v{B+r}, 0, vcc", f"v_mov_b32 v51, 0\n v_cndmask_b32 v{B+r}, v{B+r}, v51, vcc"))
    for r in range(4): k(f"v_mov_b32 v{BP0+r}, {NINF}\nv_mov_b32 v{ON+r}, {ONES}")
    for r in range(2): k(f"v_mov_b32 v{KP+r}, 0\nv_mov_b32 v{VP+r}, 0")
    def set_need(k):
        k(f"s_add_u32 s{sNEED}, s{sT3}, 1\ns_mul_i32 s{sNEED}, s{sNEED}, s{sL}\ns_and_b32 s{sT}, s{sT3}, 1\ns_lshl_b32 s{sT}, s{sT}, 3\nv_add_u32 v{vFLG}, s{sT}, v4")
    def dma(k):
        for blk in range(2):
            k(f"s_add_u32 s{sT}, s{sM0}, {blk*4096}\ns_mov_b32 m0, s{sT}\ns_nop 0")
            for u in range(4): k(f"global_load_lds_dwordx4 v{vL}, s[{sIN}:{sIN+1}] offset:{u*1024} sc1")
            adv(k, sIN, 4096 if blk == 0 else 32768 - 4096)
    def toggle(k): k(f"v_xor_b32 v{vRD}, 0x8000, v{vRD}\ns_xor_b32 s{sM0}, s{sM0}, 0x8000")
    def comp(k, hook):
        def rd(ks):
            for tt in range(2): k(f"ds_read_b128 {v(vA + 8*(ks%3) + 4*tt,4)}, v{vRD} offset:{ks*2048 + tt*256}")
        rd(0); rd(1)
        for ks in range(16):
            if ks + 2 < 16: rd(ks + 2)
            k(f"s_waitcnt lgkmcnt({2*min(2, 15-ks)})")
            for tt in range(2):
                x = v(vA + 8*(ks % 3) + 4*tt, 4)
                for mu in range(3):
                    acc = v(ACC + 8*mu + 4*tt, 4); c = "0" if ks == 0 else acc; w = a((mu*16+ks)*4, 4)
                    if mu < 2: k(f"v_mfma_f32_16x16x32_bf16 {acc}, {w}, {x}, {c}")
                    else: k(f"v_mfma_f32_16x16x32_bf16 {acc}, {x}, {w}, {c}")
            if ks == 5: hook(0)
            if ks == 10: hook(1)
        k.nop(8)
    def epilogue(k):
        for tt in range(2):
            for mu, dst in ((0, QP + 2*tt), (1, KP + 2 + 2*tt), (2, VP + 2 + 2*tt)):
                b = ACC + 8*mu + 4*tt
                k(f"v_cvt_pk_bf16_f32 v{dst}, v{b}, v{b+1}\nv_cvt_pk_bf16_f32 v{dst+1}, v{b+2}, v{b+3}")
        for tt in range(2):
            k("s_nop 1")
            k(f"v_mfma_f32_16x16x16_bf16 {v(SP,4)}, {v(KP+2*tt,2)}, {v(QP+2*tt,2)}, 0")
            k(f"v_mfma_f32_16x16x16_bf16 {v(SC,4)}, {v(KP+2+2*tt,2)}, {v(QP+2*tt,2)}, 0")
            k.nop(8)
            bp = BP0 if tt == 0 else BP
            for r in range(4): k(f"v_fma_f32 v{SP+r}, v{SP+r}, s{sC}, v{bp+r}")
            for r in range(4): k(f"v_fma_f32 v{SC+r}, v{SC+r}, s{sC}, v{BC+r}")
            k(f"""
            v_max3_f32 v{MX}, v{SP}, v{SP+1}, v{SP+2}
            v_max3_f32 v{MX}, v{MX}, v{SP+3}, v{SC}
            v_max3_f32 v{MX}, v{MX}, v{SC+1}, v{SC+2}
            v_max_f32 v{MX}, v{MX}, v{SC+3}
            """)
            xlane(k, 'v_max_f32', MX, TM)
            for r in range(8): k(f"v_sub_f32 v{SP+r}, v{SP+r}, v{MX}")
            for r in range(8): k(f"v_exp_f32 v{SP+r}, v{SP+r}")
            k("s_nop 0")
            for q in range(4): k(f"v_cvt_pk_bf16_f32 v{PP+q}, v{SP+2*q}, v{SP+2*q+1}")
            k("s_nop 1")
            k(f"v_mfma_f32_16x16x32_bf16 {v(LL,4)}, {v(ON,4)}, {v(PP,4)}, 0")
            k(f"v_mfma_f32_16x16x32_bf16 {v(OO,4)}, {v(VP+2*tt,4)}, {v(PP,4)}, 0")
            k.nop(7)
            k(f"v_rcp_f32 v{LL}, v{LL}\ns_nop 0")
            for r in range(4): k(f"v_mul_f32 v{OO+r}, v{OO+r}, v{LL}")
            k(f"v_cvt_pk_bf16_f32 v{OP+2*tt}, v{OO}, v{OO+1}\nv_cvt_pk_bf16_f32 v{OP+2*tt+1}, v{OO+2}, v{OO+3}")
        k(f"""
        s_nop 1
        v_permlane16_swap_b32 v{OP}, v{OP+2}
        v_permlane16_swap_b32 v{OP+1}, v{OP+3}
        global_store_dwordx4 v{vL}, {v(OP,4)}, s[{sOUT}:{sOUT+1}] sc1
        v_mov_b32 v{KP}, v{KP+4}
        v_mov_b32 v{KP+1}, v{KP+5}
        v_mov_b32 v{VP}, v{VP+4}
        v_mov_b32 v{VP+1}, v{VP+5}
        """)
        for r in range(4): k(f"v_mov_b32 v{BP0+r}, v{BP+r}")
        adv(k, sOUT, 32768)
    skeleton(k, 'TA', 4, NSEG, set_need, dma, lambda k: None, comp, epilogue, vFLG, vTMP, vL, toggle, 1)

def emit_T4(k):
    sH=33; sPAR=34; sC=35
    sQ=36; sK=38; sV=40; sKM=42; sVM=44; sO=46
    vL=0; vFLG=2; vTMP=3; vQA=4; vQB=5; vKMA=6; vVA=7; vVMA=8
    Q=16; KK=48; KM_=80; V=96; VM_=128
    SM=144; S0=148; S1=152; PT_=156; PM=160; LL=164; MX=168; TM=169
    OO=172
    OP=204
    BM=208; BD=212; ON=216
    TO = k.lab('LtoT4'); LOOP = k.lab('LitT4')
    k(f"""
    s_lshl_b32 s{sT}, s{sIDX}, 2
    s_add_u32 s{sT}, s{sT}, s{sW}
    s_lshr_b32 s{sH}, s{sT}, 1
    s_and_b32 s{sPAR}, s{sT}, 1
    v_and_b32 v240, 63, v0
    v_and_b32 v241, 15, v240      ; n / i
    v_lshrrev_b32 v242, 4, v240   ; g
    v_lshlrev_b32 v{vL}, 4, v240
    v_lshlrev_b32 v{vQA}, 9, v242
    v_lshl_add_u32 v{vQA}, v241, 4, v{vQA}      ; g*512 + n*16
    v_add_u32 v{vQB}, 4096, v{vQA}
    ; KM tr-read address: w*2048 + (8g + i/4)*16 + ((i%4)%2)*8   (+ ks*512 + hf*64)
    v_lshrrev_b32 v243, 2, v241
    v_lshl_add_u32 v243, v242, 3, v243
    v_lshlrev_b32 v243, 4, v243
    v_and_b32 v244, 1, v241
    v_lshl_add_u32 v243, v244, 3, v243
    s_lshl_b32 s{sM0}, s{sW}, 11
    v_add_u32 v{vKMA}, s{sM0}, v243
    v_lshlrev_b32 v{vVA}, 11, v242
    v_lshl_add_u32 v{vVA}, v241, 4, v{vVA}       ; g*2048 + i*16
    v_and_b32 v243, 1, v242
    v_lshlrev_b32 v{vVMA}, 3, v243
    v_lshl_add_u32 v{vVMA}, v241, 4, v{vVMA}     ; i*16 + (g%2)*8
    s_mov_b32 s{sFL}, s{sWS}
    s_mov_b32 s{sFL+1}, s{sWS+1}
    s_mov_b32 s{sC}, {CB}
    ; flags: lane%4 in (1,2) -> T3 q wave flags ; else R[h]
    s_mul_i32 s{sT}, s{sL}, {F_R(1)-F_R(0)}
    s_add_u32 s{sT}, s{sT}, {F_R(0)}
    s_lshl_b32 s{sT2}, s{sH}, 2
    s_add_u32 s{sT}, s{sT}, s{sT2}
    v_mov_b32 v{vFLG}, s{sT}
    s_mul_i32 s{sT}, s{sL}, {F_T3(1)-F_T3(0)}
    s_add_u32 s{sT}, s{sT}, {F_T3(0) + 48}
    s_lshl_b32 s{sT2}, s{sH}, 7
    s_add_u32 s{sT}, s{sT}, s{sT2}
    v_and_b32 v244, 3, v240
    v_lshlrev_b32 v243, 4, v244
    v_add_u32 v243, s{sT}, v243
    v_add_u32 v244, 3, v244
    v_and_b32 v244, 2, v244              ; (l+3)&2 : l%4=0 ->(3&2)=2 ; 1->(4&2)=0 ; 2->(5&2)=0 ; 3->(6&2)=2
    v_cmp_eq_u32 vcc, 0, v244
    s_nop 1
    v_cndmask_b32 v{vFLG}, v{vFLG}, v243, vcc
    """)
    base(k, sOWN, F_T4, f"s_lshl_b32 s{sT}, s{sH}, 3\ns_lshl_b32 s{sT3}, s{sPAR}, 2\ns_add_u32 s{sT}, s{sT}, s{sT3}")
    big = f"s_lshl_b32 s{sT}, s{sH}, 13\ns_lshl_b32 s{sT3}, s{sPAR}, 18\ns_add_u32 s{sT}, s{sT}, s{sT3}"
    small = f"s_lshl_b32 s{sT}, s{sH}, 11\ns_lshl_b32 s{sT3}, s{sPAR}, 16\ns_add_u32 s{sT}, s{sT}, s{sT3}"
    base(k, sQ, QT, big); base(k, sK, KT, big); base(k, sV, VT, big); base(k, sO, OT, big)
    base(k, sKM, KM, small); base(k, sVM, VM, small)
    k(f"v_mov_b32 v243, {NINF}\nv_mov_b32 v244, 0")
    for r in range(4):
        k(f"""
        v_cmp_gt_u32 vcc, 2, v242
        s_nop 1
        v_cndmask_b32 v{BM+r}, v243, v244, vcc
        v_lshlrev_b32 v245, 2, v242
        v_add_u32 v245, {r}, v245
        v_cmp_le_u32 vcc, v245, v241
        s_nop 1
        v_cndmask_b32 v{BD+r}, v243, v244, vcc
        v_mov_b32 v{ON+r}, {ONES}
        """)
    k(f"s_mov_b32 s{sS}, s{sPAR}")
    mark(k, 1)
    k.label(LOOP)
    k(f"s_add_u32 s{sNEED}, s{sS}, 1")
    poll_block(k, vFLG, vTMP, TO)
    mark(k, 2, 0)
    def qaddr(ks): return (vQA, ks*2048) if ks < 2 else (vQB, (ks-2)*2048)
    k(f"s_mov_b32 m0, s{sM0}\ns_nop 0")
    k(f"global_load_lds_dwordx4 v{vL}, s[{sKM}:{sKM+1}] sc1\nglobal_load_lds_dwordx4 v{vL}, s[{sKM}:{sKM+1}] offset:1024 sc1")
    for ks in range(4):
        va, off = qaddr(ks)
        for qt in range(2):
            k(f"global_load_dwordx4 {v(Q + (qt*4+ks)*4,4)}, v{va}, s[{sQ}:{sQ+1}] offset:{off + qt*256} sc1")
        for t in range(2):
            k(f"global_load_dwordx4 {v(KK + (t*4+ks)*4,4)}, v{va}, s[{sK}:{sK+1}] offset:{off + t*256} sc1")
    for ft in range(8):
        va, off = qaddr(ft // 2)
        k(f"global_load_dwordx4 {v(V + ft*4,4)}, v{va}, s[{sV}:{sV+1}] offset:{off + (ft % 2)*256} sc1")
        k(f"global_load_dwordx2 {v(VM_ + ft*2,2)}, v{vVMA}, s[{sVM}:{sVM+1}] offset:{ft*256} sc1")
    for p in (sQ, sK, sV): adv(k, p, 2*262144)
    for p in (sKM, sVM): adv(k, p, 2*65536)
    k("s_waitcnt vmcnt(16)")
    for ks in range(4):
        for hf in range(2):
            k(f"ds_read_b64_tr_b16 {v(KM_ + ks*4 + 2*hf,2)}, v{vKMA} offset:{ks*512 + hf*64}")
    k("s_waitcnt lgkmcnt(0)")
    for qt in range(2):
        for ks in range(4):
            q = v(Q + (qt*4+ks)*4, 4)
            c = lambda r: "0" if ks == 0 else v(r, 4)
            k(f"v_mfma_f32_16x16x32_bf16 {v(SM,4)}, {v(KM_+ks*4,4)}, {q}, {c(SM)}")
            k(f"v_mfma_f32_16x16x32_bf16 {v(S0,4)}, {v(KK+ks*4,4)}, {q}, {c(S0)}")
            if qt == 1: k(f"v_mfma_f32_16x16x32_bf16 {v(S1,4)}, {v(KK+16+ks*4,4)}, {q}, {c(S1)}")
        k.nop(8)
        n = 8 if qt == 0 else 12
        for r in range(4): k(f"v_fma_f32 v{SM+r}, v{SM+r}, s{sC}, v{BM+r}")
        if qt == 0:
            for r in range(4): k(f"v_fma_f32 v{S0+r}, v{S0+r}, s{sC}, v{BD+r}")
        else:
            for r in range(4): k(f"v_mul_f32 v{S0+r}, s{sC}, v{S0+r}")
            for r in range(4): k(f"v_fma_f32 v{S1+r}, v{S1+r}, s{sC}, v{BD+r}")
        k(f"v_max3_f32 v{MX}, v{SM}, v{SM+1}, v{SM+2}")
        i = 3
        while i < n:
            if i + 1 < n: k(f"v_max3_f32 v{MX}, v{MX}, v{SM+i}, v{SM+i+1}"); i += 2
            else: k(f"v_max_f32 v{MX}, v{MX}, v{SM+i}"); i += 1
        xlane(k, 'v_max_f32', MX, TM)
        for r in range(n): k(f"v_sub_f32 v{SM+r}, v{SM+r}, v{MX}")
        for r in range(n): k(f"v_exp_f32 v{SM+r}, v{SM+r}")
        k("s_nop 0")
        k(f"v_cvt_pk_bf16_f32 v{PM}, v{SM}, v{SM+1}\nv_cvt_pk_bf16_f32 v{PM+1}, v{SM+2}, v{SM+3}")
        k(f"v_cvt_pk_bf16_f32 v{PT_}, v{S0}, v{S0+1}\nv_cvt_pk_bf16_f32 v{PT_+1}, v{S0+2}, v{S0+3}")
        if qt == 1: k(f"v_cvt_pk_bf16_f32 v{PT_+2}, v{S1}, v{S1+1}\nv_cvt_pk_bf16_f32 v{PT_+3}, v{S1+2}, v{S1+3}")
        if qt == 0: k("s_waitcnt vmcnt(0)")
        k("s_nop 1")
        if qt == 0: k(f"v_mfma_f32_16x16x16_bf16 {v(LL,4)}, {v(ON,2)}, {v(PT_,2)}, 0")
        else: k(f"v_mfma_f32_16x16x32_bf16 {v(LL,4)}, {v(ON,4)}, {v(PT_,4)}, 0")
        for ft in range(8):
            o = v(OO + 4*ft, 4)
            if qt == 0: k(f"v_mfma_f32_16x16x16_bf16 {o}, {v(V+4*ft,2)}, {v(PT_,2)}, 0")
            else: k(f"v_mfma_f32_16x16x32_bf16 {o}, {v(V+4*ft,4)}, {v(PT_,4)}, 0")
        k(f"v_mfma_f32_16x16x16_bf16 {v(LL,4)}, {v(ON,2)}, {v(PM,2)}, {v(LL,4)}")
        for ft in range(8):
            o = v(OO + 4*ft, 4)
            k(f"v_mfma_f32_16x16x16_bf16 {o}, {v(VM_+2*ft,2)}, {v(PM,2)}, {o}")
        k(f"v_rcp_f32 v{LL}, v{LL}")
        k.nop(8)
        for u in range(4):
            b = OO + 8*u
            for r in range(8): k(f"v_mul_f32 v{b+r}, v{b+r}, v{LL}")
            d = OP
            for q in range(4): k(f"v_cvt_pk_bf16_f32 v{b+q}, v{b+2*q}, v{b+2*q+1}")
            va, off = qaddr(u)
            k(f"global_store_dwordx4 v{va}, {v(b,4)}, s[{sO}:{sO+1}] offset:{off + qt*256} sc1")
        k("s_nop 1")
    adv(k, sO, 2*262144)
    k(f"""
    s_waitcnt vmcnt(0)
    s_add_u32 s{sT}, s{sS}, 1
    v_mov_b32 v{vTMP}, s{sT}
    s_mov_b64 exec, 1
    global_store_dword v{vL}, v{vTMP}, s[{sOWN}:{sOWN+1}] sc1
    s_mov_b64 exec, -1
    s_add_u32 s{sS}, s{sS}, 2
    """)
    mark(k, 3, 2); mark(k, 4, 32)
    k(f"""
    s_cmp_lt_u32 s{sS}, {NSEG}
    s_cbranch_scc1 {LOOP}
    """)
    mark(k, 5); diag_dump(k, 2, 3)
    k("s_waitcnt vmcnt(0)\ns_endpgm")
    timeout_block(k, TO, 6)

def ln_stats(k, packed, npk, SUM, SQ, tmp, reduce_code):
    k(f"v_mov_b32 v{SUM}, 0\nv_mov_b32 v{SQ}, 0\ns_mov_b32 s{sT}, {ONES}")
    for q in range(npk):
        k(f"v_dot2_f32_bf16 v{SUM}, v{packed+q}, s{sT}, v{SUM}\nv_dot2_f32_bf16 v{SQ}, v{packed+q}, v{packed+q}, v{SQ}")
    k.nop(3)
    reduce_code()
    k(f"""
    v_mul_f32 v{SUM}, 0x3b000000, v{SUM}
    v_mul_f32 v{SQ}, 0x3b000000, v{SQ}
    v_fma_f32 v{SQ}, -v{SUM}, v{SUM}, v{SQ}
    v_max_f32 v{SQ}, 0, v{SQ}
    v_add_f32 v{SQ}, 0x3727c5ac, v{SQ}
    v_rsq_f32 v{SQ}, v{SQ}
    s_nop 0
    """)
def ln_apply(k, packed, npk, MEAN, RSTD, out, t0, t1):
    for q in range(npk):
        k(f"""
        v_lshlrev_b32 v{t0}, 16, v{packed+q}
        v_and_b32 v{t1}, 0xffff0000, v{packed+q}
        v_sub_f32 v{t0}, v{t0}, v{MEAN}
        v_sub_f32 v{t1}, v{t1}, v{MEAN}
        v_mul_f32 v{t0}, v{t0}, v{RSTD}
        v_mul_f32 v{t1}, v{t1}, v{RSTD}
        v_cvt_pk_bf16_f32 v{out+q}, v{t0}, v{t1}
        """)

def emit_T6(k):
    sPAR=33; sHF=34; sPT=36
    sX1=44; sXR=46; sXN=48; sOutP=50
    vL=0; vFLG=2; vTMP=3; vPA=4; vXA=5; vOA=6; vLW=7; vLR=8
    P=16
    X=144
    XN=160
    SUM=176; SQ=177; T0=178; T1=179; R4=180
    TO = k.lab('LtoT6'); LOOP = k.lab('LitT6')
    k(f"""
    s_lshr_b32 s{sPAR}, s{sIDX}, 1
    s_and_b32 s{sHF}, s{sIDX}, 1
    v_and_b32 v240, 63, v0
    v_and_b32 v241, 15, v240          ; tok
    v_lshrrev_b32 v242, 4, v240       ; l/16
    s_lshl_b32 s{sT}, s{sW}, 2
    v_add_u32 v243, s{sT}, v242       ; cg 0..15
    s_lshl_b32 s{sT}, s{sHF}, 4
    v_add_u32 v244, s{sT}, v241
    v_lshlrev_b32 v{vL}, 4, v240
    v_lshlrev_b32 v{vPA}, 12, v243
    v_lshl_add_u32 v{vPA}, v244, 4, v{vPA}
    v_lshlrev_b32 v{vXA}, 11, v243
    v_lshl_add_u32 v{vXA}, v244, 4, v{vXA}
    v_lshlrev_b32 v{vOA}, 10, v244
    v_lshl_add_u32 v{vOA}, v243, 6, v{vOA}
    s_lshl_b32 s{sT}, s{sW}, 7
    v_lshlrev_b32 v{vLR}, 3, v241
    v_add_u32 v{vLW}, s{sT}, v{vLR}
    s_mul_i32 s{sT}, s{sL}, {F_T5(1)-F_T5(0)}
    s_add_u32 s{sT}, s{sT}, {F_T5(0)}
    v_lshlrev_b32 v{vFLG}, 2, v240
    v_add_u32 v{vFLG}, s{sT}, v{vFLG}
    s_mov_b32 s{sFL}, s{sWS}
    s_mov_b32 s{sFL+1}, s{sWS+1}
    """)
    base(k, sOWN, F_T6, f"s_lshl_b32 s{sT}, s{sIDX}, 2")
    for kq in range(4):
        base(k, sPT + 2*kq, PT, f"s_lshl_b32 s{sT}, s{sPAR}, 18\ns_add_u32 s{sT}, s{sT}, {kq*65536}")
    base(k, sX1, X1, f"s_lshl_b32 s{sT}, s{sPAR}, 15")
    l1 = lambda l: XR(1)
    base(k, sXR, l1, f"s_lshl_b32 s{sT}, s{sPAR}, 15")
    l2 = lambda l: XNA(1)
    base(k, sXN, l2, f"s_lshl_b32 s{sT}, s{sPAR}, 15")
    k(f"""
    s_load_dwordx2 s[{sOutP}:{sOutP+1}], s[0:1], {KA_OUT}
    s_lshl_b32 s{sT}, s{sPAR}, 15
    s_waitcnt lgkmcnt(0)
    s_add_u32 s{sOutP}, s{sOutP}, s{sT}
    s_addc_u32 s{sOutP+1}, s{sOutP+1}, 0
    s_mov_b32 s{sS}, s{sPAR}
    """)
    mark(k, 1)
    k.label(LOOP)
    k(f"s_add_u32 s{sNEED}, s{sS}, 1")
    poll_block(k, vFLG, vTMP, TO)
    mark(k, 2, 0)
    for j in range(4):
        k(f"global_load_dwordx4 {v(X+4*j,4)}, v{vXA}, s[{sX1}:{sX1+1}] offset:{j*512} sc1")
    for kq in range(4):
        for j in range(8):
            k(f"global_load_dwordx4 {v(P+32*kq+4*j,4)}, v{vPA}, s[{sPT+2*kq}:{sPT+2*kq+1}] offset:{j*512} sc1")
        adv(k, sPT + 2*kq, 2*262144)
    adv(k, sX1, 2*32768)
    k("s_waitcnt vmcnt(16)")
    for r in range(32): k(f"v_add_f32 v{P+r}, v{P+r}, v{P+32+r}")
    k("s_waitcnt vmcnt(0)")
    for r in range(32): k(f"v_add_f32 v{P+64+r}, v{P+64+r}, v{P+96+r}")
    for r in range(32): k(f"v_add_f32 v{P+r}, v{P+r}, v{P+64+r}")
    for q in range(16):
        k(f"""
        v_lshlrev_b32 v{T0}, 16, v{X+q}
        v_and_b32 v{T1}, 0xffff0000, v{X+q}
        v_add_f32 v{T0}, v{T0}, v{P+2*q}
        v_add_f32 v{T1}, v{T1}, v{P+2*q+1}
        v_cvt_pk_bf16_f32 v{X+q}, v{T0}, v{T1}
        """)
    lo = k.lab('Lt6o'); le = k.lab('Lt6e')
    k(f"s_cmp_lg_u32 s{sL}, 0\ns_cbranch_scc1 {lo}")
    for j in range(4):
        k(f"global_store_dwordx4 v{vXA}, {v(X+4*j,4)}, s[{sXR}:{sXR+1}] offset:{j*512} sc1")
    def red():
        xlane(k, 'v_add_f32', SUM, T0); xlane(k, 'v_add_f32', SQ, T0)
        k(f"ds_write_b64 v{vLW}, v[{SUM}:{SQ}]\ns_waitcnt lgkmcnt(0)\ns_barrier")
        for w in range(4): k(f"ds_read_b64 {v(R4+2*w,2)}, v{vLR} offset:{w*128}")
        k(f"""
        s_waitcnt lgkmcnt(0)
        v_add_f32 v{R4}, v{R4}, v{R4+2}
        v_add_f32 v{R4+1}, v{R4+1}, v{R4+3}
        v_add_f32 v{R4+4}, v{R4+4}, v{R4+6}
        v_add_f32 v{R4+5}, v{R4+5}, v{R4+7}
        v_add_f32 v{SUM}, v{R4}, v{R4+4}
        v_add_f32 v{SQ}, v{R4+1}, v{R4+5}
        """)
    ln_stats(k, X, 16, SUM, SQ, T0, red)
    ln_apply(k, X, 16, SUM, SQ, XN, T0, T1)
    for j in range(4):
        k(f"global_store_dwordx4 v{vXA}, {v(XN+4*j,4)}, s[{sXN}:{sXN+1}] offset:{j*512} sc1")
    k(f"s_branch {le}")
    k.label(lo)
    for j in range(4):
        k(f"global_store_dwordx4 v{vOA}, {v(X+4*j,4)}, s[{sOutP}:{sOutP+1}] offset:{j*16}")
    k.label(le)
    adv(k, sXR, 2*32768); adv(k, sXN, 2*32768); adv(k, sOutP, 2*32768)
    k("s_waitcnt vmcnt(0)\ns_barrier")
    k(f"s_add_u32 s{sT3}, s{sS}, 1")
    publish(k, vL, vTMP, sT3, True)
    k(f"""
    s_add_u32 s{sS}, s{sS}, 2
    """)
    mark(k, 3, 2); mark(k, 4, 32)
    k(f"""
    s_cmp_lt_u32 s{sS}, {NSEG}
    s_cbranch_scc1 {LOOP}
    """)
    mark(k, 5); diag_dump(k, 2, 3)
    k("s_waitcnt vmcnt(0)\ns_endpgm")
    timeout_block(k, TO, 7)

PF = [True]
def emit_K0(k):
    END = k.lab('Lk0e')
    vXA=4; vCA=5; vLW=6; vLR=7; X=16; XN=24; SUM=32; SQ=33; T0=34; T1=35; R4=36
    k(f"""
    s_cmp_ge_u32 s2, 256
    s_cbranch_scc1 {END}
    s_load_dwordx2 s[{sWS}:{sWS+1}], s[0:1], {KA_WS}
    s_load_dwordx2 s[10:11], s[0:1], {KA_X}
    s_load_dwordx2 s[12:13], s[0:1], {KA_MEM0}
    v_readfirstlane_b32 s{sW}, v0
    s_nop 1
    s_lshr_b32 s{sW}, s{sW}, 6
    v_and_b32 v40, 63, v0
    v_and_b32 v41, 7, v40            ; tok
    v_lshrrev_b32 v42, 3, v40
    s_lshl_b32 s{sT}, s{sW}, 3
    v_add_u32 v42, s{sT}, v42
    s_lshl_b32 s{sT}, s2, 3
    v_add_u32 v43, s{sT}, v41
    v_lshlrev_b32 v{vXA}, 10, v43
    v_lshl_add_u32 v{vXA}, v42, 5, v{vXA}
    v_lshrrev_b32 v44, 5, v43
    v_lshlrev_b32 v44, 15, v44                ; seg*32768
    v_and_b32 v45, 31, v43
    v_lshl_add_u32 v44, v45, 4, v44
    v_lshl_add_u32 v{vCA}, v42, 10, v44
    s_lshl_b32 s{sT}, s{sW}, 6
    v_lshlrev_b32 v{vLR}, 3, v41
    v_add_u32 v{vLW}, s{sT}, v{vLR}
    s_waitcnt lgkmcnt(0)
    global_load_dwordx4 {v(X,4)}, v{vXA}, s[10:11]
    global_load_dwordx4 {v(X+4,4)}, v{vXA}, s[10:11] offset:16
    CODEPF
    ; fills
    v_mov_b32 v48, -1
    v_mov_b32 v49, -1
    v_mov_b32 v50, -1
    v_mov_b32 v51, -1
    v_lshlrev_b32 v52, 4, v0                  ; tid*16
    s_lshl_b32 s{sT}, s2, 13
    s_add_u32 s{sT}, s{sT}, {PA(0)}
    v_add_u32 v53, s{sT}, v52
    global_store_dwordx4 v53, v[48:51], s[{sWS}:{sWS+1}]
    v_add_u32 v53, 4096, v53
    global_store_dwordx4 v53, v[48:51], s[{sWS}:{sWS+1}]
    s_lshr_b32 s{sT}, s2, 7
    s_mul_i32 s{sT}, s{sT}, {MB(1)-MB(0)}
    s_and_b32 s{sT2}, s2, 127
    s_lshl_b32 s{sT2}, s{sT2}, 12
    s_add_u32 s{sT}, s{sT}, s{sT2}
    s_add_u32 s{sT}, s{sT}, {MB(0)+8192}
    v_add_u32 v53, s{sT}, v52
    global_store_dwordx4 v53, v[48:51], s[{sWS}:{sWS+1}]
    """)
    nf = k.lab('Lnf'); nm = k.lab('Lnm')
    k(f"""
    s_cmp_lg_u32 s{sW}, 0
    s_cbranch_scc1 {nf}
    v_mov_b32 v54, 0
    v_lshlrev_b32 v55, 2, v40
    s_lshl_b32 s{sT}, s2, 8
    v_add_u32 v55, s{sT}, v55
    global_store_dword v55, v54, s[{sWS}:{sWS+1}]
    """)
    k.label(nf)
    k(f"""
    s_cmp_ge_u32 s2, 4
    s_cbranch_scc1 {nm}
    s_and_b32 s{sT}, s2, 1
    s_lshl_b32 s{sT}, s{sT}, 12
    v_add_u32 v56, s{sT}, v52
    global_load_dwordx4 v[60:63], v56, s[12:13]
    s_lshr_b32 s{sT}, s2, 1
    s_mul_i32 s{sT}, s{sT}, {MB(1)-MB(0)}
    s_add_u32 s{sT}, s{sT}, {MB(0)}
    v_add_u32 v56, s{sT}, v56
    s_waitcnt vmcnt(0)
    global_store_dwordx4 v56, v[60:63], s[{sWS}:{sWS+1}]
    """)
    k.label(nm)
    k(f"""
    s_waitcnt vmcnt(0)
    v_add_u32 v53, {XR(0)}, v{vCA}
    global_store_dwordx4 v53, {v(X,4)}, s[{sWS}:{sWS+1}]
    global_store_dwordx4 v53, {v(X+4,4)}, s[{sWS}:{sWS+1}] offset:512
    """)
    def red():
        for val in (SUM, SQ):
            k(f"s_nop 1\nv_add_f32_dpp v{val}, v{val}, v{val} row_ror:8 row_mask:0xf bank_mask:0xf")
            xlane(k, 'v_add_f32', val, T0)
        k(f"ds_write_b64 v{vLW}, v[{SUM}:{SQ}]\ns_waitcnt lgkmcnt(0)\ns_barrier")
        for w in range(4): k(f"ds_read_b64 {v(R4+2*w,2)}, v{vLR} offset:{w*64}")
        k(f"""
        s_waitcnt lgkmcnt(0)
        v_add_f32 v{R4}, v{R4}, v{R4+2}
        v_add_f32 v{R4+1}, v{R4+1}, v{R4+3}
        v_add_f32 v{R4+4}, v{R4+4}, v{R4+6}
        v_add_f32 v{R4+5}, v{R4+5}, v{R4+7}
        v_add_f32 v{SUM}, v{R4}, v{R4+4}
        v_add_f32 v{SQ}, v{R4+1}, v{R4+5}
        """)
    ln_stats(k, X, 8, SUM, SQ, T0, red)
    ln_apply(k, X, 8, SUM, SQ, XN, T0, T1)
    k(f"""
    v_add_u32 v53, {XNA(0)}, v{vCA}
    global_store_dwordx4 v53, {v(XN,4)}, s[{sWS}:{sWS+1}]
    global_store_dwordx4 v53, {v(XN+4,4)}, s[{sWS}:{sWS+1}] offset:512
    s_waitcnt vmcnt(0)
    """)
    k.label(END)
    k("s_endpgm")
    txt = '\n'.join(k.lines)
    if PF[0]:
        pf = f"""s_getpc_b64 s[14:15]
Lk0pc:
s_add_u32 s14, s14, CODE_BEGIN-Lk0pc
s_addc_u32 s15, s15, 0
s_lshr_b32 s{sT}, s2, 3
s_and_b32 s{sT}, s{sT}, 31
s_mul_i32 s{sT}, s{sT}, ((CODE_END-CODE_BEGIN+2047)/2048+31)/32*2048
v_mul_u32_u24 v57, ((CODE_END-CODE_BEGIN+2047)/2048+31)/32*8, v0
v_add_u32 v57, s{sT}, v57
s_mov_b32 s{sT2}, CODE_END-CODE_BEGIN-4
v_min_u32 v57, s{sT2}, v57
v_and_b32 v57, -4, v57
global_load_dword v58, v57, s[14:15]"""
    else: pf = ''
    i = k.lines.index('CODEPF')
    k.lines[i:i+1] = [l for l in pf.split('\n') if l]
```

```python
from common import *
vL=0; vRD=1; vFLG=2; vTMP=3; vA=8; vACC=32
ONES=0x3f803f80

def lane_ids(k):
    k(f"""
    v_and_b32 v40, 63, v0
    v_and_b32 v41, 31, v40
    v_lshrrev_b32 v42, 5, v40
    v_and_b32 v43, 15, v40
    v_lshrrev_b32 v44, 4, v40
    """)

def load_W64(k, ka, row_stride, col_byte_code):
    k(f"""
    v_lshrrev_b32 v45, 3, v40
    v_mul_u32_u24 v45, {row_stride}, v45
    v_and_b32 v46, 7, v40
    v_lshl_add_u32 v45, v46, 4, v45
    ; tr read address: rows 8*kh + i/4 ; cols 16*(gamma%2) + 4*(i%4)
    v_lshrrev_b32 v46, 2, v43
    v_lshl_add_u32 v46, v42, 3, v46         ; 8kh + i/4
    v_lshlrev_b32 v46, 7, v46               ; *128
    v_and_b32 v47, 1, v44
    v_lshl_add_u32 v46, v47, 5, v46         ; + 32B*(gamma%2)
    v_and_b32 v47, 3, v43
    v_lshl_add_u32 v46, v47, 3, v46         ; + 8B*(i%4)
    s_lshl_b32 s{sT2}, s{sW}, 15
    v_add_u32 v46, s{sT2}, v46
    """)
    for rnd in range(2):
        k(f"s_load_dwordx2 s[{sP}:{sP+1}], s[0:1], {ka}")
        k(col_byte_code)
        k(f"""
        s_add_u32 s{sT}, s{sT}, {rnd*256*row_stride}
        s_lshl_b32 s{sT3}, s{sW}, 15
        s_waitcnt lgkmcnt(0)
        s_add_u32 s{sP}, s{sP}, s{sT}
        s_addc_u32 s{sP+1}, s{sP+1}, 0
        """)
        for u in range(32):
            k(f"s_mov_b32 m0, s{sT3}\ns_add_u32 s{sT3}, s{sT3}, 1024\nglobal_load_lds_dwordx4 v45, s[{sP}:{sP+1}]")
            adv(k, sP, 8*row_stride)
        k("s_waitcnt vmcnt(0)")
        n = 0
        for ksl in range(16):
            ks = rnd*16 + ksl
            for ct in range(2):
                for hf in range(2):
                    r = (ct*32 + ks)*4 + 2*hf
                    k(f"ds_read_b64_tr_b16 {a(r,2)}, v46 offset:{(16*ksl + 4*hf)*128 + ct*64}")
                    n += 1
                    if n % 8 == 0: k("s_waitcnt lgkmcnt(0)")
        k("s_waitcnt lgkmcnt(0)")

def gemm64_compute(k, hook, wA):
    def rd(ks): k(f"ds_read_b128 {v(vA + 4*(ks%4),4)}, v{vRD} offset:{ks*1024}")
    for ks in range(3): rd(ks)
    for ks in range(32):
        if ks + 3 < 32: rd(ks + 3)
        k(f"s_waitcnt lgkmcnt({min(3, 31-ks)})")
        x = v(vA + 4*(ks % 4), 4)
        for ct in range(2):
            w = a((ct*32 + ks)*4, 4); acc = v(vACC + 16*ct, 16)
            c = "0" if ks == 0 else acc
            if wA: k(f"v_mfma_f32_32x32x16_bf16 {acc}, {w}, {x}, {c}")
            else: k(f"v_mfma_f32_32x32x16_bf16 {acc}, {x}, {w}, {c}")
        if ks == 10: hook(0)
        if ks == 21: hook(1)

def toggle32k(k):
    k(f"v_xor_b32 v{vRD}, 0x8000, v{vRD}\ns_xor_b32 s{sM0}, s{sM0}, 0x8000")
def dma_linear(k, nkb, item_stride):
    for blk in range(nkb // 4):
        k(f"s_add_u32 s{sT}, s{sM0}, {blk*4096}\ns_mov_b32 m0, s{sT}\ns_nop 0")
        for u in range(4):
            k(f"global_load_lds_dwordx4 v{vL}, s[{sIN}:{sIN+1}] offset:{u*1024} sc1")
        adv(k, sIN, 4096 if blk < nkb // 4 - 1 else item_stride - (nkb - 4) * 1024)
def dma32k(k): dma_linear(k, 8, 32768)

def init_bufs32k(k):
    k(f"""
    v_lshlrev_b32 v{vL}, 4, v40
    v_xor_b32 v{vRD}, 0x8000, v{vL}
    s_lshl_b32 s{sM0}, s{sW}, 13
    """)

def emit_T3(k, vtype):
    name = 'T3v' if vtype else 'T3q'
    sHH = 33; sMU = 34
    k(f"""
    s_lshr_b32 s{sMU}, s{sIDX}, 4
    s_and_b32 s{sT}, s{sIDX}, 15
    s_lshl_b32 s{sT}, s{sT}, 1
    s_lshr_b32 s{sT2}, s{sW}, 1
    s_add_u32 s{sHH}, s{sT}, s{sT2}          ; head
    """)
    lane_ids(k)
    wait_start(k, 2, 3, F_R(0), 1, GATE['T3'])
    colcode = f"s_lshl_b32 s{sT}, s{sHH}, 8\ns_and_b32 s{sT2}, s{sW}, 1\ns_lshl_b32 s{sT2}, s{sT2}, 7\ns_add_u32 s{sT}, s{sT}, s{sT2}"
    if vtype:
        load_W64(k, KA_WV, 8192, colcode)
    else:
        lq = k.lab('Lq'); le = k.lab('Le')
        k(f"s_cmp_lg_u32 s{sMU}, 0\ns_cbranch_scc1 {lq}")
        load_W64(k, KA_WQ, 8192, colcode)
        k(f"s_branch {le}")
        k.label(lq)
        load_W64(k, KA_WK, 8192, colcode)
        k.label(le)
    vCS = 64
    for r in range(4): k(f"v_mov_b32 v{vA+r}, {ONES}")
    k("s_nop 1")
    for ks in range(32):
        for ct in range(2):
            w = a((ct*32 + ks)*4, 4); acc = v(vCS + 16*ct, 16); c = "0" if ks == 0 else acc
            if not vtype: k(f"v_mfma_f32_32x32x16_bf16 {acc}, {w}, {v(vA,4)}, {c}")
            else: k(f"v_mfma_f32_32x32x16_bf16 {acc}, {v(vA,4)}, {w}, {c}")
    k.nop(12)
    k("s_barrier")
    init_bufs32k(k)
    k(f"""
    s_mul_i32 s{sT}, s{sL}, {F_TW(1)-F_TW(0)}
    s_add_u32 s{sT}, s{sT}, {F_TW(0)}
    v_and_b32 v{vFLG}, 7, v40
    v_lshlrev_b32 v{vFLG}, 2, v{vFLG}
    v_add_u32 v{vFLG}, s{sT}, v{vFLG}
    s_mov_b32 s{sFL}, s{sWS}
    s_mov_b32 s{sFL+1}, s{sWS+1}
    """)
    base(k, sOWN, F_T3, f"s_sub_u32 s{sT3}, s{sMU}, 1\ns_lshl_b32 s{sT3}, s{sT3}, 1\ns_cmp_eq_u32 s{sMU}, 0\ns_cselect_b32 s{sT3}, 4, s{sT3}\n"
                        f"s_and_b32 s{sT}, s{sW}, 1\ns_add_u32 s{sT3}, s{sT3}, s{sT}\ns_lshl_b32 s{sT3}, s{sT3}, 4\ns_lshl_b32 s{sT}, s{sHH}, 7\ns_add_u32 s{sT}, s{sT}, s{sT3}")
    base(k, sIN, X1, f"s_lshl_b32 s{sT}, s{sW}, 13")
    base(k, sAX1, ST1)
    def outbase(fn):
        base(k, sOUT, fn, f"s_lshl_b32 s{sT}, s{sHH}, 13\ns_and_b32 s{sT3}, s{sW}, 1\ns_lshl_b32 s{sT3}, s{sT3}, 12\ns_add_u32 s{sT}, s{sT}, s{sT3}")
    if vtype: outbase(VT)
    else:
        lq = k.lab('Lq'); le = k.lab('Le')
        k(f"s_cmp_lg_u32 s{sMU}, 0\ns_cbranch_scc1 {lq}")
        outbase(QT); k(f"s_branch {le}"); k.label(lq); outbase(KT); k.label(le)
    vST = 4
    vVS0 = 5; vVS1 = 6; vSC = 7
    k(f"""
    v_lshlrev_b32 v{vST}, 10, v42
    v_lshl_add_u32 v{vST}, v41, 3, v{vST}
    v_lshlrev_b32 v{vVS0}, 11, v42
    v_lshl_add_u32 v{vVS0}, v41, 4, v{vVS0}
    v_add_u32 v{vVS1}, 4096, v{vVS0}
    s_lshl_b32 s{sT}, s{sW}, 8
    s_add_u32 s{sT}, s{sT}, 65536
    v_lshlrev_b32 v{vSC}, 2, v41
    v_add_u32 v{vSC}, s{sT}, v{vSC}
    v_lshlrev_b32 v45, 4, v42
    v_add_u32 v45, s{sT}, v45
    v_mov_b32 v31, v45
    """)
    vSR = 31
    vS = 24
    RS = 96; MR = 97
    def set_need(k): k(f"s_add_u32 s{sNEED}, s{sT3}, 1")
    def item_start(k):
        for p in range(4):
            k(f"global_load_dwordx2 {v(100+2*p,2)}, v{vST}, s[{sAX1}:{sAX1+1}] offset:{p*256} sc1")
        adv(k, sAX1, 2048)
    def compute(k, hook): gemm64_compute(k, hook, not vtype)
    def epilogue(k):
        k(f"""
        s_waitcnt vmcnt(0)
        v_add_f32 v100, v100, v102
        v_add_f32 v101, v101, v103
        v_add_f32 v104, v104, v106
        v_add_f32 v105, v105, v107
        v_add_f32 v100, v100, v104
        v_add_f32 v101, v101, v105
        v_mov_b32 v102, v100
        v_mov_b32 v103, v101
        s_nop 1
        v_permlane32_swap_b32 v100, v102
        v_permlane32_swap_b32 v101, v103
        v_add_f32 v100, v100, v102
        v_add_f32 v101, v101, v103
        v_mul_f32 v100, 0x3b000000, v100        ; mean
        v_mul_f32 v101, 0x3b000000, v101        ; E[x^2]
        v_fma_f32 v101, -v100, v100, v101       ; var
        v_max_f32 v101, 0, v101
        v_add_f32 v101, 0x3727c5ac, v101        ; + 1e-5
        v_rsq_f32 v{RS}, v101
        s_nop 0
        v_mul_f32 v{MR}, v100, v{RS}
        """)
        if not vtype:
            for r in range(32):
                k(f"v_mul_f32 v{vACC+r}, v{vACC+r}, v{RS}")
                k(f"v_fma_f32 v{vACC+r}, -v{MR}, v{vCS+r}, v{vACC+r}")
            for ct in range(2):
                for jp in range(2):
                    b = vACC + 16*ct + 8*jp; d = 100 + 4*(2*ct+jp)
                    for q in range(4): k(f"v_cvt_pk_bf16_f32 v{d+q}, v{b+2*q}, v{b+2*q+1}")
                    k("s_nop 1")
                    k(f"v_permlane32_swap_b32 v{d}, v{d+2}\nv_permlane32_swap_b32 v{d+1}, v{d+3}")
                    k(f"global_store_dwordx4 v{vL}, {v(d,4)}, s[{sOUT}:{sOUT+1}] offset:{(4*ct+2*jp)*512} sc1")
        else:
            k(f"""
            ds_write_b32 v{vSC}, v{RS}
            ds_write_b32 v{vSC}, v{MR} offset:128
            s_waitcnt lgkmcnt(0)
            """)
            for jj in range(4):
                k(f"ds_read_b128 {v(100+4*jj,4)}, v{vSR} offset:{jj*32}")
                k(f"ds_read_b128 {v(116+4*jj,4)}, v{vSR} offset:{128+jj*32}")
            k("s_waitcnt lgkmcnt(0)")
            for ct in range(2):
                cs = vCS + 16*ct
                for R in range(16):
                    r = vACC + 16*ct + R
                    k(f"v_mul_f32 v{r}, v{r}, v{100+R}")
                    k(f"v_fma_f32 v{r}, -v{116+R}, v{cs}, v{r}")
            for ct in range(2):
                for aa in range(2):
                    d = 132 + 4*(2*ct+aa); b0 = vACC + 16*ct + 4*aa; b1 = b0 + 8
                    k(f"v_cvt_pk_bf16_f32 v{d}, v{b0}, v{b0+1}\nv_cvt_pk_bf16_f32 v{d+1}, v{b0+2}, v{b0+3}")
                    k(f"v_cvt_pk_bf16_f32 v{d+2}, v{b1}, v{b1+1}\nv_cvt_pk_bf16_f32 v{d+3}, v{b1+2}, v{b1+3}")
                    k(f"global_store_dwordx4 v{vL}, {v(d,4)}, s[{sOUT}:{sOUT+1}] offset:{ct*2048 + aa*1024} sc1")
        adv(k, sOUT, 262144)
    def comp2(k, hook):
        compute(k, hook); k.nop(12)
    skeleton(k, name, 2, NSEG, set_need, dma32k, item_start, comp2, epilogue, vFLG, vTMP, vL, toggle32k, 4)

def emit_TW(k):
    lane_ids(k)
    wait_start(k, 2, 3, F_R(0), 1)
    load_W64(k, KA_WOA, 1024, f"s_lshl_b32 s{sT}, s{sIDX}, 9\ns_lshl_b32 s{sT2}, s{sW}, 7\ns_add_u32 s{sT}, s{sT}, s{sT2}")
    k("s_barrier")
    init_bufs32k(k)
    k(f"""
    s_mul_i32 s{sT}, s{sL}, {F_TA(1)-F_TA(0)}
    s_add_u32 s{sT}, s{sT}, {F_TA(0)}
    v_and_b32 v{vFLG}, 31, v40
    v_lshlrev_b32 v{vFLG}, 2, v{vFLG}
    v_add_u32 v{vFLG}, s{sT}, v{vFLG}
    s_mov_b32 s{sFL}, s{sWS}
    s_mov_b32 s{sFL+1}, s{sWS+1}
    """)
    base(k, sOWN, F_TW, f"s_lshl_b32 s{sT}, s{sIDX}, 2\ns_add_u32 s{sT}, s{sT}, s{sW}\ns_lshl_b32 s{sT}, s{sT}, 2")
    base(k, sIN, OA, f"s_lshl_b32 s{sT}, s{sW}, 13")
    colx = f"s_lshl_b32 s{sT}, s{sIDX}, 14\ns_lshl_b32 s{sT3}, s{sW}, 12\ns_add_u32 s{sT}, s{sT}, s{sT3}"
    base(k, sAX1, XR, colx)
    base(k, sOUT, X1, colx)
    base(k, sAX2, ST1, f"s_lshl_b32 s{sT}, s{sIDX}, 2\ns_add_u32 s{sT}, s{sT}, s{sW}\ns_lshl_b32 s{sT}, s{sT}, 8")
    vX = 4; vSS = 5
    k(f"""
    v_lshlrev_b32 v{vX}, 4, v41
    v_lshl_add_u32 v{vX}, v42, 3, v{vX}      ; n*16 + hi*8
    v_lshlrev_b32 v{vSS}, 3, v41             ; n*8
    """)
    def set_need(k): k(f"s_add_u32 s{sNEED}, s{sT3}, 1")
    def item_start(k):
        for ct in range(2):
            for jj in range(4):
                k(f"global_load_dwordx2 {v(64+2*(4*ct+jj),2)}, v{vX}, s[{sAX1}:{sAX1+1}] offset:{(4*ct+jj)*512} sc1")
        adv(k, sAX1, 32768)
    def comp2(k, hook):
        gemm64_compute(k, hook, True); k.nop(12)
    def epilogue(k):
        k("s_waitcnt vmcnt(0)")
        k("v_mov_b32 v96, 0\nv_mov_b32 v97, 0")
        k(f"s_mov_b32 s{sT}, {ONES}")
        for ct in range(2):
            for jj in range(4):
                x = 64 + 2*(4*ct+jj); b = vACC + 16*ct + 4*jj
                k(f"""
                v_lshlrev_b32 v98, 16, v{x}
                v_and_b32 v99, 0xffff0000, v{x}
                v_add_f32 v{b}, v{b}, v98
                v_add_f32 v{b+1}, v{b+1}, v99
                v_lshlrev_b32 v98, 16, v{x+1}
                v_and_b32 v99, 0xffff0000, v{x+1}
                v_add_f32 v{b+2}, v{b+2}, v98
                v_add_f32 v{b+3}, v{b+3}, v99
                v_cvt_pk_bf16_f32 v{x}, v{b}, v{b+1}
                v_cvt_pk_bf16_f32 v{x+1}, v{b+2}, v{b+3}
                global_store_dwordx2 v{vX}, {v(x,2)}, s[{sOUT}:{sOUT+1}] offset:{(4*ct+jj)*512} sc1
                v_dot2_f32_bf16 v96, v{x}, s{sT}, v96
                v_dot2_f32_bf16 v97, v{x}, v{x}, v97
                v_dot2_f32_bf16 v96, v{x+1}, s{sT}, v96
                v_dot2_f32_bf16 v97, v{x+1}, v{x+1}, v97
                """)
        k(f"""
        s_nop 2
        v_mov_b32 v98, v96
        v_mov_b32 v99, v97
        s_nop 1
        v_permlane32_swap_b32 v96, v98
        v_permlane32_swap_b32 v97, v99
        v_add_f32 v96, v96, v98
        v_add_f32 v97, v97, v99
        s_mov_b64 exec, 0xffffffff
        global_store_dwordx2 v{vSS}, v[96:97], s[{sAX2}:{sAX2+1}] sc1
        s_mov_b64 exec, -1
        """)
        adv(k, sAX2, 2048)
        adv(k, sOUT, 32768)
    skeleton(k, 'TW', 3, NSEG, set_need, dma32k, item_start, comp2, epilogue, vFLG, vTMP, vL, toggle32k, 9)

def emit_T5(k):
    sKQ = 33; sNQ = 34
    k(f"s_lshr_b32 s{sKQ}, s{sIDX}, 2\ns_and_b32 s{sNQ}, s{sIDX}, 3")
    lane_ids(k)
    wait_start(k, 2, 3, F_R(0), 1, GATE['T5'])
    k(f"""
    v_lshrrev_b32 v45, 2, v40
    v_lshlrev_b32 v45, 10, v45
    v_and_b32 v46, 3, v40
    v_lshl_add_u32 v45, v46, 4, v45          ; dma lane offset: row l/4, chunk l%4
    ; tr address: row = 4*kh + i/4 ; col bytes 32*(gamma%2) + 8*(i%4)
    v_lshrrev_b32 v46, 2, v43
    v_lshl_add_u32 v46, v42, 2, v46
    v_lshlrev_b32 v46, 6, v46
    v_and_b32 v47, 1, v44
    v_lshl_add_u32 v46, v47, 5, v46
    v_and_b32 v47, 3, v43
    v_lshl_add_u32 v46, v47, 3, v46
    s_lshl_b32 s{sT2}, s{sW}, 15
    v_add_u32 v46, s{sT2}, v46
    """)
    for rnd in range(2):
        k(f"s_load_dwordx2 s[{sP}:{sP+1}], s[0:1], {KA_WO}")
        k(f"""
        s_lshl_b32 s{sT}, s{sKQ}, 20
        s_lshl_b32 s{sT2}, s{sNQ}, 8
        s_add_u32 s{sT}, s{sT}, s{sT2}
        s_lshl_b32 s{sT2}, s{sW}, 6
        s_add_u32 s{sT}, s{sT}, s{sT2}
        s_add_u32 s{sT}, s{sT}, {rnd*512*1024}
        s_lshl_b32 s{sT3}, s{sW}, 15
        s_waitcnt lgkmcnt(0)
        s_add_u32 s{sP}, s{sP}, s{sT}
        s_addc_u32 s{sP+1}, s{sP+1}, 0
        """)
        for u in range(32):
            k(f"s_mov_b32 m0, s{sT3}\ns_add_u32 s{sT3}, s{sT3}, 1024\nglobal_load_lds_dwordx4 v45, s[{sP}:{sP+1}]")
            adv(k, sP, 16*1024)
        k("s_waitcnt vmcnt(0)")
        n = 0
        for ksl in range(32):
            ks = rnd*32 + ksl
            hl = ksl // 8; u = (ksl // 2) % 4; gb = 2 * (ks % 2)
            for aa in range(2):
                row = hl*128 + 32*u + 16*aa + 4*gb
                k(f"ds_read_b64_tr_b16 {a(ks*4 + 2*aa, 2)}, v46 offset:{row*64}")
                n += 1
                if n % 8 == 0: k("s_waitcnt lgkmcnt(0)")
        k("s_waitcnt lgkmcnt(0)")
    k("s_barrier")
    k(f"""
    v_lshlrev_b32 v{vL}, 4, v40
    v_xor_b32 v{vRD}, 0x10000, v{vL}
    s_lshl_b32 s{sM0}, s{sW}, 14
    s_mul_i32 s{sT}, s{sL}, {F_T4(1)-F_T4(0)}
    s_add_u32 s{sT}, s{sT}, {F_T4(0)}
    s_lshl_b32 s{sT2}, s{sKQ}, 6
    s_add_u32 s{sT}, s{sT}, s{sT2}
    v_and_b32 v4, 7, v40
    v_lshlrev_b32 v4, 3, v4
    v_add_u32 v4, s{sT}, v4
    s_mov_b32 s{sFL}, s{sWS}
    s_mov_b32 s{sFL+1}, s{sWS+1}
    """)
    base(k, sOWN, F_T5, f"s_lshl_b32 s{sT}, s{sIDX}, 2\ns_add_u32 s{sT}, s{sT}, s{sW}\ns_lshl_b32 s{sT}, s{sT}, 2")
    base(k, sIN, OT, f"s_lshl_b32 s{sT}, s{sKQ}, 16\ns_lshl_b32 s{sT3}, s{sW}, 14\ns_add_u32 s{sT}, s{sT}, s{sT3}")
    base(k, sOUT, PT, f"s_lshl_b32 s{sT}, s{sKQ}, 16\ns_lshl_b32 s{sT3}, s{sNQ}, 14\ns_add_u32 s{sT}, s{sT}, s{sT3}\ns_lshl_b32 s{sT3}, s{sW}, 12\ns_add_u32 s{sT}, s{sT}, s{sT3}")
    def set_need(k):
        k(f"s_add_u32 s{sNEED}, s{sT3}, 1\ns_and_b32 s{sT}, s{sT3}, 1\ns_lshl_b32 s{sT}, s{sT}, 2\nv_add_u32 v{vFLG}, s{sT}, v4")
    def dma(k): dma_linear(k, 16, 262144)
    def toggle(k): k(f"v_xor_b32 v{vRD}, 0x10000, v{vRD}\ns_xor_b32 s{sM0}, s{sM0}, 0x10000")
    def comp(k, hook):
        def rd(ks): k(f"ds_read_b128 {v(vA + 4*(ks%4),4)}, v{vRD} offset:{ks*1024}")
        for ks in range(3): rd(ks)
        for ks in range(64):
            if ks + 3 < 64: rd(ks + 3)
            k(f"s_waitcnt lgkmcnt({min(3, 63-ks)})")
            acc = v(vACC, 16); c = "0" if ks == 0 else acc
            k(f"v_mfma_f32_32x32x16_bf16 {acc}, {a(ks*4,4)}, {v(vA + 4*(ks%4),4)}, {c}")
            if ks == 20: hook(0)
            if ks == 42: hook(1)
        k.nop(12)
    def epilogue(k):
        for jj in range(4):
            k(f"global_store_dwordx4 v{vL}, {v(vACC+4*jj,4)}, s[{sOUT}:{sOUT+1}] offset:{jj*1024} sc1")
        adv(k, sOUT, 262144)
    skeleton(k, 'T5', 5, NSEG, set_need, dma, lambda k: None, comp, epilogue, vFLG, vTMP, vL, toggle, 4)
```

```python
from fw import *
from layout import *
SPIN = 1 << 18
SLEEP = [0]
sIDX=4; sW=5; sL=6; sS=7; sWS=8; sIN=10; sFL=12; sNEED=14; sISS=15; sSPIN=16; sT=17; sT2=18; sT3=19
sOUT=20; sAX1=22; sAX2=24; sOWN=26; sM0=28; sP=30; sTO=32
def base(k, dst, off_fn, extra=None):
    k(f"s_mul_i32 s{sT2}, s{sL}, {off_fn(1) - off_fn(0)}")
    k(f"s_add_u32 s{sT2}, s{sT2}, {off_fn(0)}")
    if extra:
        k(extra)
        k(f"s_add_u32 s{sT2}, s{sT2}, s{sT}")
    k(f"s_add_u32 s{dst}, s{sWS}, s{sT2}\ns_addc_u32 s{dst+1}, s{sWS+1}, 0")
def adv(k, pair, n):
    k(f"s_add_u32 s{pair}, s{pair}, {n}\ns_addc_u32 s{pair+1}, s{pair+1}, 0")
def timeout_block(k, lab, code):
    k.label(lab)
    k(f"""
    s_load_dwordx2 s[{sP}:{sP+1}], s[0:1], {KA_DBG}
    s_waitcnt lgkmcnt(0)
    s_mov_b64 exec, 1
    v_mov_b32 v2, {136 + 4*code}
    v_mov_b32 v3, s{sS}
    v_add_u32 v3, 0x10000, v3
    global_store_dword v2, v3, s[{sP}:{sP+1}] sc1
    s_waitcnt vmcnt(0)
    s_endpgm
    """)
def poll_block(k, vflg, vtmp, tolab, flagbase=sFL, need=sNEED):
    lab = k.lab('Lp')
    k(f"s_mov_b32 s{sSPIN}, 0")
    k.label(lab)
    k(f"""
    global_load_dword v{vtmp}, v{vflg}, s[{flagbase}:{flagbase+1}] sc1
    s_add_u32 s{sSPIN}, s{sSPIN}, 1
    s_cmp_gt_u32 s{sSPIN}, {SPIN}
    s_cbranch_scc1 {tolab}
    s_waitcnt vmcnt(0)
    v_cmp_gt_u32 vcc, s{need}, v{vtmp}
    """)
    if SLEEP[0]:
        ok = k.lab('Lpok')
        k(f"s_cbranch_vccz {ok}\ns_sleep {SLEEP[0]}\ns_branch {lab}")
        k.label(ok)
    else:
        k(f"s_cbranch_vccnz {lab}")
def publish(k, vzero_lane0, vtmp, val_sgpr, wave0_only=False):
    sk = k.lab('Lpub')
    if wave0_only: k(f"s_cmp_lg_u32 s{sW}, 0\ns_cbranch_scc1 {sk}")
    k(f"""
    v_mov_b32 v{vtmp}, s{val_sgpr}
    s_mov_b64 exec, 1
    global_store_dword v{vzero_lane0}, v{vtmp}, s[{sOWN}:{sOWN+1}] sc1
    s_mov_b64 exec, -1
    """)
    mark_val(k, 4, val_sgpr, 33)
    k.label(sk)

sPEND = 35
def skeleton(k, name, code, nitems, set_need, issue_dma_, item_start, compute, epilogue, vflg, vtmp, vL16, toggle, nst):
    TO = k.lab('Lto' + name); LOOP = k.lab('Lit' + name)
    def issue_dma(k):
        mark_val(k, 6, sNEED, 33)
        issue_dma_(k)
    vpub = vtmp + 4 if False else vtmp
    mark(k, 1)
    wait_init(k, vtmp + 120, vtmp)
    k(f"s_mov_b32 s{sS}, 0\ns_mov_b32 s{sT3}, 0\ns_mov_b32 s{sPEND}, 0")
    set_need(k)
    poll_block(k, vflg, vtmp, TO)
    mark(k, 2)
    issue_dma(k)
    k("s_waitcnt vmcnt(0)\ns_barrier")
    k.label(LOOP)
    toggle(k)
    k(f"s_add_u32 s{sT3}, s{sS}, 1")
    set_need(k)
    k(f"s_cmp_ge_u32 s{sT3}, {nitems}\ns_cselect_b32 s{sISS}, 1, 0")
    item_start(k)
    k(f"global_load_dword v{vtmp}, v{vflg}, s[{sFL}:{sFL+1}] sc1")
    def hook(n):
        sk = k.lab('Lhk')
        if n == 0:
            np_ = k.lab('Lnp')
            k("s_waitcnt vmcnt(0)")
            k(f"v_cmp_gt_u32 vcc, s{sNEED}, v{vtmp}")
            k(f"s_cmp_eq_u32 s{sPEND}, 0\ns_cbranch_scc1 {np_}")
            publish(k, vL16, vtmp, sS)
            k(f"s_mov_b32 s{sPEND}, 0")
            k.label(np_)
            k(f"s_cmp_lg_u32 s{sISS}, 0\ns_cbranch_scc1 {sk}")
        else:
            k(f"s_cmp_lg_u32 s{sISS}, 0\ns_cbranch_scc1 {sk}")
            k(f"s_waitcnt vmcnt(0)\nv_cmp_gt_u32 vcc, s{sNEED}, v{vtmp}")
        nr = k.lab('Lnr')
        k(f"s_cbranch_vccnz {nr}")
        issue_dma(k)
        k(f"s_mov_b32 s{sISS}, 1\ns_branch {sk}")
        k.label(nr)
        k(f"global_load_dword v{vtmp}, v{vflg}, s[{sFL}:{sFL+1}] sc1")
        k.label(sk)
    compute(k, hook)
    epilogue(k)
    k(f"s_add_u32 s{sS}, s{sS}, 1")
    late = k.lab('Llate'); join = k.lab('Ljoin')
    k(f"""
    s_cmp_ge_u32 s{sS}, {nitems}
    s_cbranch_scc1 {late}
    s_cmp_eq_u32 s{sISS}, 0
    s_cbranch_scc1 {late}
    s_waitcnt vmcnt({nst})
    s_mov_b32 s{sPEND}, 1
    s_branch {join}
    """)
    k.label(late)
    k("s_waitcnt vmcnt(0)")
    publish(k, vL16, vtmp, sS)
    k(f"s_cmp_ge_u32 s{sS}, {nitems}\ns_cbranch_scc1 {join}")
    poll_block(k, vflg, vtmp, TO)
    issue_dma(k)
    k("s_waitcnt vmcnt(0)")
    k.label(join)
    mark(k, 3, 1)
    k(f"""
    s_barrier
    s_cmp_lt_u32 s{sS}, {nitems}
    s_cbranch_scc1 {LOOP}
    """)
    mark(k, 5)
    diag_dump(k, 2, 3)
    k("s_waitcnt vmcnt(0)\ns_endpgm")
    timeout_block(k, TO, code)

NINIT = 128
def wait_init(k, vaddr, vtmp):
    to = k.lab('Lwito'); sk = k.lab('Lwisk')
    k(f"""
    s_load_dwordx2 s[{sP}:{sP+1}], s[0:1], {KA_DBG}
    s_mov_b32 s{sNEED}, 1
    s_mov_b32 s{sS}, 0
    v_mov_b32 v{vaddr}, 248
    s_waitcnt lgkmcnt(0)
    """)
    poll_block(k, vaddr, vtmp, to, flagbase=sP)
    k(f"s_branch {sk}")
    timeout_block(k, to, 10)
    k.label(sk)

GATE = dict(T3=None, T5=None, TW=None, TA=None)
def wait_start(k, vaddr, vtmp, flag_off, need=1, gate0=None):
    sk = k.lab('Lws'); to = k.lab('Lwsto'); go = k.lab('Lwsg')
    k(f"s_cmp_lg_u32 s{sL}, 0\ns_cbranch_scc1 {go}\ns_branch {sk}")
    k.label(go)
    wait_init(k, vaddr, vtmp)
    k(f"""
    v_mov_b32 v{vaddr}, {flag_off}
    s_mov_b32 s{sFL}, s{sWS}
    s_mov_b32 s{sFL+1}, s{sWS+1}
    s_mov_b32 s{sNEED}, {need}
    s_mov_b32 s{sS}, 0
    """)
    poll_block(k, vaddr, vtmp, to)
    k(f"s_branch {sk}")
    timeout_block(k, to, 8)
    k.label(sk)
```

```python
import re

def v(i, n=1):
    return f"v{i}" if n == 1 else f"v[{i}:{i+n-1}]"
def a(i, n=1):
    return f"a{i}" if n == 1 else f"a[{i}:{i+n-1}]"
def s(i, n=1):
    return f"s{i}" if n == 1 else f"s[{i}:{i+n-1}]"

class Asm:
    def __init__(self):
        self.lines = []
        self.nlab = 0
    def __call__(self, text):
        for l in text.strip('\n').split('\n'):
            l = l.strip()
            if l:
                self.lines.append(l)
    def lab(self, base='L'):
        self.nlab += 1
        return f"{base}_{self.nlab}"
    def label(self, name):
        self.lines.append(name + ":")
    def nop(self, n):
        while n > 0:
            k = min(n, 16)
            self.lines.append(f"s_nop {k-1}")
            n -= k
    def text(self):
        out = []
        for l in self.lines:
            if l.endswith(':') or l.startswith('.') or l.startswith(';'):
                out.append(l)
            else:
                out.append("    " + l)
        return '\n'.join(out) + '\n'

REG = re.compile(r'^(-|abs\()?\s*([vas])(\d+)\)?$')
RNG = re.compile(r'^(-)?([vas])\[(\d+):(\d+)\]$')
def regs(op):
    op = op.strip()
    m = REG.match(op)
    if m: return {(m.group(2), int(m.group(3)))}
    m = RNG.match(op)
    if m: return {(m.group(2), i) for i in range(int(m.group(3)), int(m.group(4)) + 1)}
    if op == 'vcc': return {('s', 'vcc')}
    if op == 'exec': return {('s', 'exec')}
    if op == 'm0': return {('s', 'm0')}
    return set()

def split_ops(rest):
    ops = []; cur = ''; depth = 0
    for ch in rest:
        if ch in '[(': depth += 1
        if ch in '])': depth -= 1
        if ch == ',' and depth == 0:
            ops.append(cur.strip()); cur = ''
        else:
            cur += ch
    if cur.strip(): ops.append(cur.strip())
    mods = ''
    if ops:
        parts = ops[-1].split()
        if len(parts) > 1:
            ops[-1] = parts[0]; mods = ' '.join(parts[1:])
    return ops, mods

TRANS = ('v_exp_f32', 'v_log_f32', 'v_rcp_f32', 'v_rsq_f32', 'v_sqrt_f32', 'v_sin_f32', 'v_cos_f32', 'v_rcp_iflag_f32')
def passes(mn):
    if '32x32x' in mn: return 8
    if '16x16x' in mn: return 4
    if '4x4x' in mn: return 2
    raise ValueError(mn)

class Ins:
    __slots__ = ('text','mn','kind','dst','src','srcC','srcAB','dpp','data','addr','states','mods','wide')
def parse(line):
    line = line.split(';')[0].strip()
    if not line or line.endswith(':') or line.startswith('.'):
        return None
    parts = line.split(None, 1)
    mn = parts[0]; rest = parts[1] if len(parts) > 1 else ''
    ops, mods = split_ops(rest)
    i = Ins(); i.text = line; i.mn = mn; i.mods = mods
    i.dst = set(); i.src = set(); i.srcC = set(); i.srcAB = set(); i.data = set(); i.addr = set()
    i.dpp = ('dpp' in mn) or any(k in mods for k in ('quad_perm', 'row_', 'wave_'))
    i.states = 1; i.wide = False
    R = [regs(o) for o in ops]
    if mn == 's_nop':
        i.kind = 'nop'; i.states = int(ops[0], 0) + 1
    elif mn.startswith('v_mfma'):
        i.kind = 'mfma'; i.dst = R[0]; i.srcAB = R[1] | R[2]; i.srcC = R[3]; i.src = i.srcAB | i.srcC
    elif mn.startswith('v_smfmac'):
        i.kind = 'mfma'; i.dst = R[0]; i.srcAB = R[1] | R[2] | R[3]; i.srcC = R[0]; i.src = i.srcAB | i.srcC
    elif mn.startswith('v_'):
        i.kind = 'valu'
        if mn.startswith('v_cmp'):
            i.dst = R[0]; i.src = set().union(*R[1:])
        elif mn.startswith('v_permlane') and 'swap' in mn:
            i.dst = R[0] | R[1]; i.src = R[0] | R[1]
        elif mn.startswith(('v_add_co', 'v_sub_co', 'v_addc_co', 'v_subb_co', 'v_mad_u64')):
            i.dst = R[0] | R[1]; i.src = set().union(*R[2:])
        elif mn.startswith(('v_fmac', 'v_dot2c', 'v_pk_fmac')):
            i.dst = R[0]; i.src = set().union(*R)
        elif mn == 'v_nop':
            pass
        else:
            i.dst = R[0]; i.src = set().union(*R[1:]) if len(R) > 1 else set()
            if i.dpp: i.src |= R[0]
        if mn.startswith('v_cndmask') and len(ops) == 3: i.src |= {('s', 'vcc')}
    elif mn.startswith('ds_'):
        i.kind = 'ds'
        if mn.startswith('ds_read') or mn.startswith('ds_bpermute') or mn.startswith('ds_swizzle') or mn.startswith('ds_permute'):
            i.dst = R[0]; i.addr = set().union(*R[1:])
        else:
            i.addr = R[0]; i.data = set().union(*R[1:])
        i.src = i.addr | i.data
    elif mn.startswith('global_') or mn.startswith('buffer_'):
        i.kind = 'vmem'
        if mn.startswith('global_load_lds'):
            i.addr = set().union(*R)
        elif mn.startswith('global_load'):
            i.dst = R[0]; i.addr = set().union(*R[1:])
        elif mn.startswith('global_store'):
            i.addr = R[0] | (R[2] if len(R) > 2 else set()); i.data = R[1]
            i.wide = ('x3' in mn or 'x4' in mn)
        elif mn.startswith('global_atomic'):
            if 'sc0' in mods:
                i.dst = R[0]; i.addr = R[1] | (R[3] if len(R) > 3 else set()); i.data = R[2]
            else:
                i.addr = R[0] | (R[2] if len(R) > 2 else set()); i.data = R[1]
        elif mn.startswith('buffer_load'):
            if 'lds' in mods.split():
                i.addr = set().union(*R)
            else:
                i.dst = R[0]; i.addr = set().union(*R[1:])
        elif mn.startswith('buffer_store'):
            i.data = R[0]; i.addr = set().union(*R[1:]); i.wide = ('x3' in mn or 'x4' in mn)
        elif mn.startswith('buffer_'):
            pass
        i.src = i.addr | i.data
    elif mn.startswith('s_'):
        i.kind = 'salu'
        if mn.startswith(('s_cmp', 's_cbranch', 's_branch', 's_waitcnt', 's_barrier', 's_endpgm', 's_sleep', 's_setprio', 's_bitcmp')):
            i.src = set().union(*R) if R else set()
        else:
            i.dst = R[0] if R else set(); i.src = set().union(*R[1:]) if len(R) > 1 else set()
    else:
        raise ValueError("unknown instr: " + line)
    return i

def check(lines, name=''):
    ins = []
    for l in lines:
        p = parse(l)
        if p is not None: ins.append(p)
    errs = []
    N = len(ins)
    LOOK = 24
    for j, c in enumerate(ins):
        dist = 0
        for k in range(j - 1, max(-1, j - LOOK - 1), -1):
            p = ins[k]
            need = 0; why = ''
            vd = {r for r in p.dst if r[0] in 'va'}
            sd = {r for r in p.dst if r[0] == 's'}
            def upd(n, w):
                nonlocal need, why
                if n > need: need, why = n, w
            if p.kind == 'valu':
                if c.kind == 'mfma' and vd & c.src: upd(2, 'VALU->MFMA')
                if c.kind == 'valu' and c.mn.startswith('v_permlane') and vd & c.src: upd(2, 'VALU->permlane')
                if c.kind == 'valu' and c.dpp and vd & c.src: upd(2, 'VALU->DPP')
                if c.mn.startswith(('v_readlane', 'v_readfirstlane')) and vd & c.src: upd(1, 'VALU->readlane')
                if p.mn.startswith(TRANS) and c.kind == 'valu' and not c.mn.startswith(TRANS) and vd & c.src: upd(1, 'trans->VALU')
                if p.mn.startswith(TRANS) and c.kind in ('mfma',) and vd & c.src: upd(2, 'trans->mfma')
                if sd:
                    if c.kind == 'valu' and sd & c.src: upd(2, 'VALU sgpr->VALU const')
                    if c.kind == 'vmem' and sd & c.addr: upd(5, 'VALU sgpr->VMEM')
                    if c.kind == 'salu' and sd & c.src and not c.mn.startswith('s_cbranch'): upd(1, 'VALU sgpr->SALU (pad)')
            if p.kind == 'valu' and p.mn.startswith('v_dot'):
                if vd & (c.src | c.dst):
                    if c.mn == p.mn:
                        ops_c, _ = split_ops(c.text.split(None, 1)[1])
                        ab = regs(ops_c[1]) | regs(ops_c[2])
                        if vd & ab: upd(3, 'DOT->DOT A/B')
                    else: upd(3, 'DOT->other')
            if p.kind == 'mfma':
                ps = passes(p.mn)
                big = {2: 5, 4: 8, 8: 12, 16: 20}[ps]
                ovl = {2: 4, 4: 6, 8: 10, 16: 18}[ps]
                war = {2: 1, 4: 3, 8: 7, 16: 15}[ps]
                if c.kind == 'valu' and vd & (c.src | c.dst): upd(big, 'MFMA->VALU')
                if c.kind in ('ds', 'vmem') and vd & (c.src | c.dst): upd(big, 'MFMA->mem')
                if c.kind == 'mfma':
                    if vd & c.srcAB: upd(big, 'MFMA->MFMA A/B')
                    if vd & c.srcC:
                        if vd == c.srcC and c.mn == p.mn: upd(0 if ps >= 4 else 2, '')
                        else: upd(ovl, 'MFMA->MFMA C overlap')
                    elif vd & c.dst and vd != c.dst: upd(ovl, 'MFMA WAW overlap')
                if c.kind == 'valu' and p.srcC & c.dst: upd(war, 'MFMA srcC WAR')
            if p.kind == 'vmem' and p.wide:
                if p.data & c.dst:
                    upd(2 if c.kind == 'valu' else 1, 'wide store WAR')
            if p.kind == 'salu' and ('s', 'm0') in p.dst and c.kind == 'vmem' and ('lds' in c.mn or 'lds' in c.mods.split()): upd(1, 'M0->LDS DMA')
            if p.kind == 'salu' and ('s', 'exec') in p.dst and c.kind == 'valu' and c.dpp: upd(0, '')
            extra = 0
            if p.kind == 'mfma' and k + 1 <= j and ins[k+1].kind == 'mfma':
                extra = passes(p.mn) - 1
            if need > dist + extra:
                errs.append(f"[{name}] need {need} have {dist} ({why}):\n    P: {p.text}\n    C: {c.text}")
            dist += p.states + extra
            if dist >= 24: break
    return errs

DIAGON = [False]
def mark(k, i, first_only=None):
    if not DIAGON[0]: return
    sk = None
    if first_only is not None:
        sk = k.lab('Lmk')
        k(f"s_cmp_lg_u32 s7, {first_only}\ns_cbranch_scc1 {sk}")
    k(f"s_memrealtime s[94:95]\ns_waitcnt lgkmcnt(0)\ns_mov_b32 s{80+i}, s94")
    if sk: k.label(sk)
def diag_dump(k, vt0, vt1):
    if not DIAGON[0]: return
    sk = k.lab('Ldd')
    k(f"s_cmp_lg_u32 s5, 0\ns_cbranch_scc1 {sk}\ns_mov_b64 exec, 1\nv_mov_b32 v{vt0}, 0")
    for i in range(10):
        k(f"v_mov_b32 v{vt1}, s{80+i}\nglobal_store_dword v{vt0}, v{vt1}, s[90:91] offset:{4*i} sc1")
    k("s_mov_b64 exec, -1")
    k.label(sk)

def mark_val(k, i, sreg, val):
    if not DIAGON[0]: return
    sk = k.lab('Lmv')
    k(f"s_cmp_lg_u32 s{sreg}, {val}\ns_cbranch_scc1 {sk}\ns_memrealtime s[94:95]\ns_waitcnt lgkmcnt(0)\ns_mov_b32 s{80+i}, s94")
    k.label(sk)
```

```python
import sys
from fw import *
from layout import *
import common as C
import roleR4 as roleR, rolesG, rolesA

KNAME = "interleave_layers__sliding_local_dilated__memory_aug_recurrent_mem_tr__prompt_kernel"
KD = """.amdhsa_kernel {name}
.amdhsa_next_free_vgpr {vgpr}
.amdhsa_next_free_sgpr 102
.amdhsa_accum_offset {acc}
.amdhsa_group_segment_fixed_size 0
.amdhsa_kernarg_size 104
.amdhsa_user_sgpr_count 2
.amdhsa_user_sgpr_kernarg_segment_ptr 1
.amdhsa_system_sgpr_workgroup_id_x 1
.amdhsa_float_denorm_mode_32 3
.end_amdhsa_kernel"""

def entry(k, name):
    k(f".globl {name}\n.p2align 8\n.type {name},@function")
    k.label(name)

def common_entry(k, END):
    k(f"""
    s_load_dwordx2 s[8:9], s[0:1], {KA_WS}
    v_readfirstlane_b32 s5, v0
    s_nop 1
    s_lshr_b32 s5, s5, 6
    s_waitcnt lgkmcnt(0)
    """)

def ticket(k, key_code, tag):
    k(key_code)
    k(f"""
    s_load_dwordx2 s[46:47], s[0:1], {KA_DBG}
    s_waitcnt lgkmcnt(0)
    s_cmp_lg_u32 s5, 0
    s_cbranch_scc1 L_tk{tag}
    s_mov_b64 exec, 1
    s_and_b32 s35, s33, 3
    s_lshl_b32 s35, s35, 6
    s_lshr_b32 s37, s33, 2
    s_lshl_b32 s37, s37, 2
    s_add_u32 s35, s35, s37
    v_mov_b32 v1, s35
    v_mov_b32 v2, 1
    global_atomic_add v3, v1, v2, s[46:47] sc0 sc1
    s_waitcnt vmcnt(0)
    v_mov_b32 v1, 0
    ds_write_b32 v1, v3
    s_waitcnt lgkmcnt(0)
    s_mov_b64 exec, -1
L_tk{tag}:
    s_barrier
    v_mov_b32 v1, 0
    ds_read_b32 v3, v1
    s_waitcnt lgkmcnt(0)
    v_readfirstlane_b32 s4, v3
    s_barrier
    """)

ROLES = ['R', 'T3q', 'T3v', 'TW', 'T5', 'TA', 'T4', 'T6']
def emit_roles(k, use_flags=True, stamp=0):
    errs = []
    def role(label, fn):
        n0 = len(k.lines)
        k.label(label)
        fn()
        errs.extend(check(k.lines[n0:], label))
    def R():
        roleR.emit_R_prologue(k, 6)
        roleR.emit_R_loop(k, True, use_flags, stamp)
    role('ROLE_R', R)
    role('ROLE_T3q', lambda: rolesG.emit_T3(k, False))
    role('ROLE_T3v', lambda: rolesG.emit_T3(k, True))
    role('ROLE_TW', lambda: rolesG.emit_TW(k))
    role('ROLE_T5', lambda: rolesG.emit_T5(k))
    role('ROLE_TA', lambda: rolesA.emit_TA(k))
    role('ROLE_T4', lambda: rolesA.emit_T4(k))
    role('ROLE_T6', lambda: rolesA.emit_T6(k))
    return errs

def build(mode, stamp=0, diag=False):
    DIAGON[0] = diag
    k = Asm()
    kernels = []
    launches = [] if mode == 'concurrent' else [("k0_kernel", 256, 1024)]
    if mode == 'serial':
        seq = [('TA', 8), ('TW', 2), ('T3', 48), ('R', 256), ('T4', 16), ('T5', 16), ('T6', 4)]
        for l in range(2):
            for r, n in seq:
                launches.append((f"s{r}{l}_kernel", n, 163840))
    else:
        launches.append((KNAME, 256, 163840))
    hdr = [f"; @launch grid=({g},1,1) block=(256,1,1) lds={lds}" for n, g, lds in launches]
    k.lines.extend(hdr)
    k('.amdgcn_target "amdgcn-amd-amdhsa--gfx950"\n.text')
    errs = []
    if mode == 'serial':
        k.label("CODE_BEGIN")
        for (name, g, lds) in launches[1:]:
            r = name[1:-8]; l = int(name[-8])
            entry(k, name)
            k(f"s_cmp_ge_u32 s2, {g}\ns_cbranch_scc1 L_exit_{name}")
            common_entry(k, None)
            k(f"s_mov_b32 s6, {l}")
            if r == 'R':
                k(f"s_getreg_b32 s33, hwreg(HW_REG_XCC_ID, 0, 4)\ns_cmp_lg_u32 s33, 0\ns_cbranch_scc1 L_exit_{name}")
                ticket(k, "s_mov_b32 s33, 0", name)
                k(f"s_cmp_ge_u32 s4, 32\ns_cbranch_scc1 L_exit_{name}\ns_branch ROLE_R")
            elif r == 'T3':
                k(f"s_mov_b32 s4, s2\ns_cmp_ge_u32 s4, 32\ns_cbranch_scc1 L_v_{name}\ns_branch ROLE_T3q\nL_v_{name}:\ns_branch ROLE_T3v")
            else:
                k(f"s_mov_b32 s4, s2\ns_branch ROLE_{r}")
            k(f"L_exit_{name}:\ns_endpgm")
            kernels.append((name, 512, 256))
    else:
        name = KNAME
        k.label("CODE_BEGIN")
        entry(k, name)
        k(f"s_cmp_ge_u32 s2, 256\ns_cbranch_scc1 L_exit_m")
        common_entry(k, None)
        k("s_getreg_b32 s34, hwreg(HW_REG_XCC_ID, 0, 4)\ns_and_b32 s34, s34, 7")
        if diag:
            k("s_memrealtime s[94:95]\ns_waitcnt lgkmcnt(0)\ns_mov_b32 s80, s94")
        ticket(k, "s_mov_b32 s33, s34", 'm')
        if diag:
            k(f"s_lshl_b32 s92, s34, 5\ns_add_u32 s92, s92, s4\ns_lshl_b32 s92, s92, 6\ns_add_u32 s92, s92, {DIAG}\ns_add_u32 s90, s8, s92\ns_addc_u32 s91, s9, 0")
            for i in range(1, 10): k(f"s_mov_b32 s{80+i}, 0")
        k(f"""
        s_cmp_ge_u32 s4, 32
        s_cbranch_scc1 L_exit_m
        s_mov_b32 s36, 0
        s_cmp_eq_u32 s34, 1
        s_cbranch_scc1 L_doinit
        s_mov_b32 s36, 1
        s_cmp_eq_u32 s34, 4
        s_cbranch_scc1 L_doinit
        s_mov_b32 s36, 2
        s_cmp_eq_u32 s34, 5
        s_cbranch_scc1 L_doinit
        s_mov_b32 s36, 3
        s_cmp_eq_u32 s34, 7
        s_cbranch_scc1 L_doinit
        s_branch L_noinit
L_doinit:
        s_lshl_b32 s36, s36, 5
        s_add_u32 s36, s36, s4
        """)
        n0 = len(k.lines)
        mark(k, 9)
        rolesA.emit_init(k, 36)
        mark(k, 8)
        errs += check(k.lines[n0:], 'init')
        k(f"""
L_noinit:
        s_cmp_ge_u32 s34, 2
        s_cbranch_scc1 L_d1
        s_mov_b32 s6, s34
        s_branch ROLE_R
L_d1:
        s_cmp_ge_u32 s34, 6
        s_cbranch_scc1 L_d2
        s_sub_u32 s6, s34, 2
        s_lshr_b32 s6, s6, 1
        s_and_b32 s33, s34, 1
        s_cmp_lg_u32 s33, 0
        s_cbranch_scc1 L_d1b
        s_branch ROLE_T3q
L_d1b:
        s_cmp_ge_u32 s4, 16
        s_cbranch_scc1 L_d1c
        s_add_u32 s4, s4, 32
        s_branch ROLE_T3v
L_d1c:
        s_sub_u32 s4, s4, 16
        s_branch ROLE_T5
L_d2:
        s_sub_u32 s6, s34, 6
        s_cmp_ge_u32 s4, 16
        s_cbranch_scc1 L_d2b
        s_cmp_lg_u32 s6, 0
        s_cbranch_scc1 L_d2a
        """)
        rolesA.emit_l2_prefetch(k)
        k(f"""
L_d2a:
        s_branch ROLE_T4
L_d2b:
        s_cmp_ge_u32 s4, 24
        s_cbranch_scc1 L_d2c
        s_sub_u32 s4, s4, 16
        s_branch ROLE_TA
L_d2c:
        s_cmp_ge_u32 s4, 26
        s_cbranch_scc1 L_d2d
        s_sub_u32 s4, s4, 24
        s_branch ROLE_TW
L_d2d:
        s_cmp_ge_u32 s4, 30
        s_cbranch_scc1 L_exit_m
        s_sub_u32 s4, s4, 26
        s_branch ROLE_T6
L_exit_m:
        s_endpgm
        """)
        kernels.append((name, 512, 256))
    errs += emit_roles(k, True, stamp)
    k.label("CODE_END")
    k('.section .rodata,"a"')
    for name, vg, acc in kernels:
        k(".p2align 6")
        k(KD.format(name=name, vgpr=vg, acc=acc))
    k(".text")
    return k.text(), errs

if __name__ == '__main__':
    mode = sys.argv[1] if len(sys.argv) > 1 else 'concurrent'
    txt, errs = build(mode)
    for e in errs: print(e)
    open(f"mega_{mode}.s", "w").write(txt)
    import drv
    asm, co = drv.build(f"mega_{mode}.s", KNAME, 13)
    from cdna_launch import address_register_problem
    print("bytes", len(txt))
    print("check:", address_register_problem(co, KNAME))
```

```python
from fw import *
from layout import *
WOI=0; MSTG=131072; QKT=139520; KTL=143616; VTL=151808; OX=MSTG
SPIN = 1 << 18
SLOT = 0x40000
sH=4; sW=5; sS=7
sWS=8
sMBr=10; sMBw=12; sPA=14; sPA1=16
sKT=18; sVT=20; sKM=22; sVM=24
sFL=26
sMO=28; sMMB=30; sMKM=32; sMF0=34
sC=36; sT=37; sT2=38; sT3=39; sSpin=40
sP0=42
sFKv=44; sFVv=45
sM0K=46; sM0V=47
sFR=48
sSL=50; sSH=51
sMBD=52
sMF3=34
vL16=0; vMW=1; vMR=2; vQW=3; vFLG=4; vQR0=5; vQR1=6; vKR=7; vVR=8; vOW=9; vOR=10; vWO=11
vPAS=12; vPAL=13; vMBS=14; vWO2=15; vVMS=16; vSP=17; vIDX=18; vBIAS=19
aQ=20; aK=24; aV=28
vM=32; vK=96
WV=128
OPT = dict(kmflag='sc1', ackA='0', ackB='0')

def wreg(mu, ks, d0=0, n=8):
    if mu == 0: return a(8*ks + d0, n)
    if mu == 1: return a(128 + 8*ks + d0, n)
    return v(WV + 8*ks + d0, n)

def timeout_exit(k, code, lab):
    k.label(lab)
    k(f"""
    s_load_dwordx2 s[{sP0}:{sP0+1}], s[0:1], {KA_DBG}
    s_waitcnt lgkmcnt(0)
    s_mov_b64 exec, 1
    v_mov_b32 v32, {136 + 4*code}
    v_mov_b32 v33, s{sS}
    v_add_u32 v33, 0x10000, v33
    global_store_dword v32, v33, s[{sP0}:{sP0+1}] sc1
    s_waitcnt vmcnt(0)
    s_endpgm
    """)

def r_wait_init(k):
    lp = k.lab('Lwi'); to = k.lab('Lwito'); sk = k.lab('Lwisk')
    k(f"""
    s_load_dwordx2 s[{sP0}:{sP0+1}], s[0:1], {KA_DBG}
    s_mov_b32 s{sSpin}, 0
    s_mov_b32 s{sS}, 0
    v_mov_b32 v32, 248
    s_waitcnt lgkmcnt(0)
{lp}:
    global_load_dword v33, v32, s[{sP0}:{sP0+1}] sc1
    s_add_u32 s{sSpin}, s{sSpin}, 1
    s_cmp_gt_u32 s{sSpin}, {SPIN}
    s_cbranch_scc1 {to}
    s_waitcnt vmcnt(0)
    v_cmp_gt_u32 vcc, 1, v33
    s_cbranch_vccnz {lp}
    s_branch {sk}
    """)
    timeout_exit(k, 11, to)
    k.label(sk)

def emit_R_prologue(k, l_sgpr):
    L, I, G = 40, 41, 42
    T1, T2, T3 = 43, 44, 45
    sk = k.lab('Lws'); lp = k.lab('Lwsp'); to = k.lab('Lwsto')
    k(f"""
    s_cmp_eq_u32 s{l_sgpr}, 0
    s_cbranch_scc1 {sk}
    """)
    r_wait_init(k)
    k(f"""
    s_mov_b32 s{sSpin}, 0
    s_mov_b32 s{sS}, 0
    v_mov_b32 v2, {F_R(0)}
{lp}:
    global_load_dword v3, v2, s[{sWS}:{sWS+1}] sc1
    s_add_u32 s{sSpin}, s{sSpin}, 1
    s_cmp_gt_u32 s{sSpin}, {SPIN}
    s_cbranch_scc1 {to}
    s_waitcnt vmcnt(0)
    v_cmp_gt_u32 vcc, 1, v3
    s_cbranch_vccnz {lp}
    s_branch {sk}
    """)
    timeout_exit(k, 9, to)
    k.label(sk)
    k(f"""
    v_and_b32 v40, 63, v0
    v_and_b32 v41, 15, v40
    v_lshrrev_b32 v42, 4, v40
    v_lshlrev_b32 v{vL16}, 4, v40
    """)
    for par in (0, 1):
        k(f"""
        v_add_u32 v{T1}, {4*par}, v{G}
        v_lshlrev_b32 v{T1}, 1, v{T1}
        v_xor_b32 v{T1}, v{T1}, v{I}
        v_lshlrev_b32 v{T1}, 4, v{T1}
        v_lshlrev_b32 v{T2}, 13, v{G}
        v_add_u32 v{46+par}, v{T1}, v{T2}
        """)
    k(f"""
    v_lshrrev_b32 v{T1}, 2, v{I}
    v_lshl_add_u32 v{T1}, v{G}, 2, v{T1}
    v_and_b32 v{T2}, 7, v{T1}
    v_lshlrev_b32 v{T2}, 1, v{T2}
    v_and_b32 v{T3}, 3, v{I}
    v_lshrrev_b32 v{T3}, 1, v{T3}
    s_lshl_b32 s{sT}, s{sW}, 2
    v_add_u32 v{T3}, s{sT}, v{T3}
    """)
    for b in (0, 1):
        k(f"""
        v_add_u32 v48, {2*b}, v{T3}
        v_xor_b32 v48, v48, v{T2}
        v_lshlrev_b32 v48, 4, v48
        v_lshl_add_u32 v48, v{T1}, 8, v48
        v_and_b32 v49, 1, v{I}
        v_lshl_add_u32 v{50+b}, v49, 3, v48
        v_add_u32 v{52+b}, 0x10000, v{50+b}
        """)
    def dma_half(ka, half):
        k(f"s_load_dwordx2 s[{sP0}:{sP0+1}], s[0:1], {ka}")
        k(f"""
        s_lshl_b32 s{sT}, s{sH}, 8
        s_lshl_b32 s{sT2}, s{sW}, 19          ; w*64 rows*8192
        s_add_u32 s{sT}, s{sT}, s{sT2}
        s_add_u32 s{sT}, s{sT}, {half*256*8192}
        s_lshl_b32 s{sT3}, s{sW}, 14
        s_add_u32 s{sT3}, s{sT3}, {half*65536}
        s_waitcnt lgkmcnt(0)
        s_add_u32 s{sP0}, s{sP0}, s{sT}
        s_addc_u32 s{sP0+1}, s{sP0+1}, 0
        """)
        for u in range(16):
            k(f"s_mov_b32 m0, s{sT3}")
            k(f"s_add_u32 s{sT3}, s{sT3}, 1024")
            k(f"global_load_lds_dwordx4 v{46 + (u % 2)}, s[{sP0}:{sP0+1}]")
            k(f"s_add_u32 s{sP0}, s{sP0}, 32768\ns_addc_u32 s{sP0+1}, s{sP0+1}, 0")
    def read_half(mu, half):
        for ksl in range(8):
            ks = half*8 + ksl
            for kh in (0, 1):
                for b in (0, 1):
                    base = (50 if half == 0 else 52) + b
                    off = ksl * 8192 + kh * 4096
                    t = 56 + 2 * (2 * kh + b)
                    k(f"ds_read_b64_tr_b16 {v(t,2)}, v{base} offset:{off}")
            k("s_waitcnt lgkmcnt(0)")
            for kh in (0, 1):
                for b in (0, 1):
                    t = 56 + 2 * (2 * kh + b)
                    for j in (0, 1):
                        d = 4 * kh + b + 2 * j
                        dst = wreg(mu, ks, d, 1)
                        if mu < 2: k(f"v_accvgpr_write_b32 {dst}, v{t+j}")
                        else: k(f"v_mov_b32 {dst}, v{t+j}")
    def dma_wo(half):
        k(f"s_load_dwordx2 s[{sP0}:{sP0+1}], s[0:1], {KA_WO}")
        k(f"""
        s_lshl_b32 s{sT}, s{sH}, 17
        s_lshl_b32 s{sT2}, s{sW}, 14
        s_add_u32 s{sT}, s{sT}, s{sT2}
        s_add_u32 s{sT}, s{sT}, {half*65536}
        s_add_u32 s{sT3}, s{sT2}, {half*65536}
        s_waitcnt lgkmcnt(0)
        s_add_u32 s{sP0}, s{sP0}, s{sT}
        s_addc_u32 s{sP0+1}, s{sP0+1}, 0
        """)
        for u in range(16):
            k(f"s_mov_b32 m0, s{sT3}")
            k(f"s_add_u32 s{sT3}, s{sT3}, 1024")
            k(f"global_load_lds_dwordx4 v{64 + (u % 8)}, s[{sP0}:{sP0+1}]")
            k(f"s_add_u32 s{sP0}, s{sP0}, 1024\ns_addc_u32 s{sP0+1}, s{sP0+1}, 0")
    for u in range(8):
        k(f"v_xor_b32 v{64+u}, {u << 1}, v{L}\nv_lshlrev_b32 v{64+u}, 4, v{64+u}")
    k(f"""
    v_lshrrev_b32 v72, 2, v{I}
    v_lshl_add_u32 v72, v{G}, 2, v72           ; row_l
    v_and_b32 v73, 7, v72
    v_lshlrev_b32 v73, 1, v73                  ; swz
    v_and_b32 v74, 3, v{I}
    v_lshrrev_b32 v74, 1, v74
    s_lshl_b32 s{sT}, s{sW}, 4
    v_add_u32 v74, s{sT}, v74                  ; c0
    v_lshlrev_b32 v75, 10, v72
    v_and_b32 v76, 1, v{I}
    v_lshl_add_u32 v75, v76, 3, v75
    s_lshl_b32 s{sT}, s{sW}, 13
    v_add_u32 v77, s{sT}, v{vL16}
    """)
    def proc_wo(half):
        for ksl in range(2):
            ks = 2*half + ksl
            for cb in range(4):
                for kh in (0, 1):
                    for b in (0, 1):
                        t = 112 + 2 * (2 * kh + b)
                        k(f"v_add_u32 v78, {4*cb + 2*b}, v74")
                        k(f"v_xor_b32 v78, v78, v73")
                        k(f"v_lshl_add_u32 v78, v78, 4, v75")
                        k(f"v_add_u32 v78, {ks*32768}, v78")
                        k(f"ds_read_b64_tr_b16 {v(t,2)}, v78 offset:{kh*16*1024}")
                k("s_waitcnt lgkmcnt(0)")
                for kh in (0, 1):
                    for b in (0, 1):
                        t = 112 + 2 * (2 * kh + b)
                        for j in (0, 1):
                            d = 4 * kh + b + 2 * j
                            k(f"v_mov_b32 v{80+8*cb+d}, v{t+j}")
            k("s_barrier")
            k(f"v_add_u32 v78, {ks*32768}, v77")
            for cb in range(4):
                for hf in (0, 1):
                    k(f"ds_write_b128 v78, {v(80+8*cb+4*hf,4)} offset:{cb*2048 + hf*1024}")
            k("s_waitcnt lgkmcnt(0)")
    seq = [('w', mu, ka, h) for mu, ka in ((0, KA_WQ), (1, KA_WK), (2, KA_WV)) for h in (0, 1)] + [('o', None, None, 0), ('o', None, None, 1)]
    def issue(e):
        if e[0] == 'w': dma_half(e[2], e[3])
        else: dma_wo(e[3])
    issue(seq[0]); issue(seq[1])
    for n, e in enumerate(seq):
        k("s_waitcnt vmcnt(16)\ns_barrier" if n + 1 < len(seq) else "s_waitcnt vmcnt(0)\ns_barrier")
        if e[0] == 'w':
            read_half(e[1], e[3])
            k("s_barrier")
            if n + 2 < len(seq): issue(seq[n+2])
        else:
            proc_wo(e[3])
    k("s_barrier")
    k(f"""
    v_and_b32 v{T1}, 7, v{I}                  ; i%8
    v_lshrrev_b32 v{T2}, 1, v{G}              ; g/2
    v_and_b32 v{T3}, 1, v{G}                  ; g%2
    s_mul_i32 s{sT}, s{sW}, 2112
    s_add_u32 s{sT}, s{sT}, {MSTG}
    v_add_u32 v{vMW}, s{sT}, v{vL16}
    v_mul_u32_u24 v48, 1056, v{T1}
    v_lshl_add_u32 v48, v{G}, 4, v48
    v_add_u32 v{vMR}, {MSTG}, v48
    v_mul_u32_u24 v48, 288, v{T1}
    v_lshl_add_u32 v48, v{G}, 4, v48
    v_add_u32 v{vOR}, {OX}, v48
    v_mul_u32_u24 v48, 288, v{T1}
    v_lshl_add_u32 v48, v{G}, 3, v48
    s_lshl_b32 s{sT}, s{sW}, 6
    s_add_u32 s{sT}, s{sT}, {OX}
    v_add_u32 v{vOW}, s{sT}, v48
    s_lshl_b32 s{sT}, s{sW}, 5
    v_lshl_add_u32 v48, v{T2}, 4, v{I}
    v_add_u32 v48, s{sT}, v48                 ; f
    v_lshrrev_b32 v49, 2, v{I}
    v_add_u32 v49, v49, v{T3}
    v_and_b32 v49, 3, v49
    v_lshlrev_b32 v49, 3, v49
    v_lshl_add_u32 v49, v48, 5, v49
    v_add_u32 v{vQW}, {QKT}, v49
    v_lshlrev_b32 v49, 3, v{T3}
    v_lshl_add_u32 v{vVMS}, v48, 4, v49
    """)
    for hf, dst in ((0, vQR0), (1, vQR1)):
        k(f"""
        v_lshrrev_b32 v48, 2, v{I}
        v_lshl_add_u32 v48, v{G}, 3, v48
        v_add_u32 v48, {4*hf}, v48
        v_and_b32 v49, 3, v{I}
        v_lshl_add_u32 v49, v{G}, 1, v49
        v_add_u32 v49, {hf}, v49
        v_and_b32 v49, 3, v49
        v_lshlrev_b32 v49, 3, v49
        v_lshl_add_u32 v49, v48, 5, v49
        v_add_u32 v{dst}, {QKT}, v49
        """)
    k(f"""
    v_lshlrev_b32 v48, 9, v{G}
    v_lshl_add_u32 v48, v{I}, 4, v48
    v_add_u32 v{vKR}, {KTL}, v48
    s_lshl_b32 s{sT}, s{sW}, 11
    s_add_u32 s{sT}, s{sT}, {VTL}
    v_add_u32 v{vVR}, s{sT}, v48
    s_lshl_b32 s{sT}, s{sW}, 13
    v_add_u32 v{vWO}, s{sT}, v{vL16}
    v_add_u32 v{vWO2}, 0x10000, v{vWO}
    ; vPAS = w*65536 + h*2048 + (g/2)*512 + (n/8)*256 + (g%2)*128 + (n%8)*16
    v_lshlrev_b32 v48, 9, v{T2}
    v_lshl_add_u32 v48, v{T3}, 7, v48
    v_lshl_add_u32 v48, v{T1}, 4, v48
    v_lshrrev_b32 v49, 3, v{I}
    v_lshl_add_u32 v48, v49, 8, v48
    s_lshl_b32 s{sT}, s{sW}, 16
    s_lshl_b32 s{sT2}, s{sH}, 11
    s_add_u32 s{sT}, s{sT}, s{sT2}
    v_add_u32 v{vPAS}, s{sT}, v48
    ; vPAL = (j/8)*65536 + hg*2048 + (j%8)*256 + (4w + u4)*16
    s_lshr_b32 s{sT}, s{sH}, 3
    s_lshl_b32 s{sT}, s{sT}, 16
    s_and_b32 s{sT2}, s{sH}, 7
    s_lshl_b32 s{sT2}, s{sT2}, 8
    s_add_u32 s{sT}, s{sT}, s{sT2}
    s_lshl_b32 s{sT2}, s{sW}, 6
    s_add_u32 s{sT}, s{sT}, s{sT2}
    v_lshrrev_b32 v48, 2, v{L}                 ; hg
    v_lshlrev_b32 v48, 11, v48
    v_and_b32 v49, 3, v{L}                     ; u4
    v_lshl_add_u32 v48, v49, 4, v48
    v_add_u32 v{vPAL}, s{sT}, v48
    ; vMBS = (4rh + rho)*1024 + 2*(128wc + 64ac + 16jlo + 8nh + 4(w%2)) + 2*(32b + u4)
    s_lshr_b32 s{sT}, s{sW}, 1
    s_lshl_b32 s{sT}, s{sT}, 12                ; rh*4096
    s_lshr_b32 s{sT2}, s{sH}, 3
    s_lshl_b32 s{sT2}, s{sT2}, 8               ; 2*128*wc
    s_add_u32 s{sT}, s{sT}, s{sT2}
    s_lshr_b32 s{sT2}, s{sH}, 2
    s_and_b32 s{sT2}, s{sT2}, 1
    s_lshl_b32 s{sT2}, s{sT2}, 7               ; 2*64*ac
    s_add_u32 s{sT}, s{sT}, s{sT2}
    s_and_b32 s{sT2}, s{sH}, 3
    s_lshl_b32 s{sT2}, s{sT2}, 4               ; 2*8*(j%4) = 2*(16jlo + 8nh)
    s_add_u32 s{sT}, s{sT}, s{sT2}
    s_and_b32 s{sT2}, s{sW}, 1
    s_lshl_b32 s{sT2}, s{sT2}, 3               ; 2*4*(w%2)
    s_add_u32 s{sT}, s{sT}, s{sT2}
    v_lshrrev_b32 v50, 2, v{I}                 ; hq = (l%16)/4
    v_lshlrev_b32 v48, 10, v50
    v_lshl_add_u32 v48, v49, 1, v48            ; hq*1024 + 2*u4
    v_lshl_add_u32 v48, v{G}, 6, v48           ; + 2*32*b  (b = l/16)
    v_add_u32 v{vMBS}, s{sT}, v48
    v_mov_b32 v{vIDX}, 0x44444444
    v_mov_b32 v48, 0xeeeeeeee
    v_cmp_lt_u32 vcc, 7, v{I}
    s_nop 1
    v_cndmask_b32 v{vIDX}, v{vIDX}, v48, vcc
    v_mov_b32 v{vBIAS}, 0
    v_mov_b32 v48, 0xff800000
    v_cmp_gt_u32 vcc, 2, v{G}
    s_nop 1
    v_cndmask_b32 v{vBIAS}, v{vBIAS}, v48, vcc
    """)
    def base(dst, off_fn, extra_code):
        k(f"s_mul_i32 s{sT2}, s{l_sgpr}, {off_fn(1) - off_fn(0)}")
        k(f"s_add_u32 s{sT2}, s{sT2}, {off_fn(0)}")
        k(extra_code)
        k(f"s_add_u32 s{sT2}, s{sT2}, s{sT}")
        k(f"s_add_u32 s{dst}, s{sWS}, s{sT2}\ns_addc_u32 s{dst+1}, s{sWS+1}, 0")
    base(sMBr, MB, f"s_lshl_b32 s{sT}, s{sW}, 11")
    base(sMBw, MB, f"s_mov_b32 s{sT}, 8192")
    k(f"s_mov_b32 s{sMBD}, 8192")
    base(sPA, PA, f"s_mov_b32 s{sT}, 0")
    base(sPA1, PA, f"s_mov_b32 s{sT}, 32768")
    base(sKT, KT, f"s_lshl_b32 s{sT}, s{sH}, 13\ns_lshl_b32 s{sT3}, s{sW}, 11\ns_add_u32 s{sT}, s{sT}, s{sT3}")
    base(sVT, VT, f"s_lshl_b32 s{sT}, s{sH}, 13\ns_lshl_b32 s{sT3}, s{sW}, 11\ns_add_u32 s{sT}, s{sT}, s{sT3}")
    base(sKM, KM, f"s_lshl_b32 s{sT}, s{sH}, 11")
    base(sVM, VM, f"s_lshl_b32 s{sT}, s{sH}, 11")
    base(sFL, F_T3, f"s_lshl_b32 s{sT}, s{sH}, 7")
    base(sFR, F_R, f"s_lshl_b32 s{sT}, s{sH}, 2")
    k(f"""
    s_mov_b32 s{sMO}, 0x00ff00ff
    s_mov_b32 s{sMO+1}, 0x00ff00ff
    s_mov_b32 s{sMMB}, 0x55555555
    s_mov_b32 s{sMMB+1}, 0
    s_mov_b32 s{sMKM}, 0xff00ff00
    s_mov_b32 s{sMKM+1}, 0xff00ff00
    s_mov_b32 s{sMF0}, 0xf0f0f0f0
    s_mov_b32 s{sMF0+1}, 0xf0f0f0f0
    s_mov_b32 s{sC}, 0x3e0293ee
    s_mov_b32 s{sSL}, 0x00003f80
    s_mov_b32 s{sSH}, 0x3f800000
    s_lshl_b32 s{sM0K}, s{sW}, 11
    s_add_u32 s{sM0V}, s{sM0K}, {VTL}
    s_add_u32 s{sM0K}, s{sM0K}, {KTL}
    s_mov_b32 s{sS}, 0
    s_mov_b32 s{sFKv}, 0
    s_mov_b32 s{sFVv}, 0
    """)

NST = 15
STNAMES = []
def emit_R_loop(k, fast, use_flags, stamp=False):
    st = "" if fast else "sc1"
    STN = [0]
    def ST(name):
        if stamp == 2 and name in OPT.get('stamps', name):
            i = STN[0]; STN[0] += 1
            assert i < 15
            STNAMES.append(name)
            k(f"s_memtime s[{54+2*i}:{55+2*i}]")
    def ST_collect():
        if stamp == 2:
            n = STN[0]
            k("s_waitcnt lgkmcnt(0)")
            for i in range(n):
                prev = "s53" if i == 0 else f"s{54+2*(i-1)}"
                k(f"s_sub_u32 s{55+2*i}, s{54+2*i}, {prev}")
            for i in range(n):
                k(f"s_add_u32 s{84+i}, s{84+i}, s{55+2*i}")
            k(f"s_mov_b32 s53, s{54+2*(n-1)}")
    TO = k.lab('Lto'); LOOP = k.lab('Lstep')
    def read_flags():
        k(f"""
        v_readlane_b32 s{sFKv}, v{vFLG}, 0
        v_readlane_b32 s{sT3}, v{vFLG}, 1
        v_readlane_b32 s{sFVv}, v{vFLG}, 2
        v_readlane_b32 s{sP0}, v{vFLG}, 3
        s_nop 0
        s_min_u32 s{sFKv}, s{sFKv}, s{sT3}
        s_min_u32 s{sFVv}, s{sFVv}, s{sP0}
        """)
    def flag_spin(needk, needv):
        lab = k.lab('Lfs'); ok = k.lab('Lfsok')
        k(f"s_mov_b32 s{sSpin}, 0")
        k.label(lab)
        k(f"""
        s_cmp_ge_u32 s{sFKv}, s{needk}
        s_cselect_b32 s{sT3}, 1, 0
        s_cmp_ge_u32 s{sFVv}, s{needv}
        s_cselect_b32 s{sT3}, s{sT3}, 0
        s_cmp_lg_u32 s{sT3}, 0
        s_cbranch_scc1 {ok}
        s_mov_b64 exec, 15
        global_load_dword v{vFLG}, v{vL16}, s[{sFL}:{sFL+1}] sc1
        s_mov_b64 exec, -1
        s_add_u32 s{sSpin}, s{sSpin}, 1
        {'s_add_u32 s86, s86, 1' if DIAGON[0] else ''}
        s_cmp_gt_u32 s{sSpin}, {SPIN}
        s_cbranch_scc1 {TO}
        s_waitcnt vmcnt(0)
        """)
        read_flags()
        k(f"s_branch {lab}")
        k.label(ok)
    mark(k, 1)
    if use_flags:
        r_wait_init(k)
    if DIAGON[0]: k("s_mov_b32 s86, 0")
    if use_flags:
        k(f"s_mov_b32 s{sT}, 1\ns_mov_b32 s{sT2}, 0")
        flag_spin(sT, sT2)
    k(f"""
    s_mov_b32 m0, s{sM0K}
    s_nop 0
    global_load_lds_dwordx4 v{vL16}, s[{sKT}:{sKT+1}] sc1
    global_load_lds_dwordx4 v{vL16}, s[{sKT}:{sKT+1}] offset:1024 sc1
    s_add_u32 s{sKT}, s{sKT}, 262144
    s_addc_u32 s{sKT+1}, s{sKT+1}, 0
    s_waitcnt vmcnt(0)
    s_barrier
    """)
    mark(k, 2)

    if stamp:
        k("s_memtime s[100:101]\ns_waitcnt lgkmcnt(0)\ns_mov_b32 s53, s100\ns_mov_b32 s99, s100")
        for i in range(NST): k(f"s_mov_b32 s{84+i}, 0")
        k("s_mov_b32 s82, 0\ns_mov_b32 s83, 0")
    def step(par):
        SEN = vM + 60
        RA = vM + 59
        for t in range(2):
            for ks in range(4):
                k(f"ds_read_b128 {v(vK + (t*4+ks)*4, 4)}, v{vKR} offset:{ks*2048 + t*256}")
        for r in range(aQ, aQ + 12): k(f"v_mov_b32 v{r}, 0")
        k(f"v_mov_b32 v{SEN}, -1")
        if use_flags:
            read_flags()
            k(f"s_add_u32 s{sT}, s{sS}, 2\ns_min_u32 s{sT}, s{sT}, {NSEG}\ns_add_u32 s{sT2}, s{sS}, 1")
            flag_spin(sT, sT2)
        k(f"s_mov_b32 m0, s{sM0V}")
        ST('top')
        if OPT['ackB'] != 'n': k(f"s_waitcnt vmcnt({OPT['ackB']})")
        PB = k.lab('LpollB')
        k(f"s_mov_b32 s{sSpin}, 0")
        k.label(PB)
        k(f"""
        global_load_dwordx4 {v(vM,4)}, v{vL16}, s[{sMBr}:{sMBr+1}] sc1
        global_load_dwordx4 {v(vM+4,4)}, v{vL16}, s[{sMBr}:{sMBr+1}] offset:1024 sc1
        s_add_u32 s{sSpin}, s{sSpin}, 1
        {'s_add_u32 s98, s98, 1' if stamp == 2 and False else ''}
        s_cmp_gt_u32 s{sSpin}, {SPIN}
        s_cbranch_scc1 {TO}
        s_waitcnt vmcnt(0)
        ds_write_b128 v{vMW}, {v(vM,4)}
        ds_write_b128 v{vMW}, {v(vM+4,4)} offset:1056
        v_max3_u32 v{vM+8}, v{vM}, v{vM+1}, v{vM+2}
        v_max3_u32 v{vM+9}, v{vM+3}, v{vM+4}, v{vM+5}
        v_max3_u32 v{vM+8}, v{vM+8}, v{vM+6}, v{vM+7}
        v_max_u32 v{vM+8}, v{vM+8}, v{vM+9}
        v_cmp_eq_u32 vcc, -1, v{vM+8}
        s_cbranch_vccnz {PB}
        """)
        ST('pollB')
        mark_val(k, 4, sS, 33)
        if stamp: k(f"s_add_u32 s82, s82, s{sSpin}")
        k(f"global_load_lds_dwordx4 v{vL16}, s[{sVT}:{sVT+1}] sc1")
        k(f"global_load_lds_dwordx4 v{vL16}, s[{sVT}:{sVT+1}] offset:1024 sc1")
        k("s_waitcnt lgkmcnt(0)\ns_barrier")
        ST('bar1')
        def mread(ks): k(f"ds_read_b128 {v(vM+4*ks,4)}, v{vMR} offset:{ks*64}")
        def smf(acc, ks, mu): k(f"v_smfmac_f32_16x16x64_bf16 {v(acc,4)}, {v(vM+4*ks,4)}, {wreg(mu,ks)}, v{vIDX}")
        for ks in range(8): mread(ks)
        k(f"s_mov_b64 exec, s[{sMMB}:{sMMB+1}]\nglobal_store_dword v{vMBS}, v{SEN}, s[{sMBw}:{sMBw+1}] {st}\ns_mov_b64 exec, -1")
        side = []
        skipk = k.lab('Lskipk')
        if use_flags:
            skf = k.lab('Lskf')
            side.append(f"s_cmp_lg_u32 s{sW}, 0\ns_cbranch_scc1 {skf}\nv_mov_b32 v{vFLG}, s{sS}\ns_mov_b64 exec, 1\nglobal_store_dword v{vL16}, v{vFLG}, s[{sFR}:{sFR+1}] sc1\ns_mov_b64 exec, -1\n{skf}:")
        side.append(f"s_mov_b32 m0, s{sM0K}\ns_nop 0\nglobal_load_lds_dwordx4 v{vL16}, s[{sKT}:{sKT+1}] sc1\nglobal_load_lds_dwordx4 v{vL16}, s[{sKT}:{sKT+1}] offset:1024 sc1")
        side.append(f"s_add_u32 s{sKT}, s{sKT}, 262144\ns_addc_u32 s{sKT+1}, s{sKT+1}, 0")
        side.append(f"s_add_u32 s{sVT}, s{sVT}, 262144\ns_addc_u32 s{sVT+1}, s{sVT+1}, 0")
        for ks in range(16):
            k(f"s_waitcnt lgkmcnt({min(7, 15-ks)})")
            smf(aQ, ks, 0)
            if ks + 8 < 16: mread(ks + 8)
            smf(aK, ks, 1)
            if ks >= 8 and side: k(side.pop(0))
        assert not side, side
        ST('qk')
        smf(aV, 0, 2); smf(aV, 1, 2)
        k(f"""
        v_cvt_pk_bf16_f32 v{aQ}, v{aQ}, v{aQ+1}
        v_cvt_pk_bf16_f32 v{aQ+1}, v{aQ+2}, v{aQ+3}
        v_xor_b32 v{aQ+2}, 16, v{vQW}
        v_cvt_pk_bf16_f32 v{aK}, v{aK}, v{aK+1}
        v_cvt_pk_bf16_f32 v{aK+1}, v{aK+2}, v{aK+3}
        ds_write_b64 v{vQW}, {v(aQ,2)}
        ds_write_b64 v{aQ+2}, {v(aK,2)}
        global_store_dwordx2 v{vVMS}, {v(aK,2)}, s[{sKM}:{sKM+1}] {OPT['kmflag']}
        """)
        for ks in (2, 3, 4, 5): smf(aV, ks, 2)
        k("s_waitcnt lgkmcnt(0)\ns_barrier")
        ST('bar2')
        QK = vM
        for ks in range(4):
            k(f"ds_read_b64_tr_b16 {v(QK+4*ks,2)}, v{vQR0} offset:{ks*1024}")
            k(f"ds_read_b64_tr_b16 {v(QK+4*ks+2,2)}, v{vQR1} offset:{ks*1024}")
        smf(aV, 6, 2)
        k("s_waitcnt vmcnt(4)")
        for ft in range(2):
            k(f"ds_read_b128 {v(aQ+4*ft,4)}, v{vVR} offset:{ft*256}")
        for ks in (7, 8, 9): smf(aV, ks, 2)
        def woread(slot_reg, cb, ks):
            for half in (0, 1):
                k(f"ds_read_b128 {v(slot_reg+4*half,4)}, v{vWO if ks < 2 else vWO2} offset:{(ks % 2)*32768 + cb*2048 + half*1024}")
        wo_ops = [(cb, ks) for ks in range(4) for cb in (0, 1)] + [(cb, ks) for ks in range(4) for cb in (2, 3)]
        slots = [vK, vK+16, vK+8, vK+24, vM+40, vM+48, vM+56, vM+32]
        SM = vM + 16; S0 = vM + 20; S1 = vM + 24
        outstanding = 10
        for ks in range(4):
            extra = 4 if ks >= 2 else 0
            k(f"s_waitcnt lgkmcnt({10 - 2*(ks+1) + extra})")
            c = lambda r: ("0" if ks == 0 else v(r, 4))
            q = v(QK + 4*ks, 4)
            k(f"v_mfma_f32_16x16x32_bf16 {v(S0,4)}, {v(vK + ks*4,4)}, {q}, {c(S0)}")
            k(f"v_mfma_f32_16x16x32_bf16 {v(S1,4)}, {v(vK + 16 + ks*4,4)}, {q}, {c(S1)}")
            k(f"v_mfma_f32_16x16x32_bf16 {v(SM,4)}, {q}, {q}, {c(SM)}")
            if ks == 1:
                woread(slots[0], *wo_ops[0]); woread(slots[1], *wo_ops[1])
        ST('scores')
        woread(slots[2], *wo_ops[2])
        smf(aV, 10, 2)
        woread(slots[3], *wo_ops[3])
        smf(aV, 11, 2)
        if use_flags:
            k(f"s_mov_b64 exec, 15\nglobal_load_dword v{vFLG}, v{vL16}, s[{sFL}:{sFL+1}] sc1\ns_mov_b64 exec, -1")
        MX = vM + 28; TMP = vM + 29; NM = vM + 30; NMM = vM + 31
        k(f"""
        v_max3_f32 v{MX}, v{S0}, v{S0+1}, v{S0+2}
        s_nop 0
        v_max3_f32 v{TMP}, v{SM}, v{SM+1}, v{SM+2}
        v_max3_f32 v{NM}, v{S0+3}, v{S1}, v{S1+1}
        v_max_f32 v{TMP}, v{TMP}, v{SM+3}
        v_max3_f32 v{MX}, v{MX}, v{S1+2}, v{S1+3}
        v_add_f32 v{TMP}, v{TMP}, v{vBIAS}
        v_max3_f32 v{MX}, v{MX}, v{NM}, v{TMP}
        s_nop 0
        v_mov_b32 v{TMP}, v{MX}
        """)
        smf(aV, 12, 2)
        k(f"""
        s_nop 0
        v_permlane32_swap_b32 v{MX}, v{TMP}
        v_max_f32 v{MX}, v{MX}, v{TMP}
        v_mov_b32 v{TMP}, v{MX}
        """)
        smf(aV, 13, 2)
        k(f"""
        s_nop 0
        v_permlane16_swap_b32 v{MX}, v{TMP}
        v_max_f32 v{MX}, v{MX}, v{TMP}
        v_mul_f32 v{NM}, -v{MX}, s{sC}
        """)
        smf(aV, 14, 2)
        k(f"v_add_f32 v{NMM}, v{NM}, v{vBIAS}")
        for r in range(4): k(f"v_fma_f32 v{S0+r}, v{S0+r}, s{sC}, v{NM}")
        smf(aV, 15, 2)
        for r in range(4): k(f"v_exp_f32 v{S0+r}, v{S0+r}")
        for r in range(4): k(f"v_fma_f32 v{S1+r}, v{S1+r}, s{sC}, v{NM}")
        for r in range(4): k(f"v_exp_f32 v{S1+r}, v{S1+r}")
        for r in range(4): k(f"v_fma_f32 v{SM+r}, v{SM+r}, s{sC}, v{NMM}")
        P = vM; Z = vM + 6; O0 = vM + 8; O1 = vM + 12
        ON = vM + 32
        LL = vM + 36
        for r in range(4): k(f"v_exp_f32 v{SM+r}, v{SM+r}")
        k(f"""
        v_mov_b32 v{ON}, 0x3f803f80
        v_mov_b32 v{ON+1}, 0x3f803f80
        v_cvt_pk_bf16_f32 v{P}, v{S0}, v{S0+1}
        v_cvt_pk_bf16_f32 v{P+1}, v{S0+2}, v{S0+3}
        v_cvt_pk_bf16_f32 v{P+2}, v{S1}, v{S1+1}
        v_cvt_pk_bf16_f32 v{P+3}, v{S1+2}, v{S1+3}
        v_mov_b32 v{ON+2}, 0x3f803f80
        v_mov_b32 v{ON+3}, 0x3f803f80
        v_cvt_pk_bf16_f32 v{P+4}, v{SM}, v{SM+1}
        v_cvt_pk_bf16_f32 v{P+5}, v{SM+2}, v{SM+3}
        """)
        k("s_waitcnt lgkmcnt(8)")
        ST('softmax')
        k(f"""
        v_mfma_f32_16x16x32_bf16 {v(LL,4)}, {v(ON,4)}, {v(P,4)}, 0
        v_mfma_f32_16x16x32_bf16 {v(O1,4)}, {v(aQ+4,4)}, {v(P,4)}, 0
        v_mfma_f32_16x16x32_bf16 {v(O0,4)}, {v(aQ,4)}, {v(P,4)}, 0
        v_cvt_pk_bf16_f32 v{aV}, v{aV}, v{aV+1}
        v_cvt_pk_bf16_f32 v{aV+1}, v{aV+2}, v{aV+3}
        v_mfma_f32_16x16x16_bf16 {v(LL,4)}, {v(ON,2)}, {v(P+4,2)}, {v(LL,4)}
        v_mov_b32 v{Z}, 0
        v_mov_b32 v{Z+1}, 0
        v_mfma_f32_16x16x16_bf16 {v(O1,4)}, {v(aV,2)}, {v(P+4,2)}, {v(O1,4)}
        v_permlane32_swap_b32 v{P+4}, v{Z}
        v_permlane32_swap_b32 v{P+5}, v{Z+1}
        """)
        k("s_waitcnt lgkmcnt(4)")
        woread(slots[4], *wo_ops[4])
        k(f"v_mfma_f32_16x16x16_bf16 {v(O0,4)}, {v(aV,2)}, {v(Z,2)}, {v(O0,4)}")
        woread(slots[5], *wo_ops[5])
        k(f"v_rcp_f32 v{MX}, v{LL}")
        k(f"global_store_dwordx2 v{vVMS}, {v(aV,2)}, s[{sVM}:{sVM+1}] {OPT['kmflag']}")
        woread(slots[6], *wo_ops[6])
        k("s_nop 1")
        ST('pv')
        for r in range(0, 8, 2): k(f"v_pk_mul_f32 v[{O0+r}:{O0+r+1}], v[{O0+r}:{O0+r+1}], v[{MX}:{MX+1}] op_sel_hi:[1,0]")
        k(f"""
        v_cvt_pk_bf16_f32 v{O0}, v{O0}, v{O0+1}
        v_cvt_pk_bf16_f32 v{O0+1}, v{O0+2}, v{O0+3}
        v_cvt_pk_bf16_f32 v{O1}, v{O1}, v{O1+1}
        v_cvt_pk_bf16_f32 v{O1+1}, v{O1+2}, v{O1+3}
        s_mov_b64 exec, s[{sMO}:{sMO+1}]
        ds_write_b64 v{vOW}, {v(O0,2)}
        ds_write_b64 v{vOW}, {v(O1,2)} offset:32
        s_mov_b64 exec, -1
        """)
        woread(slots[7], *wo_ops[7])
        ACC = vM
        for r in range(8): k(f"v_mov_b32 v{ACC+r}, 0")
        k(f"s_waitcnt vmcnt({3 if use_flags else 2}) lgkmcnt(2)\ns_barrier")
        ST('bar3')
        OO = vM + 16
        for ks in range(4): k(f"ds_read_b128 {v(OO+4*ks,4)}, v{vOR} offset:{ks*64}")
        for r in range(8, 16): k(f"v_mov_b32 v{ACC+r}, 0")
        issued = ['w7', 'w7', 'o0', 'o1', 'o2', 'o3']
        def retire_until(idx):
            n = len(issued) - 1 - idx
            k(f"s_waitcnt lgkmcnt({n})")
            del issued[:idx+1]
        def cvt_store(aa):
            b = ACC + 8*aa
            for q in range(4): k(f"v_cvt_pk_bf16_f32 v{b+q}, v{b+2*q}, v{b+2*q+1}")
            for q in range(4):
                if par: k(f"v_or_b32 v{b+q}, 1, v{b+q}")
                else: k(f"v_and_b32 v{b+q}, -2, v{b+q}")
            k(f"global_store_dwordx4 v{vPAS}, {v(b,4)}, s[{sPA}:{sPA+1}] offset:{aa*1024} {st}")
        for n, (cb, ks) in enumerate(wo_ops):
            need = {f'o{ks}', f'w{n}'}
            idxs = [i for i, nme in enumerate(issued) if nme in need]
            if idxs: retire_until(max(idxs))
            k(f"v_smfmac_f32_16x16x64_bf16 {v(ACC+4*cb,4)}, {v(OO+4*ks,4)}, {v(slots[n%8],8)}, v{vIDX}")
            if n + 8 < 16:
                if len(issued) + 2 > 15: retire_until(len(issued) + 2 - 15 - 1)
                woread(slots[n % 8], *wo_ops[n + 8]); issued += [f'w{n+8}', f'w{n+8}']
            if n == 11: cvt_store(0)
        ST('wo')
        SEL = vK
        k(f"""
        s_add_u32 s{sKM}, s{sKM}, 65536
        s_addc_u32 s{sKM+1}, s{sKM+1}, 0
        s_add_u32 s{sVM}, s{sVM}, 65536
        s_addc_u32 s{sVM+1}, s{sVM+1}, 0
        s_ashr_i32 s{sT}, s{sMBD}, 31
        s_nop 1
        """)
        cvt_store(1)
        k(f"""
        s_add_u32 s{sMBr}, s{sMBr}, s{sMBD}
        s_addc_u32 s{sMBr+1}, s{sMBr+1}, s{sT}
        """)
        for d in range(4): k(f"v_mov_b32 v{SEL+d}, 0")
        for d in range(4):
            lo = (0x0001000100010001 << (2*d)); hi = (0x0001000100010001 << (2*d+1))
            k(f"s_mov_b32 s{sP0}, {hex(lo & 0xffffffff)}\ns_mov_b32 s{sP0+1}, {hex(lo & 0xffffffff)}\ns_mov_b64 exec, s[{sP0}:{sP0+1}]\nv_mov_b32 v{SEL+d}, 0x00003f80")
            k(f"s_lshl_b64 exec, exec, 1\nv_mov_b32 v{SEL+d}, 0x3f800000")
        k("s_mov_b64 exec, -1")
        ST('pastore')
        if OPT['ackA'] != 'n': k(f"s_waitcnt vmcnt({OPT['ackA']})")
        ST('ackA')
        PAo = k.lab('LpollA'); X = OO
        k(f"s_mov_b32 s{sSpin}, 0")
        k.label(PAo)
        T0 = vM + 36; T1r = vM + 37
        ck3 = 'v_bitop3_b32' if par else 'v_or3_b32'; bo = ' bitop3:0x80' if par else ''; ck2 = 'v_and_b32' if par else 'v_or_b32'
        k(f"""
        global_load_dwordx4 {v(X,4)}, v{vPAL}, s[{sPA}:{sPA+1}] sc1
        global_load_dwordx4 {v(X+4,4)}, v{vPAL}, s[{sPA1}:{sPA1+1}] sc1
        s_add_u32 s{sSpin}, s{sSpin}, 1
        s_cmp_gt_u32 s{sSpin}, {SPIN}
        s_cbranch_scc1 {TO}
        s_waitcnt vmcnt(0)
        {ck3} v{T0}, v{X}, v{X+1}, v{X+2}{bo}
        {ck3} v{T1r}, v{X+3}, v{X+4}, v{X+5}{bo}
        {ck3} v{T0}, v{T0}, v{X+6}, v{X+7}{bo}
        {ck2} v{T0}, v{T0}, v{T1r}
        v_and_b32 v{T0}, 1, v{T0}
        v_cmp_ne_u32 vcc, {par}, v{T0}
        s_cbranch_vccnz {PAo}
        """)
        ST('pollA')
        if stamp: k(f"s_add_u32 s83, s83, s{sSpin}")
        A = X + 8
        k(f"""
        v_mfma_f32_16x16x32_bf16 {v(A,4)}, {v(SEL,4)}, {v(X,4)}, 0
        v_mfma_f32_16x16x32_bf16 {v(A,4)}, {v(SEL,4)}, {v(X+4,4)}, {v(A,4)}
        s_sub_u32 s{sMBD}, 0, s{sMBD}
        s_nop 6
        """)
        for rot in (8, 4):
            for r in range(4): k(f"v_add_f32_dpp v{A+r}, v{A+r}, v{A+r} row_ror:{rot} row_mask:0xf bank_mask:0xf")
        k(f"""
        v_cndmask_b32 v{A}, v{A}, v{A+1}, s[{sMF0}:{sMF0+1}]
        v_cndmask_b32 v{A+2}, v{A+2}, v{A+3}, s[{sMF0}:{sMF0+1}]
        v_cndmask_b32 v{A}, v{A}, v{A+2}, s[{sMKM}:{sMKM+1}]
        s_nop 1
        v_mov_b32_dpp v{A+1}, v{A} quad_perm:[1,0,3,2] row_mask:0xf bank_mask:0xf
        v_cvt_pk_bf16_f32 v{A}, v{A}, v{A+1}
        v_min_u32 v{A}, 0xfffffffe, v{A}
        s_mov_b64 exec, s[{sMMB}:{sMMB+1}]
        global_store_dword v{vMBS}, v{A}, s[{sMBw}:{sMBw+1}] {st}
        s_mov_b64 exec, -1
        """)
        ST('reduce')
        ST_collect()
        k(f"""
        s_ashr_i32 s{sT}, s{sMBD}, 31
        s_add_u32 s{sMBw}, s{sMBw}, s{sMBD}
        s_addc_u32 s{sMBw+1}, s{sMBw+1}, s{sT}
        """)

    k.label(LOOP)
    STN[0] = 0
    step(0)
    k(f"s_add_u32 s{sS}, s{sS}, 1")
    STN[0] = 0
    n0 = len(STNAMES)
    step(1)
    del STNAMES[n0:]
    k(f"s_add_u32 s{sS}, s{sS}, 1")
    mark(k, 3, 2)
    k(f"""
    s_cmp_lt_u32 s{sS}, {NSEG}
    s_cbranch_scc1 {LOOP}
    """)
    mark(k, 5)

    diag_dump(k, 48, 49)
    if stamp:
        k(f"""
        s_memtime s[100:101]
        s_waitcnt lgkmcnt(0)
        s_sub_u32 s100, s100, s99
        s_load_dwordx2 s[{sP0}:{sP0+1}], s[0:1], {KA_DBG}
        s_waitcnt lgkmcnt(0)
        v_mov_b32 v48, 0
        v_mov_b32 v49, s100
        s_mov_b64 exec, 1
        global_store_dword v48, v49, s[{sP0}:{sP0+1}] offset:36 sc1
        s_lshl_b32 s100, s{sH}, 2
        s_add_u32 s100, s100, s{sW}
        s_lshl_b32 s100, s100, 3
        v_mov_b32 v48, s100
        v_mov_b32 v50, s82
        v_mov_b32 v51, s83
        global_store_dwordx2 v48, v[50:51], s[{sWS}:{sWS+1}] offset:{0x800} sc1
        v_mov_b32 v48, 0
        """)
        if stamp == 2:
            lb = k.lab('Lnost')
            k(f"s_or_b32 s81, s{sH}, s{sW}\ns_or_b32 s81, s81, s6\ns_cmp_lg_u32 s81, 0\ns_cbranch_scc1 {lb}")
            for i in range(NST):
                k(f"v_mov_b32 v49, s{84+i}\nglobal_store_dword v48, v49, s[{sP0}:{sP0+1}] offset:{40+4*i} sc1")
            k.label(lb)
        k("s_mov_b64 exec, -1")
    if use_flags:
        k(f"""
        s_waitcnt vmcnt(0)
        s_barrier
        v_mov_b32 v95, s{sS}
        s_mov_b64 exec, 1
        global_store_dword v{vL16}, v95, s[{sFR}:{sFR+1}] sc1
        """)
    k("s_waitcnt vmcnt(0)\ns_endpgm")
    timeout_exit(k, 0 if fast else 1, TO)
```

```python
from common import *
ONES=0x3f803f80
NINF=0xff800000
import struct, math
def f2u(x): return struct.unpack('<I', struct.pack('<f', x))[0]
CA = f2u(0.25*math.log2(math.e))
CB = f2u(128**-0.5*math.log2(math.e))

def xlane(k, op, r, tmp):
    for sw in ('32', '16'):
        k(f"v_mov_b32 v{tmp}, v{r}\ns_nop 1\nv_permlane{sw}_swap_b32 v{r}, v{tmp}\n{op} v{r}, v{r}, v{tmp}")

def emit_TA(k):
    vL=0; vRD=1; vFLG=2; vTMP=3; vA=8
    sHA=33; sC=34
    k(f"""
    s_lshl_b32 s{sHA}, s{sIDX}, 2
    s_add_u32 s{sHA}, s{sHA}, s{sW}
    v_and_b32 v40, 63, v0
    v_and_b32 v41, 15, v40        ; i / n
    v_lshrrev_b32 v42, 4, v40     ; g
    ; DMA lane offset: row l/8 (stride 3072), chunk l%8
    v_lshrrev_b32 v45, 3, v40
    v_mul_u32_u24 v45, 3072, v45
    v_and_b32 v46, 7, v40
    v_lshl_add_u32 v45, v46, 4, v45
    ; tr address: row 8g + i/4 ; bytes 32w + 8*(i%4)
    v_lshrrev_b32 v46, 2, v41
    v_lshl_add_u32 v46, v42, 3, v46
    v_lshlrev_b32 v46, 7, v46
    v_and_b32 v47, 3, v41
    v_lshl_add_u32 v46, v47, 3, v46
    s_lshl_b32 s{sT2}, s{sW}, 5
    v_add_u32 v46, s{sT2}, v46
    """)
    wait_start(k, 2, 3, F_R(0), 1)
    for mu in range(3):
        k(f"s_load_dwordx2 s[{sP}:{sP+1}], s[0:1], {KA_WQKV}")
        k(f"""
        s_lshl_b32 s{sT}, s{sIDX}, 7
        s_add_u32 s{sT}, s{sT}, {mu*1024}
        s_mul_i32 s{sT2}, s{sW}, {128*3072}
        s_add_u32 s{sT}, s{sT}, s{sT2}
        s_lshl_b32 s{sT3}, s{sW}, 14
        s_waitcnt lgkmcnt(0)
        s_add_u32 s{sP}, s{sP}, s{sT}
        s_addc_u32 s{sP+1}, s{sP+1}, 0
        """)
        for u in range(16):
            k(f"s_mov_b32 m0, s{sT3}\ns_add_u32 s{sT3}, s{sT3}, 1024\nglobal_load_lds_dwordx4 v45, s[{sP}:{sP+1}]")
            adv(k, sP, 8*3072)
        k("s_waitcnt vmcnt(0)\ns_barrier")
        n = 0
        for ks in range(16):
            for hf in range(2):
                k(f"ds_read_b64_tr_b16 {a((mu*16+ks)*4 + 2*hf, 2)}, v46 offset:{ks*4096 + hf*512}")
                n += 1
                if n % 8 == 0: k("s_waitcnt lgkmcnt(0)")
        k("s_waitcnt lgkmcnt(0)\ns_barrier")
    k(f"""
    v_lshlrev_b32 v{vL}, 4, v40
    v_lshlrev_b32 v{vRD}, 9, v42
    v_lshl_add_u32 v{vRD}, v41, 4, v{vRD}
    v_xor_b32 v{vRD}, 0x8000, v{vRD}
    s_lshl_b32 s{sM0}, s{sW}, 13
    v_and_b32 v4, 1, v40
    v_lshlrev_b32 v4, 2, v4
    v_add_u32 v4, {F_T6(0)}, v4               ; + parity*8
    s_mov_b32 s{sFL}, s{sWS}
    s_mov_b32 s{sFL+1}, s{sWS+1}
    s_mov_b32 s{sC}, {CA}
    """)
    base(k, sOWN, F_TA, f"s_lshl_b32 s{sT}, s{sHA}, 2")
    base(k, sIN, XNA, f"s_lshl_b32 s{sT}, s{sW}, 13")
    base(k, sOUT, OA, f"s_lshl_b32 s{sT}, s{sHA}, 10")
    ACC=32
    QP=56
    KP=60
    VP=66
    SP=72; SC=76
    PP=80
    LL=84; OO=88
    OP=92
    BP=96; BC=100; BP0=104
    ON=108
    MX=112; TM=113
    k(f"v_lshlrev_b32 v48, 2, v42")
    for t, B in ((0, BP), (1, BC)):
        for r in range(4):
            k(f"""
            v_add_u32 v49, {r - (16 if t == 0 else 0) + 64}, v48      ; key offset + 64
            v_add_u32 v50, 64, v41
            v_sub_u32 v49, v50, v49                ; diff
            v_and_b32 v50, 0xfffffff1, v49         ; zero iff diff in 0,2,..,14
            v_mov_b32 v{B+r}, {NINF}
            v_cmp_eq_u32 vcc, 0, v50
            s_nop 1
            v_cndmask_b32 v{B+r}, v{B+r}, 0, vcc
            """.replace(f"v_cndmask_b32 v{B+r}, v{B+r}, 0, vcc", f"v_mov_b32 v51, 0\n v_cndmask_b32 v{B+r}, v{B+r}, v51, vcc"))
    for r in range(4): k(f"v_mov_b32 v{BP0+r}, {NINF}\nv_mov_b32 v{ON+r}, {ONES}")
    for r in range(2): k(f"v_mov_b32 v{KP+r}, 0\nv_mov_b32 v{VP+r}, 0")
    def set_need(k):
        k(f"s_add_u32 s{sNEED}, s{sT3}, 1\ns_mul_i32 s{sNEED}, s{sNEED}, s{sL}\ns_and_b32 s{sT}, s{sT3}, 1\ns_lshl_b32 s{sT}, s{sT}, 3\nv_add_u32 v{vFLG}, s{sT}, v4")
    def dma(k):
        for blk in range(2):
            k(f"s_add_u32 s{sT}, s{sM0}, {blk*4096}\ns_mov_b32 m0, s{sT}\ns_nop 0")
            for u in range(4): k(f"global_load_lds_dwordx4 v{vL}, s[{sIN}:{sIN+1}] offset:{u*1024} sc1")
            adv(k, sIN, 4096 if blk == 0 else 32768 - 4096)
    def toggle(k): k(f"v_xor_b32 v{vRD}, 0x8000, v{vRD}\ns_xor_b32 s{sM0}, s{sM0}, 0x8000")
    def comp(k, hook):
        def rd(ks):
            for tt in range(2): k(f"ds_read_b128 {v(vA + 8*(ks%3) + 4*tt,4)}, v{vRD} offset:{ks*2048 + tt*256}")
        rd(0); rd(1)
        for ks in range(16):
            if ks + 2 < 16: rd(ks + 2)
            k(f"s_waitcnt lgkmcnt({2*min(2, 15-ks)})")
            for tt in range(2):
                x = v(vA + 8*(ks % 3) + 4*tt, 4)
                for mu in range(3):
                    acc = v(ACC + 8*mu + 4*tt, 4); c = "0" if ks == 0 else acc; w = a((mu*16+ks)*4, 4)
                    if mu < 2: k(f"v_mfma_f32_16x16x32_bf16 {acc}, {w}, {x}, {c}")
                    else: k(f"v_mfma_f32_16x16x32_bf16 {acc}, {x}, {w}, {c}")
            if ks == 5: hook(0)
            if ks == 10: hook(1)
        k.nop(8)
    def epilogue(k):
        for tt in range(2):
            for mu, dst in ((0, QP + 2*tt), (1, KP + 2 + 2*tt), (2, VP + 2 + 2*tt)):
                b = ACC + 8*mu + 4*tt
                k(f"v_cvt_pk_bf16_f32 v{dst}, v{b}, v{b+1}\nv_cvt_pk_bf16_f32 v{dst+1}, v{b+2}, v{b+3}")
        for tt in range(2):
            k("s_nop 1")
            k(f"v_mfma_f32_16x16x16_bf16 {v(SP,4)}, {v(KP+2*tt,2)}, {v(QP+2*tt,2)}, 0")
            k(f"v_mfma_f32_16x16x16_bf16 {v(SC,4)}, {v(KP+2+2*tt,2)}, {v(QP+2*tt,2)}, 0")
            k.nop(8)
            bp = BP0 if tt == 0 else BP
            for r in range(4): k(f"v_fma_f32 v{SP+r}, v{SP+r}, s{sC}, v{bp+r}")
            for r in range(4): k(f"v_fma_f32 v{SC+r}, v{SC+r}, s{sC}, v{BC+r}")
            k(f"""
            v_max3_f32 v{MX}, v{SP}, v{SP+1}, v{SP+2}
            v_max3_f32 v{MX}, v{MX}, v{SP+3}, v{SC}
            v_max3_f32 v{MX}, v{MX}, v{SC+1}, v{SC+2}
            v_max_f32 v{MX}, v{MX}, v{SC+3}
            """)
            xlane(k, 'v_max_f32', MX, TM)
            for r in range(8): k(f"v_sub_f32 v{SP+r}, v{SP+r}, v{MX}")
            for r in range(8): k(f"v_exp_f32 v{SP+r}, v{SP+r}")
            k("s_nop 0")
            for q in range(4): k(f"v_cvt_pk_bf16_f32 v{PP+q}, v{SP+2*q}, v{SP+2*q+1}")
            k("s_nop 1")
            k(f"v_mfma_f32_16x16x32_bf16 {v(LL,4)}, {v(ON,4)}, {v(PP,4)}, 0")
            k(f"v_mfma_f32_16x16x32_bf16 {v(OO,4)}, {v(VP+2*tt,4)}, {v(PP,4)}, 0")
            k.nop(7)
            k(f"v_rcp_f32 v{LL}, v{LL}\ns_nop 0")
            for r in range(4): k(f"v_mul_f32 v{OO+r}, v{OO+r}, v{LL}")
            k(f"v_cvt_pk_bf16_f32 v{OP+2*tt}, v{OO}, v{OO+1}\nv_cvt_pk_bf16_f32 v{OP+2*tt+1}, v{OO+2}, v{OO+3}")
        k(f"""
        s_nop 1
        v_permlane16_swap_b32 v{OP}, v{OP+2}
        v_permlane16_swap_b32 v{OP+1}, v{OP+3}
        global_store_dwordx4 v{vL}, {v(OP,4)}, s[{sOUT}:{sOUT+1}] sc1
        v_mov_b32 v{KP}, v{KP+4}
        v_mov_b32 v{KP+1}, v{KP+5}
        v_mov_b32 v{VP}, v{VP+4}
        v_mov_b32 v{VP+1}, v{VP+5}
        """)
        for r in range(4): k(f"v_mov_b32 v{BP0+r}, v{BP+r}")
        adv(k, sOUT, 32768)
    skeleton(k, 'TA', 4, NSEG, set_need, dma, lambda k: None, comp, epilogue, vFLG, vTMP, vL, toggle, 1)

def emit_T4(k):
    sH=33; sPAR=34; sC=35
    sQ=36; sK=38; sV=40; sKM=42; sVM=44; sO=46
    vL=0; vFLG=2; vTMP=3; vQA=4; vQB=5; vKMA=6; vFLT=7; vVMA=8
    Q=16; KK=48; KM_=80; V=96; VM_=128
    SM=144; S0=148; S1=152; PT_=156; PM=160; LL=164; MX=168; TM=169
    OO=172
    OP=204
    BM=208; BD=212; ON=216
    TO = k.lab('LtoT4'); LOOP = k.lab('LitT4')
    k(f"""
    s_lshl_b32 s{sT}, s{sIDX}, 2
    s_add_u32 s{sT}, s{sT}, s{sW}
    s_lshr_b32 s{sH}, s{sT}, 1
    s_and_b32 s{sPAR}, s{sT}, 1
    v_and_b32 v240, 63, v0
    v_and_b32 v241, 15, v240      ; n / i
    v_lshrrev_b32 v242, 4, v240   ; g
    v_lshlrev_b32 v{vL}, 4, v240
    v_lshlrev_b32 v{vQA}, 9, v242
    v_lshl_add_u32 v{vQA}, v241, 4, v{vQA}      ; g*512 + n*16
    v_add_u32 v{vQB}, 4096, v{vQA}
    ; KM tr-read address: w*2048 + (8g + i/4)*16 + ((i%4)%2)*8   (+ ks*512 + hf*64)
    v_lshrrev_b32 v243, 2, v241
    v_lshl_add_u32 v243, v242, 3, v243
    v_lshlrev_b32 v243, 4, v243
    v_and_b32 v244, 1, v241
    v_lshl_add_u32 v243, v244, 3, v243
    s_lshl_b32 s{sM0}, s{sW}, 11
    v_add_u32 v{vKMA}, s{sM0}, v243
    v_and_b32 v243, 1, v242
    v_lshlrev_b32 v{vVMA}, 3, v243
    v_lshl_add_u32 v{vVMA}, v241, 4, v{vVMA}     ; i*16 + (g%2)*8
    s_mov_b32 s{sFL}, s{sWS}
    s_mov_b32 s{sFL+1}, s{sWS+1}
    s_mov_b32 s{sC}, {CB}
    s_mul_i32 s{sT}, s{sL}, {F_R(1)-F_R(0)}
    s_add_u32 s{sT}, s{sT}, {F_R(0)}
    s_lshl_b32 s{sT2}, s{sH}, 2
    s_add_u32 s{sT}, s{sT}, s{sT2}
    v_mov_b32 v{vFLG}, s{sT}
    s_mul_i32 s{sT}, s{sL}, {F_T3(1)-F_T3(0)}
    s_add_u32 s{sT}, s{sT}, {F_T3(0)}
    s_lshl_b32 s{sT2}, s{sH}, 7
    s_add_u32 s{sT}, s{sT}, s{sT2}
    v_and_b32 v244, 7, v240
    v_min_u32 v244, 5, v244
    v_lshlrev_b32 v243, 4, v244
    v_add_u32 v{vFLT}, s{sT}, v243
    """)
    base(k, sOWN, F_T4, f"s_lshl_b32 s{sT}, s{sH}, 3\ns_lshl_b32 s{sT3}, s{sPAR}, 2\ns_add_u32 s{sT}, s{sT}, s{sT3}")
    big = f"s_lshl_b32 s{sT}, s{sH}, 13\ns_lshl_b32 s{sT3}, s{sPAR}, 18\ns_add_u32 s{sT}, s{sT}, s{sT3}"
    small = f"s_lshl_b32 s{sT}, s{sH}, 11\ns_lshl_b32 s{sT3}, s{sPAR}, 16\ns_add_u32 s{sT}, s{sT}, s{sT3}"
    base(k, sQ, QT, big); base(k, sK, KT, big); base(k, sV, VT, big); base(k, sO, OT, big)
    base(k, sKM, KM, small); base(k, sVM, VM, small)
    k(f"v_mov_b32 v243, {NINF}\nv_mov_b32 v244, 0")
    for r in range(4):
        k(f"""
        v_cmp_gt_u32 vcc, 2, v242
        s_nop 1
        v_cndmask_b32 v{BM+r}, v243, v244, vcc
        v_lshlrev_b32 v245, 2, v242
        v_add_u32 v245, {r}, v245
        v_cmp_le_u32 vcc, v245, v241
        s_nop 1
        v_cndmask_b32 v{BD+r}, v243, v244, vcc
        v_mov_b32 v{ON+r}, {ONES}
        """)
    mark(k, 1)
    wait_init(k, 243, 244)
    k(f"s_mov_b32 s{sS}, s{sPAR}")
    k.label(LOOP)
    k(f"s_add_u32 s{sNEED}, s{sS}, 1")
    poll_block(k, vFLT, vTMP, TO)
    def qaddr(ks): return (vQA, ks*2048) if ks < 2 else (vQB, (ks-2)*2048)
    for ks in range(4):
        va, off = qaddr(ks)
        for qt in range(2):
            k(f"global_load_dwordx4 {v(Q + (qt*4+ks)*4,4)}, v{va}, s[{sQ}:{sQ+1}] offset:{off + qt*256} sc1")
        for t in range(2):
            k(f"global_load_dwordx4 {v(KK + (t*4+ks)*4,4)}, v{va}, s[{sK}:{sK+1}] offset:{off + t*256} sc1")
    for ft in range(8):
        va, off = qaddr(ft // 2)
        k(f"global_load_dwordx4 {v(V + ft*4,4)}, v{va}, s[{sV}:{sV+1}] offset:{off + (ft % 2)*256} sc1")
    for p in (sQ, sK, sV): adv(k, p, 2*262144)
    poll_block(k, vFLG, vTMP, TO)
    mark(k, 2, 0)
    mark_val(k, 6, sNEED, 33)
    k(f"s_mov_b32 m0, s{sM0}\ns_nop 0")
    k(f"global_load_lds_dwordx4 v{vL}, s[{sKM}:{sKM+1}] sc1\nglobal_load_lds_dwordx4 v{vL}, s[{sKM}:{sKM+1}] offset:1024 sc1")
    for ft in range(8):
        k(f"global_load_dwordx2 {v(VM_ + ft*2,2)}, v{vVMA}, s[{sVM}:{sVM+1}] offset:{ft*256} sc1")
    for p in (sKM, sVM): adv(k, p, 2*65536)
    k("s_waitcnt vmcnt(8)")
    for ks in range(4):
        for hf in range(2):
            k(f"ds_read_b64_tr_b16 {v(KM_ + ks*4 + 2*hf,2)}, v{vKMA} offset:{ks*512 + hf*64}")
    k("s_waitcnt lgkmcnt(0)")
    for qt in range(2):
        for ks in range(4):
            q = v(Q + (qt*4+ks)*4, 4)
            c = lambda r: "0" if ks == 0 else v(r, 4)
            k(f"v_mfma_f32_16x16x32_bf16 {v(SM,4)}, {v(KM_+ks*4,4)}, {q}, {c(SM)}")
            k(f"v_mfma_f32_16x16x32_bf16 {v(S0,4)}, {v(KK+ks*4,4)}, {q}, {c(S0)}")
            if qt == 1: k(f"v_mfma_f32_16x16x32_bf16 {v(S1,4)}, {v(KK+16+ks*4,4)}, {q}, {c(S1)}")
        k.nop(8)
        n = 8 if qt == 0 else 12
        for r in range(4): k(f"v_fma_f32 v{SM+r}, v{SM+r}, s{sC}, v{BM+r}")
        if qt == 0:
            for r in range(4): k(f"v_fma_f32 v{S0+r}, v{S0+r}, s{sC}, v{BD+r}")
        else:
            for r in range(4): k(f"v_mul_f32 v{S0+r}, s{sC}, v{S0+r}")
            for r in range(4): k(f"v_fma_f32 v{S1+r}, v{S1+r}, s{sC}, v{BD+r}")
        k(f"v_max3_f32 v{MX}, v{SM}, v{SM+1}, v{SM+2}")
        i = 3
        while i < n:
            if i + 1 < n: k(f"v_max3_f32 v{MX}, v{MX}, v{SM+i}, v{SM+i+1}"); i += 2
            else: k(f"v_max_f32 v{MX}, v{MX}, v{SM+i}"); i += 1
        xlane(k, 'v_max_f32', MX, TM)
        for r in range(n): k(f"v_sub_f32 v{SM+r}, v{SM+r}, v{MX}")
        for r in range(n): k(f"v_exp_f32 v{SM+r}, v{SM+r}")
        k("s_nop 0")
        k(f"v_cvt_pk_bf16_f32 v{PM}, v{SM}, v{SM+1}\nv_cvt_pk_bf16_f32 v{PM+1}, v{SM+2}, v{SM+3}")
        k(f"v_cvt_pk_bf16_f32 v{PT_}, v{S0}, v{S0+1}\nv_cvt_pk_bf16_f32 v{PT_+1}, v{S0+2}, v{S0+3}")
        if qt == 1: k(f"v_cvt_pk_bf16_f32 v{PT_+2}, v{S1}, v{S1+1}\nv_cvt_pk_bf16_f32 v{PT_+3}, v{S1+2}, v{S1+3}")
        if qt == 0: k("s_waitcnt vmcnt(0)")
        k("s_nop 1")
        if qt == 0: k(f"v_mfma_f32_16x16x16_bf16 {v(LL,4)}, {v(ON,2)}, {v(PT_,2)}, 0")
        else: k(f"v_mfma_f32_16x16x32_bf16 {v(LL,4)}, {v(ON,4)}, {v(PT_,4)}, 0")
        for ft in range(8):
            o = v(OO + 4*ft, 4)
            if qt == 0: k(f"v_mfma_f32_16x16x16_bf16 {o}, {v(V+4*ft,2)}, {v(PT_,2)}, 0")
            else: k(f"v_mfma_f32_16x16x32_bf16 {o}, {v(V+4*ft,4)}, {v(PT_,4)}, 0")
        k(f"v_mfma_f32_16x16x16_bf16 {v(LL,4)}, {v(ON,2)}, {v(PM,2)}, {v(LL,4)}")
        for ft in range(8):
            o = v(OO + 4*ft, 4)
            k(f"v_mfma_f32_16x16x16_bf16 {o}, {v(VM_+2*ft,2)}, {v(PM,2)}, {o}")
        k(f"v_rcp_f32 v{LL}, v{LL}")
        k.nop(8)
        for u in range(4):
            b = OO + 8*u
            for r in range(8): k(f"v_mul_f32 v{b+r}, v{b+r}, v{LL}")
            d = OP
            for q in range(4): k(f"v_cvt_pk_bf16_f32 v{b+q}, v{b+2*q}, v{b+2*q+1}")
            va, off = qaddr(u)
            k(f"global_store_dwordx4 v{va}, {v(b,4)}, s[{sO}:{sO+1}] offset:{off + qt*256} sc1")
        k("s_nop 1")
    adv(k, sO, 2*262144)
    k(f"""
    s_waitcnt vmcnt(0)
    s_add_u32 s{sT}, s{sS}, 1
    v_mov_b32 v{vTMP}, s{sT}
    s_mov_b64 exec, 1
    global_store_dword v{vL}, v{vTMP}, s[{sOWN}:{sOWN+1}] sc1
    s_mov_b64 exec, -1
    """)
    mark_val(k, 4, sT, 33)
    k(f"s_add_u32 s{sS}, s{sS}, 2")
    mark(k, 3, 2)
    k(f"""
    s_cmp_lt_u32 s{sS}, {NSEG}
    s_cbranch_scc1 {LOOP}
    """)
    mark(k, 5); diag_dump(k, 2, 3)
    k("s_waitcnt vmcnt(0)\ns_endpgm")
    timeout_block(k, TO, 6)

def ln_stats(k, packed, npk, SUM, SQ, tmp, reduce_code):
    k(f"v_mov_b32 v{SUM}, 0\nv_mov_b32 v{SQ}, 0\ns_mov_b32 s{sT}, {ONES}")
    for q in range(npk):
        k(f"v_dot2_f32_bf16 v{SUM}, v{packed+q}, s{sT}, v{SUM}\nv_dot2_f32_bf16 v{SQ}, v{packed+q}, v{packed+q}, v{SQ}")
    k.nop(3)
    reduce_code()
    k(f"""
    v_mul_f32 v{SUM}, 0x3b000000, v{SUM}
    v_mul_f32 v{SQ}, 0x3b000000, v{SQ}
    v_fma_f32 v{SQ}, -v{SUM}, v{SUM}, v{SQ}
    v_max_f32 v{SQ}, 0, v{SQ}
    v_add_f32 v{SQ}, 0x3727c5ac, v{SQ}
    v_rsq_f32 v{SQ}, v{SQ}
    s_nop 0
    """)
def ln_apply(k, packed, npk, MEAN, RSTD, out, t0, t1):
    for q in range(npk):
        k(f"""
        v_lshlrev_b32 v{t0}, 16, v{packed+q}
        v_and_b32 v{t1}, 0xffff0000, v{packed+q}
        v_sub_f32 v{t0}, v{t0}, v{MEAN}
        v_sub_f32 v{t1}, v{t1}, v{MEAN}
        v_mul_f32 v{t0}, v{t0}, v{RSTD}
        v_mul_f32 v{t1}, v{t1}, v{RSTD}
        v_cvt_pk_bf16_f32 v{out+q}, v{t0}, v{t1}
        """)

def emit_T6(k):
    sPAR=33; sHF=34; sPT=36
    sX1=44; sXR=46; sXN=48; sOutP=50
    vL=0; vFLG=2; vTMP=3; vPA=4; vXA=5; vOA=6; vLW=7; vLR=8
    P=16
    X=144
    XN=160
    SUM=176; SQ=177; T0=178; T1=179; R4=180
    TO = k.lab('LtoT6'); LOOP = k.lab('LitT6')
    k(f"""
    s_lshr_b32 s{sPAR}, s{sIDX}, 1
    s_and_b32 s{sHF}, s{sIDX}, 1
    v_and_b32 v240, 63, v0
    v_and_b32 v241, 15, v240          ; tok
    v_lshrrev_b32 v242, 4, v240       ; l/16
    s_lshl_b32 s{sT}, s{sW}, 2
    v_add_u32 v243, s{sT}, v242       ; cg 0..15
    s_lshl_b32 s{sT}, s{sHF}, 4
    v_add_u32 v244, s{sT}, v241
    v_lshlrev_b32 v{vL}, 4, v240
    v_lshlrev_b32 v{vPA}, 12, v243
    v_lshl_add_u32 v{vPA}, v244, 4, v{vPA}
    v_lshlrev_b32 v{vXA}, 11, v243
    v_lshl_add_u32 v{vXA}, v244, 4, v{vXA}
    v_lshlrev_b32 v{vOA}, 10, v244
    v_lshl_add_u32 v{vOA}, v243, 6, v{vOA}
    s_lshl_b32 s{sT}, s{sW}, 7
    v_lshlrev_b32 v{vLR}, 3, v241
    v_add_u32 v{vLW}, s{sT}, v{vLR}
    s_mul_i32 s{sT}, s{sL}, {F_T5(1)-F_T5(0)}
    s_add_u32 s{sT}, s{sT}, {F_T5(0)}
    v_lshlrev_b32 v{vFLG}, 2, v240
    v_add_u32 v{vFLG}, s{sT}, v{vFLG}
    s_mov_b32 s{sFL}, s{sWS}
    s_mov_b32 s{sFL+1}, s{sWS+1}
    """)
    base(k, sOWN, F_T6, f"s_lshl_b32 s{sT}, s{sIDX}, 2")
    for kq in range(4):
        base(k, sPT + 2*kq, PT, f"s_lshl_b32 s{sT}, s{sPAR}, 18\ns_add_u32 s{sT}, s{sT}, {kq*65536}")
    base(k, sX1, X1, f"s_lshl_b32 s{sT}, s{sPAR}, 15")
    l1 = lambda l: XR(1)
    base(k, sXR, l1, f"s_lshl_b32 s{sT}, s{sPAR}, 15")
    l2 = lambda l: XNA(1)
    base(k, sXN, l2, f"s_lshl_b32 s{sT}, s{sPAR}, 15")
    k(f"""
    s_load_dwordx2 s[{sOutP}:{sOutP+1}], s[0:1], {KA_OUT}
    s_lshl_b32 s{sT}, s{sPAR}, 15
    s_waitcnt lgkmcnt(0)
    s_add_u32 s{sOutP}, s{sOutP}, s{sT}
    s_addc_u32 s{sOutP+1}, s{sOutP+1}, 0
    """)
    mark(k, 1)
    wait_init(k, 245, 246)
    k(f"s_mov_b32 s{sS}, s{sPAR}")
    k.label(LOOP)
    k(f"s_add_u32 s{sNEED}, s{sS}, 1")
    poll_block(k, vFLG, vTMP, TO)
    mark(k, 2, 0)
    mark_val(k, 6, sNEED, 33)
    for j in range(4):
        k(f"global_load_dwordx4 {v(X+4*j,4)}, v{vXA}, s[{sX1}:{sX1+1}] offset:{j*512} sc1")
    for kq in range(4):
        for j in range(8):
            k(f"global_load_dwordx4 {v(P+32*kq+4*j,4)}, v{vPA}, s[{sPT+2*kq}:{sPT+2*kq+1}] offset:{j*512} sc1")
        adv(k, sPT + 2*kq, 2*262144)
    adv(k, sX1, 2*32768)
    k("s_waitcnt vmcnt(16)")
    for r in range(32): k(f"v_add_f32 v{P+r}, v{P+r}, v{P+32+r}")
    k("s_waitcnt vmcnt(0)")
    for r in range(32): k(f"v_add_f32 v{P+64+r}, v{P+64+r}, v{P+96+r}")
    for r in range(32): k(f"v_add_f32 v{P+r}, v{P+r}, v{P+64+r}")
    for q in range(16):
        k(f"""
        v_lshlrev_b32 v{T0}, 16, v{X+q}
        v_and_b32 v{T1}, 0xffff0000, v{X+q}
        v_add_f32 v{T0}, v{T0}, v{P+2*q}
        v_add_f32 v{T1}, v{T1}, v{P+2*q+1}
        v_cvt_pk_bf16_f32 v{X+q}, v{T0}, v{T1}
        """)
    lo = k.lab('Lt6o'); le = k.lab('Lt6e')
    k(f"s_cmp_lg_u32 s{sL}, 0\ns_cbranch_scc1 {lo}")
    for j in range(4):
        k(f"global_store_dwordx4 v{vXA}, {v(X+4*j,4)}, s[{sXR}:{sXR+1}] offset:{j*512} sc1")
    def red():
        xlane(k, 'v_add_f32', SUM, T0); xlane(k, 'v_add_f32', SQ, T0)
        k(f"ds_write_b64 v{vLW}, v[{SUM}:{SQ}]\ns_waitcnt lgkmcnt(0)\ns_barrier")
        for w in range(4): k(f"ds_read_b64 {v(R4+2*w,2)}, v{vLR} offset:{w*128}")
        k(f"""
        s_waitcnt lgkmcnt(0)
        v_add_f32 v{R4}, v{R4}, v{R4+2}
        v_add_f32 v{R4+1}, v{R4+1}, v{R4+3}
        v_add_f32 v{R4+4}, v{R4+4}, v{R4+6}
        v_add_f32 v{R4+5}, v{R4+5}, v{R4+7}
        v_add_f32 v{SUM}, v{R4}, v{R4+4}
        v_add_f32 v{SQ}, v{R4+1}, v{R4+5}
        """)
    ln_stats(k, X, 16, SUM, SQ, T0, red)
    ln_apply(k, X, 16, SUM, SQ, XN, T0, T1)
    for j in range(4):
        k(f"global_store_dwordx4 v{vXA}, {v(XN+4*j,4)}, s[{sXN}:{sXN+1}] offset:{j*512} sc1")
    k(f"s_branch {le}")
    k.label(lo)
    for j in range(4):
        k(f"global_store_dwordx4 v{vOA}, {v(X+4*j,4)}, s[{sOutP}:{sOutP+1}] offset:{j*16}")
    k.label(le)
    adv(k, sXR, 2*32768); adv(k, sXN, 2*32768); adv(k, sOutP, 2*32768)
    k("s_waitcnt vmcnt(0)\ns_barrier")
    k(f"s_add_u32 s{sT3}, s{sS}, 1")
    publish(k, vL, vTMP, sT3, True)
    k(f"""
    s_add_u32 s{sS}, s{sS}, 2
    """)
    mark(k, 3, 2)
    k(f"""
    s_cmp_lt_u32 s{sS}, {NSEG}
    s_cbranch_scc1 {LOOP}
    """)
    mark(k, 5); diag_dump(k, 2, 3)
    k("s_waitcnt vmcnt(0)\ns_endpgm")
    timeout_block(k, TO, 7)

PF = [True]
def emit_K0(k):
    END = k.lab('Lk0e')
    vXA=4; vCA=5; vLW=6; vLR=7; X=16; XN=24; SUM=32; SQ=33; T0=34; T1=35; R4=36
    k(f"""
    s_cmp_ge_u32 s2, 256
    s_cbranch_scc1 {END}
    s_load_dwordx2 s[{sWS}:{sWS+1}], s[0:1], {KA_WS}
    s_load_dwordx2 s[10:11], s[0:1], {KA_X}
    s_load_dwordx2 s[12:13], s[0:1], {KA_MEM0}
    v_readfirstlane_b32 s{sW}, v0
    s_nop 1
    s_lshr_b32 s{sW}, s{sW}, 6
    v_and_b32 v40, 63, v0
    v_and_b32 v41, 7, v40            ; tok
    v_lshrrev_b32 v42, 3, v40
    s_lshl_b32 s{sT}, s{sW}, 3
    v_add_u32 v42, s{sT}, v42
    s_lshl_b32 s{sT}, s2, 3
    v_add_u32 v43, s{sT}, v41
    v_lshlrev_b32 v{vXA}, 10, v43
    v_lshl_add_u32 v{vXA}, v42, 5, v{vXA}
    v_lshrrev_b32 v44, 5, v43
    v_lshlrev_b32 v44, 15, v44                ; seg*32768
    v_and_b32 v45, 31, v43
    v_lshl_add_u32 v44, v45, 4, v44
    v_lshl_add_u32 v{vCA}, v42, 10, v44
    s_lshl_b32 s{sT}, s{sW}, 6
    v_lshlrev_b32 v{vLR}, 3, v41
    v_add_u32 v{vLW}, s{sT}, v{vLR}
    s_waitcnt lgkmcnt(0)
    global_load_dwordx4 {v(X,4)}, v{vXA}, s[10:11]
    global_load_dwordx4 {v(X+4,4)}, v{vXA}, s[10:11] offset:16
    CODEPF
    ; fills
    v_mov_b32 v48, -1
    v_mov_b32 v49, -1
    v_mov_b32 v50, -1
    v_mov_b32 v51, -1
    v_lshlrev_b32 v52, 4, v0                  ; tid*16
    s_lshl_b32 s{sT}, s2, 13
    s_add_u32 s{sT}, s{sT}, {PA(0)}
    v_add_u32 v53, s{sT}, v52
    global_store_dwordx4 v53, v[48:51], s[{sWS}:{sWS+1}]
    v_add_u32 v53, 4096, v53
    global_store_dwordx4 v53, v[48:51], s[{sWS}:{sWS+1}]
    s_lshr_b32 s{sT}, s2, 7
    s_mul_i32 s{sT}, s{sT}, {MB(1)-MB(0)}
    s_and_b32 s{sT2}, s2, 127
    s_lshl_b32 s{sT2}, s{sT2}, 12
    s_add_u32 s{sT}, s{sT}, s{sT2}
    s_add_u32 s{sT}, s{sT}, {MB(0)+8192}
    v_add_u32 v53, s{sT}, v52
    global_store_dwordx4 v53, v[48:51], s[{sWS}:{sWS+1}]
    """)
    nf = k.lab('Lnf'); nm = k.lab('Lnm')
    k(f"""
    s_cmp_lg_u32 s{sW}, 0
    s_cbranch_scc1 {nf}
    v_mov_b32 v54, 0
    v_lshlrev_b32 v55, 2, v40
    s_lshl_b32 s{sT}, s2, 8
    v_add_u32 v55, s{sT}, v55
    global_store_dword v55, v54, s[{sWS}:{sWS+1}]
    """)
    k.label(nf)
    k(f"""
    s_cmp_ge_u32 s2, 4
    s_cbranch_scc1 {nm}
    s_and_b32 s{sT}, s2, 1
    s_lshl_b32 s{sT}, s{sT}, 12
    v_add_u32 v56, s{sT}, v52
    global_load_dwordx4 v[60:63], v56, s[12:13]
    s_lshr_b32 s{sT}, s2, 1
    s_mul_i32 s{sT}, s{sT}, {MB(1)-MB(0)}
    s_add_u32 s{sT}, s{sT}, {MB(0)}
    v_add_u32 v56, s{sT}, v56
    s_waitcnt vmcnt(0)
    global_store_dwordx4 v56, v[60:63], s[{sWS}:{sWS+1}]
    """)
    k.label(nm)
    k(f"""
    s_waitcnt vmcnt(0)
    v_add_u32 v53, {XR(0)}, v{vCA}
    global_store_dwordx4 v53, {v(X,4)}, s[{sWS}:{sWS+1}]
    global_store_dwordx4 v53, {v(X+4,4)}, s[{sWS}:{sWS+1}] offset:512
    """)
    def red():
        for val in (SUM, SQ):
            k(f"s_nop 1\nv_add_f32_dpp v{val}, v{val}, v{val} row_ror:8 row_mask:0xf bank_mask:0xf")
            xlane(k, 'v_add_f32', val, T0)
        k(f"ds_write_b64 v{vLW}, v[{SUM}:{SQ}]\ns_waitcnt lgkmcnt(0)\ns_barrier")
        for w in range(4): k(f"ds_read_b64 {v(R4+2*w,2)}, v{vLR} offset:{w*64}")
        k(f"""
        s_waitcnt lgkmcnt(0)
        v_add_f32 v{R4}, v{R4}, v{R4+2}
        v_add_f32 v{R4+1}, v{R4+1}, v{R4+3}
        v_add_f32 v{R4+4}, v{R4+4}, v{R4+6}
        v_add_f32 v{R4+5}, v{R4+5}, v{R4+7}
        v_add_f32 v{SUM}, v{R4}, v{R4+4}
        v_add_f32 v{SQ}, v{R4+1}, v{R4+5}
        """)
    ln_stats(k, X, 8, SUM, SQ, T0, red)
    ln_apply(k, X, 8, SUM, SQ, XN, T0, T1)
    k(f"""
    v_add_u32 v53, {XNA(0)}, v{vCA}
    global_store_dwordx4 v53, {v(XN,4)}, s[{sWS}:{sWS+1}]
    global_store_dwordx4 v53, {v(XN+4,4)}, s[{sWS}:{sWS+1}] offset:512
    s_waitcnt vmcnt(0)
    """)
    k.label(END)
    k("s_endpgm")
    txt = '\n'.join(k.lines)
    if PF[0]:
        pf = f"""s_getpc_b64 s[14:15]
Lk0pc:
s_add_u32 s14, s14, CODE_BEGIN-Lk0pc
s_addc_u32 s15, s15, 0
s_lshr_b32 s{sT}, s2, 3
s_and_b32 s{sT}, s{sT}, 31
s_mul_i32 s{sT}, s{sT}, ((CODE_END-CODE_BEGIN+2047)/2048+31)/32*2048
v_mul_u32_u24 v57, ((CODE_END-CODE_BEGIN+2047)/2048+31)/32*8, v0
v_add_u32 v57, s{sT}, v57
s_mov_b32 s{sT2}, CODE_END-CODE_BEGIN-4
v_min_u32 v57, s{sT2}, v57
v_and_b32 v57, -4, v57
global_load_dword v58, v57, s[14:15]"""
    else: pf = ''
    i = k.lines.index('CODEPF')
    k.lines[i:i+1] = [l for l in pf.split('\n') if l]


def emit_init(k, s_iw):
    vXA=4; vOA=5; vLW=6; vLR=7; X=16; XN=32; SUM=48; SQ=49; T0=50; T1=51; R4=52
    sX=10; sM=12; sD=14
    k(f"""
    s_load_dwordx2 s[{sX}:{sX+1}], s[0:1], {KA_X}
    s_load_dwordx2 s[{sM}:{sM+1}], s[0:1], {KA_MEM0}
    s_load_dwordx2 s[{sD}:{sD+1}], s[0:1], {KA_DBG}
    v_and_b32 v240, 63, v0
    v_and_b32 v241, 15, v240          ; tok
    v_lshrrev_b32 v242, 4, v240
    s_lshl_b32 s{sT}, s{sW}, 2
    v_add_u32 v243, s{sT}, v242       ; cg 0..15
    s_lshl_b32 s{sT}, s{s_iw}, 4
    v_add_u32 v244, s{sT}, v241
    v_lshlrev_b32 v{vOA}, 10, v244
    v_lshl_add_u32 v{vOA}, v243, 6, v{vOA}
    v_lshrrev_b32 v245, 5, v244
    v_lshlrev_b32 v245, 15, v245
    v_and_b32 v246, 31, v244
    v_lshl_add_u32 v245, v246, 4, v245
    v_lshl_add_u32 v{vXA}, v243, 11, v245
    s_lshl_b32 s{sT}, s{sW}, 7
    v_lshlrev_b32 v{vLR}, 3, v241
    v_add_u32 v{vLW}, s{sT}, v{vLR}
    s_waitcnt lgkmcnt(0)
    """)
    for j in range(4): k(f"global_load_dwordx4 {v(X+4*j,4)}, v{vOA}, s[{sX}:{sX+1}] offset:{j*16}")
    k(f"""
    v_mov_b32 v60, -1
    v_mov_b32 v61, -1
    v_mov_b32 v62, -1
    v_mov_b32 v63, -1
    v_lshlrev_b32 v64, 4, v0                  ; tid*16
    s_lshr_b32 s{sT}, s{s_iw}, 6
    s_mul_i32 s{sT}, s{sT}, {PA(1)-PA(0)}
    s_and_b32 s{sT2}, s{s_iw}, 63
    s_lshl_b32 s{sT2}, s{sT2}, 12
    s_add_u32 s{sT}, s{sT}, s{sT2}
    s_add_u32 s{sT}, s{sT}, {PA(0)}
    v_add_u32 v65, s{sT}, v64
    global_store_dwordx4 v65, v[60:63], s[{sWS}:{sWS+1}] sc1
    """)
    nf = k.lab('Lnf'); nm = k.lab('Lnm'); ns = k.lab('Lns')
    k(f"""
    s_cmp_lg_u32 s{sW}, 0
    s_cbranch_scc1 {nf}
    v_mov_b32 v66, 0
    v_lshlrev_b32 v67, 2, v240
    s_lshl_b32 s{sT}, s{s_iw}, 7
    v_add_u32 v67, s{sT}, v67
    s_mov_b64 exec, 0xffffffff
    global_store_dword v67, v66, s[{sWS}:{sWS+1}] sc1
    s_mov_b64 exec, -1
    """)
    k.label(nf)
    k(f"""
    s_cmp_ge_u32 s{s_iw}, 8
    s_cbranch_scc1 {nm}
    s_and_b32 s{sT}, s{s_iw}, 1
    s_lshl_b32 s{sT}, s{sT}, 12
    v_add_u32 v68, s{sT}, v64
    s_lshr_b32 s{sT}, s{s_iw}, 2
    s_mul_i32 s{sT}, s{sT}, {MB(1)-MB(0)}
    s_add_u32 s{sT}, s{sT}, {MB(0)}
    s_bitcmp1_b32 s{s_iw}, 1
    s_cbranch_scc1 {ns}
    global_load_dwordx4 v[72:75], v68, s[{sM}:{sM+1}]
    v_add_u32 v68, s{sT}, v68
    s_waitcnt vmcnt(0)
    global_store_dwordx4 v68, v[72:75], s[{sWS}:{sWS+1}] sc1
    s_branch {nm}
    """)
    k.label(ns)
    k(f"""
    s_add_u32 s{sT}, s{sT}, 8192
    v_add_u32 v68, s{sT}, v68
    global_store_dwordx4 v68, v[60:63], s[{sWS}:{sWS+1}] sc1
    """)
    k.label(nm)
    k(f"s_waitcnt vmcnt(0)")
    mark(k, 7)
    k(f"v_add_u32 v65, {XR(0)}, v{vXA}")
    for j in range(4): k(f"global_store_dwordx4 v65, {v(X+4*j,4)}, s[{sWS}:{sWS+1}] offset:{j*512} sc1")
    def red():
        xlane(k, 'v_add_f32', SUM, T0); xlane(k, 'v_add_f32', SQ, T0)
        k(f"ds_write_b64 v{vLW}, v[{SUM}:{SQ}]\ns_waitcnt lgkmcnt(0)\ns_barrier")
        for w in range(4): k(f"ds_read_b64 {v(R4+2*w,2)}, v{vLR} offset:{w*128}")
        k(f"""
        s_waitcnt lgkmcnt(0)
        v_add_f32 v{R4}, v{R4}, v{R4+2}
        v_add_f32 v{R4+1}, v{R4+1}, v{R4+3}
        v_add_f32 v{R4+4}, v{R4+4}, v{R4+6}
        v_add_f32 v{R4+5}, v{R4+5}, v{R4+7}
        v_add_f32 v{SUM}, v{R4}, v{R4+4}
        v_add_f32 v{SQ}, v{R4+1}, v{R4+5}
        """)
    ln_stats(k, X, 16, SUM, SQ, T0, red)
    ln_apply(k, X, 16, SUM, SQ, XN, T0, T1)
    k(f"v_add_u32 v65, {XNA(0)}, v{vXA}")
    for j in range(4): k(f"global_store_dwordx4 v65, {v(XN+4*j,4)}, s[{sWS}:{sWS+1}] offset:{j*512} sc1")
    sk = k.lab('Linits'); sk2 = k.lab('Linits2')
    k(f"""
    s_waitcnt vmcnt(0)
    s_barrier
    s_cmp_lg_u32 s{sW}, 0
    s_cbranch_scc1 {sk}
    s_mov_b64 exec, 1
    v_mov_b32 v66, 16
    v_mov_b32 v67, 1
    global_atomic_add v68, v66, v67, s[{sD}:{sD+1}] sc0 sc1
    s_waitcnt vmcnt(0)
    v_cmp_eq_u32 vcc, 127, v68
    s_cbranch_vccz {sk2}
    v_mov_b32 v66, 248
    global_store_dword v66, v67, s[{sD}:{sD+1}] sc1
    s_waitcnt vmcnt(0)
{sk2}:
    s_mov_b64 exec, -1
    """)
    k.label(sk)

def emit_l2_prefetch(k):
    k(f"""
    s_load_dwordx2 s[10:11], s[0:1], {KA_WQKV}
    s_load_dwordx2 s[12:13], s[0:1], {KA_WOA}
    s_lshl_b32 s{sT}, s{sIDX}, 2
    s_add_u32 s{sT}, s{sT}, s{sW}              ; wave 0..63
    v_and_b32 v4, 63, v0
    v_lshlrev_b32 v4, 6, v4                    ; lane*64
    s_mul_i32 s{sT2}, s{sT}, 24576
    v_add_u32 v5, s{sT2}, v4
    s_lshl_b32 s{sT2}, s{sT}, 13
    v_add_u32 v6, s{sT2}, v4
    s_waitcnt lgkmcnt(0)
    """)
    for j in range(6):
        k(f"global_load_dword v{8+j}, v5, s[10:11]\nv_add_u32 v5, 4096, v5")
    for j in range(2):
        k(f"global_load_dword v{16+j}, v6, s[12:13]\nv_add_u32 v6, 4096, v6")
    k("s_waitcnt vmcnt(0)")
```

```python
import sys
from fw import *
from layout import *
import common as C
import roleR4 as roleR, rolesG, rolesA

KNAME = "interleave_layers__sliding_local_dilated__memory_aug_recurrent_mem_tr__prompt_kernel"
KD = """.amdhsa_kernel {name}
.amdhsa_next_free_vgpr {vgpr}
.amdhsa_next_free_sgpr 102
.amdhsa_accum_offset {acc}
.amdhsa_group_segment_fixed_size 0
.amdhsa_kernarg_size 104
.amdhsa_user_sgpr_count 2
.amdhsa_user_sgpr_kernarg_segment_ptr 1
.amdhsa_system_sgpr_workgroup_id_x 1
.amdhsa_float_denorm_mode_32 3
.end_amdhsa_kernel"""

def entry(k, name):
    k(f".globl {name}\n.p2align 8\n.type {name},@function")
    k.label(name)

def common_entry(k, END):
    k(f"""
    s_load_dwordx2 s[8:9], s[0:1], {KA_WS}
    v_readfirstlane_b32 s5, v0
    s_nop 1
    s_lshr_b32 s5, s5, 6
    s_waitcnt lgkmcnt(0)
    """)

def ticket(k, key_code, tag):
    k(key_code)
    k(f"""
    s_load_dwordx2 s[46:47], s[0:1], {KA_DBG}
    s_waitcnt lgkmcnt(0)
    s_cmp_lg_u32 s5, 0
    s_cbranch_scc1 L_tk{tag}
    s_mov_b64 exec, 1
    s_and_b32 s35, s33, 3
    s_lshl_b32 s35, s35, 6
    s_lshr_b32 s37, s33, 2
    s_lshl_b32 s37, s37, 2
    s_add_u32 s35, s35, s37
    v_mov_b32 v1, s35
    v_mov_b32 v2, 1
    global_atomic_add v3, v1, v2, s[46:47] sc0 sc1
    s_waitcnt vmcnt(0)
    v_mov_b32 v1, 0
    ds_write_b32 v1, v3
    s_waitcnt lgkmcnt(0)
    s_mov_b64 exec, -1
L_tk{tag}:
    s_barrier
    v_mov_b32 v1, 0
    ds_read_b32 v3, v1
    s_waitcnt lgkmcnt(0)
    v_readfirstlane_b32 s4, v3
    s_barrier
    """)

CODEPF = [3]
ROLES = ['R', 'T3q', 'T3v', 'TW', 'T5', 'TA', 'T4', 'T6']
def emit_roles(k, use_flags=True, stamp=0):
    errs = []
    def role(label, fn):
        n0 = len(k.lines)
        k.label(label)
        fn()
        errs.extend(check(k.lines[n0:], label))
    def R():
        roleR.emit_R_prologue(k, 6)
        roleR.emit_R_loop(k, True, use_flags, stamp)
    role('ROLE_R', R)
    role('ROLE_T3q', lambda: rolesG.emit_T3(k, False))
    role('ROLE_T3v', lambda: rolesG.emit_T3(k, True))
    role('ROLE_TW', lambda: rolesG.emit_TW(k))
    role('ROLE_T5', lambda: rolesG.emit_T5(k))
    role('ROLE_TA', lambda: rolesA.emit_TA(k))
    role('ROLE_T4', lambda: rolesA.emit_T4(k))
    role('ROLE_T6', lambda: rolesA.emit_T6(k))
    return errs

def build(mode, stamp=0, diag=False):
    DIAGON[0] = diag
    k = Asm()
    kernels = []
    launches = [] if mode == 'concurrent' else [("k0_kernel", 256, 1024)]
    if mode == 'serial':
        seq = [('TA', 8), ('TW', 2), ('T3', 48), ('R', 256), ('T4', 16), ('T5', 16), ('T6', 4)]
        for l in range(2):
            for r, n in seq:
                launches.append((f"s{r}{l}_kernel", n, 163840))
    else:
        launches.append((KNAME, 256, 163840))
    hdr = [f"; @launch grid=({g},1,1) block=(256,1,1) lds={lds}" for n, g, lds in launches]
    k.lines.extend(hdr)
    k('.amdgcn_target "amdgcn-amd-amdhsa--gfx950"\n.text')
    errs = []
    if mode == 'serial':
        k.label("CODE_BEGIN")
        for (name, g, lds) in launches[1:]:
            r = name[1:-8]; l = int(name[-8])
            entry(k, name)
            k(f"s_cmp_ge_u32 s2, {g}\ns_cbranch_scc1 L_exit_{name}")
            common_entry(k, None)
            k(f"s_mov_b32 s6, {l}")
            if r == 'R':
                k(f"s_getreg_b32 s33, hwreg(HW_REG_XCC_ID, 0, 4)\ns_cmp_lg_u32 s33, 0\ns_cbranch_scc1 L_exit_{name}")
                ticket(k, "s_mov_b32 s33, 0", name)
                k(f"s_cmp_ge_u32 s4, 32\ns_cbranch_scc1 L_exit_{name}\ns_branch ROLE_R")
            elif r == 'T3':
                k(f"s_mov_b32 s4, s2\ns_cmp_ge_u32 s4, 32\ns_cbranch_scc1 L_v_{name}\ns_branch ROLE_T3q\nL_v_{name}:\ns_branch ROLE_T3v")
            else:
                k(f"s_mov_b32 s4, s2\ns_branch ROLE_{r}")
            k(f"L_exit_{name}:\ns_endpgm")
            kernels.append((name, 512, 256))
    else:
        name = KNAME
        k.label("CODE_BEGIN")
        entry(k, name)
        k(f"s_cmp_ge_u32 s2, 256\ns_cbranch_scc1 L_exit_m")
        common_entry(k, None)
        if CODEPF[0]:
            k(f"""
            s_cmp_eq_u32 s5, 0
            s_cbranch_scc1 L_nopf
            s_getpc_b64 s[14:15]
L_pfpc:
            s_add_u32 s14, s14, ROLE_R-L_pfpc
            s_addc_u32 s15, s15, 0
            v_subrev_u32 v1, 64, v0
            v_lshlrev_b32 v1, 7, v1
            s_mov_b32 s16, CODE_END-ROLE_R-4
            """)
            for j in range(CODEPF[0]):
                k(f"v_min_u32 v2, s16, v1\nv_and_b32 v2, -4, v2\nglobal_load_dword v255, v2, s[14:15]\nv_add_u32 v1, {192*128}, v1")
            k("L_nopf:")
        k("s_getreg_b32 s34, hwreg(HW_REG_XCC_ID, 0, 4)\ns_and_b32 s34, s34, 7")
        if diag:
            k("s_memrealtime s[94:95]\ns_waitcnt lgkmcnt(0)\ns_mov_b32 s80, s94")
        ticket(k, "s_mov_b32 s33, s34", 'm')
        if diag:
            k(f"s_lshl_b32 s92, s34, 5\ns_add_u32 s92, s92, s4\ns_lshl_b32 s92, s92, 6\ns_add_u32 s92, s92, {DIAG}\ns_add_u32 s90, s8, s92\ns_addc_u32 s91, s9, 0")
            for i in range(1, 10): k(f"s_mov_b32 s{80+i}, 0")
        k(f"""
        s_cmp_ge_u32 s4, 32
        s_cbranch_scc1 L_exit_m
        s_mov_b32 s36, 0
        s_cmp_eq_u32 s34, 1
        s_cbranch_scc1 L_doinit
        s_mov_b32 s36, 1
        s_cmp_eq_u32 s34, 4
        s_cbranch_scc1 L_doinit
        s_mov_b32 s36, 2
        s_cmp_eq_u32 s34, 5
        s_cbranch_scc1 L_doinit
        s_mov_b32 s36, 3
        s_cmp_eq_u32 s34, 7
        s_cbranch_scc1 L_doinit
        s_branch L_noinit
L_doinit:
        s_lshl_b32 s36, s36, 5
        s_add_u32 s36, s36, s4
        """)
        n0 = len(k.lines)
        mark(k, 9)
        rolesA.emit_init(k, 36)
        mark(k, 8)
        errs += check(k.lines[n0:], 'init')
        k(f"""
L_noinit:
        s_cmp_ge_u32 s34, 2
        s_cbranch_scc1 L_d1
        s_mov_b32 s6, s34
        s_branch ROLE_R
L_d1:
        s_cmp_ge_u32 s34, 6
        s_cbranch_scc1 L_d2
        s_sub_u32 s6, s34, 2
        s_lshr_b32 s6, s6, 1
        s_and_b32 s33, s34, 1
        s_cmp_lg_u32 s33, 0
        s_cbranch_scc1 L_d1b
        s_branch ROLE_T3q
L_d1b:
        s_cmp_ge_u32 s4, 16
        s_cbranch_scc1 L_d1c
        s_add_u32 s4, s4, 32
        s_branch ROLE_T3v
L_d1c:
        s_sub_u32 s4, s4, 16
        s_branch ROLE_T5
L_d2:
        s_sub_u32 s6, s34, 6
        s_cmp_ge_u32 s4, 16
        s_cbranch_scc1 L_d2b
        s_cmp_lg_u32 s6, 0
        s_cbranch_scc1 L_d2a
        """)
        rolesA.emit_l2_prefetch(k)
        k(f"""
L_d2a:
        s_branch ROLE_T4
L_d2b:
        s_cmp_ge_u32 s4, 24
        s_cbranch_scc1 L_d2c
        s_sub_u32 s4, s4, 16
        s_branch ROLE_TA
L_d2c:
        s_cmp_ge_u32 s4, 26
        s_cbranch_scc1 L_d2d
        s_sub_u32 s4, s4, 24
        s_branch ROLE_TW
L_d2d:
        s_cmp_ge_u32 s4, 30
        s_cbranch_scc1 L_exit_m
        s_sub_u32 s4, s4, 26
        s_branch ROLE_T6
L_exit_m:
        s_endpgm
        """)
        kernels.append((name, 512, 256))
    errs += emit_roles(k, True, stamp)
    k.label("CODE_END")
    k('.section .rodata,"a"')
    for name, vg, acc in kernels:
        k(".p2align 6")
        k(KD.format(name=name, vgpr=vg, acc=acc))
    k(".text")
    return k.text(), errs

if __name__ == '__main__':
    mode = sys.argv[1] if len(sys.argv) > 1 else 'concurrent'
    txt, errs = build(mode)
    for e in errs: print(e)
    open(f"mega_{mode}.s", "w").write(txt)
    import drv
    asm, co = drv.build(f"mega_{mode}.s", KNAME, 13)
    from cdna_launch import address_register_problem
    print("bytes", len(txt))
    print("check:", address_register_problem(co, KNAME))
```

```python
from fw import *
from layout import *
WOI=0; MSTG=131072; QKT=139520; KTL=143616; VTL=151808; OX=MSTG
SPIN = 1 << 18
SLOT = 0x40000
sH=4; sW=5; sS=7
sWS=8
sMBr=10; sMBw=12; sPA=14; sPA1=16
sKT=18; sVT=20; sKM=22; sVM=24
sFL=26
sMO=28; sMMB=30; sMKM=32; sMF0=34
sC=36; sT=37; sT2=38; sT3=39; sSpin=40
sP0=42
sFKv=44; sFVv=45
sM0K=46; sM0V=47
sFR=48
sSL=50; sSH=51
sMBD=52
sMF3=34
vL16=0; vMW=1; vMR=2; vQW=3; vFLG=4; vQR0=5; vQR1=6; vKR=7; vVR=8; vOW=9; vOR=10; vWO=11
vPAS=12; vPAL=13; vMBS=14; vWO2=15; vVMS=16; vSP=17; vIDX=18; vBIAS=19
aQ=20; aK=24; aV=28
vM=32; vK=96
WV=128
OPT = dict(kmflag='sc1', ackA='0', ackB='0', exp='')

def wreg(mu, ks, d0=0, n=8):
    if mu == 0: return a(8*ks + d0, n)
    if mu == 1: return a(128 + 8*ks + d0, n)
    return v(WV + 8*ks + d0, n)

def timeout_exit(k, code, lab):
    k.label(lab)
    k(f"""
    s_load_dwordx2 s[{sP0}:{sP0+1}], s[0:1], {KA_DBG}
    s_waitcnt lgkmcnt(0)
    s_mov_b64 exec, 1
    v_mov_b32 v32, {136 + 4*code}
    v_mov_b32 v33, s{sS}
    v_add_u32 v33, 0x10000, v33
    global_store_dword v32, v33, s[{sP0}:{sP0+1}] sc1
    s_waitcnt vmcnt(0)
    s_endpgm
    """)

def r_wait_init(k):
    lp = k.lab('Lwi'); to = k.lab('Lwito'); sk = k.lab('Lwisk')
    k(f"""
    s_load_dwordx2 s[{sP0}:{sP0+1}], s[0:1], {KA_DBG}
    s_mov_b32 s{sSpin}, 0
    s_mov_b32 s{sS}, 0
    v_mov_b32 v32, 248
    s_waitcnt lgkmcnt(0)
{lp}:
    global_load_dword v33, v32, s[{sP0}:{sP0+1}] sc1
    s_add_u32 s{sSpin}, s{sSpin}, 1
    s_cmp_gt_u32 s{sSpin}, {SPIN}
    s_cbranch_scc1 {to}
    s_waitcnt vmcnt(0)
    v_cmp_gt_u32 vcc, 1, v33
    s_cbranch_vccnz {lp}
    s_branch {sk}
    """)
    timeout_exit(k, 11, to)
    k.label(sk)

def emit_R_prologue(k, l_sgpr):
    L, I, G = 40, 41, 42
    T1, T2, T3 = 43, 44, 45
    sk = k.lab('Lws'); lp = k.lab('Lwsp'); to = k.lab('Lwsto')
    k(f"""
    s_cmp_eq_u32 s{l_sgpr}, 0
    s_cbranch_scc1 {sk}
    """)
    r_wait_init(k)
    k(f"""
    s_mov_b32 s{sSpin}, 0
    s_mov_b32 s{sS}, 0
    v_mov_b32 v2, {F_R(0)}
{lp}:
    global_load_dword v3, v2, s[{sWS}:{sWS+1}] sc1
    s_add_u32 s{sSpin}, s{sSpin}, 1
    s_cmp_gt_u32 s{sSpin}, {SPIN}
    s_cbranch_scc1 {to}
    s_waitcnt vmcnt(0)
    v_cmp_gt_u32 vcc, 1, v3
    s_cbranch_vccnz {lp}
    s_branch {sk}
    """)
    timeout_exit(k, 9, to)
    k.label(sk)
    k(f"""
    v_and_b32 v40, 63, v0
    v_and_b32 v41, 15, v40
    v_lshrrev_b32 v42, 4, v40
    v_lshlrev_b32 v{vL16}, 4, v40
    """)
    for par in (0, 1):
        k(f"""
        v_add_u32 v{T1}, {4*par}, v{G}
        v_lshlrev_b32 v{T1}, 1, v{T1}
        v_xor_b32 v{T1}, v{T1}, v{I}
        v_lshlrev_b32 v{T1}, 4, v{T1}
        v_lshlrev_b32 v{T2}, 13, v{G}
        v_add_u32 v{46+par}, v{T1}, v{T2}
        """)
    k(f"""
    v_lshrrev_b32 v{T1}, 2, v{I}
    v_lshl_add_u32 v{T1}, v{G}, 2, v{T1}
    v_and_b32 v{T2}, 7, v{T1}
    v_lshlrev_b32 v{T2}, 1, v{T2}
    v_and_b32 v{T3}, 3, v{I}
    v_lshrrev_b32 v{T3}, 1, v{T3}
    s_lshl_b32 s{sT}, s{sW}, 2
    v_add_u32 v{T3}, s{sT}, v{T3}
    """)
    for b in (0, 1):
        k(f"""
        v_add_u32 v48, {2*b}, v{T3}
        v_xor_b32 v48, v48, v{T2}
        v_lshlrev_b32 v48, 4, v48
        v_lshl_add_u32 v48, v{T1}, 8, v48
        v_and_b32 v49, 1, v{I}
        v_lshl_add_u32 v{50+b}, v49, 3, v48
        v_add_u32 v{52+b}, 0x10000, v{50+b}
        """)
    def dma_half(ka, half):
        k(f"s_load_dwordx2 s[{sP0}:{sP0+1}], s[0:1], {ka}")
        k(f"""
        s_lshl_b32 s{sT}, s{sH}, 8
        s_lshl_b32 s{sT2}, s{sW}, 19          ; w*64 rows*8192
        s_add_u32 s{sT}, s{sT}, s{sT2}
        s_add_u32 s{sT}, s{sT}, {half*256*8192}
        s_lshl_b32 s{sT3}, s{sW}, 14
        s_add_u32 s{sT3}, s{sT3}, {half*65536}
        s_waitcnt lgkmcnt(0)
        s_add_u32 s{sP0}, s{sP0}, s{sT}
        s_addc_u32 s{sP0+1}, s{sP0+1}, 0
        """)
        for u in range(16):
            k(f"s_mov_b32 m0, s{sT3}")
            k(f"s_add_u32 s{sT3}, s{sT3}, 1024")
            k(f"global_load_lds_dwordx4 v{46 + (u % 2)}, s[{sP0}:{sP0+1}]")
            k(f"s_add_u32 s{sP0}, s{sP0}, 32768\ns_addc_u32 s{sP0+1}, s{sP0+1}, 0")
    def read_half(mu, half):
        for ksl in range(8):
            ks = half*8 + ksl
            for kh in (0, 1):
                for b in (0, 1):
                    base = (50 if half == 0 else 52) + b
                    off = ksl * 8192 + kh * 4096
                    t = 56 + 2 * (2 * kh + b)
                    k(f"ds_read_b64_tr_b16 {v(t,2)}, v{base} offset:{off}")
            k("s_waitcnt lgkmcnt(0)")
            for kh in (0, 1):
                for b in (0, 1):
                    t = 56 + 2 * (2 * kh + b)
                    for j in (0, 1):
                        d = 4 * kh + b + 2 * j
                        dst = wreg(mu, ks, d, 1)
                        if mu < 2: k(f"v_accvgpr_write_b32 {dst}, v{t+j}")
                        else: k(f"v_mov_b32 {dst}, v{t+j}")
    def dma_wo(half):
        k(f"s_load_dwordx2 s[{sP0}:{sP0+1}], s[0:1], {KA_WO}")
        k(f"""
        s_lshl_b32 s{sT}, s{sH}, 17
        s_lshl_b32 s{sT2}, s{sW}, 14
        s_add_u32 s{sT}, s{sT}, s{sT2}
        s_add_u32 s{sT}, s{sT}, {half*65536}
        s_add_u32 s{sT3}, s{sT2}, {half*65536}
        s_waitcnt lgkmcnt(0)
        s_add_u32 s{sP0}, s{sP0}, s{sT}
        s_addc_u32 s{sP0+1}, s{sP0+1}, 0
        """)
        for u in range(16):
            k(f"s_mov_b32 m0, s{sT3}")
            k(f"s_add_u32 s{sT3}, s{sT3}, 1024")
            k(f"global_load_lds_dwordx4 v{64 + (u % 8)}, s[{sP0}:{sP0+1}]")
            k(f"s_add_u32 s{sP0}, s{sP0}, 1024\ns_addc_u32 s{sP0+1}, s{sP0+1}, 0")
    for u in range(8):
        k(f"v_xor_b32 v{64+u}, {u << 1}, v{L}\nv_lshlrev_b32 v{64+u}, 4, v{64+u}")
    k(f"""
    v_lshrrev_b32 v72, 2, v{I}
    v_lshl_add_u32 v72, v{G}, 2, v72           ; row_l
    v_and_b32 v73, 7, v72
    v_lshlrev_b32 v73, 1, v73                  ; swz
    v_and_b32 v74, 3, v{I}
    v_lshrrev_b32 v74, 1, v74
    s_lshl_b32 s{sT}, s{sW}, 4
    v_add_u32 v74, s{sT}, v74                  ; c0
    v_lshlrev_b32 v75, 10, v72
    v_and_b32 v76, 1, v{I}
    v_lshl_add_u32 v75, v76, 3, v75
    s_lshl_b32 s{sT}, s{sW}, 13
    v_add_u32 v77, s{sT}, v{vL16}
    """)
    def proc_wo(half):
        for ksl in range(2):
            ks = 2*half + ksl
            for cb in range(4):
                for kh in (0, 1):
                    for b in (0, 1):
                        t = 112 + 2 * (2 * kh + b)
                        k(f"v_add_u32 v78, {4*cb + 2*b}, v74")
                        k(f"v_xor_b32 v78, v78, v73")
                        k(f"v_lshl_add_u32 v78, v78, 4, v75")
                        k(f"v_add_u32 v78, {ks*32768}, v78")
                        k(f"ds_read_b64_tr_b16 {v(t,2)}, v78 offset:{kh*16*1024}")
                k("s_waitcnt lgkmcnt(0)")
                for kh in (0, 1):
                    for b in (0, 1):
                        t = 112 + 2 * (2 * kh + b)
                        for j in (0, 1):
                            d = 4 * kh + b + 2 * j
                            k(f"v_mov_b32 v{80+8*cb+d}, v{t+j}")
            k("s_barrier")
            k(f"v_add_u32 v78, {ks*32768}, v77")
            for cb in range(4):
                for hf in (0, 1):
                    k(f"ds_write_b128 v78, {v(80+8*cb+4*hf,4)} offset:{cb*2048 + hf*1024}")
            k("s_waitcnt lgkmcnt(0)")
    seq = [('w', mu, ka, h) for mu, ka in ((0, KA_WQ), (1, KA_WK), (2, KA_WV)) for h in (0, 1)] + [('o', None, None, 0), ('o', None, None, 1)]
    def issue(e):
        if e[0] == 'w': dma_half(e[2], e[3])
        else: dma_wo(e[3])
    issue(seq[0]); issue(seq[1])
    for n, e in enumerate(seq):
        k("s_waitcnt vmcnt(16)\ns_barrier" if n + 1 < len(seq) else "s_waitcnt vmcnt(0)\ns_barrier")
        if e[0] == 'w':
            read_half(e[1], e[3])
            k("s_barrier")
            if n + 2 < len(seq): issue(seq[n+2])
        else:
            proc_wo(e[3])
    k("s_barrier")
    k(f"""
    v_and_b32 v{T1}, 7, v{I}                  ; i%8
    v_lshrrev_b32 v{T2}, 1, v{G}              ; g/2
    v_and_b32 v{T3}, 1, v{G}                  ; g%2
    s_mul_i32 s{sT}, s{sW}, 2112
    s_add_u32 s{sT}, s{sT}, {MSTG}
    v_add_u32 v{vMW}, s{sT}, v{vL16}
    v_mul_u32_u24 v48, 1056, v{T1}
    v_lshl_add_u32 v48, v{G}, 4, v48
    v_add_u32 v{vMR}, {MSTG}, v48
    v_mul_u32_u24 v48, 288, v{T1}
    v_lshl_add_u32 v48, v{G}, 4, v48
    v_add_u32 v{vOR}, {OX}, v48
    v_mul_u32_u24 v48, 288, v{T1}
    v_lshl_add_u32 v48, v{G}, 3, v48
    s_lshl_b32 s{sT}, s{sW}, 6
    s_add_u32 s{sT}, s{sT}, {OX}
    v_add_u32 v{vOW}, s{sT}, v48
    s_lshl_b32 s{sT}, s{sW}, 5
    v_lshl_add_u32 v48, v{T2}, 4, v{I}
    v_add_u32 v48, s{sT}, v48                 ; f
    v_lshrrev_b32 v49, 2, v{I}
    v_add_u32 v49, v49, v{T3}
    v_and_b32 v49, 3, v49
    v_lshlrev_b32 v49, 3, v49
    v_lshl_add_u32 v49, v48, 5, v49
    v_add_u32 v{vQW}, {QKT}, v49
    v_lshlrev_b32 v49, 3, v{T3}
    v_lshl_add_u32 v{vVMS}, v48, 4, v49
    """)
    for hf, dst in ((0, vQR0), (1, vQR1)):
        k(f"""
        v_lshrrev_b32 v48, 2, v{I}
        v_lshl_add_u32 v48, v{G}, 3, v48
        v_add_u32 v48, {4*hf}, v48
        v_and_b32 v49, 3, v{I}
        v_lshl_add_u32 v49, v{G}, 1, v49
        v_add_u32 v49, {hf}, v49
        v_and_b32 v49, 3, v49
        v_lshlrev_b32 v49, 3, v49
        v_lshl_add_u32 v49, v48, 5, v49
        v_add_u32 v{dst}, {QKT}, v49
        """)
    k(f"""
    v_lshlrev_b32 v48, 9, v{G}
    v_lshl_add_u32 v48, v{I}, 4, v48
    v_add_u32 v{vKR}, {KTL}, v48
    s_lshl_b32 s{sT}, s{sW}, 11
    s_add_u32 s{sT}, s{sT}, {VTL}
    v_add_u32 v{vVR}, s{sT}, v48
    s_lshl_b32 s{sT}, s{sW}, 13
    v_add_u32 v{vWO}, s{sT}, v{vL16}
    v_add_u32 v{vWO2}, 0x10000, v{vWO}
    ; vPAS = w*65536 + h*2048 + (g/2)*512 + (n/8)*256 + (g%2)*128 + (n%8)*16
    v_lshlrev_b32 v48, 9, v{T2}
    v_lshl_add_u32 v48, v{T3}, 7, v48
    v_lshl_add_u32 v48, v{T1}, 4, v48
    v_lshrrev_b32 v49, 3, v{I}
    v_lshl_add_u32 v48, v49, 8, v48
    s_lshl_b32 s{sT}, s{sW}, 16
    s_lshl_b32 s{sT2}, s{sH}, 11
    s_add_u32 s{sT}, s{sT}, s{sT2}
    v_add_u32 v{vPAS}, s{sT}, v48
    ; vPAL = (j/8)*65536 + hg*2048 + (j%8)*256 + (4w + u4)*16
    s_lshr_b32 s{sT}, s{sH}, 3
    s_lshl_b32 s{sT}, s{sT}, 16
    s_and_b32 s{sT2}, s{sH}, 7
    s_lshl_b32 s{sT2}, s{sT2}, 8
    s_add_u32 s{sT}, s{sT}, s{sT2}
    s_lshl_b32 s{sT2}, s{sW}, 6
    s_add_u32 s{sT}, s{sT}, s{sT2}
    v_lshrrev_b32 v48, 2, v{L}                 ; hg
    v_lshlrev_b32 v48, 11, v48
    v_and_b32 v49, 3, v{L}                     ; u4
    v_lshl_add_u32 v48, v49, 4, v48
    v_add_u32 v{vPAL}, s{sT}, v48
    ; vMBS = (4rh + rho)*1024 + 2*(128wc + 64ac + 16jlo + 8nh + 4(w%2)) + 2*(32b + u4)
    s_lshr_b32 s{sT}, s{sW}, 1
    s_lshl_b32 s{sT}, s{sT}, 12                ; rh*4096
    s_lshr_b32 s{sT2}, s{sH}, 3
    s_lshl_b32 s{sT2}, s{sT2}, 8               ; 2*128*wc
    s_add_u32 s{sT}, s{sT}, s{sT2}
    s_lshr_b32 s{sT2}, s{sH}, 2
    s_and_b32 s{sT2}, s{sT2}, 1
    s_lshl_b32 s{sT2}, s{sT2}, 7               ; 2*64*ac
    s_add_u32 s{sT}, s{sT}, s{sT2}
    s_and_b32 s{sT2}, s{sH}, 3
    s_lshl_b32 s{sT2}, s{sT2}, 4               ; 2*8*(j%4) = 2*(16jlo + 8nh)
    s_add_u32 s{sT}, s{sT}, s{sT2}
    s_and_b32 s{sT2}, s{sW}, 1
    s_lshl_b32 s{sT2}, s{sT2}, 3               ; 2*4*(w%2)
    s_add_u32 s{sT}, s{sT}, s{sT2}
    v_lshrrev_b32 v50, 2, v{I}                 ; hq = (l%16)/4
    v_lshlrev_b32 v48, 10, v50
    v_lshl_add_u32 v48, v49, 1, v48            ; hq*1024 + 2*u4
    v_lshl_add_u32 v48, v{G}, 6, v48           ; + 2*32*b  (b = l/16)
    v_add_u32 v{vMBS}, s{sT}, v48
    v_mov_b32 v{vIDX}, 0x44444444
    v_mov_b32 v48, 0xeeeeeeee
    v_cmp_lt_u32 vcc, 7, v{I}
    s_nop 1
    v_cndmask_b32 v{vIDX}, v{vIDX}, v48, vcc
    v_mov_b32 v{vBIAS}, 0
    v_mov_b32 v48, 0xff800000
    v_cmp_gt_u32 vcc, 2, v{G}
    s_nop 1
    v_cndmask_b32 v{vBIAS}, v{vBIAS}, v48, vcc
    """)
    def base(dst, off_fn, extra_code):
        k(f"s_mul_i32 s{sT2}, s{l_sgpr}, {off_fn(1) - off_fn(0)}")
        k(f"s_add_u32 s{sT2}, s{sT2}, {off_fn(0)}")
        k(extra_code)
        k(f"s_add_u32 s{sT2}, s{sT2}, s{sT}")
        k(f"s_add_u32 s{dst}, s{sWS}, s{sT2}\ns_addc_u32 s{dst+1}, s{sWS+1}, 0")
    base(sMBr, MB, f"s_lshl_b32 s{sT}, s{sW}, 11")
    base(sMBw, MB, f"s_mov_b32 s{sT}, 8192")
    k(f"s_mov_b32 s{sMBD}, 8192")
    base(sPA, PA, f"s_mov_b32 s{sT}, 0")
    base(sPA1, PA, f"s_mov_b32 s{sT}, 32768")
    base(sKT, KT, f"s_lshl_b32 s{sT}, s{sH}, 13\ns_lshl_b32 s{sT3}, s{sW}, 11\ns_add_u32 s{sT}, s{sT}, s{sT3}")
    base(sVT, VT, f"s_lshl_b32 s{sT}, s{sH}, 13\ns_lshl_b32 s{sT3}, s{sW}, 11\ns_add_u32 s{sT}, s{sT}, s{sT3}")
    base(sKM, KM, f"s_lshl_b32 s{sT}, s{sH}, 11")
    base(sVM, VM, f"s_lshl_b32 s{sT}, s{sH}, 11")
    base(sFL, F_T3, f"s_lshl_b32 s{sT}, s{sH}, 7")
    base(sFR, F_R, f"s_lshl_b32 s{sT}, s{sH}, 2")
    k(f"""
    s_mov_b32 s{sMO}, 0x00ff00ff
    s_mov_b32 s{sMO+1}, 0x00ff00ff
    s_mov_b32 s{sMMB}, 0x55555555
    s_mov_b32 s{sMMB+1}, 0
    s_mov_b32 s{sMKM}, 0xff00ff00
    s_mov_b32 s{sMKM+1}, 0xff00ff00
    s_mov_b32 s{sMF0}, 0xf0f0f0f0
    s_mov_b32 s{sMF0+1}, 0xf0f0f0f0
    s_mov_b32 s{sC}, 0x3e0293ee
    s_mov_b32 s{sSL}, 0x00003f80
    s_mov_b32 s{sSH}, 0x3f800000
    s_lshl_b32 s{sM0K}, s{sW}, 11
    s_add_u32 s{sM0V}, s{sM0K}, {VTL}
    s_add_u32 s{sM0K}, s{sM0K}, {KTL}
    s_mov_b32 s{sS}, 0
    s_mov_b32 s{sFKv}, 0
    s_mov_b32 s{sFVv}, 0
    """)

NST = 15
STNAMES = []
def emit_R_loop(k, fast, use_flags, stamp=False):
    st = "" if fast else "sc1"
    STN = [0]
    def ST(name):
        if stamp == 2 and name in OPT.get('stamps', name):
            i = STN[0]; STN[0] += 1
            assert i < 15
            STNAMES.append(name)
            k(f"s_memtime s[{54+2*i}:{55+2*i}]")
    def ST_collect():
        if stamp == 2:
            n = STN[0]
            k("s_waitcnt lgkmcnt(0)")
            for i in range(n):
                prev = "s53" if i == 0 else f"s{54+2*(i-1)}"
                k(f"s_sub_u32 s{55+2*i}, s{54+2*i}, {prev}")
            for i in range(n):
                k(f"s_add_u32 s{84+i}, s{84+i}, s{55+2*i}")
            k(f"s_mov_b32 s53, s{54+2*(n-1)}")
    TO = k.lab('Lto'); LOOP = k.lab('Lstep')
    def flag_check():
        lab = k.lab('Lfs'); ok = k.lab('Lfsok')
        k(f"""
        s_mov_b64 exec, 15
        v_cmp_gt_u32 vcc, v{vSP}, v{vFLG}
        s_cbranch_vccz {ok}
        s_mov_b32 s{sSpin}, 0
{lab}:
        global_load_dword v{vFLG}, v{vL16}, s[{sFL}:{sFL+1}] sc1
        s_add_u32 s{sSpin}, s{sSpin}, 1
        {'s_add_u32 s86, s86, 1' if DIAGON[0] else ''}
        s_cmp_gt_u32 s{sSpin}, {SPIN}
        s_cbranch_scc1 {TO}
        s_waitcnt vmcnt(0)
        v_cmp_gt_u32 vcc, v{vSP}, v{vFLG}
        s_cbranch_vccnz {lab}
{ok}:
        s_mov_b64 exec, -1
        """)
    mark(k, 1)
    if use_flags:
        r_wait_init(k)
    if DIAGON[0]: k("s_mov_b32 s86, 0")
    if use_flags:
        k(f"v_mov_b32 v{vSP}, 1\nv_mov_b32 v{vFLG}, 0\ns_mov_b64 exec, 12\nv_mov_b32 v{vSP}, 0\ns_mov_b64 exec, -1")
        flag_check()
        k(f"v_add_u32 v{vSP}, 1, v{vSP}")
    k(f"""
    s_mov_b32 m0, s{sM0K}
    s_nop 0
    global_load_lds_dwordx4 v{vL16}, s[{sKT}:{sKT+1}] sc1
    global_load_lds_dwordx4 v{vL16}, s[{sKT}:{sKT+1}] offset:1024 sc1
    s_add_u32 s{sKT}, s{sKT}, 262144
    s_addc_u32 s{sKT+1}, s{sKT+1}, 0
    s_waitcnt vmcnt(0)
    s_barrier
    """)
    mark(k, 2)
    if DIAGON[0]: k("s_memtime s[96:97]\ns_waitcnt lgkmcnt(0)\ns_mov_b32 s89, s96")

    if stamp:
        k("s_memtime s[100:101]\ns_waitcnt lgkmcnt(0)\ns_mov_b32 s53, s100\ns_mov_b32 s99, s100")
        for i in range(NST): k(f"s_mov_b32 s{84+i}, 0")
        k("s_mov_b32 s82, 0\ns_mov_b32 s83, 0")
    def step(par):
        SEN = vM + 60
        RA = vM + 59
        for r in range(aQ, aQ + 12): k(f"v_mov_b32 v{r}, 0")
        k(f"v_mov_b32 v{SEN}, -1")
        if use_flags:
            flag_check()
            k(f"v_add_u32 v{vSP}, 1, v{vSP}\nv_min_u32 v{vSP}, {NSEG}, v{vSP}")
        k(f"s_mov_b32 m0, s{sM0V}")
        ST('top')
        if OPT['ackB'] != 'n': k(f"s_waitcnt vmcnt({OPT['ackB']})")
        PB = k.lab('LpollB')
        k(f"s_mov_b32 s{sSpin}, 0")
        k.label(PB)
        k(f"""
        global_load_dwordx4 {v(vM,4)}, v{vL16}, s[{sMBr}:{sMBr+1}] sc1
        global_load_dwordx4 {v(vM+4,4)}, v{vL16}, s[{sMBr}:{sMBr+1}] offset:1024 sc1
        s_add_u32 s{sSpin}, s{sSpin}, 1
        {'s_add_u32 s98, s98, 1' if stamp == 2 and False else ''}
        s_cmp_gt_u32 s{sSpin}, {SPIN}
        s_cbranch_scc1 {TO}
        s_waitcnt vmcnt(0)
        ds_write_b128 v{vMW}, {v(vM,4)}
        ds_write_b128 v{vMW}, {v(vM+4,4)} offset:1056
        v_max3_u32 v{vM+8}, v{vM}, v{vM+1}, v{vM+2}
        v_max3_u32 v{vM+9}, v{vM+3}, v{vM+4}, v{vM+5}
        v_max3_u32 v{vM+8}, v{vM+8}, v{vM+6}, v{vM+7}
        v_max_u32 v{vM+8}, v{vM+8}, v{vM+9}
        v_cmp_eq_u32 vcc, -1, v{vM+8}
        s_cbranch_vccnz {PB}
        """)
        ST('pollB')
        mark_val(k, 4, sS, 33)
        if stamp: k(f"s_add_u32 s82, s82, s{sSpin}")
        k(f"global_load_lds_dwordx4 v{vL16}, s[{sVT}:{sVT+1}] sc1")
        k(f"global_load_lds_dwordx4 v{vL16}, s[{sVT}:{sVT+1}] offset:1024 sc1")
        k("s_waitcnt lgkmcnt(0)\ns_barrier")
        ST('bar1')
        def mread(ks): k(f"ds_read_b128 {v(vM+4*ks,4)}, v{vMR} offset:{ks*64}")
        def smf(acc, ks, mu): k(f"v_smfmac_f32_16x16x64_bf16 {v(acc,4)}, {v(vM+4*ks,4)}, {wreg(mu,ks)}, v{vIDX}")
        for ks in range(8): mread(ks)
        k(f"s_mov_b64 exec, s[{sMMB}:{sMMB+1}]\nglobal_store_dword v{vMBS}, v{SEN}, s[{sMBw}:{sMBw+1}] {st}\ns_mov_b64 exec, -1")
        side = []
        skipk = k.lab('Lskipk')
        if use_flags:
            skf = k.lab('Lskf')
            side.append(f"s_cmp_lg_u32 s{sW}, 0\ns_cbranch_scc1 {skf}\nv_mov_b32 v{vFLG}, s{sS}\ns_mov_b64 exec, 1\nglobal_store_dword v{vL16}, v{vFLG}, s[{sFR}:{sFR+1}] sc1\ns_mov_b64 exec, -1\n{skf}:")
        side.append(f"s_add_u32 s{sVT}, s{sVT}, 262144\ns_addc_u32 s{sVT+1}, s{sVT+1}, 0")
        for ks in range(16):
            k(f"s_waitcnt lgkmcnt(7)")
            smf(aQ, ks, 0)
            if ks + 8 < 16: mread(ks + 8)
            else:
                j = ks - 8; t = j // 4; kk = j % 4
                k(f"ds_read_b128 {v(vK + (t*4+kk)*4, 4)}, v{vKR} offset:{kk*2048 + t*256}")
            smf(aK, ks, 1)
            if ks >= 8 and side: k(side.pop(0))
        assert not side, side
        ST('qk')
        smf(aV, 0, 2); smf(aV, 1, 2)
        k(f"""
        v_cvt_pk_bf16_f32 v{aQ}, v{aQ}, v{aQ+1}
        v_cvt_pk_bf16_f32 v{aQ+1}, v{aQ+2}, v{aQ+3}
        v_xor_b32 v{aQ+2}, 16, v{vQW}
        v_cvt_pk_bf16_f32 v{aK}, v{aK}, v{aK+1}
        v_cvt_pk_bf16_f32 v{aK+1}, v{aK+2}, v{aK+3}
        ds_write_b64 v{vQW}, {v(aQ,2)}
        ds_write_b64 v{aQ+2}, {v(aK,2)}
        global_store_dwordx2 v{vVMS}, {v(aK,2)}, s[{sKM}:{sKM+1}] {OPT['kmflag']}
        """)
        for ks in (2, 3, 4, 5): smf(aV, ks, 2)
        k("s_waitcnt lgkmcnt(0)\ns_barrier")
        ST('bar2')
        QK = vM
        for ks in range(4):
            k(f"ds_read_b64_tr_b16 {v(QK+4*ks,2)}, v{vQR0} offset:{ks*1024}")
            k(f"ds_read_b64_tr_b16 {v(QK+4*ks+2,2)}, v{vQR1} offset:{ks*1024}")
        smf(aV, 6, 2)
        k(f"s_mov_b32 m0, s{sM0K}\ns_nop 0\nglobal_load_lds_dwordx4 v{vL16}, s[{sKT}:{sKT+1}] sc1")
        smf(aV, 7, 2)
        k(f"global_load_lds_dwordx4 v{vL16}, s[{sKT}:{sKT+1}] offset:1024 sc1")
        smf(aV, 8, 2)
        k(f"s_add_u32 s{sKT}, s{sKT}, 262144\ns_addc_u32 s{sKT+1}, s{sKT+1}, 0")
        smf(aV, 9, 2)
        def woread(slot_reg, cb, ks):
            for half in (0, 1):
                k(f"ds_read_b128 {v(slot_reg+4*half,4)}, v{vWO if ks < 2 else vWO2} offset:{(ks % 2)*32768 + cb*2048 + half*1024}")
        wo_ops = [(cb, ks) for ks in range(4) for cb in (0, 1)] + [(cb, ks) for ks in range(4) for cb in (2, 3)]
        slots = [vK, vK+16, vK+8, vK+24, vM+40, vM+48, vM+56, vM+32]
        SM = vM + 16; S0 = vM + 20; S1 = vM + 24
        for ks in range(4):
            extra = 4 if ks >= 2 else 0
            k(f"s_waitcnt lgkmcnt({8 - 2*(ks+1) + extra})")
            c = lambda r: ("0" if ks == 0 else v(r, 4))
            q = v(QK + 4*ks, 4)
            k(f"v_mfma_f32_16x16x32_bf16 {v(S0,4)}, {v(vK + ks*4,4)}, {q}, {c(S0)}")
            k(f"v_mfma_f32_16x16x32_bf16 {v(S1,4)}, {v(vK + 16 + ks*4,4)}, {q}, {c(S1)}")
            k(f"v_mfma_f32_16x16x32_bf16 {v(SM,4)}, {q}, {q}, {c(SM)}")
            if ks == 1:
                woread(slots[0], *wo_ops[0]); woread(slots[1], *wo_ops[1])
        ST('scores')
        k("s_waitcnt vmcnt(4)")
        for ft in range(2):
            k(f"ds_read_b128 {v(aQ+4*ft,4)}, v{vVR} offset:{ft*256}")
        smf(aV, 10, 2)
        woread(slots[2], *wo_ops[2])
        smf(aV, 11, 2)
        woread(slots[3], *wo_ops[3])
        if use_flags:
            k(f"s_mov_b64 exec, 15\nglobal_load_dword v{vFLG}, v{vL16}, s[{sFL}:{sFL+1}] sc1\ns_mov_b64 exec, -1")
        MX = vM + 28; TMP = vM + 29; NM = vM + 30; NMM = vM + 31
        k(f"""
        v_max3_f32 v{MX}, v{S0}, v{S0+1}, v{S0+2}
        s_nop 0
        v_max3_f32 v{TMP}, v{SM}, v{SM+1}, v{SM+2}
        v_max3_f32 v{NM}, v{S0+3}, v{S1}, v{S1+1}
        v_max_f32 v{TMP}, v{TMP}, v{SM+3}
        v_max3_f32 v{MX}, v{MX}, v{S1+2}, v{S1+3}
        v_add_f32 v{TMP}, v{TMP}, v{vBIAS}
        v_max3_f32 v{MX}, v{MX}, v{NM}, v{TMP}
        s_nop 0
        v_mov_b32 v{TMP}, v{MX}
        """)
        smf(aV, 12, 2)
        k(f"""
        s_nop 0
        v_permlane32_swap_b32 v{MX}, v{TMP}
        v_max_f32 v{MX}, v{MX}, v{TMP}
        v_mov_b32 v{TMP}, v{MX}
        """)
        smf(aV, 13, 2)
        k(f"""
        s_nop 0
        v_permlane16_swap_b32 v{MX}, v{TMP}
        v_max_f32 v{MX}, v{MX}, v{TMP}
        v_mul_f32 v{NM}, -v{MX}, s{sC}
        """)
        smf(aV, 14, 2)
        k(f"v_add_f32 v{NMM}, v{NM}, v{vBIAS}")
        for r in range(4): k(f"v_fma_f32 v{S0+r}, v{S0+r}, s{sC}, v{NM}")
        smf(aV, 15, 2)
        for r in range(4): k(f"v_exp_f32 v{S0+r}, v{S0+r}")
        for r in range(4): k(f"v_fma_f32 v{S1+r}, v{S1+r}, s{sC}, v{NM}")
        for r in range(4): k(f"v_exp_f32 v{S1+r}, v{S1+r}")
        for r in range(4): k(f"v_fma_f32 v{SM+r}, v{SM+r}, s{sC}, v{NMM}")
        P = vM; Z = vM + 6; O0 = vM + 8; O1 = vM + 12
        ON = vM + 32
        LL = vM + 36
        for r in range(4): k(f"v_exp_f32 v{SM+r}, v{SM+r}")
        k(f"""
        v_mov_b32 v{ON}, 0x3f803f80
        v_mov_b32 v{ON+1}, 0x3f803f80
        v_cvt_pk_bf16_f32 v{P}, v{S0}, v{S0+1}
        v_cvt_pk_bf16_f32 v{P+1}, v{S0+2}, v{S0+3}
        v_cvt_pk_bf16_f32 v{P+2}, v{S1}, v{S1+1}
        v_cvt_pk_bf16_f32 v{P+3}, v{S1+2}, v{S1+3}
        v_mov_b32 v{ON+2}, 0x3f803f80
        v_mov_b32 v{ON+3}, 0x3f803f80
        v_cvt_pk_bf16_f32 v{P+4}, v{SM}, v{SM+1}
        v_cvt_pk_bf16_f32 v{P+5}, v{SM+2}, v{SM+3}
        """)
        k("s_waitcnt lgkmcnt(4)")
        ST('softmax')
        k(f"""
        v_mfma_f32_16x16x32_bf16 {v(LL,4)}, {v(ON,4)}, {v(P,4)}, 0
        v_mfma_f32_16x16x32_bf16 {v(O1,4)}, {v(aQ+4,4)}, {v(P,4)}, 0
        v_mfma_f32_16x16x32_bf16 {v(O0,4)}, {v(aQ,4)}, {v(P,4)}, 0
        v_cvt_pk_bf16_f32 v{aV}, v{aV}, v{aV+1}
        v_cvt_pk_bf16_f32 v{aV+1}, v{aV+2}, v{aV+3}
        v_mfma_f32_16x16x16_bf16 {v(LL,4)}, {v(ON,2)}, {v(P+4,2)}, {v(LL,4)}
        v_mov_b32 v{Z}, 0
        v_mov_b32 v{Z+1}, 0
        v_mfma_f32_16x16x16_bf16 {v(O1,4)}, {v(aV,2)}, {v(P+4,2)}, {v(O1,4)}
        v_permlane32_swap_b32 v{P+4}, v{Z}
        v_permlane32_swap_b32 v{P+5}, v{Z+1}
        """)
        woread(slots[4], *wo_ops[4])
        k(f"v_mfma_f32_16x16x16_bf16 {v(O0,4)}, {v(aV,2)}, {v(Z,2)}, {v(O0,4)}")
        woread(slots[5], *wo_ops[5])
        k(f"v_rcp_f32 v{MX}, v{LL}")
        k(f"global_store_dwordx2 v{vVMS}, {v(aV,2)}, s[{sVM}:{sVM+1}] {OPT['kmflag']}")
        woread(slots[6], *wo_ops[6])
        k("s_nop 1")
        ST('pv')
        for r in range(0, 8, 2): k(f"v_pk_mul_f32 v[{O0+r}:{O0+r+1}], v[{O0+r}:{O0+r+1}], v[{MX}:{MX+1}] op_sel_hi:[1,0]")
        k(f"""
        v_cvt_pk_bf16_f32 v{O0}, v{O0}, v{O0+1}
        v_cvt_pk_bf16_f32 v{O0+1}, v{O0+2}, v{O0+3}
        v_cvt_pk_bf16_f32 v{O1}, v{O1}, v{O1+1}
        v_cvt_pk_bf16_f32 v{O1+1}, v{O1+2}, v{O1+3}
        s_mov_b64 exec, s[{sMO}:{sMO+1}]
        ds_write_b64 v{vOW}, {v(O0,2)}
        ds_write_b64 v{vOW}, {v(O1,2)} offset:32
        s_mov_b64 exec, -1
        """)
        woread(slots[7], *wo_ops[7])
        ACC = vM
        for r in range(8): k(f"v_mov_b32 v{ACC+r}, 0")
        k(f"s_waitcnt lgkmcnt(2)\ns_barrier")
        ST('bar3')
        OO = vM + 16
        for ks in range(4): k(f"ds_read_b128 {v(OO+4*ks,4)}, v{vOR} offset:{ks*64}")
        for r in range(8, 16): k(f"v_mov_b32 v{ACC+r}, 0")
        issued = ['w7', 'w7', 'o0', 'o1', 'o2', 'o3']
        def retire_until(idx):
            n = len(issued) - 1 - idx
            k(f"s_waitcnt lgkmcnt({n})")
            del issued[:idx+1]
        def cvt_store(aa):
            b = ACC + 8*aa
            for q in range(4): k(f"v_cvt_pk_bf16_f32 v{b+q}, v{b+2*q}, v{b+2*q+1}")
            for q in range(4):
                if par: k(f"v_or_b32 v{b+q}, 1, v{b+q}")
                else: k(f"v_and_b32 v{b+q}, -2, v{b+q}")
            k(f"global_store_dwordx4 v{vPAS}, {v(b,4)}, s[{sPA}:{sPA+1}] offset:{aa*1024} {st}")
        for n, (cb, ks) in enumerate(wo_ops):
            need = {f'o{ks}', f'w{n}'}
            idxs = [i for i, nme in enumerate(issued) if nme in need]
            if idxs: retire_until(max(idxs))
            k(f"v_smfmac_f32_16x16x64_bf16 {v(ACC+4*cb,4)}, {v(OO+4*ks,4)}, {v(slots[n%8],8)}, v{vIDX}")
            if n + 8 < 16:
                if len(issued) + 2 > 15: retire_until(len(issued) + 2 - 15 - 1)
                woread(slots[n % 8], *wo_ops[n + 8]); issued += [f'w{n+8}', f'w{n+8}']
            if n == 11: cvt_store(0)
        ST('wo')
        SEL = vK
        k(f"""
        s_add_u32 s{sKM}, s{sKM}, 65536
        s_addc_u32 s{sKM+1}, s{sKM+1}, 0
        s_add_u32 s{sVM}, s{sVM}, 65536
        s_addc_u32 s{sVM+1}, s{sVM+1}, 0
        s_ashr_i32 s{sT}, s{sMBD}, 31
        s_nop 1
        """)
        cvt_store(1)
        k(f"""
        s_add_u32 s{sMBr}, s{sMBr}, s{sMBD}
        s_addc_u32 s{sMBr+1}, s{sMBr+1}, s{sT}
        """)
        for d in range(4): k(f"v_mov_b32 v{SEL+d}, 0")
        for d in range(4):
            lo = (0x0001000100010001 << (2*d)); hi = (0x0001000100010001 << (2*d+1))
            k(f"s_mov_b32 s{sP0}, {hex(lo & 0xffffffff)}\ns_mov_b32 s{sP0+1}, {hex(lo & 0xffffffff)}\ns_mov_b64 exec, s[{sP0}:{sP0+1}]\nv_mov_b32 v{SEL+d}, 0x00003f80")
            k(f"s_lshl_b64 exec, exec, 1\nv_mov_b32 v{SEL+d}, 0x3f800000")
        k("s_mov_b64 exec, -1")
        ST('pastore')
        if OPT['ackA'] != 'n': k(f"s_waitcnt vmcnt({OPT['ackA']})")
        ST('ackA')
        PAo = k.lab('LpollA'); X = OO
        k(f"s_mov_b32 s{sSpin}, 0")
        k.label(PAo)
        T0 = vM + 36; T1r = vM + 37
        ck3 = 'v_bitop3_b32' if par else 'v_or3_b32'; bo = ' bitop3:0x80' if par else ''; ck2 = 'v_and_b32' if par else 'v_or_b32'
        k(f"""
        global_load_dwordx4 {v(X,4)}, v{vPAL}, s[{sPA}:{sPA+1}] sc1
        global_load_dwordx4 {v(X+4,4)}, v{vPAL}, s[{sPA1}:{sPA1+1}] sc1
        s_add_u32 s{sSpin}, s{sSpin}, 1
        s_cmp_gt_u32 s{sSpin}, {SPIN}
        s_cbranch_scc1 {TO}
        s_waitcnt vmcnt(0)
        {ck3} v{T0}, v{X}, v{X+1}, v{X+2}{bo}
        {ck3} v{T1r}, v{X+3}, v{X+4}, v{X+5}{bo}
        {ck3} v{T0}, v{T0}, v{X+6}, v{X+7}{bo}
        {ck2} v{T0}, v{T0}, v{T1r}
        v_and_b32 v{T0}, 1, v{T0}
        v_cmp_ne_u32 vcc, {par}, v{T0}
        s_cbranch_vccnz {PAo}
        """)
        ST('pollA')
        if stamp: k(f"s_add_u32 s83, s83, s{sSpin}")
        A = X + 8
        k(f"""
        v_mfma_f32_16x16x32_bf16 {v(A,4)}, {v(SEL,4)}, {v(X,4)}, 0
        v_mfma_f32_16x16x32_bf16 {v(A,4)}, {v(SEL,4)}, {v(X+4,4)}, {v(A,4)}
        s_sub_u32 s{sMBD}, 0, s{sMBD}
        s_nop 6
        """)
        for rot in (8, 4):
            for r in range(4): k(f"v_add_f32_dpp v{A+r}, v{A+r}, v{A+r} row_ror:{rot} row_mask:0xf bank_mask:0xf")
        k(f"""
        v_cndmask_b32 v{A}, v{A}, v{A+1}, s[{sMF0}:{sMF0+1}]
        v_cndmask_b32 v{A+2}, v{A+2}, v{A+3}, s[{sMF0}:{sMF0+1}]
        v_cndmask_b32 v{A}, v{A}, v{A+2}, s[{sMKM}:{sMKM+1}]
        s_nop 1
        v_mov_b32_dpp v{A+1}, v{A} quad_perm:[1,0,3,2] row_mask:0xf bank_mask:0xf
        v_cvt_pk_bf16_f32 v{A}, v{A}, v{A+1}
        v_min_u32 v{A}, 0xfffffffe, v{A}
        s_mov_b64 exec, s[{sMMB}:{sMMB+1}]
        global_store_dword v{vMBS}, v{A}, s[{sMBw}:{sMBw+1}] {st}
        s_mov_b64 exec, -1
        """)
        ST('reduce')
        ST_collect()
        k(f"""
        s_ashr_i32 s{sT}, s{sMBD}, 31
        s_add_u32 s{sMBw}, s{sMBw}, s{sMBD}
        s_addc_u32 s{sMBw+1}, s{sMBw+1}, s{sT}
        """)

    k.label(LOOP)
    STN[0] = 0
    step(0)
    k(f"s_add_u32 s{sS}, s{sS}, 1")
    STN[0] = 0
    n0 = len(STNAMES)
    step(1)
    del STNAMES[n0:]
    k(f"s_add_u32 s{sS}, s{sS}, 1")
    mark(k, 3, 2)
    k(f"""
    s_cmp_lt_u32 s{sS}, {NSEG}
    s_cbranch_scc1 {LOOP}
    """)
    mark(k, 5)
    if DIAGON[0]: k("s_memtime s[96:97]\ns_waitcnt lgkmcnt(0)\ns_sub_u32 s89, s96, s89")

    diag_dump(k, 48, 49)
    if stamp:
        k(f"""
        s_memtime s[100:101]
        s_waitcnt lgkmcnt(0)
        s_sub_u32 s100, s100, s99
        s_load_dwordx2 s[{sP0}:{sP0+1}], s[0:1], {KA_DBG}
        s_waitcnt lgkmcnt(0)
        v_mov_b32 v48, 0
        v_mov_b32 v49, s100
        s_mov_b64 exec, 1
        global_store_dword v48, v49, s[{sP0}:{sP0+1}] offset:36 sc1
        s_lshl_b32 s100, s{sH}, 2
        s_add_u32 s100, s100, s{sW}
        s_lshl_b32 s100, s100, 3
        v_mov_b32 v48, s100
        v_mov_b32 v50, s82
        v_mov_b32 v51, s83
        global_store_dwordx2 v48, v[50:51], s[{sWS}:{sWS+1}] offset:{0x800} sc1
        v_mov_b32 v48, 0
        """)
        if stamp == 2:
            lb = k.lab('Lnost')
            k(f"s_or_b32 s81, s{sH}, s{sW}\ns_or_b32 s81, s81, s6\ns_cmp_lg_u32 s81, 0\ns_cbranch_scc1 {lb}")
            for i in range(NST):
                k(f"v_mov_b32 v49, s{84+i}\nglobal_store_dword v48, v49, s[{sP0}:{sP0+1}] offset:{40+4*i} sc1")
            k.label(lb)
        k("s_mov_b64 exec, -1")
    if use_flags:
        k(f"""
        s_waitcnt vmcnt(0)
        s_barrier
        v_mov_b32 v95, s{sS}
        s_mov_b64 exec, 1
        global_store_dword v{vL16}, v95, s[{sFR}:{sFR+1}] sc1
        """)
    k("s_waitcnt vmcnt(0)\ns_endpgm")
    timeout_exit(k, 0 if fast else 1, TO)
```

```python
from fw import *
from layout import *
SPIN = 1 << 18
SLEEP = [0]
sIDX=4; sW=5; sL=6; sS=7; sWS=8; sIN=10; sFL=12; sNEED=14; sISS=15; sSPIN=16; sT=17; sT2=18; sT3=19
sOUT=20; sAX1=22; sAX2=24; sOWN=26; sM0=28; sP=30; sTO=32
def base(k, dst, off_fn, extra=None):
    k(f"s_mul_i32 s{sT2}, s{sL}, {off_fn(1) - off_fn(0)}")
    k(f"s_add_u32 s{sT2}, s{sT2}, {off_fn(0)}")
    if extra:
        k(extra)
        k(f"s_add_u32 s{sT2}, s{sT2}, s{sT}")
    k(f"s_add_u32 s{dst}, s{sWS}, s{sT2}\ns_addc_u32 s{dst+1}, s{sWS+1}, 0")
def adv(k, pair, n):
    k(f"s_add_u32 s{pair}, s{pair}, {n}\ns_addc_u32 s{pair+1}, s{pair+1}, 0")
def timeout_block(k, lab, code):
    k.label(lab)
    k(f"""
    s_load_dwordx2 s[{sP}:{sP+1}], s[0:1], {KA_DBG}
    s_waitcnt lgkmcnt(0)
    s_mov_b64 exec, 1
    v_mov_b32 v2, {136 + 4*code}
    v_mov_b32 v3, s{sS}
    v_add_u32 v3, 0x10000, v3
    global_store_dword v2, v3, s[{sP}:{sP+1}] sc1
    s_waitcnt vmcnt(0)
    s_endpgm
    """)
def poll_block(k, vflg, vtmp, tolab, flagbase=sFL, need=sNEED):
    lab = k.lab('Lp')
    k(f"s_mov_b32 s{sSPIN}, 0")
    k.label(lab)
    k(f"""
    global_load_dword v{vtmp}, v{vflg}, s[{flagbase}:{flagbase+1}] sc1
    s_add_u32 s{sSPIN}, s{sSPIN}, 1
    s_cmp_gt_u32 s{sSPIN}, {SPIN}
    s_cbranch_scc1 {tolab}
    s_waitcnt vmcnt(0)
    v_cmp_gt_u32 vcc, s{need}, v{vtmp}
    """)
    if SLEEP[0]:
        ok = k.lab('Lpok')
        k(f"s_cbranch_vccz {ok}\ns_sleep {SLEEP[0]}\ns_branch {lab}")
        k.label(ok)
    else:
        k(f"s_cbranch_vccnz {lab}")
def publish(k, vzero_lane0, vtmp, val_sgpr, wave0_only=False):
    sk = k.lab('Lpub')
    if wave0_only: k(f"s_cmp_lg_u32 s{sW}, 0\ns_cbranch_scc1 {sk}")
    k(f"""
    v_mov_b32 v{vtmp}, s{val_sgpr}
    s_mov_b64 exec, 1
    global_store_dword v{vzero_lane0}, v{vtmp}, s[{sOWN}:{sOWN+1}] sc1
    s_mov_b64 exec, -1
    """)
    mark_val(k, 4, val_sgpr, 33)
    k.label(sk)

sPEND = 35; sGO = 37
SKST = [None]
SKNAMES = []
class Stamper:
    def __init__(self, k, on):
        self.k = k; self.on = on; self.n = 0
    def __call__(self, name):
        if not self.on: return
        i = self.n; self.n += 1; SKNAMES.append(name)
        self.k(f"s_memtime s[{54+2*i}:{55+2*i}]")
    def init(self):
        if not self.on: return
        self.k("s_memtime s[100:101]\ns_waitcnt lgkmcnt(0)\ns_mov_b32 s53, s100")
        for i in range(12): self.k(f"s_mov_b32 s{84+i}, 0")
    def collect(self):
        if not self.on: return
        k = self.k; n = self.n
        k("s_waitcnt lgkmcnt(0)")
        for i in range(n):
            prev = "s53" if i == 0 else f"s{54+2*(i-1)}"
            k(f"s_sub_u32 s{55+2*i}, s{54+2*i}, {prev}")
        for i in range(n): k(f"s_add_u32 s{84+i}, s{84+i}, s{55+2*i}")
        k(f"s_mov_b32 s53, s{54+2*(n-1)}")
    def dump(self):
        if not self.on: return
        k = self.k; sk = k.lab('Lsd')
        k(f"s_load_dwordx2 s[{sP}:{sP+1}], s[0:1], {KA_DBG}\ns_waitcnt lgkmcnt(0)\ns_or_b32 s52, s{sIDX}, s{sW}\ns_or_b32 s52, s52, s{sL}\ns_cmp_lg_u32 s52, 0\ns_cbranch_scc1 {sk}\ns_mov_b64 exec, 1\nv_mov_b32 v2, 0")
        for i in range(12): k(f"v_mov_b32 v3, s{84+i}\nglobal_store_dword v2, v3, s[{sP}:{sP+1}] offset:{20+4*i if i < 11 else 68} sc1")
        k("s_mov_b64 exec, -1")
        k.label(sk)
def skeleton(k, name, code, nitems, set_need, issue_dma_, item_start, compute, epilogue, vflg, vtmp, vL16, toggle, nst, chunks):
    TO = k.lab('Lto' + name); LOOP = k.lab('Lit' + name)
    def issue_dma(k):
        mark_val(k, 6, sNEED, 33)
        issue_dma_(k)
    vpub = vtmp + 4 if False else vtmp
    mark(k, 1)
    wait_init(k, vtmp + 120, vtmp)
    k(f"s_mov_b32 s{sS}, 0\ns_mov_b32 s{sT3}, 0\ns_mov_b32 s{sPEND}, 0\ns_mov_b32 s{sGO}, 0")
    set_need(k)
    poll_block(k, vflg, vtmp, TO)
    mark(k, 2)
    issue_dma(k)
    k("s_waitcnt vmcnt(0)\ns_barrier")
    ST = Stamper(k, SKST[0] == name)
    ST.init()
    k.label(LOOP)
    toggle(k)
    k(f"s_add_u32 s{sT3}, s{sS}, 1")
    set_need(k)
    k(f"s_cmp_ge_u32 s{sT3}, {nitems}\ns_cselect_b32 s{sISS}, 1, 0")
    aux = item_start()
    pre = [f"global_load_dword v{vtmp}, v{vflg}, s[{sFL}:{sFL+1}] sc1"] + aux
    naux = sum(c.count('global_load') for c in aux)
    def hook(n):
        if n >= 100:
            j = n - 100
            if j < len(pre): k(pre[j])
            return
        if n >= 10:
            j = n - 10
            if j < len(chunks):
                sk = k.lab('Lch')
                k(f"s_cmp_eq_u32 s{sGO}, 0\ns_cbranch_scc1 {sk}")
                if j == 0: mark_val(k, 6, sNEED, 33)
                k(chunks[j])
                if j == len(chunks) - 1: k(f"s_mov_b32 s{sGO}, 0")
                k.label(sk)
            return
        sk = k.lab('Lhk')
        if n == 0:
            np_ = k.lab('Lnp')
            ST('part1')
            k(f"s_waitcnt vmcnt({naux})")
            ST('h0wait')
            k(f"v_cmp_gt_u32 vcc, s{sNEED}, v{vtmp}")
            k(f"s_cmp_eq_u32 s{sPEND}, 0\ns_cbranch_scc1 {np_}")
            publish(k, vL16, vtmp, sS)
            k(f"s_mov_b32 s{sPEND}, 0")
            k.label(np_)
            k(f"s_cmp_lg_u32 s{sISS}, 0\ns_cbranch_scc1 {sk}")
            nr = k.lab('Lnr')
            k(f"s_cbranch_vccnz {nr}")
            k(f"s_mov_b32 s{sISS}, 1\ns_mov_b32 s{sGO}, 1\ns_branch {sk}")
            k.label(nr)
            k(f"global_load_dword v{vtmp}, v{vflg}, s[{sFL}:{sFL+1}] sc1")
            k.label(sk)
        else:
            ST('part2')
            k(f"s_cmp_lg_u32 s{sISS}, 0\ns_cbranch_scc1 {sk}")
            k(f"s_waitcnt vmcnt(0)\nv_cmp_gt_u32 vcc, s{sNEED}, v{vtmp}")
            k(f"s_cbranch_vccnz {sk}")
            issue_dma(k)
            k(f"s_mov_b32 s{sISS}, 1")
            k.label(sk)
    compute(k, hook)
    ST('part3')
    if naux:
        l1 = k.lab('Law'); l2 = k.lab('Law2')
        k(f"s_cmp_ge_u32 s{sT3}, {nitems}\ns_cbranch_scc1 {l1}\ns_waitcnt vmcnt({len(chunks)})\ns_branch {l2}\n{l1}:\ns_waitcnt vmcnt(0)\n{l2}:")
    epilogue(k)
    ST('epi')
    k(f"s_add_u32 s{sS}, s{sS}, 1")
    late = k.lab('Llate'); join = k.lab('Ljoin')
    k(f"""
    s_cmp_ge_u32 s{sS}, {nitems}
    s_cbranch_scc1 {late}
    s_cmp_eq_u32 s{sISS}, 0
    s_cbranch_scc1 {late}
    s_waitcnt vmcnt({nst})
    s_mov_b32 s{sPEND}, 1
    s_branch {join}
    """)
    k.label(late)
    k("s_waitcnt vmcnt(0)")
    publish(k, vL16, vtmp, sS)
    k(f"s_cmp_ge_u32 s{sS}, {nitems}\ns_cbranch_scc1 {join}")
    poll_block(k, vflg, vtmp, TO)
    issue_dma(k)
    k("s_waitcnt vmcnt(0)")
    k.label(join)
    ST('endwait')
    mark(k, 3, 1)
    k("s_barrier")
    ST('barrier')
    ST.collect()
    k(f"""
    s_cmp_lt_u32 s{sS}, {nitems}
    s_cbranch_scc1 {LOOP}
    """)
    ST.dump()
    mark(k, 5)
    diag_dump(k, 2, 3)
    k("s_waitcnt vmcnt(0)\ns_endpgm")
    timeout_block(k, TO, code)

NINIT = 128
def wait_init(k, vaddr, vtmp):
    to = k.lab('Lwito'); sk = k.lab('Lwisk')
    k(f"""
    s_load_dwordx2 s[{sP}:{sP+1}], s[0:1], {KA_DBG}
    s_mov_b32 s{sNEED}, 1
    s_mov_b32 s{sS}, 0
    v_mov_b32 v{vaddr}, 248
    s_waitcnt lgkmcnt(0)
    """)
    poll_block(k, vaddr, vtmp, to, flagbase=sP)
    k(f"s_branch {sk}")
    timeout_block(k, to, 10)
    k.label(sk)

GATE = dict(T3=None, T5=None, TW=None, TA=None)
def wait_start(k, vaddr, vtmp, flag_off, need=1, gate0=None):
    sk = k.lab('Lws'); to = k.lab('Lwsto'); go = k.lab('Lwsg')
    k(f"s_cmp_lg_u32 s{sL}, 0\ns_cbranch_scc1 {go}\ns_branch {sk}")
    k.label(go)
    wait_init(k, vaddr, vtmp)
    k(f"""
    v_mov_b32 v{vaddr}, {flag_off}
    s_mov_b32 s{sFL}, s{sWS}
    s_mov_b32 s{sFL+1}, s{sWS+1}
    s_mov_b32 s{sNEED}, {need}
    s_mov_b32 s{sS}, 0
    """)
    poll_block(k, vaddr, vtmp, to)
    k(f"s_branch {sk}")
    timeout_block(k, to, 8)
    k.label(sk)
```

```python
S=2048; D=512; NSEG=64; H=32
FLAGS = 0x0
def MB(l):  return 0x10000 + l*0x90000
def PA(l):  return 0x200000 + l*0x100000
def XR(l):  return 0x400000 + l*0x200000
def XNA(l): return 0x800000 + l*0x200000
def OA(l):  return 0xC00000 + l*0x200000
def X1(l):  return 0x1000000 + l*0x200000
def ST1(l): return 0x1400000 + l*0x40000
def KM(l):  return 0x1800000 + l*0x400000
def VM(l):  return 0x2000000 + l*0x400000
def QT(l):  return 0x3000000 + l*0x1000000
def KT(l):  return 0x5000000 + l*0x1000000
def VT(l):  return 0x7000000 + l*0x1000000
def OT(l):  return 0x9000000 + l*0x1000000
def PT(l):  return 0xB000000 + l*0x1000000
WS_END = 0xD000000
KA_X=0; KA_WQKV=8; KA_WOA=16; KA_BX=24; KA_MEM0=32; KA_WQ=40; KA_WK=48; KA_WV=56; KA_WO=64; KA_SEG=72; KA_OUT=80; KA_DBG=88; KA_WS=96
def F_R(l):   return FLAGS + 0x0000 + l*0x800
def F_T3(l):  return FLAGS + 0x1000 + l*0x1000
def F_T5(l):  return FLAGS + 0x3000 + l*0x400
def F_T4(l):  return FLAGS + 0x3800 + l*0x400
def F_TA(l):  return FLAGS + 0x4000 + l*0x400
def F_TW(l):  return FLAGS + 0x4800 + l*0x100
def F_T6(l):  return FLAGS + 0x4C00 + l*0x100
FLAG_BYTES = 0x8000
DIAG = 0x8000
```

```python
from fw import *
from layout import *
WOI=0; MSTG=131072; QKT=139520; KTL=143616; VTL=151808; OX=MSTG
SPIN = 1 << 18
SLOT = 0x40000
sH=4; sW=5; sS=7
sWS=8
sMBr=10; sMBw=12; sPA=14; sPA1=16
sKT=18; sVT=20; sKM=22; sVM=24
sFL=26
sMO=28; sMMB=30; sMKM=32; sMF0=34
sC=36; sT=37; sT2=38; sT3=39; sSpin=40
sP0=42
sFKv=44; sFVv=45
sM0K=46; sM0V=47
sFR=48
sSL=50; sSH=51
sMBD=52
sMF3=34
vL16=0; vMW=1; vMR=2; vQW=3; vFLG=4; vQR0=5; vQR1=6; vKR=7; vVR=8; vOW=9; vOR=10; vWO=11
vPAS=12; vPAL=13; vMBS=14; vWO2=15; vVMS=16; vSP=17; vIDX=18; vBIAS=19
aQ=20; aK=24; aV=28
vM=32; vK=96
WV=128
OPT = dict(kmflag='sc1', ackA='0', ackB='0', exp='')

def wreg(mu, ks, d0=0, n=8):
    if mu == 0: return a(8*ks + d0, n)
    if mu == 1: return a(128 + 8*ks + d0, n)
    return v(WV + 8*ks + d0, n)

def timeout_exit(k, code, lab):
    k.label(lab)
    k(f"""
    s_load_dwordx2 s[{sP0}:{sP0+1}], s[0:1], {KA_DBG}
    s_waitcnt lgkmcnt(0)
    s_mov_b64 exec, 1
    v_mov_b32 v32, {136 + 4*code}
    v_mov_b32 v33, s{sS}
    v_add_u32 v33, 0x10000, v33
    global_store_dword v32, v33, s[{sP0}:{sP0+1}] sc1
    s_waitcnt vmcnt(0)
    s_endpgm
    """)

def r_wait_init(k):
    lp = k.lab('Lwi'); to = k.lab('Lwito'); sk = k.lab('Lwisk')
    k(f"""
    s_load_dwordx2 s[{sP0}:{sP0+1}], s[0:1], {KA_DBG}
    s_mov_b32 s{sSpin}, 0
    s_mov_b32 s{sS}, 0
    v_mov_b32 v32, 248
    s_waitcnt lgkmcnt(0)
{lp}:
    global_load_dword v33, v32, s[{sP0}:{sP0+1}] sc1
    s_add_u32 s{sSpin}, s{sSpin}, 1
    s_cmp_gt_u32 s{sSpin}, {SPIN}
    s_cbranch_scc1 {to}
    s_waitcnt vmcnt(0)
    v_cmp_gt_u32 vcc, 1, v33
    s_cbranch_vccnz {lp}
    s_branch {sk}
    """)
    timeout_exit(k, 11, to)
    k.label(sk)

def emit_R_prologue(k, l_sgpr):
    L, I, G = 40, 41, 42
    T1, T2, T3 = 43, 44, 45
    sk = k.lab('Lws'); lp = k.lab('Lwsp'); to = k.lab('Lwsto')
    k(f"""
    s_cmp_eq_u32 s{l_sgpr}, 0
    s_cbranch_scc1 {sk}
    """)
    r_wait_init(k)
    k(f"""
    s_mov_b32 s{sSpin}, 0
    s_mov_b32 s{sS}, 0
    v_mov_b32 v2, {F_R(0)}
{lp}:
    global_load_dword v3, v2, s[{sWS}:{sWS+1}] sc1
    s_add_u32 s{sSpin}, s{sSpin}, 1
    s_cmp_gt_u32 s{sSpin}, {SPIN}
    s_cbranch_scc1 {to}
    s_waitcnt vmcnt(0)
    v_cmp_gt_u32 vcc, 1, v3
    s_cbranch_vccnz {lp}
    s_branch {sk}
    """)
    timeout_exit(k, 9, to)
    k.label(sk)
    k(f"""
    v_and_b32 v40, 63, v0
    v_and_b32 v41, 15, v40
    v_lshrrev_b32 v42, 4, v40
    v_lshlrev_b32 v{vL16}, 4, v40
    """)
    for par in (0, 1):
        k(f"""
        v_add_u32 v{T1}, {4*par}, v{G}
        v_lshlrev_b32 v{T1}, 1, v{T1}
        v_xor_b32 v{T1}, v{T1}, v{I}
        v_lshlrev_b32 v{T1}, 4, v{T1}
        v_lshlrev_b32 v{T2}, 13, v{G}
        v_add_u32 v{46+par}, v{T1}, v{T2}
        """)
    k(f"""
    v_lshrrev_b32 v{T1}, 2, v{I}
    v_lshl_add_u32 v{T1}, v{G}, 2, v{T1}
    v_and_b32 v{T2}, 7, v{T1}
    v_lshlrev_b32 v{T2}, 1, v{T2}
    v_and_b32 v{T3}, 3, v{I}
    v_lshrrev_b32 v{T3}, 1, v{T3}
    s_lshl_b32 s{sT}, s{sW}, 2
    v_add_u32 v{T3}, s{sT}, v{T3}
    """)
    for b in (0, 1):
        k(f"""
        v_add_u32 v48, {2*b}, v{T3}
        v_xor_b32 v48, v48, v{T2}
        v_lshlrev_b32 v48, 4, v48
        v_lshl_add_u32 v48, v{T1}, 8, v48
        v_and_b32 v49, 1, v{I}
        v_lshl_add_u32 v{50+b}, v49, 3, v48
        v_add_u32 v{52+b}, 0x10000, v{50+b}
        """)
    def dma_half(ka, half):
        k(f"s_load_dwordx2 s[{sP0}:{sP0+1}], s[0:1], {ka}")
        k(f"""
        s_lshl_b32 s{sT}, s{sH}, 8
        s_lshl_b32 s{sT2}, s{sW}, 19          ; w*64 rows*8192
        s_add_u32 s{sT}, s{sT}, s{sT2}
        s_add_u32 s{sT}, s{sT}, {half*256*8192}
        s_lshl_b32 s{sT3}, s{sW}, 14
        s_add_u32 s{sT3}, s{sT3}, {half*65536}
        s_waitcnt lgkmcnt(0)
        s_add_u32 s{sP0}, s{sP0}, s{sT}
        s_addc_u32 s{sP0+1}, s{sP0+1}, 0
        """)
        for u in range(16):
            k(f"s_mov_b32 m0, s{sT3}")
            k(f"s_add_u32 s{sT3}, s{sT3}, 1024")
            k(f"global_load_lds_dwordx4 v{46 + (u % 2)}, s[{sP0}:{sP0+1}]")
            k(f"s_add_u32 s{sP0}, s{sP0}, 32768\ns_addc_u32 s{sP0+1}, s{sP0+1}, 0")
    def read_half(mu, half):
        for ksl in range(8):
            ks = half*8 + ksl
            for kh in (0, 1):
                for b in (0, 1):
                    base = (50 if half == 0 else 52) + b
                    off = ksl * 8192 + kh * 4096
                    t = 56 + 2 * (2 * kh + b)
                    k(f"ds_read_b64_tr_b16 {v(t,2)}, v{base} offset:{off}")
            k("s_waitcnt lgkmcnt(0)")
            for kh in (0, 1):
                for b in (0, 1):
                    t = 56 + 2 * (2 * kh + b)
                    for j in (0, 1):
                        d = 4 * kh + b + 2 * j
                        dst = wreg(mu, ks, d, 1)
                        if mu < 2: k(f"v_accvgpr_write_b32 {dst}, v{t+j}")
                        else: k(f"v_mov_b32 {dst}, v{t+j}")
    def dma_wo(half):
        k(f"s_load_dwordx2 s[{sP0}:{sP0+1}], s[0:1], {KA_WO}")
        k(f"""
        s_lshl_b32 s{sT}, s{sH}, 17
        s_lshl_b32 s{sT2}, s{sW}, 14
        s_add_u32 s{sT}, s{sT}, s{sT2}
        s_add_u32 s{sT}, s{sT}, {half*65536}
        s_add_u32 s{sT3}, s{sT2}, {half*65536}
        s_waitcnt lgkmcnt(0)
        s_add_u32 s{sP0}, s{sP0}, s{sT}
        s_addc_u32 s{sP0+1}, s{sP0+1}, 0
        """)
        for u in range(16):
            k(f"s_mov_b32 m0, s{sT3}")
            k(f"s_add_u32 s{sT3}, s{sT3}, 1024")
            k(f"global_load_lds_dwordx4 v{64 + (u % 8)}, s[{sP0}:{sP0+1}]")
            k(f"s_add_u32 s{sP0}, s{sP0}, 1024\ns_addc_u32 s{sP0+1}, s{sP0+1}, 0")
    for u in range(8):
        k(f"v_xor_b32 v{64+u}, {u << 1}, v{L}\nv_lshlrev_b32 v{64+u}, 4, v{64+u}")
    k(f"""
    v_lshrrev_b32 v72, 2, v{I}
    v_lshl_add_u32 v72, v{G}, 2, v72           ; row_l
    v_and_b32 v73, 7, v72
    v_lshlrev_b32 v73, 1, v73                  ; swz
    v_and_b32 v74, 3, v{I}
    v_lshrrev_b32 v74, 1, v74
    s_lshl_b32 s{sT}, s{sW}, 4
    v_add_u32 v74, s{sT}, v74                  ; c0
    v_lshlrev_b32 v75, 10, v72
    v_and_b32 v76, 1, v{I}
    v_lshl_add_u32 v75, v76, 3, v75
    s_lshl_b32 s{sT}, s{sW}, 13
    v_add_u32 v77, s{sT}, v{vL16}
    """)
    def proc_wo(half):
        for ksl in range(2):
            ks = 2*half + ksl
            for cb in range(4):
                for kh in (0, 1):
                    for b in (0, 1):
                        t = 112 + 2 * (2 * kh + b)
                        k(f"v_add_u32 v78, {4*cb + 2*b}, v74")
                        k(f"v_xor_b32 v78, v78, v73")
                        k(f"v_lshl_add_u32 v78, v78, 4, v75")
                        k(f"v_add_u32 v78, {ks*32768}, v78")
                        k(f"ds_read_b64_tr_b16 {v(t,2)}, v78 offset:{kh*16*1024}")
                k("s_waitcnt lgkmcnt(0)")
                for kh in (0, 1):
                    for b in (0, 1):
                        t = 112 + 2 * (2 * kh + b)
                        for j in (0, 1):
                            d = 4 * kh + b + 2 * j
                            k(f"v_mov_b32 v{80+8*cb+d}, v{t+j}")
            k("s_barrier")
            k(f"v_add_u32 v78, {ks*32768}, v77")
            for cb in range(4):
                for hf in (0, 1):
                    k(f"ds_write_b128 v78, {v(80+8*cb+4*hf,4)} offset:{cb*2048 + hf*1024}")
            k("s_waitcnt lgkmcnt(0)")
    seq = [('w', mu, ka, h) for mu, ka in ((0, KA_WQ), (1, KA_WK), (2, KA_WV)) for h in (0, 1)] + [('o', None, None, 0), ('o', None, None, 1)]
    def issue(e):
        if e[0] == 'w': dma_half(e[2], e[3])
        else: dma_wo(e[3])
    issue(seq[0]); issue(seq[1])
    for n, e in enumerate(seq):
        k("s_waitcnt vmcnt(16)\ns_barrier" if n + 1 < len(seq) else "s_waitcnt vmcnt(0)\ns_barrier")
        if e[0] == 'w':
            read_half(e[1], e[3])
            k("s_barrier")
            if n + 2 < len(seq): issue(seq[n+2])
        else:
            proc_wo(e[3])
    k("s_barrier")
    k(f"""
    v_and_b32 v{T1}, 7, v{I}                  ; i%8
    v_lshrrev_b32 v{T2}, 1, v{G}              ; g/2
    v_and_b32 v{T3}, 1, v{G}                  ; g%2
    s_mul_i32 s{sT}, s{sW}, 2112
    s_add_u32 s{sT}, s{sT}, {MSTG}
    v_add_u32 v{vMW}, s{sT}, v{vL16}
    v_mul_u32_u24 v48, 1056, v{T1}
    v_lshl_add_u32 v48, v{G}, 4, v48
    v_add_u32 v{vMR}, {MSTG}, v48
    v_mul_u32_u24 v48, 288, v{T1}
    v_lshl_add_u32 v48, v{G}, 4, v48
    v_add_u32 v{vOR}, {OX}, v48
    v_mul_u32_u24 v48, 288, v{T1}
    v_lshl_add_u32 v48, v{G}, 3, v48
    s_lshl_b32 s{sT}, s{sW}, 6
    s_add_u32 s{sT}, s{sT}, {OX}
    v_add_u32 v{vOW}, s{sT}, v48
    s_lshl_b32 s{sT}, s{sW}, 5
    v_lshl_add_u32 v48, v{T2}, 4, v{I}
    v_add_u32 v48, s{sT}, v48                 ; f
    v_lshrrev_b32 v49, 2, v{I}
    v_add_u32 v49, v49, v{T3}
    v_and_b32 v49, 3, v49
    v_lshlrev_b32 v49, 3, v49
    v_lshl_add_u32 v49, v48, 5, v49
    v_add_u32 v{vQW}, {QKT}, v49
    v_lshlrev_b32 v49, 3, v{T3}
    v_lshl_add_u32 v{vVMS}, v48, 4, v49
    """)
    for hf, dst in ((0, vQR0), (1, vQR1)):
        k(f"""
        v_lshrrev_b32 v48, 2, v{I}
        v_lshl_add_u32 v48, v{G}, 3, v48
        v_add_u32 v48, {4*hf}, v48
        v_and_b32 v49, 3, v{I}
        v_lshl_add_u32 v49, v{G}, 1, v49
        v_add_u32 v49, {hf}, v49
        v_and_b32 v49, 3, v49
        v_lshlrev_b32 v49, 3, v49
        v_lshl_add_u32 v49, v48, 5, v49
        v_add_u32 v{dst}, {QKT}, v49
        """)
    k(f"""
    v_lshlrev_b32 v48, 9, v{G}
    v_lshl_add_u32 v48, v{I}, 4, v48
    v_add_u32 v{vKR}, {KTL}, v48
    s_lshl_b32 s{sT}, s{sW}, 11
    s_add_u32 s{sT}, s{sT}, {VTL}
    v_add_u32 v{vVR}, s{sT}, v48
    s_lshl_b32 s{sT}, s{sW}, 13
    v_add_u32 v{vWO}, s{sT}, v{vL16}
    v_add_u32 v{vWO2}, 0x10000, v{vWO}
    ; vPAS = w*65536 + h*2048 + (g/2)*512 + (n/8)*256 + (g%2)*128 + (n%8)*16
    v_lshlrev_b32 v48, 9, v{T2}
    v_lshl_add_u32 v48, v{T3}, 7, v48
    v_lshl_add_u32 v48, v{T1}, 4, v48
    v_lshrrev_b32 v49, 3, v{I}
    v_lshl_add_u32 v48, v49, 8, v48
    s_lshl_b32 s{sT}, s{sW}, 16
    s_lshl_b32 s{sT2}, s{sH}, 11
    s_add_u32 s{sT}, s{sT}, s{sT2}
    v_add_u32 v{vPAS}, s{sT}, v48
    ; vPAL = (j/8)*65536 + hg*2048 + (j%8)*256 + (4w + u4)*16
    s_lshr_b32 s{sT}, s{sH}, 3
    s_lshl_b32 s{sT}, s{sT}, 16
    s_and_b32 s{sT2}, s{sH}, 7
    s_lshl_b32 s{sT2}, s{sT2}, 8
    s_add_u32 s{sT}, s{sT}, s{sT2}
    s_lshl_b32 s{sT2}, s{sW}, 6
    s_add_u32 s{sT}, s{sT}, s{sT2}
    v_lshrrev_b32 v48, 2, v{L}                 ; hg
    v_lshlrev_b32 v48, 11, v48
    v_and_b32 v49, 3, v{L}                     ; u4
    v_lshl_add_u32 v48, v49, 4, v48
    v_add_u32 v{vPAL}, s{sT}, v48
    ; vMBS = (4rh + rho)*1024 + 2*(128wc + 64ac + 16jlo + 8nh + 4(w%2)) + 2*(32b + u4)
    s_lshr_b32 s{sT}, s{sW}, 1
    s_lshl_b32 s{sT}, s{sT}, 12                ; rh*4096
    s_lshr_b32 s{sT2}, s{sH}, 3
    s_lshl_b32 s{sT2}, s{sT2}, 8               ; 2*128*wc
    s_add_u32 s{sT}, s{sT}, s{sT2}
    s_lshr_b32 s{sT2}, s{sH}, 2
    s_and_b32 s{sT2}, s{sT2}, 1
    s_lshl_b32 s{sT2}, s{sT2}, 7               ; 2*64*ac
    s_add_u32 s{sT}, s{sT}, s{sT2}
    s_and_b32 s{sT2}, s{sH}, 3
    s_lshl_b32 s{sT2}, s{sT2}, 4               ; 2*8*(j%4) = 2*(16jlo + 8nh)
    s_add_u32 s{sT}, s{sT}, s{sT2}
    s_and_b32 s{sT2}, s{sW}, 1
    s_lshl_b32 s{sT2}, s{sT2}, 3               ; 2*4*(w%2)
    s_add_u32 s{sT}, s{sT}, s{sT2}
    v_lshrrev_b32 v50, 2, v{I}                 ; hq = (l%16)/4
    v_lshlrev_b32 v48, 10, v50
    v_lshl_add_u32 v48, v49, 1, v48            ; hq*1024 + 2*u4
    v_lshl_add_u32 v48, v{G}, 6, v48           ; + 2*32*b  (b = l/16)
    v_add_u32 v{vMBS}, s{sT}, v48
    v_mov_b32 v{vIDX}, 0x44444444
    v_mov_b32 v48, 0xeeeeeeee
    v_cmp_lt_u32 vcc, 7, v{I}
    s_nop 1
    v_cndmask_b32 v{vIDX}, v{vIDX}, v48, vcc
    v_mov_b32 v{vBIAS}, 0
    v_mov_b32 v48, 0xff800000
    v_cmp_gt_u32 vcc, 2, v{G}
    s_nop 1
    v_cndmask_b32 v{vBIAS}, v{vBIAS}, v48, vcc
    """)
    def base(dst, off_fn, extra_code):
        k(f"s_mul_i32 s{sT2}, s{l_sgpr}, {off_fn(1) - off_fn(0)}")
        k(f"s_add_u32 s{sT2}, s{sT2}, {off_fn(0)}")
        k(extra_code)
        k(f"s_add_u32 s{sT2}, s{sT2}, s{sT}")
        k(f"s_add_u32 s{dst}, s{sWS}, s{sT2}\ns_addc_u32 s{dst+1}, s{sWS+1}, 0")
    base(sMBr, MB, f"s_lshl_b32 s{sT}, s{sW}, 11")
    base(sMBw, MB, f"s_mov_b32 s{sT}, 8192")
    k(f"s_mov_b32 s{sMBD}, 8192")
    base(sPA, PA, f"s_mov_b32 s{sT}, 0")
    base(sPA1, PA, f"s_mov_b32 s{sT}, 32768")
    base(sKT, KT, f"s_lshl_b32 s{sT}, s{sH}, 13\ns_lshl_b32 s{sT3}, s{sW}, 11\ns_add_u32 s{sT}, s{sT}, s{sT3}")
    base(sVT, VT, f"s_lshl_b32 s{sT}, s{sH}, 13\ns_lshl_b32 s{sT3}, s{sW}, 11\ns_add_u32 s{sT}, s{sT}, s{sT3}")
    base(sKM, KM, f"s_lshl_b32 s{sT}, s{sH}, 11")
    base(sVM, VM, f"s_lshl_b32 s{sT}, s{sH}, 11")
    base(sFL, F_T3, f"s_lshl_b32 s{sT}, s{sH}, 7")
    base(sFR, F_R, f"s_lshl_b32 s{sT}, s{sH}, 6")
    k(f"""
    s_mov_b32 s{sMO}, 0x00ff00ff
    s_mov_b32 s{sMO+1}, 0x00ff00ff
    s_mov_b32 s{sMMB}, 0x55555555
    s_mov_b32 s{sMMB+1}, 0
    s_mov_b32 s{sMKM}, 0xff00ff00
    s_mov_b32 s{sMKM+1}, 0xff00ff00
    s_mov_b32 s{sMF0}, 0xf0f0f0f0
    s_mov_b32 s{sMF0+1}, 0xf0f0f0f0
    s_mov_b32 s{sC}, 0x3e0293ee
    s_mov_b32 s{sSL}, 0x00003f80
    s_mov_b32 s{sSH}, 0x3f800000
    s_lshl_b32 s{sM0K}, s{sW}, 11
    s_add_u32 s{sM0V}, s{sM0K}, {VTL}
    s_add_u32 s{sM0K}, s{sM0K}, {KTL}
    s_mov_b32 s{sS}, 0
    s_mov_b32 s{sFKv}, 0
    s_mov_b32 s{sFVv}, 0
    """)

NST = 15
STNAMES = []
def emit_R_loop(k, fast, use_flags, stamp=False):
    st = "" if fast else "sc1"
    STN = [0]
    def ST(name):
        if stamp == 2 and name in OPT.get('stamps', name):
            i = STN[0]; STN[0] += 1
            assert i < 15
            STNAMES.append(name)
            k(f"s_memtime s[{54+2*i}:{55+2*i}]")
    def ST_collect():
        if stamp == 2:
            n = STN[0]
            k("s_waitcnt lgkmcnt(0)")
            for i in range(n):
                prev = "s53" if i == 0 else f"s{54+2*(i-1)}"
                k(f"s_sub_u32 s{55+2*i}, s{54+2*i}, {prev}")
            for i in range(n):
                k(f"s_add_u32 s{84+i}, s{84+i}, s{55+2*i}")
            k(f"s_mov_b32 s53, s{54+2*(n-1)}")
    TO = k.lab('Lto'); LOOP = k.lab('Lstep'); FIN = k.lab('Lfin')
    def flag_check():
        lab = k.lab('Lfs'); ok = k.lab('Lfsok')
        k(f"""
        s_mov_b64 exec, 15
        v_cmp_gt_u32 vcc, v{vSP}, v{vFLG}
        s_cbranch_vccz {ok}
        s_mov_b32 s{sSpin}, 0
{lab}:
        global_load_dword v{vFLG}, v{vL16}, s[{sFL}:{sFL+1}] sc1
        s_add_u32 s{sSpin}, s{sSpin}, 1
        {'s_add_u32 s86, s86, 1' if DIAGON[0] else ''}
        s_cmp_gt_u32 s{sSpin}, {SPIN}
        s_cbranch_scc1 {TO}
        s_waitcnt vmcnt(0)
        v_cmp_gt_u32 vcc, v{vSP}, v{vFLG}
        s_cbranch_vccnz {lab}
{ok}:
        s_mov_b64 exec, -1
        """)
    mark(k, 1)
    if use_flags:
        r_wait_init(k)
    if DIAGON[0]: k("s_mov_b32 s86, 0")
    if use_flags:
        k(f"v_mov_b32 v{vSP}, 1\nv_mov_b32 v{vFLG}, 0\ns_mov_b64 exec, 12\nv_mov_b32 v{vSP}, 0\ns_mov_b64 exec, -1")
        flag_check()
        k(f"v_add_u32 v{vSP}, 1, v{vSP}")
    k(f"""
    s_mov_b32 m0, s{sM0K}
    s_nop 0
    global_load_lds_dwordx4 v{vL16}, s[{sKT}:{sKT+1}] sc1
    global_load_lds_dwordx4 v{vL16}, s[{sKT}:{sKT+1}] offset:1024 sc1
    s_add_u32 s{sKT}, s{sKT}, 262144
    s_addc_u32 s{sKT+1}, s{sKT+1}, 0
    s_waitcnt vmcnt(0)
    s_barrier
    """)
    mark(k, 2)
    if DIAGON[0]: k("s_memtime s[96:97]\ns_waitcnt lgkmcnt(0)\ns_mov_b32 s89, s96")

    if stamp:
        k("s_memtime s[100:101]\ns_waitcnt lgkmcnt(0)\ns_mov_b32 s53, s100\ns_mov_b32 s99, s100")
        for i in range(NST): k(f"s_mov_b32 s{84+i}, 0")
        k("s_mov_b32 s82, 0\ns_mov_b32 s83, 0")
    def step(par):
        SEN = vM + 60
        RA = vM + 59
        for r in range(aQ, aQ + 12): k(f"v_mov_b32 v{r}, 0")
        if use_flags:
            flag_check()
            k(f"v_add_u32 v{vSP}, 1, v{vSP}\nv_min_u32 v{vSP}, {NSEG}, v{vSP}")
        k(f"s_mov_b32 m0, s{sM0V}")
        ST('top')
        if OPT['ackB'] != 'n': k(f"s_waitcnt vmcnt({OPT['ackB']})")
        PB = k.lab('LpollB')
        k(f"s_mov_b32 s{sSpin}, 0")
        k.label(PB)
        k(f"""
        global_load_dwordx4 {v(vM,4)}, v{vL16}, s[{sMBr}:{sMBr+1}] sc1
        global_load_dwordx4 {v(vM+4,4)}, v{vL16}, s[{sMBr}:{sMBr+1}] offset:1024 sc1
        s_add_u32 s{sSpin}, s{sSpin}, 1
        {'s_add_u32 s98, s98, 1' if stamp == 2 and False else ''}
        s_cmp_gt_u32 s{sSpin}, {SPIN}
        s_cbranch_scc1 {TO}
        s_waitcnt vmcnt(0)
        ds_write_b128 v{vMW}, {v(vM,4)}
        ds_write_b128 v{vMW}, {v(vM+4,4)} offset:1056
        v_max3_u32 v{vM+8}, v{vM}, v{vM+1}, v{vM+2}
        v_max3_u32 v{vM+9}, v{vM+3}, v{vM+4}, v{vM+5}
        v_max3_u32 v{vM+8}, v{vM+8}, v{vM+6}, v{vM+7}
        v_max_u32 v{vM+8}, v{vM+8}, v{vM+9}
        v_cmp_eq_u32 vcc, -1, v{vM+8}
        s_cbranch_vccnz {PB}
        """)
        ST('pollB')
        mark_val(k, 4, sS, 33)
        if stamp: k(f"s_add_u32 s82, s82, s{sSpin}")
        if use_flags:
            skf = k.lab('Lskf')
            k(f"s_cmp_lg_u32 s{sW}, 0\ns_cbranch_scc1 {skf}\nv_mov_b32 v{vFLG}, s{sS}\ns_mov_b64 exec, 1\nglobal_store_dword v{vL16}, v{vFLG}, s[{sFR}:{sFR+1}] sc1\ns_mov_b64 exec, -1\n{skf}:")
        k(f"global_load_lds_dwordx4 v{vL16}, s[{sVT}:{sVT+1}] sc1")
        k(f"global_load_lds_dwordx4 v{vL16}, s[{sVT}:{sVT+1}] offset:1024 sc1")
        k("s_waitcnt lgkmcnt(0)\ns_barrier")
        ST('bar1')
        def mread(ks): k(f"ds_read_b128 {v(vM+4*ks,4)}, v{vMR} offset:{ks*64}")
        def smf(acc, ks, mu): k(f"v_smfmac_f32_16x16x64_bf16 {v(acc,4)}, {v(vM+4*ks,4)}, {wreg(mu,ks)}, v{vIDX}")
        for ks in range(8): mread(ks)
        side = []
        skipk = k.lab('Lskipk')
        if use_flags:
            side.append(f"s_mov_b64 exec, 15\nglobal_load_dword v{vFLG}, v{vL16}, s[{sFL}:{sFL+1}] sc1\ns_mov_b64 exec, -1")
        side.append(f"s_add_u32 s{sVT}, s{sVT}, 262144\ns_addc_u32 s{sVT+1}, s{sVT+1}, 0")
        for ks in range(16):
            k(f"s_waitcnt lgkmcnt(7)")
            smf(aQ, ks, 0)
            if ks + 8 < 16: mread(ks + 8)
            else:
                j = ks - 8; t = j // 4; kk = j % 4
                k(f"ds_read_b128 {v(vK + (t*4+kk)*4, 4)}, v{vKR} offset:{kk*2048 + t*256}")
            smf(aK, ks, 1)
            if ks >= 8 and side: k(side.pop(0))
        assert not side, side
        ST('qk')
        smf(aV, 0, 2); smf(aV, 1, 2)
        k(f"""
        v_cvt_pk_bf16_f32 v{aQ}, v{aQ}, v{aQ+1}
        v_cvt_pk_bf16_f32 v{aQ+1}, v{aQ+2}, v{aQ+3}
        v_xor_b32 v{aQ+2}, 16, v{vQW}
        v_cvt_pk_bf16_f32 v{aK}, v{aK}, v{aK+1}
        v_cvt_pk_bf16_f32 v{aK+1}, v{aK+2}, v{aK+3}
        ds_write_b64 v{vQW}, {v(aQ,2)}
        ds_write_b64 v{aQ+2}, {v(aK,2)}
        global_store_dwordx2 v{vVMS}, {v(aK,2)}, s[{sKM}:{sKM+1}] {OPT['kmflag']}
        """)
        for ks in (2, 3, 4, 5): smf(aV, ks, 2)
        k("s_waitcnt lgkmcnt(0)\ns_barrier")
        ST('bar2')
        QK = vM
        for ks in range(4):
            k(f"ds_read_b64_tr_b16 {v(QK+4*ks,2)}, v{vQR0} offset:{ks*1024}")
            k(f"ds_read_b64_tr_b16 {v(QK+4*ks+2,2)}, v{vQR1} offset:{ks*1024}")
        smf(aV, 6, 2)
        k(f"s_mov_b32 m0, s{sM0K}\ns_nop 0\nglobal_load_lds_dwordx4 v{vL16}, s[{sKT}:{sKT+1}] sc1")
        smf(aV, 7, 2)
        k(f"global_load_lds_dwordx4 v{vL16}, s[{sKT}:{sKT+1}] offset:1024 sc1")
        smf(aV, 8, 2)
        k(f"s_add_u32 s{sKT}, s{sKT}, 262144\ns_addc_u32 s{sKT+1}, s{sKT+1}, 0")
        smf(aV, 9, 2)
        for r in range(4): k(f"v_mov_b32 v{vM+32+r}, 0x3f803f80")
        def woread(slot_reg, cb, ks):
            for half in (0, 1):
                k(f"ds_read_b128 {v(slot_reg+4*half,4)}, v{vWO if ks < 2 else vWO2} offset:{(ks % 2)*32768 + cb*2048 + half*1024}")
        wo_ops = [(cb, ks) for ks in range(4) for cb in (0, 1)] + [(cb, ks) for ks in range(4) for cb in (2, 3)]
        slots = [vK, vK+16, vK+8, vK+24, vM+40, vM+48, vM+56, vM+32]
        SM = vM + 16; S0 = vM + 20; S1 = vM + 24
        for ks in range(4):
            extra = 4 if ks >= 2 else 0
            k(f"s_waitcnt lgkmcnt({8 - 2*(ks+1) + extra})")
            c = lambda r: ("0" if ks == 0 else v(r, 4))
            q = v(QK + 4*ks, 4)
            k(f"v_mfma_f32_16x16x32_bf16 {v(S0,4)}, {v(vK + ks*4,4)}, {q}, {c(S0)}")
            k(f"v_mfma_f32_16x16x32_bf16 {v(S1,4)}, {v(vK + 16 + ks*4,4)}, {q}, {c(S1)}")
            k(f"v_mfma_f32_16x16x32_bf16 {v(SM,4)}, {q}, {q}, {c(SM)}")
            if ks == 1:
                woread(slots[0], *wo_ops[0]); woread(slots[1], *wo_ops[1])
        ST('scores')
        smf(aV, 10, 2)
        smf(aV, 11, 2)
        MX = vM + 28; TMP = vM + 29; NM = vM + 30; NMM = vM + 31
        P = vM; Z = vM + 6; O0 = vM + 8; O1 = vM + 12
        ON = vM + 32
        LL = vM + 36
        def ds1(reg, addr, off): k(f"ds_read_b128 {v(reg,4)}, v{addr} offset:{off}")
        def wo1(n, half):
            cb, ks = wo_ops[n]
            ds1(slots[n % 8] + 4*half, vWO if ks < 2 else vWO2, (ks % 2)*32768 + cb*2048 + half*1024)
        k(f"""
        v_max3_f32 v{MX}, v{S0}, v{S0+1}, v{S0+2}
        s_waitcnt vmcnt({4 if use_flags else 3})
        v_max3_f32 v{NM}, v{S0+3}, v{S1}, v{S1+1}
        v_max3_f32 v{TMP}, v{SM}, v{SM+1}, v{SM+2}
        v_max3_f32 v{MX}, v{MX}, v{S1+2}, v{S1+3}
        v_max_f32 v{TMP}, v{TMP}, v{SM+3}
        """)
        ds1(aQ, vVR, 0)
        k(f"""
        v_add_f32 v{TMP}, v{TMP}, v{vBIAS}
        v_max3_f32 v{MX}, v{MX}, v{NM}, v{TMP}
        """)
        ds1(aQ+4, vVR, 256)
        k(f"v_mov_b32 v{TMP}, v{MX}")
        smf(aV, 12, 2)
        wo1(2, 0)
        k(f"""
        v_permlane32_swap_b32 v{MX}, v{TMP}
        v_max_f32 v{MX}, v{MX}, v{TMP}
        v_mov_b32 v{TMP}, v{MX}
        """)
        smf(aV, 13, 2)
        wo1(2, 1)
        k(f"""
        v_permlane16_swap_b32 v{MX}, v{TMP}
        v_max_f32 v{MX}, v{MX}, v{TMP}
        v_mul_f32 v{NM}, -v{MX}, s{sC}
        """)
        smf(aV, 14, 2)
        k(f"v_add_f32 v{NMM}, v{NM}, v{vBIAS}")
        for r in range(4): k(f"v_fma_f32 v{S0+r}, v{S0+r}, s{sC}, v{NM}")
        smf(aV, 15, 2)
        for r in range(4): k(f"v_exp_f32 v{S0+r}, v{S0+r}")
        for r in range(4): k(f"v_fma_f32 v{S1+r}, v{S1+r}, s{sC}, v{NM}")
        for r in range(4): k(f"v_exp_f32 v{S1+r}, v{S1+r}")
        for r in range(4): k(f"v_fma_f32 v{SM+r}, v{SM+r}, s{sC}, v{NMM}")
        k(f"v_cvt_pk_bf16_f32 v{P}, v{S0}, v{S0+1}\nv_cvt_pk_bf16_f32 v{P+1}, v{S0+2}, v{S0+3}")
        for r in range(4): k(f"v_exp_f32 v{SM+r}, v{SM+r}")
        k(f"""
        v_cvt_pk_bf16_f32 v{P+2}, v{S1}, v{S1+1}
        v_cvt_pk_bf16_f32 v{P+3}, v{S1+2}, v{S1+3}
        v_cvt_pk_bf16_f32 v{P+4}, v{SM}, v{SM+1}
        v_cvt_pk_bf16_f32 v{P+5}, v{SM+2}, v{SM+3}
        """)
        k("s_waitcnt lgkmcnt(2)")
        ST('softmax')
        k(f"v_mfma_f32_16x16x32_bf16 {v(LL,4)}, {v(ON,4)}, {v(P,4)}, 0")
        k(f"v_cvt_pk_bf16_f32 v{aV}, v{aV}, v{aV+1}")
        k(f"v_mfma_f32_16x16x32_bf16 {v(O1,4)}, {v(aQ+4,4)}, {v(P,4)}, 0")
        k(f"v_cvt_pk_bf16_f32 v{aV+1}, v{aV+2}, v{aV+3}")
        k(f"v_mfma_f32_16x16x32_bf16 {v(O0,4)}, {v(aQ,4)}, {v(P,4)}, 0")
        k(f"v_mov_b32 v{Z}, 0\nv_mov_b32 v{Z+1}, 0")
        k(f"v_mfma_f32_16x16x16_bf16 {v(LL,4)}, {v(ON,2)}, {v(P+4,2)}, {v(LL,4)}")
        wo1(3, 0)
        k(f"v_mfma_f32_16x16x16_bf16 {v(O1,4)}, {v(aV,2)}, {v(P+4,2)}, {v(O1,4)}")
        k(f"v_permlane32_swap_b32 v{P+4}, v{Z}\nv_permlane32_swap_b32 v{P+5}, v{Z+1}")
        wo1(3, 1); wo1(4, 0)
        k(f"v_mfma_f32_16x16x16_bf16 {v(O0,4)}, {v(aV,2)}, {v(Z,2)}, {v(O0,4)}")
        wo1(4, 1)
        k(f"v_rcp_f32 v{MX}, v{LL}")
        wo1(5, 0); wo1(5, 1); wo1(6, 0); wo1(6, 1)
        k("s_nop 1")
        ST('pv')
        for r in range(0, 8, 2): k(f"v_pk_mul_f32 v[{O0+r}:{O0+r+1}], v[{O0+r}:{O0+r+1}], v[{MX}:{MX+1}] op_sel_hi:[1,0]")
        k(f"""
        v_cvt_pk_bf16_f32 v{O0}, v{O0}, v{O0+1}
        v_cvt_pk_bf16_f32 v{O0+1}, v{O0+2}, v{O0+3}
        v_cvt_pk_bf16_f32 v{O1}, v{O1}, v{O1+1}
        v_cvt_pk_bf16_f32 v{O1+1}, v{O1+2}, v{O1+3}
        s_mov_b64 exec, s[{sMO}:{sMO+1}]
        s_waitcnt lgkmcnt(8)
        ds_write_b64 v{vOW}, {v(O0,2)}
        ds_write_b64 v{vOW}, {v(O1,2)} offset:32
        s_mov_b64 exec, -1
        global_store_dwordx2 v{vVMS}, {v(aV,2)}, s[{sVM}:{sVM+1}] {OPT['kmflag']}
        """)
        if par == 1 and use_flags:
            k(f"s_cmp_eq_u32 s{sS}, {NSEG-1}\ns_cbranch_scc1 {FIN}")
        woread(slots[7], *wo_ops[7])
        ACC = vM
        for r in range(8): k(f"v_mov_b32 v{ACC+r}, 0")
        k(f"s_waitcnt lgkmcnt(2)\ns_barrier")
        ST('bar3')
        OO = vM + 16
        for ks in range(4): k(f"ds_read_b128 {v(OO+4*ks,4)}, v{vOR} offset:{ks*64}")
        for r in range(8, 16): k(f"v_mov_b32 v{ACC+r}, 0")
        issued = ['w7', 'w7', 'o0', 'o1', 'o2', 'o3']
        def retire_until(idx):
            n = len(issued) - 1 - idx
            k(f"s_waitcnt lgkmcnt({n})")
            del issued[:idx+1]
        def cvt_store(aa):
            b = ACC + 8*aa
            for q in range(4): k(f"v_cvt_pk_bf16_f32 v{b+q}, v{b+2*q}, v{b+2*q+1}")
            for q in range(4):
                if par: k(f"v_or_b32 v{b+q}, 1, v{b+q}")
                else: k(f"v_and_b32 v{b+q}, -2, v{b+q}")
            k(f"global_store_dwordx4 v{vPAS}, {v(b,4)}, s[{sPA}:{sPA+1}] offset:{aa*1024} {st}")
        for n, (cb, ks) in enumerate(wo_ops):
            need = {f'o{ks}', f'w{n}'}
            idxs = [i for i, nme in enumerate(issued) if nme in need]
            if idxs: retire_until(max(idxs))
            k(f"v_smfmac_f32_16x16x64_bf16 {v(ACC+4*cb,4)}, {v(OO+4*ks,4)}, {v(slots[n%8],8)}, v{vIDX}")
            if n + 8 < 16:
                if len(issued) + 2 > 15: retire_until(len(issued) + 2 - 15 - 1)
                woread(slots[n % 8], *wo_ops[n + 8]); issued += [f'w{n+8}', f'w{n+8}']
            if n == 11: cvt_store(0)
        ST('wo')
        SEL = vK
        k(f"""
        s_add_u32 s{sKM}, s{sKM}, 65536
        s_addc_u32 s{sKM+1}, s{sKM+1}, 0
        s_add_u32 s{sVM}, s{sVM}, 65536
        s_addc_u32 s{sVM+1}, s{sVM+1}, 0
        s_ashr_i32 s{sT}, s{sMBD}, 31
        s_nop 1
        """)
        cvt_store(1)
        k(f"""
        s_add_u32 s{sMBr}, s{sMBr}, s{sMBD}
        s_addc_u32 s{sMBr+1}, s{sMBr+1}, s{sT}
        """)
        for d in range(4): k(f"v_mov_b32 v{SEL+d}, 0")
        for d in range(4):
            lo = (0x0001000100010001 << (2*d)); hi = (0x0001000100010001 << (2*d+1))
            k(f"s_mov_b32 s{sP0}, {hex(lo & 0xffffffff)}\ns_mov_b32 s{sP0+1}, {hex(lo & 0xffffffff)}\ns_mov_b64 exec, s[{sP0}:{sP0+1}]\nv_mov_b32 v{SEL+d}, 0x00003f80")
            k(f"s_lshl_b64 exec, exec, 1\nv_mov_b32 v{SEL+d}, 0x3f800000")
        k("s_mov_b64 exec, -1")
        ST('pastore')
        if OPT['ackA'] != 'n': k(f"s_waitcnt vmcnt({OPT['ackA']})")
        ST('ackA')
        PAo = k.lab('LpollA'); X = OO
        k(f"s_mov_b32 s{sSpin}, 0")
        k.label(PAo)
        T0 = vM + 36; T1r = vM + 37
        ck3 = 'v_bitop3_b32' if par else 'v_or3_b32'; bo = ' bitop3:0x80' if par else ''; ck2 = 'v_and_b32' if par else 'v_or_b32'
        k(f"""
        global_load_dwordx4 {v(X,4)}, v{vPAL}, s[{sPA}:{sPA+1}] sc1
        global_load_dwordx4 {v(X+4,4)}, v{vPAL}, s[{sPA1}:{sPA1+1}] sc1
        s_add_u32 s{sSpin}, s{sSpin}, 1
        s_cmp_gt_u32 s{sSpin}, {SPIN}
        s_cbranch_scc1 {TO}
        s_waitcnt vmcnt(0)
        {ck3} v{T0}, v{X}, v{X+1}, v{X+2}{bo}
        {ck3} v{T1r}, v{X+3}, v{X+4}, v{X+5}{bo}
        {ck3} v{T0}, v{T0}, v{X+6}, v{X+7}{bo}
        {ck2} v{T0}, v{T0}, v{T1r}
        v_and_b32 v{T0}, 1, v{T0}
        v_cmp_ne_u32 vcc, {par}, v{T0}
        s_cbranch_vccnz {PAo}
        """)
        ST('pollA')
        if stamp: k(f"s_add_u32 s83, s83, s{sSpin}")
        A = X + 8
        k(f"""
        v_mfma_f32_16x16x32_bf16 {v(A,4)}, {v(SEL,4)}, {v(X,4)}, 0
        v_mfma_f32_16x16x32_bf16 {v(A,4)}, {v(SEL,4)}, {v(X+4,4)}, {v(A,4)}
        s_sub_u32 s{sMBD}, 0, s{sMBD}
        s_nop 6
        """)
        for rot in (8, 4):
            for r in range(4): k(f"v_add_f32_dpp v{A+r}, v{A+r}, v{A+r} row_ror:{rot} row_mask:0xf bank_mask:0xf")
        k(f"""
        v_cndmask_b32 v{A}, v{A}, v{A+1}, s[{sMF0}:{sMF0+1}]
        v_cndmask_b32 v{A+2}, v{A+2}, v{A+3}, s[{sMF0}:{sMF0+1}]
        v_cndmask_b32 v{A}, v{A}, v{A+2}, s[{sMKM}:{sMKM+1}]
        s_nop 1
        v_mov_b32_dpp v{A+1}, v{A} quad_perm:[1,0,3,2] row_mask:0xf bank_mask:0xf
        v_cvt_pk_bf16_f32 v{A}, v{A}, v{A+1}
        v_min_u32 v{A}, 0xfffffffe, v{A}
        s_mov_b64 exec, s[{sMMB}:{sMMB+1}]
        global_store_dword v{vMBS}, v{A}, s[{sMBw}:{sMBw+1}] {st}
        s_ashr_i32 s{sT}, s{sMBD}, 31
        s_add_u32 s{sMBw}, s{sMBw}, s{sMBD}
        s_addc_u32 s{sMBw+1}, s{sMBw+1}, s{sT}
        v_mov_b32 v{A+1}, -1
        global_store_dword v{vMBS}, v{A+1}, s[{sMBw}:{sMBw+1}] {st}
        s_mov_b64 exec, -1
        """)
        ST('reduce')
        ST_collect()
    k.label(LOOP)
    STN[0] = 0
    step(0)
    k(f"s_add_u32 s{sS}, s{sS}, 1")
    STN[0] = 0
    n0 = len(STNAMES)
    step(1)
    del STNAMES[n0:]
    k(f"s_add_u32 s{sS}, s{sS}, 1")
    mark(k, 3, 2)
    k(f"""
    s_cmp_lt_u32 s{sS}, {NSEG}
    s_cbranch_scc1 {LOOP}
    """)
    k.label(FIN)
    mark(k, 5)
    if DIAGON[0]: k("s_memtime s[96:97]\ns_waitcnt lgkmcnt(0)\ns_sub_u32 s89, s96, s89")

    diag_dump(k, 48, 49)
    if stamp:
        k(f"""
        s_memtime s[100:101]
        s_waitcnt lgkmcnt(0)
        s_sub_u32 s100, s100, s99
        s_load_dwordx2 s[{sP0}:{sP0+1}], s[0:1], {KA_DBG}
        s_waitcnt lgkmcnt(0)
        v_mov_b32 v48, 0
        v_mov_b32 v49, s100
        s_mov_b64 exec, 1
        global_store_dword v48, v49, s[{sP0}:{sP0+1}] offset:36 sc1
        s_lshl_b32 s100, s{sH}, 2
        s_add_u32 s100, s100, s{sW}
        s_lshl_b32 s100, s100, 3
        s_add_u32 s100, s100, 0xC000
        v_mov_b32 v48, s100
        v_mov_b32 v50, s82
        v_mov_b32 v51, s83
        global_store_dwordx2 v48, v[50:51], s[{sWS}:{sWS+1}] sc1
        v_mov_b32 v48, 0
        """)
        if stamp == 2:
            lb = k.lab('Lnost')
            k(f"s_or_b32 s81, s{sH}, s{sW}\ns_or_b32 s81, s81, s6\ns_cmp_lg_u32 s81, 0\ns_cbranch_scc1 {lb}")
            for i in range(NST):
                k(f"v_mov_b32 v49, s{84+i}\nglobal_store_dword v48, v49, s[{sP0}:{sP0+1}] offset:{40+4*i} sc1")
            k.label(lb)
        k("s_mov_b64 exec, -1")
    if use_flags:
        k(f"""
        s_mov_b32 s{sS}, {NSEG}
        s_waitcnt vmcnt(0) lgkmcnt(0)
        s_barrier
        v_mov_b32 v95, s{sS}
        s_mov_b64 exec, 1
        global_store_dword v{vL16}, v95, s[{sFR}:{sFR+1}] sc1
        """)
    k("s_waitcnt vmcnt(0)\ns_endpgm")
    timeout_exit(k, 0 if fast else 1, TO)
```

```python
from common import *
ONES=0x3f803f80
NINF=0xff800000
import struct, math
def f2u(x): return struct.unpack('<I', struct.pack('<f', x))[0]
CA = f2u(0.25*math.log2(math.e))
CB = f2u(128**-0.5*math.log2(math.e))

def xlane(k, op, r, tmp):
    for sw in ('32', '16'):
        k(f"v_mov_b32 v{tmp}, v{r}\ns_nop 1\nv_permlane{sw}_swap_b32 v{r}, v{tmp}\n{op} v{r}, v{r}, v{tmp}")

def emit_TA(k):
    vL=0; vRD=1; vFLG=2; vTMP=3; vA=8
    sHA=33; sC=34
    k(f"""
    s_lshl_b32 s{sHA}, s{sIDX}, 2
    s_add_u32 s{sHA}, s{sHA}, s{sW}
    v_and_b32 v40, 63, v0
    v_and_b32 v41, 15, v40        ; i / n
    v_lshrrev_b32 v42, 4, v40     ; g
    ; DMA lane offset: row l/8 (stride 3072), chunk l%8
    v_lshrrev_b32 v45, 3, v40
    v_mul_u32_u24 v45, 3072, v45
    v_and_b32 v46, 7, v40
    v_lshl_add_u32 v45, v46, 4, v45
    ; tr address: row 8g + i/4 ; bytes 32w + 8*(i%4)
    v_lshrrev_b32 v46, 2, v41
    v_lshl_add_u32 v46, v42, 3, v46
    v_lshlrev_b32 v46, 7, v46
    v_and_b32 v47, 3, v41
    v_lshl_add_u32 v46, v47, 3, v46
    s_lshl_b32 s{sT2}, s{sW}, 5
    v_add_u32 v46, s{sT2}, v46
    """)
    wait_start(k, 2, 3, F_R(0), 1)
    for mu in range(3):
        k(f"s_load_dwordx2 s[{sP}:{sP+1}], s[0:1], {KA_WQKV}")
        k(f"""
        s_lshl_b32 s{sT}, s{sIDX}, 7
        s_add_u32 s{sT}, s{sT}, {mu*1024}
        s_mul_i32 s{sT2}, s{sW}, {128*3072}
        s_add_u32 s{sT}, s{sT}, s{sT2}
        s_lshl_b32 s{sT3}, s{sW}, 14
        s_waitcnt lgkmcnt(0)
        s_add_u32 s{sP}, s{sP}, s{sT}
        s_addc_u32 s{sP+1}, s{sP+1}, 0
        """)
        for u in range(16):
            k(f"s_mov_b32 m0, s{sT3}\ns_add_u32 s{sT3}, s{sT3}, 1024\nglobal_load_lds_dwordx4 v45, s[{sP}:{sP+1}]")
            adv(k, sP, 8*3072)
        k("s_waitcnt vmcnt(0)\ns_barrier")
        n = 0
        for ks in range(16):
            for hf in range(2):
                k(f"ds_read_b64_tr_b16 {a((mu*16+ks)*4 + 2*hf, 2)}, v46 offset:{ks*4096 + hf*512}")
                n += 1
                if n % 8 == 0: k("s_waitcnt lgkmcnt(0)")
        k("s_waitcnt lgkmcnt(0)\ns_barrier")
    k(f"""
    v_lshlrev_b32 v{vL}, 4, v40
    v_lshlrev_b32 v{vRD}, 9, v42
    v_lshl_add_u32 v{vRD}, v41, 4, v{vRD}
    v_xor_b32 v{vRD}, 0x8000, v{vRD}
    s_lshl_b32 s{sM0}, s{sW}, 13
    v_and_b32 v4, 1, v40
    v_lshlrev_b32 v4, 6, v4
    v_add_u32 v4, {F_T6(0)}, v4               ; + parity*128
    s_mov_b32 s{sFL}, s{sWS}
    s_mov_b32 s{sFL+1}, s{sWS+1}
    s_mov_b32 s{sC}, {CA}
    """)
    base(k, sOWN, F_TA, f"s_lshl_b32 s{sT}, s{sIDX}, 4\ns_add_u32 s{sT}, s{sT}, s{sW}\ns_lshl_b32 s{sT}, s{sT}, 2")
    base(k, sIN, XNA, f"s_lshl_b32 s{sT}, s{sW}, 13")
    base(k, sOUT, OA, f"s_lshl_b32 s{sT}, s{sHA}, 10")
    ACC=32
    QP=56
    KP=60
    VP=66
    SP=72; SC=76
    PP=80
    LL=84; OO=88
    OP=92
    BP=96; BC=100; BP0=104
    ON=108
    MX=112; TM=113
    k(f"v_lshlrev_b32 v48, 2, v42")
    for t, B in ((0, BP), (1, BC)):
        for r in range(4):
            k(f"""
            v_add_u32 v49, {r - (16 if t == 0 else 0) + 64}, v48      ; key offset + 64
            v_add_u32 v50, 64, v41
            v_sub_u32 v49, v50, v49                ; diff
            v_and_b32 v50, 0xfffffff1, v49         ; zero iff diff in 0,2,..,14
            v_mov_b32 v{B+r}, {NINF}
            v_cmp_eq_u32 vcc, 0, v50
            s_nop 1
            v_cndmask_b32 v{B+r}, v{B+r}, 0, vcc
            """.replace(f"v_cndmask_b32 v{B+r}, v{B+r}, 0, vcc", f"v_mov_b32 v51, 0\n v_cndmask_b32 v{B+r}, v{B+r}, v51, vcc"))
    for r in range(4): k(f"v_mov_b32 v{BP0+r}, {NINF}\nv_mov_b32 v{ON+r}, {ONES}")
    for r in range(2): k(f"v_mov_b32 v{KP+r}, 0\nv_mov_b32 v{VP+r}, 0")
    def set_need(k):
        k(f"s_add_u32 s{sNEED}, s{sT3}, 1\ns_mul_i32 s{sNEED}, s{sNEED}, s{sL}\ns_and_b32 s{sT}, s{sT3}, 1\ns_lshl_b32 s{sT}, s{sT}, 7\nv_add_u32 v{vFLG}, s{sT}, v4")
    def dma(k):
        for blk in range(2):
            k(f"s_add_u32 s{sT}, s{sM0}, {blk*4096}\ns_mov_b32 m0, s{sT}\ns_nop 0")
            for u in range(4): k(f"global_load_lds_dwordx4 v{vL}, s[{sIN}:{sIN+1}] offset:{u*1024} sc1")
            adv(k, sIN, 4096 if blk == 0 else 32768 - 4096)
    ta_chunks = []
    for blk in range(2):
        for u in range(4):
            c = ""
            if u == 0: c += f"s_add_u32 s{sT}, s{sM0}, {blk*4096}\ns_mov_b32 m0, s{sT}\ns_nop 0\n"
            c += f"global_load_lds_dwordx4 v{vL}, s[{sIN}:{sIN+1}] offset:{u*1024} sc1"
            if u == 3:
                n = 4096 if blk == 0 else 32768 - 4096
                c += f"\ns_add_u32 s{sIN}, s{sIN}, {n}\ns_addc_u32 s{sIN+1}, s{sIN+1}, 0"
            ta_chunks.append(c)
    def toggle(k): k(f"v_xor_b32 v{vRD}, 0x8000, v{vRD}\ns_xor_b32 s{sM0}, s{sM0}, 0x8000")
    def comp(k, hook):
        def rd(ks):
            for tt in range(2): k(f"ds_read_b128 {v(vA + 8*(ks%3) + 4*tt,4)}, v{vRD} offset:{ks*2048 + tt*256}")
        rd(0); rd(1)
        for ks in range(16):
            if ks + 2 < 16: rd(ks + 2)
            k(f"s_waitcnt lgkmcnt({2*min(2, 15-ks)})")
            for tt in range(2):
                x = v(vA + 8*(ks % 3) + 4*tt, 4)
                for mu in range(3):
                    acc = v(ACC + 8*mu + 4*tt, 4); c = "0" if ks == 0 else acc; w = a((mu*16+ks)*4, 4)
                    if mu < 2: k(f"v_mfma_f32_16x16x32_bf16 {acc}, {w}, {x}, {c}")
                    else: k(f"v_mfma_f32_16x16x32_bf16 {acc}, {x}, {w}, {c}")
            if ks == 0: hook(100)
            if ks == 5: hook(0)
            if 6 <= ks < 10: hook(10 + 2*(ks - 6)); hook(11 + 2*(ks - 6))
            if ks == 12: hook(1)
        k.nop(8)
    def epilogue(k, hook):
        for tt in range(2):
            for mu, dst in ((0, QP + 2*tt), (1, KP + 2 + 2*tt), (2, VP + 2 + 2*tt)):
                b = ACC + 8*mu + 4*tt
                k(f"v_cvt_pk_bf16_f32 v{dst}, v{b}, v{b+1}\nv_cvt_pk_bf16_f32 v{dst+1}, v{b+2}, v{b+3}")
        for tt in range(2):
            k("s_nop 1")
            k(f"v_mfma_f32_16x16x16_bf16 {v(SP,4)}, {v(KP+2*tt,2)}, {v(QP+2*tt,2)}, 0")
            k(f"v_mfma_f32_16x16x16_bf16 {v(SC,4)}, {v(KP+2+2*tt,2)}, {v(QP+2*tt,2)}, 0")
            k.nop(8)
            bp = BP0 if tt == 0 else BP
            for r in range(4): k(f"v_fma_f32 v{SP+r}, v{SP+r}, s{sC}, v{bp+r}")
            for r in range(4): k(f"v_fma_f32 v{SC+r}, v{SC+r}, s{sC}, v{BC+r}")
            k(f"""
            v_max3_f32 v{MX}, v{SP}, v{SP+1}, v{SP+2}
            v_max3_f32 v{MX}, v{MX}, v{SP+3}, v{SC}
            v_max3_f32 v{MX}, v{MX}, v{SC+1}, v{SC+2}
            v_max_f32 v{MX}, v{MX}, v{SC+3}
            """)
            xlane(k, 'v_max_f32', MX, TM)
            for r in range(8): k(f"v_sub_f32 v{SP+r}, v{SP+r}, v{MX}")
            for r in range(8): k(f"v_exp_f32 v{SP+r}, v{SP+r}")
            k("s_nop 0")
            for q in range(4): k(f"v_cvt_pk_bf16_f32 v{PP+q}, v{SP+2*q}, v{SP+2*q+1}")
            k("s_nop 1")
            k(f"v_mfma_f32_16x16x32_bf16 {v(LL,4)}, {v(ON,4)}, {v(PP,4)}, 0")
            k(f"v_mfma_f32_16x16x32_bf16 {v(OO,4)}, {v(VP+2*tt,4)}, {v(PP,4)}, 0")
            k.nop(7)
            k(f"v_rcp_f32 v{LL}, v{LL}\ns_nop 0")
            for r in range(4): k(f"v_mul_f32 v{OO+r}, v{OO+r}, v{LL}")
            k(f"v_cvt_pk_bf16_f32 v{OP+2*tt}, v{OO}, v{OO+1}\nv_cvt_pk_bf16_f32 v{OP+2*tt+1}, v{OO+2}, v{OO+3}")
        hook(2)
        k(f"""
        s_nop 1
        v_permlane16_swap_b32 v{OP}, v{OP+2}
        v_permlane16_swap_b32 v{OP+1}, v{OP+3}
        global_store_dwordx4 v{vL}, {v(OP,4)}, s[{sOUT}:{sOUT+1}] sc1
        v_mov_b32 v{KP}, v{KP+4}
        v_mov_b32 v{KP+1}, v{KP+5}
        v_mov_b32 v{VP}, v{VP+4}
        v_mov_b32 v{VP+1}, v{VP+5}
        """)
        for r in range(4): k(f"v_mov_b32 v{BP0+r}, v{BP+r}")
        adv(k, sOUT, 32768)
    skeleton(k, 'TA', 4, NSEG, set_need, dma, lambda: [], comp, epilogue, vFLG, vTMP, vL, toggle, 1, ta_chunks)

def emit_T4(k):
    sH=33; sPAR=34; sC=35
    sQ=36; sK=38; sV=40; sKM=42; sVM=44; sO=46
    vL=0; vFLG=2; vTMP=3; vQA=4; vQB=5; vKMA=6; vFLT=7; vVMA=8
    Q=16; KK=48; KM_=80; V=96; VM_=128
    SM=144; S0=148; S1=152; PT_=156; PM=160; LL=164; MX=168; TM=169
    OO=172
    OP=204
    BM=208; BD=212; ON=216
    TO = k.lab('LtoT4'); LOOP = k.lab('LitT4')
    k(f"""
    s_lshl_b32 s{sT}, s{sIDX}, 2
    s_add_u32 s{sT}, s{sT}, s{sW}
    s_lshr_b32 s{sH}, s{sT}, 1
    s_and_b32 s{sPAR}, s{sT}, 1
    v_and_b32 v240, 63, v0
    v_and_b32 v241, 15, v240      ; n / i
    v_lshrrev_b32 v242, 4, v240   ; g
    v_lshlrev_b32 v{vL}, 4, v240
    v_lshlrev_b32 v{vQA}, 9, v242
    v_lshl_add_u32 v{vQA}, v241, 4, v{vQA}      ; g*512 + n*16
    v_add_u32 v{vQB}, 4096, v{vQA}
    ; KM tr-read address: w*2048 + (8g + i/4)*16 + ((i%4)%2)*8   (+ ks*512 + hf*64)
    v_lshrrev_b32 v243, 2, v241
    v_lshl_add_u32 v243, v242, 3, v243
    v_lshlrev_b32 v243, 4, v243
    v_and_b32 v244, 1, v241
    v_lshl_add_u32 v243, v244, 3, v243
    s_lshl_b32 s{sM0}, s{sW}, 11
    v_add_u32 v{vKMA}, s{sM0}, v243
    v_and_b32 v243, 1, v242
    v_lshlrev_b32 v{vVMA}, 3, v243
    v_lshl_add_u32 v{vVMA}, v241, 4, v{vVMA}     ; i*16 + (g%2)*8
    s_mov_b32 s{sFL}, s{sWS}
    s_mov_b32 s{sFL+1}, s{sWS+1}
    s_mov_b32 s{sC}, {CB}
    s_mul_i32 s{sT}, s{sL}, {F_R(1)-F_R(0)}
    s_add_u32 s{sT}, s{sT}, {F_R(0)}
    s_lshl_b32 s{sT2}, s{sH}, 6
    s_add_u32 s{sT}, s{sT}, s{sT2}
    v_mov_b32 v{vFLG}, s{sT}
    s_mul_i32 s{sT}, s{sL}, {F_T3(1)-F_T3(0)}
    s_add_u32 s{sT}, s{sT}, {F_T3(0)}
    s_lshl_b32 s{sT2}, s{sH}, 7
    s_add_u32 s{sT}, s{sT}, s{sT2}
    v_and_b32 v244, 7, v240
    v_min_u32 v244, 5, v244
    v_lshlrev_b32 v243, 4, v244
    v_add_u32 v{vFLT}, s{sT}, v243
    """)
    base(k, sOWN, F_T4, f"s_lshl_b32 s{sT}, s{sIDX}, 4\ns_add_u32 s{sT}, s{sT}, s{sW}\ns_lshl_b32 s{sT}, s{sT}, 2")
    big = f"s_lshl_b32 s{sT}, s{sH}, 13\ns_lshl_b32 s{sT3}, s{sPAR}, 18\ns_add_u32 s{sT}, s{sT}, s{sT3}"
    small = f"s_lshl_b32 s{sT}, s{sH}, 11\ns_lshl_b32 s{sT3}, s{sPAR}, 16\ns_add_u32 s{sT}, s{sT}, s{sT3}"
    base(k, sQ, QT, big); base(k, sK, KT, big); base(k, sV, VT, big); base(k, sO, OT, big)
    base(k, sKM, KM, small); base(k, sVM, VM, small)
    k(f"v_mov_b32 v243, {NINF}\nv_mov_b32 v244, 0")
    for r in range(4):
        k(f"""
        v_cmp_gt_u32 vcc, 2, v242
        s_nop 1
        v_cndmask_b32 v{BM+r}, v243, v244, vcc
        v_lshlrev_b32 v245, 2, v242
        v_add_u32 v245, {r}, v245
        v_cmp_le_u32 vcc, v245, v241
        s_nop 1
        v_cndmask_b32 v{BD+r}, v243, v244, vcc
        v_mov_b32 v{ON+r}, {ONES}
        """)
    mark(k, 1)
    wait_init(k, 243, 244)
    k(f"s_mov_b32 s{sS}, s{sPAR}")
    k.label(LOOP)
    k(f"s_add_u32 s{sNEED}, s{sS}, 1")
    poll_block(k, vFLT, vTMP, TO)
    def qaddr(ks): return (vQA, ks*2048) if ks < 2 else (vQB, (ks-2)*2048)
    for ks in range(4):
        va, off = qaddr(ks)
        for qt in range(2):
            k(f"global_load_dwordx4 {v(Q + (qt*4+ks)*4,4)}, v{va}, s[{sQ}:{sQ+1}] offset:{off + qt*256} sc1")
        for t in range(2):
            k(f"global_load_dwordx4 {v(KK + (t*4+ks)*4,4)}, v{va}, s[{sK}:{sK+1}] offset:{off + t*256} sc1")
    for ft in range(8):
        va, off = qaddr(ft // 2)
        k(f"global_load_dwordx4 {v(V + ft*4,4)}, v{va}, s[{sV}:{sV+1}] offset:{off + (ft % 2)*256} sc1")
    for p in (sQ, sK, sV): adv(k, p, 2*262144)
    poll_block(k, vFLG, vTMP, TO)
    mark(k, 2, 0)
    mark_val(k, 6, sNEED, 33)
    k(f"s_mov_b32 m0, s{sM0}\ns_nop 0")
    k(f"global_load_lds_dwordx4 v{vL}, s[{sKM}:{sKM+1}] sc1\nglobal_load_lds_dwordx4 v{vL}, s[{sKM}:{sKM+1}] offset:1024 sc1")
    for ft in range(8):
        k(f"global_load_dwordx2 {v(VM_ + ft*2,2)}, v{vVMA}, s[{sVM}:{sVM+1}] offset:{ft*256} sc1")
    for p in (sKM, sVM): adv(k, p, 2*65536)
    k("s_waitcnt vmcnt(8)")
    for ks in range(4):
        for hf in range(2):
            k(f"ds_read_b64_tr_b16 {v(KM_ + ks*4 + 2*hf,2)}, v{vKMA} offset:{ks*512 + hf*64}")
    k("s_waitcnt lgkmcnt(0)")
    for qt in range(2):
        for ks in range(4):
            q = v(Q + (qt*4+ks)*4, 4)
            c = lambda r: "0" if ks == 0 else v(r, 4)
            k(f"v_mfma_f32_16x16x32_bf16 {v(SM,4)}, {v(KM_+ks*4,4)}, {q}, {c(SM)}")
            k(f"v_mfma_f32_16x16x32_bf16 {v(S0,4)}, {v(KK+ks*4,4)}, {q}, {c(S0)}")
            if qt == 1: k(f"v_mfma_f32_16x16x32_bf16 {v(S1,4)}, {v(KK+16+ks*4,4)}, {q}, {c(S1)}")
        k.nop(8)
        n = 8 if qt == 0 else 12
        for r in range(4): k(f"v_fma_f32 v{SM+r}, v{SM+r}, s{sC}, v{BM+r}")
        if qt == 0:
            for r in range(4): k(f"v_fma_f32 v{S0+r}, v{S0+r}, s{sC}, v{BD+r}")
        else:
            for r in range(4): k(f"v_mul_f32 v{S0+r}, s{sC}, v{S0+r}")
            for r in range(4): k(f"v_fma_f32 v{S1+r}, v{S1+r}, s{sC}, v{BD+r}")
        k(f"v_max3_f32 v{MX}, v{SM}, v{SM+1}, v{SM+2}")
        i = 3
        while i < n:
            if i + 1 < n: k(f"v_max3_f32 v{MX}, v{MX}, v{SM+i}, v{SM+i+1}"); i += 2
            else: k(f"v_max_f32 v{MX}, v{MX}, v{SM+i}"); i += 1
        xlane(k, 'v_max_f32', MX, TM)
        for r in range(n): k(f"v_sub_f32 v{SM+r}, v{SM+r}, v{MX}")
        for r in range(n): k(f"v_exp_f32 v{SM+r}, v{SM+r}")
        k("s_nop 0")
        k(f"v_cvt_pk_bf16_f32 v{PM}, v{SM}, v{SM+1}\nv_cvt_pk_bf16_f32 v{PM+1}, v{SM+2}, v{SM+3}")
        k(f"v_cvt_pk_bf16_f32 v{PT_}, v{S0}, v{S0+1}\nv_cvt_pk_bf16_f32 v{PT_+1}, v{S0+2}, v{S0+3}")
        if qt == 1: k(f"v_cvt_pk_bf16_f32 v{PT_+2}, v{S1}, v{S1+1}\nv_cvt_pk_bf16_f32 v{PT_+3}, v{S1+2}, v{S1+3}")
        if qt == 0: k("s_waitcnt vmcnt(0)")
        k("s_nop 1")
        if qt == 0: k(f"v_mfma_f32_16x16x16_bf16 {v(LL,4)}, {v(ON,2)}, {v(PT_,2)}, 0")
        else: k(f"v_mfma_f32_16x16x32_bf16 {v(LL,4)}, {v(ON,4)}, {v(PT_,4)}, 0")
        for ft in range(8):
            o = v(OO + 4*ft, 4)
            if qt == 0: k(f"v_mfma_f32_16x16x16_bf16 {o}, {v(V+4*ft,2)}, {v(PT_,2)}, 0")
            else: k(f"v_mfma_f32_16x16x32_bf16 {o}, {v(V+4*ft,4)}, {v(PT_,4)}, 0")
        k(f"v_mfma_f32_16x16x16_bf16 {v(LL,4)}, {v(ON,2)}, {v(PM,2)}, {v(LL,4)}")
        for ft in range(8):
            o = v(OO + 4*ft, 4)
            k(f"v_mfma_f32_16x16x16_bf16 {o}, {v(VM_+2*ft,2)}, {v(PM,2)}, {o}")
        k(f"v_rcp_f32 v{LL}, v{LL}")
        k.nop(8)
        for u in range(4):
            b = OO + 8*u
            for r in range(8): k(f"v_mul_f32 v{b+r}, v{b+r}, v{LL}")
            d = OP
            for q in range(4): k(f"v_cvt_pk_bf16_f32 v{b+q}, v{b+2*q}, v{b+2*q+1}")
            va, off = qaddr(u)
            k(f"global_store_dwordx4 v{va}, {v(b,4)}, s[{sO}:{sO+1}] offset:{off + qt*256} sc1")
        k("s_nop 1")
    adv(k, sO, 2*262144)
    k(f"""
    s_waitcnt vmcnt(0)
    s_add_u32 s{sT}, s{sS}, 1
    v_mov_b32 v{vTMP}, s{sT}
    s_mov_b64 exec, 1
    global_store_dword v{vL}, v{vTMP}, s[{sOWN}:{sOWN+1}] sc1
    s_mov_b64 exec, -1
    """)
    mark_val(k, 4, sT, 33)
    k(f"s_add_u32 s{sS}, s{sS}, 2")
    mark(k, 3, 2)
    k(f"""
    s_cmp_lt_u32 s{sS}, {NSEG}
    s_cbranch_scc1 {LOOP}
    """)
    mark(k, 5); diag_dump(k, 2, 3)
    k("s_waitcnt vmcnt(0)\ns_endpgm")
    timeout_block(k, TO, 6)

def ln_stats(k, packed, npk, SUM, SQ, tmp, reduce_code):
    k(f"v_mov_b32 v{SUM}, 0\nv_mov_b32 v{SQ}, 0\ns_mov_b32 s{sT}, {ONES}")
    for q in range(npk):
        k(f"v_dot2_f32_bf16 v{SUM}, v{packed+q}, s{sT}, v{SUM}\nv_dot2_f32_bf16 v{SQ}, v{packed+q}, v{packed+q}, v{SQ}")
    k.nop(3)
    reduce_code()
    k(f"""
    v_mul_f32 v{SUM}, 0x3b000000, v{SUM}
    v_mul_f32 v{SQ}, 0x3b000000, v{SQ}
    v_fma_f32 v{SQ}, -v{SUM}, v{SUM}, v{SQ}
    v_max_f32 v{SQ}, 0, v{SQ}
    v_add_f32 v{SQ}, 0x3727c5ac, v{SQ}
    v_rsq_f32 v{SQ}, v{SQ}
    s_nop 0
    """)
def ln_apply(k, packed, npk, MEAN, RSTD, out, t0, t1):
    for q in range(npk):
        k(f"""
        v_lshlrev_b32 v{t0}, 16, v{packed+q}
        v_and_b32 v{t1}, 0xffff0000, v{packed+q}
        v_sub_f32 v{t0}, v{t0}, v{MEAN}
        v_sub_f32 v{t1}, v{t1}, v{MEAN}
        v_mul_f32 v{t0}, v{t0}, v{RSTD}
        v_mul_f32 v{t1}, v{t1}, v{RSTD}
        v_cvt_pk_bf16_f32 v{out+q}, v{t0}, v{t1}
        """)

OUTFLAG = ['nt']
def emit_T6(k):
    sPAR=33; sHF=34; sPT=36
    sX1=44; sXR=46; sXN=48; sOutP=50
    vL=0; vFLG=2; vTMP=3; vPA=4; vXA=5; vOA=6; vLW=7; vLR=8
    P=16
    X=144
    XN=160
    SUM=176; SQ=177; T0=178; T1=179; R4=180
    TO = k.lab('LtoT6'); LOOP = k.lab('LitT6')
    k(f"""
    s_lshr_b32 s{sPAR}, s{sIDX}, 1
    s_and_b32 s{sHF}, s{sIDX}, 1
    v_and_b32 v240, 63, v0
    v_and_b32 v241, 15, v240          ; tok
    v_lshrrev_b32 v242, 4, v240       ; l/16
    s_lshl_b32 s{sT}, s{sW}, 2
    v_add_u32 v243, s{sT}, v242       ; cg 0..15
    s_lshl_b32 s{sT}, s{sHF}, 4
    v_add_u32 v244, s{sT}, v241
    v_lshlrev_b32 v{vL}, 4, v240
    v_lshlrev_b32 v{vPA}, 12, v243
    v_lshl_add_u32 v{vPA}, v244, 4, v{vPA}
    v_lshlrev_b32 v{vXA}, 11, v243
    v_lshl_add_u32 v{vXA}, v244, 4, v{vXA}
    v_lshlrev_b32 v{vOA}, 10, v244
    v_lshl_add_u32 v{vOA}, v243, 6, v{vOA}
    s_lshl_b32 s{sT}, s{sW}, 7
    v_lshlrev_b32 v{vLR}, 3, v241
    v_add_u32 v{vLW}, s{sT}, v{vLR}
    s_mul_i32 s{sT}, s{sL}, {F_T5(1)-F_T5(0)}
    s_add_u32 s{sT}, s{sT}, {F_T5(0)}
    v_and_b32 v{vFLG}, 3, v240
    v_lshlrev_b32 v{vFLG}, 2, v{vFLG}
    v_lshrrev_b32 v245, 2, v240
    v_lshl_add_u32 v{vFLG}, v245, 6, v{vFLG}
    v_add_u32 v{vFLG}, s{sT}, v{vFLG}
    s_mov_b32 s{sFL}, s{sWS}
    s_mov_b32 s{sFL+1}, s{sWS+1}
    """)
    base(k, sOWN, F_T6, f"s_lshl_b32 s{sT}, s{sIDX}, 6")
    for kq in range(4):
        base(k, sPT + 2*kq, PT, f"s_lshl_b32 s{sT}, s{sPAR}, 17\ns_add_u32 s{sT}, s{sT}, {kq*32768}")
    base(k, sX1, X1, f"s_lshl_b32 s{sT}, s{sPAR}, 15")
    l1 = lambda l: XR(1)
    base(k, sXR, l1, f"s_lshl_b32 s{sT}, s{sPAR}, 15")
    l2 = lambda l: XNA(1)
    base(k, sXN, l2, f"s_lshl_b32 s{sT}, s{sPAR}, 15")
    k(f"""
    s_load_dwordx2 s[{sOutP}:{sOutP+1}], s[0:1], {KA_OUT}
    s_lshl_b32 s{sT}, s{sPAR}, 15
    s_waitcnt lgkmcnt(0)
    s_add_u32 s{sOutP}, s{sOutP}, s{sT}
    s_addc_u32 s{sOutP+1}, s{sOutP+1}, 0
    """)
    mark(k, 1)
    wait_init(k, 245, 246)
    k(f"s_mov_b32 s{sS}, s{sPAR}")
    k.label(LOOP)
    k(f"s_add_u32 s{sNEED}, s{sS}, 1")
    poll_block(k, vFLG, vTMP, TO)
    mark(k, 2, 0)
    mark_val(k, 6, sNEED, 33)
    for j in range(4):
        k(f"global_load_dwordx4 {v(X+4*j,4)}, v{vXA}, s[{sX1}:{sX1+1}] offset:{j*512} sc1")
    for kq in range(4):
        for j in range(4):
            k(f"global_load_dwordx4 {v(P+16*kq+4*j,4)}, v{vXA}, s[{sPT+2*kq}:{sPT+2*kq+1}] offset:{j*512} sc1")
        adv(k, sPT + 2*kq, 2*131072)
    adv(k, sX1, 2*32768)
    ACC = 96
    k(f"s_mov_b32 s{sT}, 0x00003f80\ns_mov_b32 s{sT2}, 0x3f800000")
    srcs = [X] + [P + 16*kq for kq in range(4)]
    for n, b in enumerate(srcs):
        k(f"s_waitcnt vmcnt({16 - 4*n})")
        for q in range(16):
            c0 = "0" if n == 0 else f"v{ACC+2*q}"; c1 = "0" if n == 0 else f"v{ACC+2*q+1}"
            k(f"v_dot2_f32_bf16 v{ACC+2*q}, v{b+q}, s{sT}, {c0}\nv_dot2_f32_bf16 v{ACC+2*q+1}, v{b+q}, s{sT2}, {c1}")
    k("s_nop 2")
    for q in range(16): k(f"v_cvt_pk_bf16_f32 v{X+q}, v{ACC+2*q}, v{ACC+2*q+1}")
    lo = k.lab('Lt6o'); le = k.lab('Lt6e')
    k(f"s_cmp_lg_u32 s{sL}, 0\ns_cbranch_scc1 {lo}")
    for j in range(4):
        k(f"global_store_dwordx4 v{vXA}, {v(X+4*j,4)}, s[{sXR}:{sXR+1}] offset:{j*512} sc1")
    def red():
        xlane(k, 'v_add_f32', SUM, T0); xlane(k, 'v_add_f32', SQ, T0)
        k(f"ds_write_b64 v{vLW}, v[{SUM}:{SQ}]\ns_waitcnt lgkmcnt(0)\ns_barrier")
        for w in range(4): k(f"ds_read_b64 {v(R4+2*w,2)}, v{vLR} offset:{w*128}")
        k(f"""
        s_waitcnt lgkmcnt(0)
        v_add_f32 v{R4}, v{R4}, v{R4+2}
        v_add_f32 v{R4+1}, v{R4+1}, v{R4+3}
        v_add_f32 v{R4+4}, v{R4+4}, v{R4+6}
        v_add_f32 v{R4+5}, v{R4+5}, v{R4+7}
        v_add_f32 v{SUM}, v{R4}, v{R4+4}
        v_add_f32 v{SQ}, v{R4+1}, v{R4+5}
        """)
    ln_stats(k, X, 16, SUM, SQ, T0, red)
    ln_apply(k, X, 16, SUM, SQ, XN, T0, T1)
    for j in range(4):
        k(f"global_store_dwordx4 v{vXA}, {v(XN+4*j,4)}, s[{sXN}:{sXN+1}] offset:{j*512} sc1")
    k(f"s_branch {le}")
    k.label(lo)
    for j in range(4):
        k(f"global_store_dwordx4 v{vOA}, {v(X+4*j,4)}, s[{sOutP}:{sOutP+1}] offset:{j*16} {OUTFLAG[0]}")
    k.label(le)
    adv(k, sXR, 2*32768); adv(k, sXN, 2*32768); adv(k, sOutP, 2*32768)
    k("s_waitcnt vmcnt(0)\ns_barrier")
    k(f"s_add_u32 s{sT3}, s{sS}, 1")
    publish(k, vL, vTMP, sT3, True)
    k(f"""
    s_add_u32 s{sS}, s{sS}, 2
    """)
    mark(k, 3, 2)
    k(f"""
    s_cmp_lt_u32 s{sS}, {NSEG}
    s_cbranch_scc1 {LOOP}
    """)
    mark(k, 5); diag_dump(k, 2, 3)
    k("s_waitcnt vmcnt(0)\ns_endpgm")
    timeout_block(k, TO, 7)

PF = [True]
def emit_K0(k):
    END = k.lab('Lk0e')
    vXA=4; vCA=5; vLW=6; vLR=7; X=16; XN=24; SUM=32; SQ=33; T0=34; T1=35; R4=36
    k(f"""
    s_cmp_ge_u32 s2, 256
    s_cbranch_scc1 {END}
    s_load_dwordx2 s[{sWS}:{sWS+1}], s[0:1], {KA_WS}
    s_load_dwordx2 s[10:11], s[0:1], {KA_X}
    s_load_dwordx2 s[12:13], s[0:1], {KA_MEM0}
    v_readfirstlane_b32 s{sW}, v0
    s_nop 1
    s_lshr_b32 s{sW}, s{sW}, 6
    v_and_b32 v40, 63, v0
    v_and_b32 v41, 7, v40            ; tok
    v_lshrrev_b32 v42, 3, v40
    s_lshl_b32 s{sT}, s{sW}, 3
    v_add_u32 v42, s{sT}, v42
    s_lshl_b32 s{sT}, s2, 3
    v_add_u32 v43, s{sT}, v41
    v_lshlrev_b32 v{vXA}, 10, v43
    v_lshl_add_u32 v{vXA}, v42, 5, v{vXA}
    v_lshrrev_b32 v44, 5, v43
    v_lshlrev_b32 v44, 15, v44                ; seg*32768
    v_and_b32 v45, 31, v43
    v_lshl_add_u32 v44, v45, 4, v44
    v_lshl_add_u32 v{vCA}, v42, 10, v44
    s_lshl_b32 s{sT}, s{sW}, 6
    v_lshlrev_b32 v{vLR}, 3, v41
    v_add_u32 v{vLW}, s{sT}, v{vLR}
    s_waitcnt lgkmcnt(0)
    global_load_dwordx4 {v(X,4)}, v{vXA}, s[10:11]
    global_load_dwordx4 {v(X+4,4)}, v{vXA}, s[10:11] offset:16
    CODEPF
    ; fills
    v_mov_b32 v48, -1
    v_mov_b32 v49, -1
    v_mov_b32 v50, -1
    v_mov_b32 v51, -1
    v_lshlrev_b32 v52, 4, v0                  ; tid*16
    s_lshl_b32 s{sT}, s2, 13
    s_add_u32 s{sT}, s{sT}, {PA(0)}
    v_add_u32 v53, s{sT}, v52
    global_store_dwordx4 v53, v[48:51], s[{sWS}:{sWS+1}]
    v_add_u32 v53, 4096, v53
    global_store_dwordx4 v53, v[48:51], s[{sWS}:{sWS+1}]
    s_lshr_b32 s{sT}, s2, 7
    s_mul_i32 s{sT}, s{sT}, {MB(1)-MB(0)}
    s_and_b32 s{sT2}, s2, 127
    s_lshl_b32 s{sT2}, s{sT2}, 12
    s_add_u32 s{sT}, s{sT}, s{sT2}
    s_add_u32 s{sT}, s{sT}, {MB(0)+8192}
    v_add_u32 v53, s{sT}, v52
    global_store_dwordx4 v53, v[48:51], s[{sWS}:{sWS+1}]
    """)
    nf = k.lab('Lnf'); nm = k.lab('Lnm')
    k(f"""
    s_cmp_lg_u32 s{sW}, 0
    s_cbranch_scc1 {nf}
    v_mov_b32 v54, 0
    v_lshlrev_b32 v55, 2, v40
    s_lshl_b32 s{sT}, s2, 8
    v_add_u32 v55, s{sT}, v55
    global_store_dword v55, v54, s[{sWS}:{sWS+1}]
    """)
    k.label(nf)
    k(f"""
    s_cmp_ge_u32 s2, 4
    s_cbranch_scc1 {nm}
    s_and_b32 s{sT}, s2, 1
    s_lshl_b32 s{sT}, s{sT}, 12
    v_add_u32 v56, s{sT}, v52
    global_load_dwordx4 v[60:63], v56, s[12:13]
    s_lshr_b32 s{sT}, s2, 1
    s_mul_i32 s{sT}, s{sT}, {MB(1)-MB(0)}
    s_add_u32 s{sT}, s{sT}, {MB(0)}
    v_add_u32 v56, s{sT}, v56
    s_waitcnt vmcnt(0)
    global_store_dwordx4 v56, v[60:63], s[{sWS}:{sWS+1}]
    """)
    k.label(nm)
    k(f"""
    s_waitcnt vmcnt(0)
    v_add_u32 v53, {XR(0)}, v{vCA}
    global_store_dwordx4 v53, {v(X,4)}, s[{sWS}:{sWS+1}]
    global_store_dwordx4 v53, {v(X+4,4)}, s[{sWS}:{sWS+1}] offset:512
    """)
    def red():
        for val in (SUM, SQ):
            k(f"s_nop 1\nv_add_f32_dpp v{val}, v{val}, v{val} row_ror:8 row_mask:0xf bank_mask:0xf")
            xlane(k, 'v_add_f32', val, T0)
        k(f"ds_write_b64 v{vLW}, v[{SUM}:{SQ}]\ns_waitcnt lgkmcnt(0)\ns_barrier")
        for w in range(4): k(f"ds_read_b64 {v(R4+2*w,2)}, v{vLR} offset:{w*64}")
        k(f"""
        s_waitcnt lgkmcnt(0)
        v_add_f32 v{R4}, v{R4}, v{R4+2}
        v_add_f32 v{R4+1}, v{R4+1}, v{R4+3}
        v_add_f32 v{R4+4}, v{R4+4}, v{R4+6}
        v_add_f32 v{R4+5}, v{R4+5}, v{R4+7}
        v_add_f32 v{SUM}, v{R4}, v{R4+4}
        v_add_f32 v{SQ}, v{R4+1}, v{R4+5}
        """)
    ln_stats(k, X, 8, SUM, SQ, T0, red)
    ln_apply(k, X, 8, SUM, SQ, XN, T0, T1)
    k(f"""
    v_add_u32 v53, {XNA(0)}, v{vCA}
    global_store_dwordx4 v53, {v(XN,4)}, s[{sWS}:{sWS+1}]
    global_store_dwordx4 v53, {v(XN+4,4)}, s[{sWS}:{sWS+1}] offset:512
    s_waitcnt vmcnt(0)
    """)
    k.label(END)
    k("s_endpgm")
    txt = '\n'.join(k.lines)
    if PF[0]:
        pf = f"""s_getpc_b64 s[14:15]
Lk0pc:
s_add_u32 s14, s14, CODE_BEGIN-Lk0pc
s_addc_u32 s15, s15, 0
s_lshr_b32 s{sT}, s2, 3
s_and_b32 s{sT}, s{sT}, 31
s_mul_i32 s{sT}, s{sT}, ((CODE_END-CODE_BEGIN+2047)/2048+31)/32*2048
v_mul_u32_u24 v57, ((CODE_END-CODE_BEGIN+2047)/2048+31)/32*8, v0
v_add_u32 v57, s{sT}, v57
s_mov_b32 s{sT2}, CODE_END-CODE_BEGIN-4
v_min_u32 v57, s{sT2}, v57
v_and_b32 v57, -4, v57
global_load_dword v58, v57, s[14:15]"""
    else: pf = ''
    i = k.lines.index('CODEPF')
    k.lines[i:i+1] = [l for l in pf.split('\n') if l]


def emit_init(k, s_iw):
    vXA=4; vOA=5; vLW=6; vLR=7; X=16; XN=32; SUM=48; SQ=49; T0=50; T1=51; R4=52
    sX=10; sM=12; sD=14
    k(f"""
    s_load_dwordx2 s[{sX}:{sX+1}], s[0:1], {KA_X}
    s_load_dwordx2 s[{sM}:{sM+1}], s[0:1], {KA_MEM0}
    s_load_dwordx2 s[{sD}:{sD+1}], s[0:1], {KA_DBG}
    v_and_b32 v240, 63, v0
    v_and_b32 v241, 15, v240          ; tok
    v_lshrrev_b32 v242, 4, v240
    s_lshl_b32 s{sT}, s{sW}, 2
    v_add_u32 v243, s{sT}, v242       ; cg 0..15
    s_lshl_b32 s{sT}, s{s_iw}, 4
    v_add_u32 v244, s{sT}, v241
    v_lshlrev_b32 v{vOA}, 10, v244
    v_lshl_add_u32 v{vOA}, v243, 6, v{vOA}
    v_lshrrev_b32 v245, 5, v244
    v_lshlrev_b32 v245, 15, v245
    v_and_b32 v246, 31, v244
    v_lshl_add_u32 v245, v246, 4, v245
    v_lshl_add_u32 v{vXA}, v243, 11, v245
    s_lshl_b32 s{sT}, s{sW}, 7
    v_lshlrev_b32 v{vLR}, 3, v241
    v_add_u32 v{vLW}, s{sT}, v{vLR}
    s_waitcnt lgkmcnt(0)
    """)
    for j in range(4): k(f"global_load_dwordx4 {v(X+4*j,4)}, v{vOA}, s[{sX}:{sX+1}] offset:{j*16}")
    k(f"""
    v_mov_b32 v60, -1
    v_mov_b32 v61, -1
    v_mov_b32 v62, -1
    v_mov_b32 v63, -1
    v_lshlrev_b32 v64, 4, v0                  ; tid*16
    s_lshr_b32 s{sT}, s{s_iw}, 6
    s_mul_i32 s{sT}, s{sT}, {PA(1)-PA(0)}
    s_and_b32 s{sT2}, s{s_iw}, 63
    s_lshl_b32 s{sT2}, s{sT2}, 12
    s_add_u32 s{sT}, s{sT}, s{sT2}
    s_add_u32 s{sT}, s{sT}, {PA(0)}
    v_add_u32 v65, s{sT}, v64
    global_store_dwordx4 v65, v[60:63], s[{sWS}:{sWS+1}] sc1
    """)
    nf = k.lab('Lnf'); nm = k.lab('Lnm'); ns = k.lab('Lns')
    k(f"""
    s_cmp_lg_u32 s{sW}, 0
    s_cbranch_scc1 {nf}
    v_mov_b32 v66, 0
    v_lshlrev_b32 v67, 2, v240
    s_lshl_b32 s{sT}, s{s_iw}, 8
    v_add_u32 v67, s{sT}, v67
    global_store_dword v67, v66, s[{sWS}:{sWS+1}] sc1
    """)
    k.label(nf)
    k(f"""
    s_cmp_ge_u32 s{s_iw}, 8
    s_cbranch_scc1 {nm}
    s_and_b32 s{sT}, s{s_iw}, 1
    s_lshl_b32 s{sT}, s{sT}, 12
    v_add_u32 v68, s{sT}, v64
    s_lshr_b32 s{sT}, s{s_iw}, 2
    s_mul_i32 s{sT}, s{sT}, {MB(1)-MB(0)}
    s_add_u32 s{sT}, s{sT}, {MB(0)}
    s_bitcmp1_b32 s{s_iw}, 1
    s_cbranch_scc1 {ns}
    global_load_dwordx4 v[72:75], v68, s[{sM}:{sM+1}]
    v_add_u32 v68, s{sT}, v68
    s_waitcnt vmcnt(0)
    global_store_dwordx4 v68, v[72:75], s[{sWS}:{sWS+1}] sc1
    s_branch {nm}
    """)
    k.label(ns)
    k(f"""
    s_add_u32 s{sT}, s{sT}, 8192
    v_add_u32 v68, s{sT}, v68
    global_store_dwordx4 v68, v[60:63], s[{sWS}:{sWS+1}] sc1
    """)
    k.label(nm)
    k(f"s_waitcnt vmcnt(0)")
    mark(k, 7)
    k(f"v_add_u32 v65, {XR(0)}, v{vXA}")
    for j in range(4): k(f"global_store_dwordx4 v65, {v(X+4*j,4)}, s[{sWS}:{sWS+1}] offset:{j*512} sc1")
    def red():
        xlane(k, 'v_add_f32', SUM, T0); xlane(k, 'v_add_f32', SQ, T0)
        k(f"ds_write_b64 v{vLW}, v[{SUM}:{SQ}]\ns_waitcnt lgkmcnt(0)\ns_barrier")
        for w in range(4): k(f"ds_read_b64 {v(R4+2*w,2)}, v{vLR} offset:{w*128}")
        k(f"""
        s_waitcnt lgkmcnt(0)
        v_add_f32 v{R4}, v{R4}, v{R4+2}
        v_add_f32 v{R4+1}, v{R4+1}, v{R4+3}
        v_add_f32 v{R4+4}, v{R4+4}, v{R4+6}
        v_add_f32 v{R4+5}, v{R4+5}, v{R4+7}
        v_add_f32 v{SUM}, v{R4}, v{R4+4}
        v_add_f32 v{SQ}, v{R4+1}, v{R4+5}
        """)
    ln_stats(k, X, 16, SUM, SQ, T0, red)
    ln_apply(k, X, 16, SUM, SQ, XN, T0, T1)
    k(f"v_add_u32 v65, {XNA(0)}, v{vXA}")
    for j in range(4): k(f"global_store_dwordx4 v65, {v(XN+4*j,4)}, s[{sWS}:{sWS+1}] offset:{j*512} sc1")
    sk = k.lab('Linits'); sk2 = k.lab('Linits2')
    k(f"""
    s_waitcnt vmcnt(0)
    s_barrier
    s_cmp_lg_u32 s{sW}, 0
    s_cbranch_scc1 {sk}
    s_mov_b64 exec, 1
    v_mov_b32 v66, 16
    v_mov_b32 v67, 1
    global_atomic_add v68, v66, v67, s[{sD}:{sD+1}] sc0 sc1
    s_waitcnt vmcnt(0)
    v_cmp_eq_u32 vcc, 127, v68
    s_cbranch_vccz {sk2}
    v_mov_b32 v66, 248
    global_store_dword v66, v67, s[{sD}:{sD+1}] sc1
    s_waitcnt vmcnt(0)
{sk2}:
    s_mov_b64 exec, -1
    """)
    k.label(sk)

def emit_l2_prefetch(k):
    k(f"""
    s_load_dwordx2 s[10:11], s[0:1], {KA_WQKV}
    s_load_dwordx2 s[12:13], s[0:1], {KA_WOA}
    s_lshl_b32 s{sT}, s{sIDX}, 2
    s_add_u32 s{sT}, s{sT}, s{sW}              ; wave 0..63
    v_and_b32 v4, 63, v0
    v_lshlrev_b32 v4, 6, v4                    ; lane*64
    s_mul_i32 s{sT2}, s{sT}, 24576
    v_add_u32 v5, s{sT2}, v4
    s_lshl_b32 s{sT2}, s{sT}, 13
    v_add_u32 v6, s{sT2}, v4
    s_waitcnt lgkmcnt(0)
    """)
    for j in range(6):
        k(f"global_load_dword v{8+j}, v5, s[10:11]\nv_add_u32 v5, 4096, v5")
    for j in range(2):
        k(f"global_load_dword v{16+j}, v6, s[12:13]\nv_add_u32 v6, 4096, v6")
    k("s_waitcnt vmcnt(0)")
```

```python
from common import *
vL=0; vRD=1; vFLG=2; vTMP=3; vA=8; vACC=32
ONES=0x3f803f80

def lane_ids(k):
    k(f"""
    v_and_b32 v40, 63, v0
    v_and_b32 v41, 31, v40
    v_lshrrev_b32 v42, 5, v40
    v_and_b32 v43, 15, v40
    v_lshrrev_b32 v44, 4, v40
    """)

def load_W64(k, ka, row_stride, col_byte_code):
    k(f"""
    v_lshrrev_b32 v45, 3, v40
    v_mul_u32_u24 v45, {row_stride}, v45
    v_and_b32 v46, 7, v40
    v_lshl_add_u32 v45, v46, 4, v45
    ; tr read address: rows 8*kh + i/4 ; cols 16*(gamma%2) + 4*(i%4)
    v_lshrrev_b32 v46, 2, v43
    v_lshl_add_u32 v46, v42, 3, v46         ; 8kh + i/4
    v_lshlrev_b32 v46, 7, v46               ; *128
    v_and_b32 v47, 1, v44
    v_lshl_add_u32 v46, v47, 5, v46         ; + 32B*(gamma%2)
    v_and_b32 v47, 3, v43
    v_lshl_add_u32 v46, v47, 3, v46         ; + 8B*(i%4)
    s_lshl_b32 s{sT2}, s{sW}, 15
    v_add_u32 v46, s{sT2}, v46
    """)
    for rnd in range(2):
        k(f"s_load_dwordx2 s[{sP}:{sP+1}], s[0:1], {ka}")
        k(col_byte_code)
        k(f"""
        s_add_u32 s{sT}, s{sT}, {rnd*256*row_stride}
        s_lshl_b32 s{sT3}, s{sW}, 15
        s_waitcnt lgkmcnt(0)
        s_add_u32 s{sP}, s{sP}, s{sT}
        s_addc_u32 s{sP+1}, s{sP+1}, 0
        """)
        for u in range(32):
            k(f"s_mov_b32 m0, s{sT3}\ns_add_u32 s{sT3}, s{sT3}, 1024\nglobal_load_lds_dwordx4 v45, s[{sP}:{sP+1}]")
            adv(k, sP, 8*row_stride)
        k("s_waitcnt vmcnt(0)")
        n = 0
        for ksl in range(16):
            ks = rnd*16 + ksl
            for ct in range(2):
                for hf in range(2):
                    r = (ct*32 + ks)*4 + 2*hf
                    k(f"ds_read_b64_tr_b16 {a(r,2)}, v46 offset:{(16*ksl + 4*hf)*128 + ct*64}")
                    n += 1
                    if n % 8 == 0: k("s_waitcnt lgkmcnt(0)")
        k("s_waitcnt lgkmcnt(0)")

def gemm64_compute(k, hook, wA):
    def rd(ks): k(f"ds_read_b128 {v(vA + 4*(ks%4),4)}, v{vRD} offset:{ks*1024}")
    for ks in range(3): rd(ks)
    for ks in range(32):
        if ks + 3 < 32: rd(ks + 3)
        k(f"s_waitcnt lgkmcnt({min(3, 31-ks)})")
        x = v(vA + 4*(ks % 4), 4)
        for ct in range(2):
            w = a((ct*32 + ks)*4, 4); acc = v(vACC + 16*ct, 16)
            c = "0" if ks == 0 else acc
            if wA: k(f"v_mfma_f32_32x32x16_bf16 {acc}, {w}, {x}, {c}")
            else: k(f"v_mfma_f32_32x32x16_bf16 {acc}, {x}, {w}, {c}")
        if ks < 8: hook(100 + ks)
        if ks == 12: hook(0)
        if 13 <= ks < 21: hook(10 + ks - 13)
        if ks == 24: hook(1)

def toggle32k(k):
    k(f"v_xor_b32 v{vRD}, 0x8000, v{vRD}\ns_xor_b32 s{sM0}, s{sM0}, 0x8000")
def dma_linear(k, nkb, item_stride):
    for blk in range(nkb // 4):
        k(f"s_add_u32 s{sT}, s{sM0}, {blk*4096}\ns_mov_b32 m0, s{sT}\ns_nop 0")
        for u in range(4):
            k(f"global_load_lds_dwordx4 v{vL}, s[{sIN}:{sIN+1}] offset:{u*1024} sc1")
        adv(k, sIN, 4096 if blk < nkb // 4 - 1 else item_stride - (nkb - 4) * 1024)
def dma_chunks(nkb, item_stride):
    ch = []
    for blk in range(nkb // 4):
        for u in range(4):
            c = ""
            if u == 0: c += f"s_add_u32 s{sT}, s{sM0}, {blk*4096}\ns_mov_b32 m0, s{sT}\ns_nop 0\n"
            c += f"global_load_lds_dwordx4 v{vL}, s[{sIN}:{sIN+1}] offset:{u*1024} sc1"
            if u == 3:
                n = 4096 if blk < nkb // 4 - 1 else item_stride - (nkb - 4) * 1024
                c += f"\ns_add_u32 s{sIN}, s{sIN}, {n}\ns_addc_u32 s{sIN+1}, s{sIN+1}, 0"
            ch.append(c)
    return ch
def dma32k(k): dma_linear(k, 8, 32768)

def init_bufs32k(k):
    k(f"""
    v_lshlrev_b32 v{vL}, 4, v40
    v_xor_b32 v{vRD}, 0x8000, v{vL}
    s_lshl_b32 s{sM0}, s{sW}, 13
    """)

def emit_T3(k, vtype):
    name = 'T3v' if vtype else 'T3q'
    sHH = 33; sMU = 34
    k(f"""
    s_lshr_b32 s{sMU}, s{sIDX}, 4
    s_and_b32 s{sT}, s{sIDX}, 15
    s_lshl_b32 s{sT}, s{sT}, 1
    s_lshr_b32 s{sT2}, s{sW}, 1
    s_add_u32 s{sHH}, s{sT}, s{sT2}          ; head
    """)
    lane_ids(k)
    wait_start(k, 2, 3, F_R(0), 1, GATE['T3'])
    colcode = f"s_lshl_b32 s{sT}, s{sHH}, 8\ns_and_b32 s{sT2}, s{sW}, 1\ns_lshl_b32 s{sT2}, s{sT2}, 7\ns_add_u32 s{sT}, s{sT}, s{sT2}"
    if vtype:
        load_W64(k, KA_WV, 8192, colcode)
    else:
        lq = k.lab('Lq'); le = k.lab('Le')
        k(f"s_cmp_lg_u32 s{sMU}, 0\ns_cbranch_scc1 {lq}")
        load_W64(k, KA_WQ, 8192, colcode)
        k(f"s_branch {le}")
        k.label(lq)
        load_W64(k, KA_WK, 8192, colcode)
        k.label(le)
    vCS = 64
    for r in range(4): k(f"v_mov_b32 v{vA+r}, {ONES}")
    k("s_nop 1")
    for ks in range(32):
        for ct in range(2):
            w = a((ct*32 + ks)*4, 4); acc = v(vCS + 16*ct, 16); c = "0" if ks == 0 else acc
            if not vtype: k(f"v_mfma_f32_32x32x16_bf16 {acc}, {w}, {v(vA,4)}, {c}")
            else: k(f"v_mfma_f32_32x32x16_bf16 {acc}, {v(vA,4)}, {w}, {c}")
    k.nop(12)
    k("s_barrier")
    init_bufs32k(k)
    k(f"""
    s_mul_i32 s{sT}, s{sL}, {F_TW(1)-F_TW(0)}
    s_add_u32 s{sT}, s{sT}, {F_TW(0)}
    v_and_b32 v{vFLG}, 3, v40
    v_lshlrev_b32 v{vFLG}, 2, v{vFLG}
    v_bfe_u32 v47, v40, 2, 1
    v_lshl_add_u32 v{vFLG}, v47, 6, v{vFLG}
    v_add_u32 v{vFLG}, s{sT}, v{vFLG}
    s_mov_b32 s{sFL}, s{sWS}
    s_mov_b32 s{sFL+1}, s{sWS+1}
    """)
    base(k, sOWN, F_T3, f"s_sub_u32 s{sT3}, s{sMU}, 1\ns_lshl_b32 s{sT3}, s{sT3}, 1\ns_cmp_eq_u32 s{sMU}, 0\ns_cselect_b32 s{sT3}, 4, s{sT3}\n"
                        f"s_and_b32 s{sT}, s{sW}, 1\ns_add_u32 s{sT3}, s{sT3}, s{sT}\ns_lshl_b32 s{sT3}, s{sT3}, 4\ns_lshl_b32 s{sT}, s{sHH}, 7\ns_add_u32 s{sT}, s{sT}, s{sT3}")
    base(k, sIN, X1, f"s_lshl_b32 s{sT}, s{sW}, 13")
    base(k, sAX1, ST1)
    def outbase(fn):
        base(k, sOUT, fn, f"s_lshl_b32 s{sT}, s{sHH}, 13\ns_and_b32 s{sT3}, s{sW}, 1\ns_lshl_b32 s{sT3}, s{sT3}, 12\ns_add_u32 s{sT}, s{sT}, s{sT3}")
    if vtype: outbase(VT)
    else:
        lq = k.lab('Lq'); le = k.lab('Le')
        k(f"s_cmp_lg_u32 s{sMU}, 0\ns_cbranch_scc1 {lq}")
        outbase(QT); k(f"s_branch {le}"); k.label(lq); outbase(KT); k.label(le)
    vST = 4
    vVS0 = 5; vVS1 = 6; vSC = 7
    k(f"""
    v_lshlrev_b32 v{vST}, 10, v42
    v_lshl_add_u32 v{vST}, v41, 3, v{vST}
    v_lshlrev_b32 v{vVS0}, 11, v42
    v_lshl_add_u32 v{vVS0}, v41, 4, v{vVS0}
    v_add_u32 v{vVS1}, 4096, v{vVS0}
    s_lshl_b32 s{sT}, s{sW}, 8
    s_add_u32 s{sT}, s{sT}, 65536
    v_lshlrev_b32 v{vSC}, 2, v41
    v_add_u32 v{vSC}, s{sT}, v{vSC}
    v_lshlrev_b32 v45, 4, v42
    v_add_u32 v45, s{sT}, v45
    v_mov_b32 v31, v45
    """)
    vSR = 31
    vS = 24
    RS = 96; MR = 97
    def set_need(k): k(f"s_add_u32 s{sNEED}, s{sT3}, 1")
    def item_start():
        ch = [f"global_load_dwordx2 {v(100+2*p,2)}, v{vST}, s[{sAX1}:{sAX1+1}] offset:{p*256} sc1" for p in range(4)]
        ch.append(f"s_add_u32 s{sAX1}, s{sAX1}, 2048\ns_addc_u32 s{sAX1+1}, s{sAX1+1}, 0")
        return ch
    def compute(k, hook): gemm64_compute(k, hook, not vtype)
    def epilogue(k):
        k(f"""
        v_add_f32 v100, v100, v102
        v_add_f32 v101, v101, v103
        v_add_f32 v104, v104, v106
        v_add_f32 v105, v105, v107
        v_add_f32 v100, v100, v104
        v_add_f32 v101, v101, v105
        v_mov_b32 v102, v100
        v_mov_b32 v103, v101
        s_nop 1
        v_permlane32_swap_b32 v100, v102
        v_permlane32_swap_b32 v101, v103
        v_add_f32 v100, v100, v102
        v_add_f32 v101, v101, v103
        v_mul_f32 v100, 0x3b000000, v100        ; mean
        v_mul_f32 v101, 0x3b000000, v101        ; E[x^2]
        v_fma_f32 v101, -v100, v100, v101       ; var
        v_max_f32 v101, 0, v101
        v_add_f32 v101, 0x3727c5ac, v101        ; + 1e-5
        v_rsq_f32 v{RS}, v101
        s_nop 0
        v_mul_f32 v{MR}, v100, v{RS}
        """)
        if not vtype:
            for r in range(0, 32, 2):
                k(f"v_pk_mul_f32 {v(vACC+r,2)}, {v(vACC+r,2)}, {v(RS,2)} op_sel_hi:[1,0]")
            for r in range(0, 32, 2):
                k(f"v_pk_fma_f32 {v(vACC+r,2)}, {v(vCS+r,2)}, {v(RS,2)}, {v(vACC+r,2)} op_sel:[0,1,0] op_sel_hi:[1,1,1] neg_lo:[0,1,0] neg_hi:[0,1,0]")
            for ct in range(2):
                for jp in range(2):
                    b = vACC + 16*ct + 8*jp; d = 100 + 4*(2*ct+jp)
                    for q in range(4): k(f"v_cvt_pk_bf16_f32 v{d+q}, v{b+2*q}, v{b+2*q+1}")
                    k("s_nop 1")
                    k(f"v_permlane32_swap_b32 v{d}, v{d+2}\nv_permlane32_swap_b32 v{d+1}, v{d+3}")
                    k(f"global_store_dwordx4 v{vL}, {v(d,4)}, s[{sOUT}:{sOUT+1}] offset:{(4*ct+2*jp)*512} sc1")
        else:
            k(f"""
            ds_write_b32 v{vSC}, v{RS}
            ds_write_b32 v{vSC}, v{MR} offset:128
            s_waitcnt lgkmcnt(0)
            """)
            for jj in range(4):
                k(f"ds_read_b128 {v(100+4*jj,4)}, v{vSR} offset:{jj*32}")
                k(f"ds_read_b128 {v(116+4*jj,4)}, v{vSR} offset:{128+jj*32}")
            k("s_waitcnt lgkmcnt(0)")
            for ct in range(2):
                cs = vCS + 16*ct
                for R in range(0, 16, 2):
                    r = vACC + 16*ct + R
                    k(f"v_pk_mul_f32 {v(r,2)}, {v(r,2)}, {v(100+R,2)}")
                for R in range(0, 16, 2):
                    r = vACC + 16*ct + R
                    k(f"v_pk_fma_f32 {v(r,2)}, {v(116+R,2)}, {v(cs,2)}, {v(r,2)} op_sel_hi:[1,0,1] neg_lo:[1,0,0] neg_hi:[1,0,0]")
            for ct in range(2):
                for aa in range(2):
                    d = 132 + 4*(2*ct+aa); b0 = vACC + 16*ct + 4*aa; b1 = b0 + 8
                    k(f"v_cvt_pk_bf16_f32 v{d}, v{b0}, v{b0+1}\nv_cvt_pk_bf16_f32 v{d+1}, v{b0+2}, v{b0+3}")
                    k(f"v_cvt_pk_bf16_f32 v{d+2}, v{b1}, v{b1+1}\nv_cvt_pk_bf16_f32 v{d+3}, v{b1+2}, v{b1+3}")
                    k(f"global_store_dwordx4 v{vL}, {v(d,4)}, s[{sOUT}:{sOUT+1}] offset:{ct*2048 + aa*1024} sc1")
        adv(k, sOUT, 262144)
    def comp2(k, hook):
        compute(k, hook); k.nop(12)
    skeleton(k, name, 2, NSEG, set_need, dma32k, item_start, comp2, epilogue, vFLG, vTMP, vL, toggle32k, 4, dma_chunks(8, 32768))

def emit_TW(k):
    lane_ids(k)
    wait_start(k, 2, 3, F_R(0), 1)
    load_W64(k, KA_WOA, 1024, f"s_lshl_b32 s{sT}, s{sIDX}, 9\ns_lshl_b32 s{sT2}, s{sW}, 7\ns_add_u32 s{sT}, s{sT}, s{sT2}")
    k("s_barrier")
    init_bufs32k(k)
    k(f"""
    s_mul_i32 s{sT}, s{sL}, {F_TA(1)-F_TA(0)}
    s_add_u32 s{sT}, s{sT}, {F_TA(0)}
    v_and_b32 v{vFLG}, 3, v40
    v_lshlrev_b32 v{vFLG}, 2, v{vFLG}
    v_bfe_u32 v47, v40, 2, 3
    v_lshl_add_u32 v{vFLG}, v47, 6, v{vFLG}
    v_add_u32 v{vFLG}, s{sT}, v{vFLG}
    s_mov_b32 s{sFL}, s{sWS}
    s_mov_b32 s{sFL+1}, s{sWS+1}
    """)
    base(k, sOWN, F_TW, f"s_lshl_b32 s{sT}, s{sIDX}, 4\ns_add_u32 s{sT}, s{sT}, s{sW}\ns_lshl_b32 s{sT}, s{sT}, 2")
    base(k, sIN, OA, f"s_lshl_b32 s{sT}, s{sW}, 13")
    colx = f"s_lshl_b32 s{sT}, s{sIDX}, 14\ns_lshl_b32 s{sT3}, s{sW}, 12\ns_add_u32 s{sT}, s{sT}, s{sT3}"
    base(k, sAX1, XR, colx)
    base(k, sOUT, X1, colx)
    base(k, sAX2, ST1, f"s_lshl_b32 s{sT}, s{sIDX}, 2\ns_add_u32 s{sT}, s{sT}, s{sW}\ns_lshl_b32 s{sT}, s{sT}, 8")
    vX = 4; vSS = 5
    k(f"""
    v_lshlrev_b32 v{vX}, 4, v41
    v_lshl_add_u32 v{vX}, v42, 3, v{vX}      ; n*16 + hi*8
    v_lshlrev_b32 v{vSS}, 3, v41             ; n*8
    """)
    def set_need(k): k(f"s_add_u32 s{sNEED}, s{sT3}, 1")
    def item_start():
        ch = [f"global_load_dwordx4 {v(64+4*(2*ct+jp),4)}, v{vL}, s[{sAX1}:{sAX1+1}] offset:{(4*ct+2*jp)*512} sc1" for ct in range(2) for jp in range(2)]
        ch.append(f"s_add_u32 s{sAX1}, s{sAX1}, 32768\ns_addc_u32 s{sAX1+1}, s{sAX1+1}, 0")
        return ch
    def comp2(k, hook):
        gemm64_compute(k, hook, True); k.nop(12)
    def epilogue(k):
        k("v_mov_b32 v96, 0\nv_mov_b32 v97, 0")
        k(f"s_mov_b32 s{sT}, {ONES}\ns_mov_b32 s{sT2}, 0x00003f80\ns_mov_b32 s{sT3}, 0x3f800000")
        for u in range(4):
            d = 64 + 4*u
            k(f"v_permlane32_swap_b32 v{d}, v{d+2}\nv_permlane32_swap_b32 v{d+1}, v{d+3}")
        k("s_nop 0")
        for ct in range(2):
            for jj in range(4):
                x = 64 + 2*(4*ct+jj); b = vACC + 16*ct + 4*jj
                k(f"""
                v_dot2_f32_bf16 v{b}, v{x}, s{sT2}, v{b}
                v_dot2_f32_bf16 v{b+1}, v{x}, s{sT3}, v{b+1}
                v_dot2_f32_bf16 v{b+2}, v{x+1}, s{sT2}, v{b+2}
                v_dot2_f32_bf16 v{b+3}, v{x+1}, s{sT3}, v{b+3}
                """)
        k("s_nop 1")
        for ct in range(2):
            for jj in range(4):
                x = 64 + 2*(4*ct+jj); b = vACC + 16*ct + 4*jj
                k(f"v_cvt_pk_bf16_f32 v{x}, v{b}, v{b+1}\nv_cvt_pk_bf16_f32 v{x+1}, v{b+2}, v{b+3}")
        k("s_nop 0")
        for u in range(4):
            d = 64 + 4*u; ct = u // 2; jp = u % 2
            k(f"v_permlane32_swap_b32 v{d}, v{d+2}\nv_permlane32_swap_b32 v{d+1}, v{d+3}")
            k(f"s_nop 0\nglobal_store_dwordx4 v{vL}, {v(d,4)}, s[{sOUT}:{sOUT+1}] offset:{(4*ct+2*jp)*512} sc1")
        for q in range(16):
            k(f"v_dot2_f32_bf16 v96, v{64+q}, s{sT}, v96\nv_dot2_f32_bf16 v97, v{64+q}, v{64+q}, v97")
        k(f"""
        s_nop 2
        v_mov_b32 v98, v96
        v_mov_b32 v99, v97
        s_nop 1
        v_permlane32_swap_b32 v96, v98
        v_permlane32_swap_b32 v97, v99
        v_add_f32 v96, v96, v98
        v_add_f32 v97, v97, v99
        s_mov_b64 exec, 0xffffffff
        global_store_dwordx2 v{vSS}, v[96:97], s[{sAX2}:{sAX2+1}] sc1
        s_mov_b64 exec, -1
        """)
        adv(k, sAX2, 2048)
        adv(k, sOUT, 32768)
    skeleton(k, 'TW', 3, NSEG, set_need, dma32k, item_start, comp2, epilogue, vFLG, vTMP, vL, toggle32k, 5, dma_chunks(8, 32768))

def emit_T5(k):
    sKQ = 33; sNQ = 34
    k(f"s_lshr_b32 s{sKQ}, s{sIDX}, 2\ns_and_b32 s{sNQ}, s{sIDX}, 3")
    lane_ids(k)
    wait_start(k, 2, 3, F_R(0), 1, GATE['T5'])
    k(f"""
    v_lshrrev_b32 v45, 2, v40
    v_lshlrev_b32 v45, 10, v45
    v_and_b32 v46, 3, v40
    v_lshl_add_u32 v45, v46, 4, v45          ; dma lane offset: row l/4, chunk l%4
    ; tr address: row = 4*kh + i/4 ; col bytes 32*(gamma%2) + 8*(i%4)
    v_lshrrev_b32 v46, 2, v43
    v_lshl_add_u32 v46, v42, 2, v46
    v_lshlrev_b32 v46, 6, v46
    v_and_b32 v47, 1, v44
    v_lshl_add_u32 v46, v47, 5, v46
    v_and_b32 v47, 3, v43
    v_lshl_add_u32 v46, v47, 3, v46
    s_lshl_b32 s{sT2}, s{sW}, 15
    v_add_u32 v46, s{sT2}, v46
    """)
    for rnd in range(2):
        k(f"s_load_dwordx2 s[{sP}:{sP+1}], s[0:1], {KA_WO}")
        k(f"""
        s_lshl_b32 s{sT}, s{sKQ}, 20
        s_lshl_b32 s{sT2}, s{sNQ}, 8
        s_add_u32 s{sT}, s{sT}, s{sT2}
        s_lshl_b32 s{sT2}, s{sW}, 6
        s_add_u32 s{sT}, s{sT}, s{sT2}
        s_add_u32 s{sT}, s{sT}, {rnd*512*1024}
        s_lshl_b32 s{sT3}, s{sW}, 15
        s_waitcnt lgkmcnt(0)
        s_add_u32 s{sP}, s{sP}, s{sT}
        s_addc_u32 s{sP+1}, s{sP+1}, 0
        """)
        for u in range(32):
            k(f"s_mov_b32 m0, s{sT3}\ns_add_u32 s{sT3}, s{sT3}, 1024\nglobal_load_lds_dwordx4 v45, s[{sP}:{sP+1}]")
            adv(k, sP, 16*1024)
        k("s_waitcnt vmcnt(0)")
        n = 0
        for ksl in range(32):
            ks = rnd*32 + ksl
            hl = ksl // 8; u = (ksl // 2) % 4; gb = 2 * (ks % 2)
            for aa in range(2):
                row = hl*128 + 32*u + 16*aa + 4*gb
                k(f"ds_read_b64_tr_b16 {a(ks*4 + 2*aa, 2)}, v46 offset:{row*64}")
                n += 1
                if n % 8 == 0: k("s_waitcnt lgkmcnt(0)")
        k("s_waitcnt lgkmcnt(0)")
    k("s_barrier")
    k(f"""
    v_lshlrev_b32 v{vL}, 4, v40
    v_xor_b32 v{vRD}, 0x10000, v{vL}
    s_lshl_b32 s{sM0}, s{sW}, 14
    s_mul_i32 s{sT}, s{sL}, {F_T4(1)-F_T4(0)}
    s_add_u32 s{sT}, s{sT}, {F_T4(0)}
    s_lshl_b32 s{sT2}, s{sKQ}, 8
    s_add_u32 s{sT}, s{sT}, s{sT2}
    v_and_b32 v4, 1, v40                      ; h%2
    v_lshlrev_b32 v4, 3, v4
    v_bfe_u32 v47, v40, 1, 2                  ; (h%8)/2
    v_lshl_add_u32 v4, v47, 6, v4
    v_add_u32 v4, s{sT}, v4
    s_mov_b32 s{sFL}, s{sWS}
    s_mov_b32 s{sFL+1}, s{sWS+1}
    """)
    base(k, sOWN, F_T5, f"s_lshl_b32 s{sT}, s{sIDX}, 4\ns_add_u32 s{sT}, s{sT}, s{sW}\ns_lshl_b32 s{sT}, s{sT}, 2")
    base(k, sIN, OT, f"s_lshl_b32 s{sT}, s{sKQ}, 16\ns_lshl_b32 s{sT3}, s{sW}, 14\ns_add_u32 s{sT}, s{sT}, s{sT3}")
    base(k, sOUT, PT, f"s_lshl_b32 s{sT}, s{sKQ}, 15\ns_lshl_b32 s{sT3}, s{sNQ}, 13\ns_add_u32 s{sT}, s{sT}, s{sT3}\ns_lshl_b32 s{sT3}, s{sW}, 11\ns_add_u32 s{sT}, s{sT}, s{sT3}")
    def set_need(k):
        k(f"s_add_u32 s{sNEED}, s{sT3}, 1\ns_and_b32 s{sT}, s{sT3}, 1\ns_lshl_b32 s{sT}, s{sT}, 2\nv_add_u32 v{vFLG}, s{sT}, v4")
    def dma(k): dma_linear(k, 16, 262144)
    def toggle(k): k(f"v_xor_b32 v{vRD}, 0x10000, v{vRD}\ns_xor_b32 s{sM0}, s{sM0}, 0x10000")
    def comp(k, hook):
        def rd(ks): k(f"ds_read_b128 {v(vA + 4*(ks%4),4)}, v{vRD} offset:{ks*1024}")
        for ks in range(3): rd(ks)
        for ks in range(64):
            if ks + 3 < 64: rd(ks + 3)
            k(f"s_waitcnt lgkmcnt({min(3, 63-ks)})")
            acc = v(vACC, 16); c = "0" if ks == 0 else acc
            k(f"v_mfma_f32_32x32x16_bf16 {acc}, {a(ks*4,4)}, {v(vA + 4*(ks%4),4)}, {c}")
            if ks == 1: hook(100)
            if ks == 22: hook(0)
            if 23 <= ks < 55 and (ks - 23) % 2 == 0: hook(10 + (ks - 23) // 2)
            if ks == 56: hook(1)
        k.nop(12)
    def epilogue(k):
        for jp in range(2):
            b = vACC + 8*jp; d = 64 + 4*jp
            for q in range(4): k(f"v_cvt_pk_bf16_f32 v{d+q}, v{b+2*q}, v{b+2*q+1}")
            k("s_nop 1")
            k(f"v_permlane32_swap_b32 v{d}, v{d+2}\nv_permlane32_swap_b32 v{d+1}, v{d+3}")
            k(f"global_store_dwordx4 v{vL}, {v(d,4)}, s[{sOUT}:{sOUT+1}] offset:{jp*1024} sc1")
        adv(k, sOUT, 131072)
    skeleton(k, 'T5', 5, NSEG, set_need, dma, lambda: [], comp, epilogue, vFLG, vTMP, vL, toggle, 2, dma_chunks(16, 262144))
```

```python
import sys
from fw import *
from layout import *
import common as C
import roleR4 as roleR, rolesG, rolesA

KNAME = "interleave_layers__sliding_local_dilated__memory_aug_recurrent_mem_tr__prompt_kernel"
KD = """.amdhsa_kernel {name}
.amdhsa_next_free_vgpr {vgpr}
.amdhsa_next_free_sgpr 102
.amdhsa_accum_offset {acc}
.amdhsa_group_segment_fixed_size 0
.amdhsa_kernarg_size 104
.amdhsa_user_sgpr_count 2
.amdhsa_user_sgpr_kernarg_segment_ptr 1
.amdhsa_system_sgpr_workgroup_id_x 1
.amdhsa_float_denorm_mode_32 3
.end_amdhsa_kernel"""

def entry(k, name):
    k(f".globl {name}\n.p2align 8\n.type {name},@function")
    k.label(name)

def common_entry(k, END):
    k(f"""
    s_load_dwordx2 s[8:9], s[0:1], {KA_WS}
    v_readfirstlane_b32 s5, v0
    s_nop 1
    s_lshr_b32 s5, s5, 6
    s_waitcnt lgkmcnt(0)
    """)

FAKE = [None]
def cnt_addr_lanes(k, vdst, vtmp):
    k(f"""
    v_and_b32 v{vdst}, 3, v0
    v_lshlrev_b32 v{vdst}, 6, v{vdst}
    v_bfe_u32 v{vtmp}, v0, 2, 1
    v_lshl_add_u32 v{vdst}, v{vtmp}, 2, v{vdst}
    """)
def ticket(k):
    k(f"""
    s_load_dwordx2 s[46:47], s[0:1], {KA_DBG}
    s_waitcnt lgkmcnt(0)
    s_cmp_lg_u32 s5, 0
    s_cbranch_scc1 L_tkm
    s_and_b32 s35, s34, 3
    s_lshl_b32 s35, s35, 6
    s_lshr_b32 s37, s34, 2
    s_lshl_b32 s37, s37, 2
    s_add_u32 s35, s35, s37
    s_mov_b64 exec, 1
    v_mov_b32 v1, s35
    v_mov_b32 v2, 1
    global_atomic_add v3, v1, v2, s[46:47] sc0 sc1
    s_waitcnt vmcnt(0)
    v_readfirstlane_b32 s4, v3
    s_nop 1
    s_cmp_lt_u32 s4, 32
    s_cbranch_scc1 L_tkok
    v_mov_b32 v1, 24
    global_atomic_add v3, v1, v2, s[46:47] sc0 sc1
    s_waitcnt vmcnt(0)
    v_readfirstlane_b32 s35, v3
    s_mov_b64 exec, 0xff
    """)
    cnt_addr_lanes(k, 1, 2)
    k(f"""
    s_mov_b32 s37, 0
L_ovf_spin:
    global_load_dword v3, v1, s[46:47] sc1
    s_add_u32 s37, s37, 1
    s_cmp_gt_u32 s37, {C.SPIN}
    s_cbranch_scc1 L_ovf_fail
    s_waitcnt vmcnt(0)
    s_mov_b32 s38, 0
    """)
    for x in range(8):
        k(f"v_readlane_b32 s{48+x}, v3, {x}")
    k("s_nop 1")
    for x in range(8):
        k(f"s_add_u32 s38, s38, s{48+x}")
    k(f"""
    s_cmp_lt_u32 s38, 256
    s_cbranch_scc1 L_ovf_spin
    """)
    for x in range(8):
        k(f"""
        s_min_u32 s39, s{48+x}, 32
        s_sub_u32 s38, 32, s39
        s_cmp_lt_u32 s35, s38
        s_cbranch_scc0 L_ovf_n{x}
        s_mov_b32 s34, {x}
        s_add_u32 s4, s39, s35
        s_branch L_tkok
L_ovf_n{x}:
        s_sub_u32 s35, s35, s38
        """)
    k(f"""
L_ovf_fail:
    s_waitcnt vmcnt(0)
    s_mov_b32 s4, 255
L_tkok:
    s_mov_b64 exec, 1
    v_mov_b32 v1, 0
    v_mov_b32 v2, s4
    v_mov_b32 v3, s34
    ds_write_b64 v1, v[2:3]
    s_waitcnt lgkmcnt(0)
    s_mov_b64 exec, -1
L_tkm:
    s_barrier
    v_mov_b32 v1, 0
    ds_read_b64 v[2:3], v1
    s_waitcnt lgkmcnt(0)
    v_readfirstlane_b32 s4, v2
    v_readfirstlane_b32 s34, v3
    s_barrier
    """)

CODEPF = [4]
ROLES = ['R', 'T3q', 'T3v', 'TW', 'T5', 'TA', 'T4', 'T6']
def emit_roles(k, use_flags=True, stamp=0):
    errs = []
    def role(label, fn):
        n0 = len(k.lines)
        k.label(label)
        fn()
        errs.extend(check(k.lines[n0:], label))
    def R():
        roleR.emit_R_prologue(k, 6)
        roleR.emit_R_mode(k, 'L_R_slow')
        roleR.emit_R_loop(k, True, use_flags, stamp)
        k.label('L_R_slow')
        roleR.emit_R_loop(k, False, use_flags, 0)
    role('ROLE_R', R)
    role('ROLE_T3q', lambda: rolesG.emit_T3(k, False))
    role('ROLE_T3v', lambda: rolesG.emit_T3(k, True))
    role('ROLE_TW', lambda: rolesG.emit_TW(k))
    role('ROLE_T5', lambda: rolesG.emit_T5(k))
    role('ROLE_TA', lambda: rolesA.emit_TA(k))
    role('ROLE_T4', lambda: rolesA.emit_T4(k))
    role('ROLE_T6', lambda: rolesA.emit_T6(k))
    return errs

def build(mode, stamp=0, diag=False):
    DIAGON[0] = diag
    k = Asm()
    kernels = []
    launches = [] if mode == 'concurrent' else [("k0_kernel", 256, 1024)]
    if mode == 'serial':
        seq = [('TA', 8), ('TW', 2), ('T3', 48), ('R', 256), ('T4', 16), ('T5', 16), ('T6', 4)]
        for l in range(2):
            for r, n in seq:
                launches.append((f"s{r}{l}_kernel", n, 163840))
    else:
        launches.append((KNAME, 256, 163840))
    hdr = [f"; @launch grid=({g},1,1) block=(256,1,1) lds={lds}" for n, g, lds in launches]
    k.lines.extend(hdr)
    k('.amdgcn_target "amdgcn-amd-amdhsa--gfx950"\n.text')
    errs = []
    if mode == 'serial':
        k.label("CODE_BEGIN")
        for (name, g, lds) in launches[1:]:
            r = name[1:-8]; l = int(name[-8])
            entry(k, name)
            k(f"s_cmp_ge_u32 s2, {g}\ns_cbranch_scc1 L_exit_{name}")
            common_entry(k, None)
            k(f"s_mov_b32 s6, {l}")
            if r == 'R':
                k(f"s_getreg_b32 s33, hwreg(HW_REG_XCC_ID, 0, 4)\ns_cmp_lg_u32 s33, 0\ns_cbranch_scc1 L_exit_{name}")
                ticket(k, "s_mov_b32 s33, 0", name)
                k(f"s_cmp_ge_u32 s4, 32\ns_cbranch_scc1 L_exit_{name}\ns_branch ROLE_R")
            elif r == 'T3':
                k(f"s_mov_b32 s4, s2\ns_cmp_ge_u32 s4, 32\ns_cbranch_scc1 L_v_{name}\ns_branch ROLE_T3q\nL_v_{name}:\ns_branch ROLE_T3v")
            else:
                k(f"s_mov_b32 s4, s2\ns_branch ROLE_{r}")
            k(f"L_exit_{name}:\ns_endpgm")
            kernels.append((name, 512, 256))
    else:
        name = KNAME
        k.label("CODE_BEGIN")
        entry(k, name)
        k(f"s_cmp_ge_u32 s2, 256\ns_cbranch_scc1 L_exit_m")
        common_entry(k, None)
        if CODEPF[0]:
            k(f"""
            s_cmp_eq_u32 s5, 0
            s_cbranch_scc1 L_nopf
            s_getpc_b64 s[14:15]
L_pfpc:
            s_add_u32 s14, s14, ROLE_R-L_pfpc
            s_addc_u32 s15, s15, 0
            v_subrev_u32 v1, 64, v0
            v_lshlrev_b32 v1, 7, v1
            s_mov_b32 s16, CODE_END-ROLE_R-4
            """)
            for j in range(CODEPF[0]):
                k(f"v_min_u32 v2, s16, v1\nv_and_b32 v2, -4, v2\nglobal_load_dword v255, v2, s[14:15]\nv_add_u32 v1, {192*128}, v1")
            k("L_nopf:")
        k("s_getreg_b32 s34, hwreg(HW_REG_XCC_ID, 0, 4)\ns_and_b32 s34, s34, 7")
        if diag:
            k("s_memrealtime s[94:95]\ns_waitcnt lgkmcnt(0)\ns_mov_b32 s80, s94")
        if FAKE[0]: k(FAKE[0])
        ticket(k)
        if diag:
            k(f"s_lshl_b32 s92, s34, 5\ns_add_u32 s92, s92, s4\ns_lshl_b32 s92, s92, 6\ns_add_u32 s92, s92, {DIAG}\ns_add_u32 s90, s8, s92\ns_addc_u32 s91, s9, 0")
            for i in range(1, 10): k(f"s_mov_b32 s{80+i}, 0")
        k(f"""
        s_cmp_ge_u32 s4, 32
        s_cbranch_scc1 L_exit_m
        s_mov_b32 s36, 0
        s_cmp_eq_u32 s34, 1
        s_cbranch_scc1 L_doinit
        s_mov_b32 s36, 1
        s_cmp_eq_u32 s34, 4
        s_cbranch_scc1 L_doinit
        s_mov_b32 s36, 2
        s_cmp_eq_u32 s34, 5
        s_cbranch_scc1 L_doinit
        s_mov_b32 s36, 3
        s_cmp_eq_u32 s34, 7
        s_cbranch_scc1 L_doinit
        s_branch L_noinit
L_doinit:
        s_lshl_b32 s36, s36, 5
        s_add_u32 s36, s36, s4
        """)
        n0 = len(k.lines)
        mark(k, 9)
        rolesA.emit_init(k, 36)
        mark(k, 8)
        errs += check(k.lines[n0:], 'init')
        k(f"""
L_noinit:
        s_cmp_ge_u32 s34, 2
        s_cbranch_scc1 L_d1
        s_mov_b32 s6, s34
        s_branch ROLE_R
L_d1:
        s_cmp_ge_u32 s34, 6
        s_cbranch_scc1 L_d2
        s_sub_u32 s6, s34, 2
        s_lshr_b32 s6, s6, 1
        s_and_b32 s33, s34, 1
        s_cmp_lg_u32 s33, 0
        s_cbranch_scc1 L_d1b
        s_branch ROLE_T3q
L_d1b:
        s_cmp_ge_u32 s4, 16
        s_cbranch_scc1 L_d1c
        s_add_u32 s4, s4, 32
        s_branch ROLE_T3v
L_d1c:
        s_sub_u32 s4, s4, 16
        s_branch ROLE_T5
L_d2:
        s_sub_u32 s6, s34, 6
        s_cmp_ge_u32 s4, 16
        s_cbranch_scc1 L_d2b
        s_cmp_lg_u32 s6, 0
        s_cbranch_scc1 L_d2a
        """)
        rolesA.emit_l2_prefetch(k)
        k(f"""
L_d2a:
        s_branch ROLE_T4
L_d2b:
        s_cmp_ge_u32 s4, 24
        s_cbranch_scc1 L_d2c
        s_sub_u32 s4, s4, 16
        s_branch ROLE_TA
L_d2c:
        s_cmp_ge_u32 s4, 26
        s_cbranch_scc1 L_d2d
        s_sub_u32 s4, s4, 24
        s_branch ROLE_TW
L_d2d:
        s_cmp_ge_u32 s4, 30
        s_cbranch_scc1 L_exit_m
        s_sub_u32 s4, s4, 26
        s_branch ROLE_T6
L_exit_m:
        s_endpgm
        """)
        kernels.append((name, 512, 256))
    errs += emit_roles(k, True, stamp)
    k.label("CODE_END")
    k('.section .rodata,"a"')
    for name, vg, acc in kernels:
        k(".p2align 6")
        k(KD.format(name=name, vgpr=vg, acc=acc))
    k(".text")
    return k.text(), errs

if __name__ == '__main__':
    mode = sys.argv[1] if len(sys.argv) > 1 else 'concurrent'
    txt, errs = build(mode)
    for e in errs: print(e)
    open(f"mega_{mode}.s", "w").write(txt)
    import drv
    asm, co = drv.build(f"mega_{mode}.s", KNAME, 13)
    from cdna_launch import address_register_problem
    print("bytes", len(txt))
    print("check:", address_register_problem(co, KNAME))
```

```python
from fw import *
from layout import *
WOI=0; MSTG=131072; QKT=139520; KTL=143616; VTL=151808; OX=MSTG
SPIN = 1 << 18
SLOT = 0x40000
sH=4; sW=5; sS=7
sWS=8
sMBr=10; sMBw=12; sPA=14; sPA1=16
sKT=18; sVT=20; sKM=22; sVM=24
sFL=26
sMO=28; sMMB=30; sMKM=32; sMF0=34
sC=36; sT=37; sT2=38; sT3=39; sSpin=40
sP0=42
sFKv=44; sFVv=45
sM0K=46; sM0V=47
sFR=48
sSL=50; sSH=51
sMBD=52
sMF3=34
vL16=0; vMW=1; vMR=2; vQW=3; vFLG=4; vQR0=5; vQR1=6; vKR=7; vVR=8; vOW=9; vOR=10; vWO=11
vPAS=12; vPAL=13; vMBS=14; vWO2=15; vVMS=16; vSP=17; vIDX=18; vBIAS=19
aQ=20; aK=24; aV=28
vM=32; vK=96
WV=128
OPT = dict(kmflag='sc1', ackA='0', ackB='0', exp='')

def wreg(mu, ks, d0=0, n=8):
    if mu == 0: return a(8*ks + d0, n)
    if mu == 1: return a(128 + 8*ks + d0, n)
    return v(WV + 8*ks + d0, n)

def timeout_exit(k, code, lab):
    k.label(lab)
    k(f"""
    s_load_dwordx2 s[{sP0}:{sP0+1}], s[0:1], {KA_DBG}
    s_waitcnt lgkmcnt(0)
    s_mov_b64 exec, 1
    v_mov_b32 v32, {136 + 4*code}
    v_mov_b32 v33, s{sS}
    v_add_u32 v33, 0x10000, v33
    global_store_dword v32, v33, s[{sP0}:{sP0+1}] sc1
    s_waitcnt vmcnt(0)
    s_endpgm
    """)

def r_wait_init(k):
    lp = k.lab('Lwi'); to = k.lab('Lwito'); sk = k.lab('Lwisk')
    k(f"""
    s_load_dwordx2 s[{sP0}:{sP0+1}], s[0:1], {KA_DBG}
    s_mov_b32 s{sSpin}, 0
    s_mov_b32 s{sS}, 0
    v_mov_b32 v32, 248
    s_waitcnt lgkmcnt(0)
{lp}:
    global_load_dword v33, v32, s[{sP0}:{sP0+1}] sc1
    s_add_u32 s{sSpin}, s{sSpin}, 1
    s_cmp_gt_u32 s{sSpin}, {SPIN}
    s_cbranch_scc1 {to}
    s_waitcnt vmcnt(0)
    v_cmp_gt_u32 vcc, 1, v33
    s_cbranch_vccnz {lp}
    s_branch {sk}
    """)
    timeout_exit(k, 11, to)
    k.label(sk)

def emit_R_prologue(k, l_sgpr):
    L, I, G = 40, 41, 42
    T1, T2, T3 = 43, 44, 45
    sk = k.lab('Lws'); lp = k.lab('Lwsp'); to = k.lab('Lwsto')
    k(f"""
    s_cmp_eq_u32 s{l_sgpr}, 0
    s_cbranch_scc1 {sk}
    """)
    r_wait_init(k)
    k(f"""
    s_mov_b32 s{sSpin}, 0
    s_mov_b32 s{sS}, 0
    v_mov_b32 v2, {F_R(0)}
{lp}:
    global_load_dword v3, v2, s[{sWS}:{sWS+1}] sc1
    s_add_u32 s{sSpin}, s{sSpin}, 1
    s_cmp_gt_u32 s{sSpin}, {SPIN}
    s_cbranch_scc1 {to}
    s_waitcnt vmcnt(0)
    v_cmp_gt_u32 vcc, 1, v3
    s_cbranch_vccnz {lp}
    s_branch {sk}
    """)
    timeout_exit(k, 9, to)
    k.label(sk)
    k(f"""
    v_and_b32 v40, 63, v0
    v_and_b32 v41, 15, v40
    v_lshrrev_b32 v42, 4, v40
    v_lshlrev_b32 v{vL16}, 4, v40
    """)
    for par in (0, 1):
        k(f"""
        v_add_u32 v{T1}, {4*par}, v{G}
        v_lshlrev_b32 v{T1}, 1, v{T1}
        v_xor_b32 v{T1}, v{T1}, v{I}
        v_lshlrev_b32 v{T1}, 4, v{T1}
        v_lshlrev_b32 v{T2}, 13, v{G}
        v_add_u32 v{46+par}, v{T1}, v{T2}
        """)
    k(f"""
    v_lshrrev_b32 v{T1}, 2, v{I}
    v_lshl_add_u32 v{T1}, v{G}, 2, v{T1}
    v_and_b32 v{T2}, 7, v{T1}
    v_lshlrev_b32 v{T2}, 1, v{T2}
    v_and_b32 v{T3}, 3, v{I}
    v_lshrrev_b32 v{T3}, 1, v{T3}
    s_lshl_b32 s{sT}, s{sW}, 2
    v_add_u32 v{T3}, s{sT}, v{T3}
    """)
    for b in (0, 1):
        k(f"""
        v_add_u32 v48, {2*b}, v{T3}
        v_xor_b32 v48, v48, v{T2}
        v_lshlrev_b32 v48, 4, v48
        v_lshl_add_u32 v48, v{T1}, 8, v48
        v_and_b32 v49, 1, v{I}
        v_lshl_add_u32 v{50+b}, v49, 3, v48
        v_add_u32 v{52+b}, 0x10000, v{50+b}
        """)
    def dma_half(ka, half):
        k(f"s_load_dwordx2 s[{sP0}:{sP0+1}], s[0:1], {ka}")
        k(f"""
        s_lshl_b32 s{sT}, s{sH}, 8
        s_lshl_b32 s{sT2}, s{sW}, 19          ; w*64 rows*8192
        s_add_u32 s{sT}, s{sT}, s{sT2}
        s_add_u32 s{sT}, s{sT}, {half*256*8192}
        s_lshl_b32 s{sT3}, s{sW}, 14
        s_add_u32 s{sT3}, s{sT3}, {half*65536}
        s_waitcnt lgkmcnt(0)
        s_add_u32 s{sP0}, s{sP0}, s{sT}
        s_addc_u32 s{sP0+1}, s{sP0+1}, 0
        """)
        for u in range(16):
            k(f"s_mov_b32 m0, s{sT3}")
            k(f"s_add_u32 s{sT3}, s{sT3}, 1024")
            k(f"global_load_lds_dwordx4 v{46 + (u % 2)}, s[{sP0}:{sP0+1}]")
            k(f"s_add_u32 s{sP0}, s{sP0}, 32768\ns_addc_u32 s{sP0+1}, s{sP0+1}, 0")
    def read_half(mu, half):
        for ksl in range(8):
            ks = half*8 + ksl
            for kh in (0, 1):
                for b in (0, 1):
                    base = (50 if half == 0 else 52) + b
                    off = ksl * 8192 + kh * 4096
                    t = 56 + 2 * (2 * kh + b)
                    k(f"ds_read_b64_tr_b16 {v(t,2)}, v{base} offset:{off}")
            k("s_waitcnt lgkmcnt(0)")
            for kh in (0, 1):
                for b in (0, 1):
                    t = 56 + 2 * (2 * kh + b)
                    for j in (0, 1):
                        d = 4 * kh + b + 2 * j
                        dst = wreg(mu, ks, d, 1)
                        if mu < 2: k(f"v_accvgpr_write_b32 {dst}, v{t+j}")
                        else: k(f"v_mov_b32 {dst}, v{t+j}")
    def dma_wo(half):
        k(f"s_load_dwordx2 s[{sP0}:{sP0+1}], s[0:1], {KA_WO}")
        k(f"""
        s_lshl_b32 s{sT}, s{sH}, 17
        s_lshl_b32 s{sT2}, s{sW}, 14
        s_add_u32 s{sT}, s{sT}, s{sT2}
        s_add_u32 s{sT}, s{sT}, {half*65536}
        s_add_u32 s{sT3}, s{sT2}, {half*65536}
        s_waitcnt lgkmcnt(0)
        s_add_u32 s{sP0}, s{sP0}, s{sT}
        s_addc_u32 s{sP0+1}, s{sP0+1}, 0
        """)
        for u in range(16):
            k(f"s_mov_b32 m0, s{sT3}")
            k(f"s_add_u32 s{sT3}, s{sT3}, 1024")
            k(f"global_load_lds_dwordx4 v{64 + (u % 8)}, s[{sP0}:{sP0+1}]")
            k(f"s_add_u32 s{sP0}, s{sP0}, 1024\ns_addc_u32 s{sP0+1}, s{sP0+1}, 0")
    for u in range(8):
        k(f"v_xor_b32 v{64+u}, {u << 1}, v{L}\nv_lshlrev_b32 v{64+u}, 4, v{64+u}")
    k(f"""
    v_lshrrev_b32 v72, 2, v{I}
    v_lshl_add_u32 v72, v{G}, 2, v72           ; row_l
    v_and_b32 v73, 7, v72
    v_lshlrev_b32 v73, 1, v73                  ; swz
    v_and_b32 v74, 3, v{I}
    v_lshrrev_b32 v74, 1, v74
    s_lshl_b32 s{sT}, s{sW}, 4
    v_add_u32 v74, s{sT}, v74                  ; c0
    v_lshlrev_b32 v75, 10, v72
    v_and_b32 v76, 1, v{I}
    v_lshl_add_u32 v75, v76, 3, v75
    s_lshl_b32 s{sT}, s{sW}, 13
    v_add_u32 v77, s{sT}, v{vL16}
    """)
    def proc_wo(half):
        for ksl in range(2):
            ks = 2*half + ksl
            for cb in range(4):
                for kh in (0, 1):
                    for b in (0, 1):
                        t = 112 + 2 * (2 * kh + b)
                        k(f"v_add_u32 v78, {4*cb + 2*b}, v74")
                        k(f"v_xor_b32 v78, v78, v73")
                        k(f"v_lshl_add_u32 v78, v78, 4, v75")
                        k(f"v_add_u32 v78, {ks*32768}, v78")
                        k(f"ds_read_b64_tr_b16 {v(t,2)}, v78 offset:{kh*16*1024}")
                k("s_waitcnt lgkmcnt(0)")
                for kh in (0, 1):
                    for b in (0, 1):
                        t = 112 + 2 * (2 * kh + b)
                        for j in (0, 1):
                            d = 4 * kh + b + 2 * j
                            k(f"v_mov_b32 v{80+8*cb+d}, v{t+j}")
            k("s_barrier")
            k(f"v_add_u32 v78, {ks*32768}, v77")
            for cb in range(4):
                for hf in (0, 1):
                    k(f"ds_write_b128 v78, {v(80+8*cb+4*hf,4)} offset:{cb*2048 + hf*1024}")
            k("s_waitcnt lgkmcnt(0)")
    seq = [('w', mu, ka, h) for mu, ka in ((0, KA_WQ), (1, KA_WK), (2, KA_WV)) for h in (0, 1)] + [('o', None, None, 0), ('o', None, None, 1)]
    def issue(e):
        if e[0] == 'w': dma_half(e[2], e[3])
        else: dma_wo(e[3])
    issue(seq[0]); issue(seq[1])
    for n, e in enumerate(seq):
        k("s_waitcnt vmcnt(16)\ns_barrier" if n + 1 < len(seq) else "s_waitcnt vmcnt(0)\ns_barrier")
        if e[0] == 'w':
            read_half(e[1], e[3])
            k("s_barrier")
            if n + 2 < len(seq): issue(seq[n+2])
        else:
            proc_wo(e[3])
    k("s_barrier")
    k(f"""
    v_and_b32 v{T1}, 7, v{I}                  ; i%8
    v_lshrrev_b32 v{T2}, 1, v{G}              ; g/2
    v_and_b32 v{T3}, 1, v{G}                  ; g%2
    s_mul_i32 s{sT}, s{sW}, 2112
    s_add_u32 s{sT}, s{sT}, {MSTG}
    v_add_u32 v{vMW}, s{sT}, v{vL16}
    v_mul_u32_u24 v48, 1056, v{T1}
    v_lshl_add_u32 v48, v{G}, 4, v48
    v_add_u32 v{vMR}, {MSTG}, v48
    v_mul_u32_u24 v48, 288, v{T1}
    v_lshl_add_u32 v48, v{G}, 4, v48
    v_add_u32 v{vOR}, {OX}, v48
    v_mul_u32_u24 v48, 288, v{T1}
    v_lshl_add_u32 v48, v{G}, 3, v48
    s_lshl_b32 s{sT}, s{sW}, 6
    s_add_u32 s{sT}, s{sT}, {OX}
    v_add_u32 v{vOW}, s{sT}, v48
    s_lshl_b32 s{sT}, s{sW}, 5
    v_lshl_add_u32 v48, v{T2}, 4, v{I}
    v_add_u32 v48, s{sT}, v48                 ; f
    v_lshrrev_b32 v49, 2, v{I}
    v_add_u32 v49, v49, v{T3}
    v_and_b32 v49, 3, v49
    v_lshlrev_b32 v49, 3, v49
    v_lshl_add_u32 v49, v48, 5, v49
    v_add_u32 v{vQW}, {QKT}, v49
    v_lshlrev_b32 v49, 3, v{T3}
    v_lshl_add_u32 v{vVMS}, v48, 4, v49
    """)
    for hf, dst in ((0, vQR0), (1, vQR1)):
        k(f"""
        v_lshrrev_b32 v48, 2, v{I}
        v_lshl_add_u32 v48, v{G}, 3, v48
        v_add_u32 v48, {4*hf}, v48
        v_and_b32 v49, 3, v{I}
        v_lshl_add_u32 v49, v{G}, 1, v49
        v_add_u32 v49, {hf}, v49
        v_and_b32 v49, 3, v49
        v_lshlrev_b32 v49, 3, v49
        v_lshl_add_u32 v49, v48, 5, v49
        v_add_u32 v{dst}, {QKT}, v49
        """)
    k(f"""
    v_lshlrev_b32 v48, 9, v{G}
    v_lshl_add_u32 v48, v{I}, 4, v48
    v_add_u32 v{vKR}, {KTL}, v48
    s_lshl_b32 s{sT}, s{sW}, 11
    s_add_u32 s{sT}, s{sT}, {VTL}
    v_add_u32 v{vVR}, s{sT}, v48
    s_lshl_b32 s{sT}, s{sW}, 13
    v_add_u32 v{vWO}, s{sT}, v{vL16}
    v_add_u32 v{vWO2}, 0x10000, v{vWO}
    ; vPAS = w*65536 + h*2048 + (g/2)*512 + (n/8)*256 + (g%2)*128 + (n%8)*16
    v_lshlrev_b32 v48, 9, v{T2}
    v_lshl_add_u32 v48, v{T3}, 7, v48
    v_lshl_add_u32 v48, v{T1}, 4, v48
    v_lshrrev_b32 v49, 3, v{I}
    v_lshl_add_u32 v48, v49, 8, v48
    s_lshl_b32 s{sT}, s{sW}, 16
    s_lshl_b32 s{sT2}, s{sH}, 11
    s_add_u32 s{sT}, s{sT}, s{sT2}
    v_add_u32 v{vPAS}, s{sT}, v48
    ; vPAL = (j/8)*65536 + hg*2048 + (j%8)*256 + (4w + u4)*16
    s_lshr_b32 s{sT}, s{sH}, 3
    s_lshl_b32 s{sT}, s{sT}, 16
    s_and_b32 s{sT2}, s{sH}, 7
    s_lshl_b32 s{sT2}, s{sT2}, 8
    s_add_u32 s{sT}, s{sT}, s{sT2}
    s_lshl_b32 s{sT2}, s{sW}, 6
    s_add_u32 s{sT}, s{sT}, s{sT2}
    v_lshrrev_b32 v48, 2, v{L}                 ; hg
    v_lshlrev_b32 v48, 11, v48
    v_and_b32 v49, 3, v{L}                     ; u4
    v_lshl_add_u32 v48, v49, 4, v48
    v_add_u32 v{vPAL}, s{sT}, v48
    ; vMBS = (4rh + rho)*1024 + 2*(128wc + 64ac + 16jlo + 8nh + 4(w%2)) + 2*(32b + u4)
    s_lshr_b32 s{sT}, s{sW}, 1
    s_lshl_b32 s{sT}, s{sT}, 12                ; rh*4096
    s_lshr_b32 s{sT2}, s{sH}, 3
    s_lshl_b32 s{sT2}, s{sT2}, 8               ; 2*128*wc
    s_add_u32 s{sT}, s{sT}, s{sT2}
    s_lshr_b32 s{sT2}, s{sH}, 2
    s_and_b32 s{sT2}, s{sT2}, 1
    s_lshl_b32 s{sT2}, s{sT2}, 7               ; 2*64*ac
    s_add_u32 s{sT}, s{sT}, s{sT2}
    s_and_b32 s{sT2}, s{sH}, 3
    s_lshl_b32 s{sT2}, s{sT2}, 4               ; 2*8*(j%4) = 2*(16jlo + 8nh)
    s_add_u32 s{sT}, s{sT}, s{sT2}
    s_and_b32 s{sT2}, s{sW}, 1
    s_lshl_b32 s{sT2}, s{sT2}, 3               ; 2*4*(w%2)
    s_add_u32 s{sT}, s{sT}, s{sT2}
    v_lshrrev_b32 v50, 2, v{I}                 ; hq = (l%16)/4
    v_lshlrev_b32 v48, 10, v50
    v_lshl_add_u32 v48, v49, 1, v48            ; hq*1024 + 2*u4
    v_lshl_add_u32 v48, v{G}, 6, v48           ; + 2*32*b  (b = l/16)
    v_add_u32 v{vMBS}, s{sT}, v48
    v_mov_b32 v{vIDX}, 0x44444444
    v_mov_b32 v48, 0xeeeeeeee
    v_cmp_lt_u32 vcc, 7, v{I}
    s_nop 1
    v_cndmask_b32 v{vIDX}, v{vIDX}, v48, vcc
    v_mov_b32 v{vBIAS}, 0
    v_mov_b32 v48, 0xff800000
    v_cmp_gt_u32 vcc, 2, v{G}
    s_nop 1
    v_cndmask_b32 v{vBIAS}, v{vBIAS}, v48, vcc
    """)
    def base(dst, off_fn, extra_code):
        k(f"s_mul_i32 s{sT2}, s{l_sgpr}, {off_fn(1) - off_fn(0)}")
        k(f"s_add_u32 s{sT2}, s{sT2}, {off_fn(0)}")
        k(extra_code)
        k(f"s_add_u32 s{sT2}, s{sT2}, s{sT}")
        k(f"s_add_u32 s{dst}, s{sWS}, s{sT2}\ns_addc_u32 s{dst+1}, s{sWS+1}, 0")
    base(sMBr, MB, f"s_lshl_b32 s{sT}, s{sW}, 11")
    base(sMBw, MB, f"s_mov_b32 s{sT}, 8192")
    k(f"s_mov_b32 s{sMBD}, 8192")
    base(sPA, PA, f"s_mov_b32 s{sT}, 0")
    base(sPA1, PA, f"s_mov_b32 s{sT}, 32768")
    base(sKT, KT, f"s_lshl_b32 s{sT}, s{sH}, 13\ns_lshl_b32 s{sT3}, s{sW}, 11\ns_add_u32 s{sT}, s{sT}, s{sT3}")
    base(sVT, VT, f"s_lshl_b32 s{sT}, s{sH}, 13\ns_lshl_b32 s{sT3}, s{sW}, 11\ns_add_u32 s{sT}, s{sT}, s{sT3}")
    base(sKM, KM, f"s_lshl_b32 s{sT}, s{sH}, 11")
    base(sVM, VM, f"s_lshl_b32 s{sT}, s{sH}, 11")
    base(sFL, F_T3, f"s_lshl_b32 s{sT}, s{sH}, 7")
    base(sFR, F_R, f"s_lshl_b32 s{sT}, s{sH}, 6")
    k(f"""
    s_mov_b32 s{sMO}, 0x00ff00ff
    s_mov_b32 s{sMO+1}, 0x00ff00ff
    s_mov_b32 s{sMMB}, 0x55555555
    s_mov_b32 s{sMMB+1}, 0
    s_mov_b32 s{sMKM}, 0xff00ff00
    s_mov_b32 s{sMKM+1}, 0xff00ff00
    s_mov_b32 s{sMF0}, 0xf0f0f0f0
    s_mov_b32 s{sMF0+1}, 0xf0f0f0f0
    s_mov_b32 s{sC}, 0x3e0293ee
    s_mov_b32 s{sSL}, 0x00003f80
    s_mov_b32 s{sSH}, 0x3f800000
    s_lshl_b32 s{sM0K}, s{sW}, 11
    s_add_u32 s{sM0V}, s{sM0K}, {VTL}
    s_add_u32 s{sM0K}, s{sM0K}, {KTL}
    s_mov_b32 s{sS}, 0
    s_mov_b32 s{sFKv}, 0
    s_mov_b32 s{sFVv}, 0
    """)

def emit_R_mode(k, slow_label):
    lp = k.lab('Lmd'); fast = k.lab('Lmdf'); to = k.lab('Lmdto')
    k(f"""
    s_load_dwordx2 s[{sP0}:{sP0+1}], s[0:1], {KA_DBG}
    v_and_b32 v32, 63, v{vL16}
    v_lshrrev_b32 v32, 4, v{vL16}            ; lane
    v_and_b32 v33, 3, v32
    v_lshlrev_b32 v33, 6, v33
    v_bfe_u32 v34, v32, 2, 1
    v_lshl_add_u32 v33, v34, 2, v33
    s_mov_b32 s{sSpin}, 0
    s_mov_b32 s{sS}, 0
    s_waitcnt lgkmcnt(0)
{lp}:
    global_load_dword v34, v33, s[{sP0}:{sP0+1}] sc1
    s_add_u32 s{sSpin}, s{sSpin}, 1
    s_cmp_gt_u32 s{sSpin}, {SPIN}
    s_cbranch_scc1 {to}
    s_waitcnt vmcnt(0)
    v_readlane_b32 s{sT2}, v34, 0
    v_readlane_b32 s{sT3}, v34, 1
    s_nop 1
    s_cmp_eq_u32 s6, 0
    s_cselect_b32 s{sT}, s{sT2}, s{sT3}
    s_cmp_ge_u32 s{sT}, 32
    s_cbranch_scc1 {fast}
    s_mov_b32 s{sT}, 0
    """)
    for x in range(8):
        k(f"v_readlane_b32 s{sT2}, v34, {x}\ns_nop 1\ns_add_u32 s{sT}, s{sT}, s{sT2}")
    k(f"""
    s_cmp_lt_u32 s{sT}, 256
    s_cbranch_scc1 {lp}
    s_branch {slow_label}
    """)
    timeout_exit(k, 12, to)
    k.label(fast)

NST = 15
STNAMES = []
def emit_R_loop(k, fast, use_flags, stamp=False):
    st = "" if fast else "sc1"
    STN = [0]
    def ST(name):
        if stamp == 2 and name in OPT.get('stamps', name):
            i = STN[0]; STN[0] += 1
            assert i < 15
            STNAMES.append(name)
            k(f"s_memtime s[{54+2*i}:{55+2*i}]")
    def ST_collect():
        if stamp == 2:
            n = STN[0]
            k("s_waitcnt lgkmcnt(0)")
            for i in range(n):
                prev = "s53" if i == 0 else f"s{54+2*(i-1)}"
                k(f"s_sub_u32 s{55+2*i}, s{54+2*i}, {prev}")
            for i in range(n):
                k(f"s_add_u32 s{84+i}, s{84+i}, s{55+2*i}")
            k(f"s_mov_b32 s53, s{54+2*(n-1)}")
    TO = k.lab('Lto'); LOOP = k.lab('Lstep'); FIN = k.lab('Lfin')
    def flag_check():
        lab = k.lab('Lfs'); ok = k.lab('Lfsok')
        k(f"""
        s_mov_b64 exec, 15
        v_cmp_gt_u32 vcc, v{vSP}, v{vFLG}
        s_cbranch_vccz {ok}
        s_mov_b32 s{sSpin}, 0
{lab}:
        global_load_dword v{vFLG}, v{vL16}, s[{sFL}:{sFL+1}] sc1
        s_add_u32 s{sSpin}, s{sSpin}, 1
        {'s_add_u32 s86, s86, 1' if DIAGON[0] else ''}
        s_cmp_gt_u32 s{sSpin}, {SPIN}
        s_cbranch_scc1 {TO}
        s_waitcnt vmcnt(0)
        v_cmp_gt_u32 vcc, v{vSP}, v{vFLG}
        s_cbranch_vccnz {lab}
{ok}:
        s_mov_b64 exec, -1
        """)
    mark(k, 1)
    if use_flags:
        r_wait_init(k)
    if DIAGON[0]: k("s_mov_b32 s86, 0")
    if use_flags:
        k(f"v_mov_b32 v{vSP}, 1\nv_mov_b32 v{vFLG}, 0\ns_mov_b64 exec, 12\nv_mov_b32 v{vSP}, 0\ns_mov_b64 exec, -1")
        flag_check()
        k(f"v_add_u32 v{vSP}, 1, v{vSP}")
    k(f"""
    s_mov_b32 m0, s{sM0K}
    s_nop 0
    global_load_lds_dwordx4 v{vL16}, s[{sKT}:{sKT+1}] sc1
    global_load_lds_dwordx4 v{vL16}, s[{sKT}:{sKT+1}] offset:1024 sc1
    s_add_u32 s{sKT}, s{sKT}, 262144
    s_addc_u32 s{sKT+1}, s{sKT+1}, 0
    s_waitcnt vmcnt(0)
    s_barrier
    """)
    mark(k, 2)
    if DIAGON[0]: k("s_memtime s[96:97]\ns_waitcnt lgkmcnt(0)\ns_mov_b32 s89, s96")

    if stamp:
        k("s_memtime s[100:101]\ns_waitcnt lgkmcnt(0)\ns_mov_b32 s53, s100\ns_mov_b32 s99, s100")
        for i in range(NST): k(f"s_mov_b32 s{84+i}, 0")
        k("s_mov_b32 s82, 0\ns_mov_b32 s83, 0")
    def step(par):
        SEN = vM + 60
        RA = vM + 59
        for r in range(aQ, aQ + 12): k(f"v_mov_b32 v{r}, 0")
        if use_flags:
            flag_check()
            k(f"v_add_u32 v{vSP}, 1, v{vSP}\nv_min_u32 v{vSP}, {NSEG}, v{vSP}")
        k(f"s_mov_b32 m0, s{sM0V}")
        ST('top')
        if OPT['ackB'] != 'n': k(f"s_waitcnt vmcnt({OPT['ackB']})")
        PB = k.lab('LpollB')
        k(f"s_mov_b32 s{sSpin}, 0")
        k.label(PB)
        k(f"""
        global_load_dwordx4 {v(vM,4)}, v{vL16}, s[{sMBr}:{sMBr+1}] sc1
        global_load_dwordx4 {v(vM+4,4)}, v{vL16}, s[{sMBr}:{sMBr+1}] offset:1024 sc1
        s_add_u32 s{sSpin}, s{sSpin}, 1
        {'s_add_u32 s98, s98, 1' if stamp == 2 and False else ''}
        s_cmp_gt_u32 s{sSpin}, {SPIN}
        s_cbranch_scc1 {TO}
        s_waitcnt vmcnt(0)
        ds_write_b128 v{vMW}, {v(vM,4)}
        ds_write_b128 v{vMW}, {v(vM+4,4)} offset:1056
        v_max3_u32 v{vM+8}, v{vM}, v{vM+1}, v{vM+2}
        v_max3_u32 v{vM+9}, v{vM+3}, v{vM+4}, v{vM+5}
        v_max3_u32 v{vM+8}, v{vM+8}, v{vM+6}, v{vM+7}
        v_max_u32 v{vM+8}, v{vM+8}, v{vM+9}
        v_cmp_eq_u32 vcc, -1, v{vM+8}
        s_cbranch_vccnz {PB}
        """)
        ST('pollB')
        mark_val(k, 4, sS, 33)
        if stamp: k(f"s_add_u32 s82, s82, s{sSpin}")
        if use_flags:
            skf = k.lab('Lskf')
            k(f"s_cmp_lg_u32 s{sW}, 0\ns_cbranch_scc1 {skf}\nv_mov_b32 v{vFLG}, s{sS}\ns_mov_b64 exec, 1\nglobal_store_dword v{vL16}, v{vFLG}, s[{sFR}:{sFR+1}] sc1\ns_mov_b64 exec, -1\n{skf}:")
        k(f"global_load_lds_dwordx4 v{vL16}, s[{sVT}:{sVT+1}] sc1")
        k(f"global_load_lds_dwordx4 v{vL16}, s[{sVT}:{sVT+1}] offset:1024 sc1")
        k("s_waitcnt lgkmcnt(0)\ns_barrier")
        ST('bar1')
        def mread(ks): k(f"ds_read_b128 {v(vM+4*ks,4)}, v{vMR} offset:{ks*64}")
        def smf(acc, ks, mu): k(f"v_smfmac_f32_16x16x64_bf16 {v(acc,4)}, {v(vM+4*ks,4)}, {wreg(mu,ks)}, v{vIDX}")
        for ks in range(8): mread(ks)
        side = []
        skipk = k.lab('Lskipk')
        if use_flags:
            side.append(f"s_mov_b64 exec, 15\nglobal_load_dword v{vFLG}, v{vL16}, s[{sFL}:{sFL+1}] sc1\ns_mov_b64 exec, -1")
        side.append(f"s_add_u32 s{sVT}, s{sVT}, 262144\ns_addc_u32 s{sVT+1}, s{sVT+1}, 0")
        for ks in range(16):
            k(f"s_waitcnt lgkmcnt(7)")
            smf(aQ, ks, 0)
            if ks + 8 < 16: mread(ks + 8)
            else:
                j = ks - 8; t = j // 4; kk = j % 4
                k(f"ds_read_b128 {v(vK + (t*4+kk)*4, 4)}, v{vKR} offset:{kk*2048 + t*256}")
            smf(aK, ks, 1)
            if ks >= 8 and side: k(side.pop(0))
        assert not side, side
        ST('qk')
        smf(aV, 0, 2); smf(aV, 1, 2)
        k(f"""
        v_cvt_pk_bf16_f32 v{aQ}, v{aQ}, v{aQ+1}
        v_cvt_pk_bf16_f32 v{aQ+1}, v{aQ+2}, v{aQ+3}
        v_xor_b32 v{aQ+2}, 16, v{vQW}
        v_cvt_pk_bf16_f32 v{aK}, v{aK}, v{aK+1}
        v_cvt_pk_bf16_f32 v{aK+1}, v{aK+2}, v{aK+3}
        ds_write_b64 v{vQW}, {v(aQ,2)}
        ds_write_b64 v{aQ+2}, {v(aK,2)}
        global_store_dwordx2 v{vVMS}, {v(aK,2)}, s[{sKM}:{sKM+1}] {OPT['kmflag']}
        """)
        for ks in (2, 3, 4, 5): smf(aV, ks, 2)
        k("s_waitcnt lgkmcnt(0)\ns_barrier")
        ST('bar2')
        QK = vM
        for ks in range(4):
            k(f"ds_read_b64_tr_b16 {v(QK+4*ks,2)}, v{vQR0} offset:{ks*1024}")
            k(f"ds_read_b64_tr_b16 {v(QK+4*ks+2,2)}, v{vQR1} offset:{ks*1024}")
        smf(aV, 6, 2)
        k(f"s_mov_b32 m0, s{sM0K}\ns_nop 0\nglobal_load_lds_dwordx4 v{vL16}, s[{sKT}:{sKT+1}] sc1")
        smf(aV, 7, 2)
        k(f"global_load_lds_dwordx4 v{vL16}, s[{sKT}:{sKT+1}] offset:1024 sc1")
        smf(aV, 8, 2)
        k(f"s_add_u32 s{sKT}, s{sKT}, 262144\ns_addc_u32 s{sKT+1}, s{sKT+1}, 0")
        smf(aV, 9, 2)
        for r in range(4): k(f"v_mov_b32 v{vM+32+r}, 0x3f803f80")
        def woread(slot_reg, cb, ks):
            for half in (0, 1):
                k(f"ds_read_b128 {v(slot_reg+4*half,4)}, v{vWO if ks < 2 else vWO2} offset:{(ks % 2)*32768 + cb*2048 + half*1024}")
        wo_ops = [(cb, ks) for ks in range(4) for cb in (0, 1)] + [(cb, ks) for ks in range(4) for cb in (2, 3)]
        slots = [vK, vK+16, vK+8, vK+24, vM+40, vM+48, vM+56, vM+32]
        SM = vM + 16; S0 = vM + 20; S1 = vM + 24
        for ks in range(4):
            extra = 4 if ks >= 2 else 0
            k(f"s_waitcnt lgkmcnt({8 - 2*(ks+1) + extra})")
            c = lambda r: ("0" if ks == 0 else v(r, 4))
            q = v(QK + 4*ks, 4)
            k(f"v_mfma_f32_16x16x32_bf16 {v(S0,4)}, {v(vK + ks*4,4)}, {q}, {c(S0)}")
            k(f"v_mfma_f32_16x16x32_bf16 {v(S1,4)}, {v(vK + 16 + ks*4,4)}, {q}, {c(S1)}")
            k(f"v_mfma_f32_16x16x32_bf16 {v(SM,4)}, {q}, {q}, {c(SM)}")
            if ks == 1:
                woread(slots[0], *wo_ops[0]); woread(slots[1], *wo_ops[1])
        ST('scores')
        smf(aV, 10, 2)
        smf(aV, 11, 2)
        MX = vM + 28; TMP = vM + 29; NM = vM + 30; NMM = vM + 31
        P = vM; Z = vM + 6; O0 = vM + 8; O1 = vM + 12
        ON = vM + 32
        LL = vM + 36
        def ds1(reg, addr, off): k(f"ds_read_b128 {v(reg,4)}, v{addr} offset:{off}")
        def wo1(n, half):
            cb, ks = wo_ops[n]
            ds1(slots[n % 8] + 4*half, vWO if ks < 2 else vWO2, (ks % 2)*32768 + cb*2048 + half*1024)
        k(f"""
        v_max3_f32 v{MX}, v{S0}, v{S0+1}, v{S0+2}
        s_waitcnt vmcnt({4 if use_flags else 3})
        v_max3_f32 v{NM}, v{S0+3}, v{S1}, v{S1+1}
        v_max3_f32 v{TMP}, v{SM}, v{SM+1}, v{SM+2}
        v_max3_f32 v{MX}, v{MX}, v{S1+2}, v{S1+3}
        v_max_f32 v{TMP}, v{TMP}, v{SM+3}
        """)
        ds1(aQ, vVR, 0)
        k(f"""
        v_add_f32 v{TMP}, v{TMP}, v{vBIAS}
        v_max3_f32 v{MX}, v{MX}, v{NM}, v{TMP}
        """)
        ds1(aQ+4, vVR, 256)
        k(f"v_mov_b32 v{TMP}, v{MX}")
        smf(aV, 12, 2)
        wo1(2, 0)
        k(f"""
        v_permlane32_swap_b32 v{MX}, v{TMP}
        v_max_f32 v{MX}, v{MX}, v{TMP}
        v_mov_b32 v{TMP}, v{MX}
        """)
        smf(aV, 13, 2)
        wo1(2, 1)
        k(f"""
        v_permlane16_swap_b32 v{MX}, v{TMP}
        v_max_f32 v{MX}, v{MX}, v{TMP}
        v_mul_f32 v{NM}, -v{MX}, s{sC}
        """)
        smf(aV, 14, 2)
        k(f"v_add_f32 v{NMM}, v{NM}, v{vBIAS}")
        for r in range(4): k(f"v_fma_f32 v{S0+r}, v{S0+r}, s{sC}, v{NM}")
        smf(aV, 15, 2)
        for r in range(4): k(f"v_exp_f32 v{S0+r}, v{S0+r}")
        for r in range(4): k(f"v_fma_f32 v{S1+r}, v{S1+r}, s{sC}, v{NM}")
        for r in range(4): k(f"v_exp_f32 v{S1+r}, v{S1+r}")
        for r in range(4): k(f"v_fma_f32 v{SM+r}, v{SM+r}, s{sC}, v{NMM}")
        k(f"v_cvt_pk_bf16_f32 v{P}, v{S0}, v{S0+1}\nv_cvt_pk_bf16_f32 v{P+1}, v{S0+2}, v{S0+3}")
        for r in range(4): k(f"v_exp_f32 v{SM+r}, v{SM+r}")
        k(f"""
        v_cvt_pk_bf16_f32 v{P+2}, v{S1}, v{S1+1}
        v_cvt_pk_bf16_f32 v{P+3}, v{S1+2}, v{S1+3}
        v_cvt_pk_bf16_f32 v{P+4}, v{SM}, v{SM+1}
        v_cvt_pk_bf16_f32 v{P+5}, v{SM+2}, v{SM+3}
        """)
        k("s_waitcnt lgkmcnt(2)")
        ST('softmax')
        k(f"v_mfma_f32_16x16x32_bf16 {v(LL,4)}, {v(ON,4)}, {v(P,4)}, 0")
        k(f"v_cvt_pk_bf16_f32 v{aV}, v{aV}, v{aV+1}")
        k(f"v_mfma_f32_16x16x32_bf16 {v(O1,4)}, {v(aQ+4,4)}, {v(P,4)}, 0")
        k(f"v_cvt_pk_bf16_f32 v{aV+1}, v{aV+2}, v{aV+3}")
        k(f"v_mfma_f32_16x16x32_bf16 {v(O0,4)}, {v(aQ,4)}, {v(P,4)}, 0")
        k(f"v_mov_b32 v{Z}, 0\nv_mov_b32 v{Z+1}, 0")
        k(f"v_mfma_f32_16x16x16_bf16 {v(LL,4)}, {v(ON,2)}, {v(P+4,2)}, {v(LL,4)}")
        wo1(3, 0)
        k(f"v_mfma_f32_16x16x16_bf16 {v(O1,4)}, {v(aV,2)}, {v(P+4,2)}, {v(O1,4)}")
        k(f"v_permlane32_swap_b32 v{P+4}, v{Z}\nv_permlane32_swap_b32 v{P+5}, v{Z+1}")
        wo1(3, 1); wo1(4, 0)
        k(f"v_mfma_f32_16x16x16_bf16 {v(O0,4)}, {v(aV,2)}, {v(Z,2)}, {v(O0,4)}")
        wo1(4, 1)
        k(f"v_rcp_f32 v{MX}, v{LL}")
        wo1(5, 0); wo1(5, 1); wo1(6, 0); wo1(6, 1)
        k("s_nop 1")
        ST('pv')
        for r in range(0, 8, 2): k(f"v_pk_mul_f32 v[{O0+r}:{O0+r+1}], v[{O0+r}:{O0+r+1}], v[{MX}:{MX+1}] op_sel_hi:[1,0]")
        k(f"""
        v_cvt_pk_bf16_f32 v{O0}, v{O0}, v{O0+1}
        v_cvt_pk_bf16_f32 v{O0+1}, v{O0+2}, v{O0+3}
        v_cvt_pk_bf16_f32 v{O1}, v{O1}, v{O1+1}
        v_cvt_pk_bf16_f32 v{O1+1}, v{O1+2}, v{O1+3}
        s_mov_b64 exec, s[{sMO}:{sMO+1}]
        s_waitcnt lgkmcnt(8)
        ds_write_b64 v{vOW}, {v(O0,2)}
        ds_write_b64 v{vOW}, {v(O1,2)} offset:32
        s_mov_b64 exec, -1
        global_store_dwordx2 v{vVMS}, {v(aV,2)}, s[{sVM}:{sVM+1}] {OPT['kmflag']}
        """)
        if par == 1 and use_flags:
            k(f"s_cmp_eq_u32 s{sS}, {NSEG-1}\ns_cbranch_scc1 {FIN}")
        woread(slots[7], *wo_ops[7])
        ACC = vM
        for r in range(8): k(f"v_mov_b32 v{ACC+r}, 0")
        k(f"s_waitcnt lgkmcnt(2)\ns_barrier")
        ST('bar3')
        OO = vM + 16
        for ks in range(4): k(f"ds_read_b128 {v(OO+4*ks,4)}, v{vOR} offset:{ks*64}")
        for r in range(8, 16): k(f"v_mov_b32 v{ACC+r}, 0")
        issued = ['w7', 'w7', 'o0', 'o1', 'o2', 'o3']
        def retire_until(idx):
            n = len(issued) - 1 - idx
            k(f"s_waitcnt lgkmcnt({n})")
            del issued[:idx+1]
        def cvt_store(aa):
            b = ACC + 8*aa
            for q in range(4): k(f"v_cvt_pk_bf16_f32 v{b+q}, v{b+2*q}, v{b+2*q+1}")
            for q in range(4):
                if par: k(f"v_or_b32 v{b+q}, 1, v{b+q}")
                else: k(f"v_and_b32 v{b+q}, -2, v{b+q}")
            k(f"global_store_dwordx4 v{vPAS}, {v(b,4)}, s[{sPA}:{sPA+1}] offset:{aa*1024} {st}")
        for n, (cb, ks) in enumerate(wo_ops):
            need = {f'o{ks}', f'w{n}'}
            idxs = [i for i, nme in enumerate(issued) if nme in need]
            if idxs: retire_until(max(idxs))
            k(f"v_smfmac_f32_16x16x64_bf16 {v(ACC+4*cb,4)}, {v(OO+4*ks,4)}, {v(slots[n%8],8)}, v{vIDX}")
            if n + 8 < 16:
                if len(issued) + 2 > 15: retire_until(len(issued) + 2 - 15 - 1)
                woread(slots[n % 8], *wo_ops[n + 8]); issued += [f'w{n+8}', f'w{n+8}']
            if n == 11: cvt_store(0)
        ST('wo')
        SEL = vK
        k(f"""
        s_add_u32 s{sKM}, s{sKM}, 65536
        s_addc_u32 s{sKM+1}, s{sKM+1}, 0
        s_add_u32 s{sVM}, s{sVM}, 65536
        s_addc_u32 s{sVM+1}, s{sVM+1}, 0
        s_ashr_i32 s{sT}, s{sMBD}, 31
        s_nop 1
        """)
        cvt_store(1)
        k(f"""
        s_add_u32 s{sMBr}, s{sMBr}, s{sMBD}
        s_addc_u32 s{sMBr+1}, s{sMBr+1}, s{sT}
        """)
        for d in range(4): k(f"v_mov_b32 v{SEL+d}, 0")
        for d in range(4):
            lo = (0x0001000100010001 << (2*d)); hi = (0x0001000100010001 << (2*d+1))
            k(f"s_mov_b32 s{sP0}, {hex(lo & 0xffffffff)}\ns_mov_b32 s{sP0+1}, {hex(lo & 0xffffffff)}\ns_mov_b64 exec, s[{sP0}:{sP0+1}]\nv_mov_b32 v{SEL+d}, 0x00003f80")
            k(f"s_lshl_b64 exec, exec, 1\nv_mov_b32 v{SEL+d}, 0x3f800000")
        k("s_mov_b64 exec, -1")
        ST('pastore')
        if OPT['ackA'] != 'n': k(f"s_waitcnt vmcnt({OPT['ackA']})")
        ST('ackA')
        PAo = k.lab('LpollA'); X = OO
        k(f"s_mov_b32 s{sSpin}, 0")
        k.label(PAo)
        T0 = vM + 36; T1r = vM + 37
        ck3 = 'v_bitop3_b32' if par else 'v_or3_b32'; bo = ' bitop3:0x80' if par else ''; ck2 = 'v_and_b32' if par else 'v_or_b32'
        k(f"""
        global_load_dwordx4 {v(X,4)}, v{vPAL}, s[{sPA}:{sPA+1}] sc1
        global_load_dwordx4 {v(X+4,4)}, v{vPAL}, s[{sPA1}:{sPA1+1}] sc1
        s_add_u32 s{sSpin}, s{sSpin}, 1
        s_cmp_gt_u32 s{sSpin}, {SPIN}
        s_cbranch_scc1 {TO}
        s_waitcnt vmcnt(0)
        {ck3} v{T0}, v{X}, v{X+1}, v{X+2}{bo}
        {ck3} v{T1r}, v{X+3}, v{X+4}, v{X+5}{bo}
        {ck3} v{T0}, v{T0}, v{X+6}, v{X+7}{bo}
        {ck2} v{T0}, v{T0}, v{T1r}
        v_and_b32 v{T0}, 1, v{T0}
        v_cmp_ne_u32 vcc, {par}, v{T0}
        s_cbranch_vccnz {PAo}
        """)
        ST('pollA')
        if stamp: k(f"s_add_u32 s83, s83, s{sSpin}")
        A = X + 8
        k(f"""
        v_mfma_f32_16x16x32_bf16 {v(A,4)}, {v(SEL,4)}, {v(X,4)}, 0
        v_mfma_f32_16x16x32_bf16 {v(A,4)}, {v(SEL,4)}, {v(X+4,4)}, {v(A,4)}
        s_sub_u32 s{sMBD}, 0, s{sMBD}
        s_nop 6
        """)
        for rot in (8, 4):
            for r in range(4): k(f"v_add_f32_dpp v{A+r}, v{A+r}, v{A+r} row_ror:{rot} row_mask:0xf bank_mask:0xf")
        k(f"""
        v_cndmask_b32 v{A}, v{A}, v{A+1}, s[{sMF0}:{sMF0+1}]
        v_cndmask_b32 v{A+2}, v{A+2}, v{A+3}, s[{sMF0}:{sMF0+1}]
        v_cndmask_b32 v{A}, v{A}, v{A+2}, s[{sMKM}:{sMKM+1}]
        s_nop 1
        v_mov_b32_dpp v{A+1}, v{A} quad_perm:[1,0,3,2] row_mask:0xf bank_mask:0xf
        v_cvt_pk_bf16_f32 v{A}, v{A}, v{A+1}
        v_min_u32 v{A}, 0xfffffffe, v{A}
        s_mov_b64 exec, s[{sMMB}:{sMMB+1}]
        global_store_dword v{vMBS}, v{A}, s[{sMBw}:{sMBw+1}] {st}
        s_ashr_i32 s{sT}, s{sMBD}, 31
        s_add_u32 s{sMBw}, s{sMBw}, s{sMBD}
        s_addc_u32 s{sMBw+1}, s{sMBw+1}, s{sT}
        v_mov_b32 v{A+1}, -1
        global_store_dword v{vMBS}, v{A+1}, s[{sMBw}:{sMBw+1}] {st}
        s_mov_b64 exec, -1
        """)
        ST('reduce')
        ST_collect()
    k.label(LOOP)
    STN[0] = 0
    step(0)
    k(f"s_add_u32 s{sS}, s{sS}, 1")
    STN[0] = 0
    n0 = len(STNAMES)
    step(1)
    del STNAMES[n0:]
    k(f"s_add_u32 s{sS}, s{sS}, 1")
    mark(k, 3, 2)
    k(f"""
    s_cmp_lt_u32 s{sS}, {NSEG}
    s_cbranch_scc1 {LOOP}
    """)
    k.label(FIN)
    mark(k, 5)
    if DIAGON[0]: k("s_memtime s[96:97]\ns_waitcnt lgkmcnt(0)\ns_sub_u32 s89, s96, s89")

    diag_dump(k, 48, 49)
    if stamp:
        k(f"""
        s_memtime s[100:101]
        s_waitcnt lgkmcnt(0)
        s_sub_u32 s100, s100, s99
        s_load_dwordx2 s[{sP0}:{sP0+1}], s[0:1], {KA_DBG}
        s_waitcnt lgkmcnt(0)
        v_mov_b32 v48, 0
        v_mov_b32 v49, s100
        s_mov_b64 exec, 1
        global_store_dword v48, v49, s[{sP0}:{sP0+1}] offset:36 sc1
        s_lshl_b32 s100, s{sH}, 2
        s_add_u32 s100, s100, s{sW}
        s_lshl_b32 s100, s100, 3
        s_add_u32 s100, s100, 0xC000
        v_mov_b32 v48, s100
        v_mov_b32 v50, s82
        v_mov_b32 v51, s83
        global_store_dwordx2 v48, v[50:51], s[{sWS}:{sWS+1}] sc1
        v_mov_b32 v48, 0
        """)
        if stamp == 2:
            lb = k.lab('Lnost')
            k(f"s_or_b32 s81, s{sH}, s{sW}\ns_or_b32 s81, s81, s6\ns_cmp_lg_u32 s81, 0\ns_cbranch_scc1 {lb}")
            for i in range(NST):
                k(f"v_mov_b32 v49, s{84+i}\nglobal_store_dword v48, v49, s[{sP0}:{sP0+1}] offset:{40+4*i} sc1")
            k.label(lb)
        k("s_mov_b64 exec, -1")
    if use_flags:
        k(f"""
        s_mov_b32 s{sS}, {NSEG}
        s_waitcnt vmcnt(0) lgkmcnt(0)
        s_barrier
        v_mov_b32 v95, s{sS}
        s_mov_b64 exec, 1
        global_store_dword v{vL16}, v95, s[{sFR}:{sFR+1}] sc1
        """)
    k("s_waitcnt vmcnt(0)\ns_endpgm")
    timeout_exit(k, 0 if fast else 1, TO)
```

```python
from fw import *
from layout import *
SPIN = 1 << 18
SLEEP = [0]
sIDX=4; sW=5; sL=6; sS=7; sWS=8; sIN=10; sFL=12; sNEED=14; sISS=15; sSPIN=16; sT=17; sT2=18; sT3=19
sOUT=20; sAX1=22; sAX2=24; sOWN=26; sM0=28; sP=30; sTO=32
def base(k, dst, off_fn, extra=None):
    k(f"s_mul_i32 s{sT2}, s{sL}, {off_fn(1) - off_fn(0)}")
    k(f"s_add_u32 s{sT2}, s{sT2}, {off_fn(0)}")
    if extra:
        k(extra)
        k(f"s_add_u32 s{sT2}, s{sT2}, s{sT}")
    k(f"s_add_u32 s{dst}, s{sWS}, s{sT2}\ns_addc_u32 s{dst+1}, s{sWS+1}, 0")
def adv(k, pair, n):
    k(f"s_add_u32 s{pair}, s{pair}, {n}\ns_addc_u32 s{pair+1}, s{pair+1}, 0")
def timeout_block(k, lab, code):
    k.label(lab)
    k(f"""
    s_load_dwordx2 s[{sP}:{sP+1}], s[0:1], {KA_DBG}
    s_waitcnt lgkmcnt(0)
    s_mov_b64 exec, 1
    v_mov_b32 v2, {136 + 4*code}
    v_mov_b32 v3, s{sS}
    v_add_u32 v3, 0x10000, v3
    global_store_dword v2, v3, s[{sP}:{sP+1}] sc1
    s_waitcnt vmcnt(0)
    s_endpgm
    """)
def poll_block(k, vflg, vtmp, tolab, flagbase=sFL, need=sNEED):
    lab = k.lab('Lp')
    k(f"s_mov_b32 s{sSPIN}, 0")
    k.label(lab)
    k(f"""
    global_load_dword v{vtmp}, v{vflg}, s[{flagbase}:{flagbase+1}] sc1
    s_add_u32 s{sSPIN}, s{sSPIN}, 1
    s_cmp_gt_u32 s{sSPIN}, {SPIN}
    s_cbranch_scc1 {tolab}
    s_waitcnt vmcnt(0)
    v_cmp_gt_u32 vcc, s{need}, v{vtmp}
    """)
    if SLEEP[0]:
        ok = k.lab('Lpok')
        k(f"s_cbranch_vccz {ok}\ns_sleep {SLEEP[0]}\ns_branch {lab}")
        k.label(ok)
    else:
        k(f"s_cbranch_vccnz {lab}")
def publish(k, vzero_lane0, vtmp, val_sgpr, wave0_only=False):
    sk = k.lab('Lpub')
    if wave0_only: k(f"s_cmp_lg_u32 s{sW}, 0\ns_cbranch_scc1 {sk}")
    k(f"""
    v_mov_b32 v{vtmp}, s{val_sgpr}
    s_mov_b64 exec, 1
    global_store_dword v{vzero_lane0}, v{vtmp}, s[{sOWN}:{sOWN+1}] sc1
    s_mov_b64 exec, -1
    """)
    mark_val(k, 4, val_sgpr, 33)
    k.label(sk)

sPEND = 35; sGO = 37
SKST = [None]
SKNAMES = []
class Stamper:
    def __init__(self, k, on):
        self.k = k; self.on = on; self.n = 0
    def __call__(self, name):
        if not self.on: return
        i = self.n; self.n += 1; SKNAMES.append(name)
        self.k(f"s_memtime s[{54+2*i}:{55+2*i}]")
    def init(self):
        if not self.on: return
        self.k("s_memtime s[100:101]\ns_waitcnt lgkmcnt(0)\ns_mov_b32 s53, s100")
        for i in range(12): self.k(f"s_mov_b32 s{84+i}, 0")
    def collect(self):
        if not self.on: return
        k = self.k; n = self.n
        k("s_waitcnt lgkmcnt(0)")
        for i in range(n):
            prev = "s53" if i == 0 else f"s{54+2*(i-1)}"
            k(f"s_sub_u32 s{55+2*i}, s{54+2*i}, {prev}")
        for i in range(n): k(f"s_add_u32 s{84+i}, s{84+i}, s{55+2*i}")
        k(f"s_mov_b32 s53, s{54+2*(n-1)}")
    def dump(self):
        if not self.on: return
        k = self.k; sk = k.lab('Lsd')
        k(f"s_load_dwordx2 s[{sP}:{sP+1}], s[0:1], {KA_DBG}\ns_waitcnt lgkmcnt(0)\ns_or_b32 s52, s{sIDX}, s{sW}\ns_or_b32 s52, s52, s{sL}\ns_cmp_lg_u32 s52, 0\ns_cbranch_scc1 {sk}\ns_mov_b64 exec, 1\nv_mov_b32 v2, 0")
        for i in range(12): k(f"v_mov_b32 v3, s{84+i}\nglobal_store_dword v2, v3, s[{sP}:{sP+1}] offset:{20+4*i if i < 11 else 68} sc1")
        k("s_mov_b64 exec, -1")
        k.label(sk)
def skeleton(k, name, code, nitems, set_need, issue_dma_, item_start, compute, epilogue, vflg, vtmp, vL16, toggle, nst, chunks):
    TO = k.lab('Lto' + name); LOOP = k.lab('Lit' + name)
    def issue_dma(k):
        mark_val(k, 6, sNEED, 33)
        issue_dma_(k)
    vpub = vtmp + 4 if False else vtmp
    mark(k, 1)
    wait_init(k, vtmp + 120, vtmp)
    k(f"s_mov_b32 s{sS}, 0\ns_mov_b32 s{sT3}, 0\ns_mov_b32 s{sPEND}, 0\ns_mov_b32 s{sGO}, 0")
    set_need(k)
    poll_block(k, vflg, vtmp, TO)
    mark(k, 2)
    issue_dma(k)
    k("s_waitcnt vmcnt(0)\ns_barrier")
    ST = Stamper(k, SKST[0] == name)
    ST.init()
    k.label(LOOP)
    toggle(k)
    k(f"s_add_u32 s{sT3}, s{sS}, 1")
    set_need(k)
    k(f"s_cmp_ge_u32 s{sT3}, {nitems}\ns_cselect_b32 s{sISS}, 1, 0")
    aux = item_start()
    pre = [f"global_load_dword v{vtmp}, v{vflg}, s[{sFL}:{sFL+1}] sc1"] + aux
    naux = sum(c.count('global_load') for c in aux)
    def hook(n):
        if n >= 100:
            j = n - 100
            if j < len(pre): k(pre[j])
            return
        if n >= 10:
            j = n - 10
            if j < len(chunks):
                sk = k.lab('Lch')
                k(f"s_cmp_eq_u32 s{sGO}, 0\ns_cbranch_scc1 {sk}")
                if j == 0: mark_val(k, 6, sNEED, 33)
                k(chunks[j])
                if j == len(chunks) - 1: k(f"s_mov_b32 s{sGO}, 0")
                k.label(sk)
            return
        sk = k.lab('Lhk')
        if n == 0:
            np_ = k.lab('Lnp')
            ST('part1')
            k(f"s_waitcnt vmcnt({naux})")
            ST('h0wait')
            k(f"v_cmp_gt_u32 vcc, s{sNEED}, v{vtmp}")
            k(f"s_cmp_eq_u32 s{sPEND}, 0\ns_cbranch_scc1 {np_}")
            publish(k, vL16, vtmp, sS)
            k(f"s_mov_b32 s{sPEND}, 0")
            k.label(np_)
            k(f"s_cmp_lg_u32 s{sISS}, 0\ns_cbranch_scc1 {sk}")
            nr = k.lab('Lnr')
            k(f"s_cbranch_vccnz {nr}")
            k(f"s_mov_b32 s{sISS}, 1\ns_mov_b32 s{sGO}, 1\ns_branch {sk}")
            k.label(nr)
            k(f"global_load_dword v{vtmp}, v{vflg}, s[{sFL}:{sFL+1}] sc1")
            k.label(sk)
        elif n == 1:
            ST('part2')
            k(f"s_cmp_lg_u32 s{sISS}, 0\ns_cbranch_scc1 {sk}")
            k(f"s_waitcnt vmcnt(0)\nv_cmp_gt_u32 vcc, s{sNEED}, v{vtmp}")
            nr = k.lab('Lnr1')
            k(f"s_cbranch_vccnz {nr}")
            issue_dma(k)
            k(f"s_mov_b32 s{sISS}, 1\ns_branch {sk}")
            k.label(nr)
            k(f"global_load_dword v{vtmp}, v{vflg}, s[{sFL}:{sFL+1}] sc1")
            k.label(sk)
        else:
            k(f"s_cmp_lg_u32 s{sISS}, 0\ns_cbranch_scc1 {sk}")
            k(f"s_waitcnt vmcnt(0)\nv_cmp_gt_u32 vcc, s{sNEED}, v{vtmp}")
            k(f"s_cbranch_vccnz {sk}")
            k(f"s_mov_b32 s{sGO}, 2")
            k.label(sk)
    compute(k, hook)
    ST('part3')
    if naux:
        l1 = k.lab('Law'); l2 = k.lab('Law2')
        k(f"s_cmp_ge_u32 s{sT3}, {nitems}\ns_cbranch_scc1 {l1}\ns_waitcnt vmcnt({len(chunks)})\ns_branch {l2}\n{l1}:\ns_waitcnt vmcnt(0)\n{l2}:")
    epilogue(k, hook)
    ST('epi')
    k(f"s_add_u32 s{sS}, s{sS}, 1")
    late = k.lab('Llate'); join = k.lab('Ljoin'); ng2 = k.lab('Lng2')
    k(f"s_cmp_lg_u32 s{sGO}, 2\ns_cbranch_scc1 {ng2}")
    issue_dma(k)
    k(f"s_mov_b32 s{sGO}, 0\ns_waitcnt vmcnt({len(chunks)})")
    publish(k, vL16, vtmp, sS)
    k(f"s_waitcnt vmcnt(0)\ns_branch {join}")
    k.label(ng2)
    k(f"""
    s_cmp_ge_u32 s{sS}, {nitems}
    s_cbranch_scc1 {late}
    s_cmp_eq_u32 s{sISS}, 0
    s_cbranch_scc1 {late}
    s_waitcnt vmcnt({nst})
    s_mov_b32 s{sPEND}, 1
    s_branch {join}
    """)
    k.label(late)
    k("s_waitcnt vmcnt(0)")
    publish(k, vL16, vtmp, sS)
    k(f"s_cmp_ge_u32 s{sS}, {nitems}\ns_cbranch_scc1 {join}")
    poll_block(k, vflg, vtmp, TO)
    issue_dma(k)
    k("s_waitcnt vmcnt(0)")
    k.label(join)
    ST('endwait')
    mark(k, 3, 1)
    k("s_barrier")
    ST('barrier')
    ST.collect()
    k(f"""
    s_cmp_lt_u32 s{sS}, {nitems}
    s_cbranch_scc1 {LOOP}
    """)
    ST.dump()
    mark(k, 5)
    diag_dump(k, 2, 3)
    k("s_waitcnt vmcnt(0)\ns_endpgm")
    timeout_block(k, TO, code)

NINIT = 128
def wait_init(k, vaddr, vtmp):
    to = k.lab('Lwito'); sk = k.lab('Lwisk')
    k(f"""
    s_load_dwordx2 s[{sP}:{sP+1}], s[0:1], {KA_DBG}
    s_mov_b32 s{sNEED}, 1
    s_mov_b32 s{sS}, 0
    v_mov_b32 v{vaddr}, 248
    s_waitcnt lgkmcnt(0)
    """)
    poll_block(k, vaddr, vtmp, to, flagbase=sP)
    k(f"s_branch {sk}")
    timeout_block(k, to, 10)
    k.label(sk)

GATE = dict(T3=None, T5=None, TW=None, TA=None)
def wait_start(k, vaddr, vtmp, flag_off, need=1, gate0=None):
    sk = k.lab('Lws'); to = k.lab('Lwsto'); go = k.lab('Lwsg')
    k(f"s_cmp_lg_u32 s{sL}, 0\ns_cbranch_scc1 {go}\ns_branch {sk}")
    k.label(go)
    wait_init(k, vaddr, vtmp)
    k(f"""
    v_mov_b32 v{vaddr}, {flag_off}
    s_mov_b32 s{sFL}, s{sWS}
    s_mov_b32 s{sFL+1}, s{sWS+1}
    s_mov_b32 s{sNEED}, {need}
    s_mov_b32 s{sS}, 0
    """)
    poll_block(k, vaddr, vtmp, to)
    k(f"s_branch {sk}")
    timeout_block(k, to, 8)
    k.label(sk)
```

```python
import sys
from fw import *
from layout import *
import common as C
import roleR4 as roleR, rolesG, rolesA

KNAME = "interleave_layers__sliding_local_dilated__memory_aug_recurrent_mem_tr__prompt_kernel"
KD = """.amdhsa_kernel {name}
.amdhsa_next_free_vgpr {vgpr}
.amdhsa_next_free_sgpr 102
.amdhsa_accum_offset {acc}
.amdhsa_group_segment_fixed_size 0
.amdhsa_kernarg_size 104
.amdhsa_user_sgpr_count 2
.amdhsa_user_sgpr_kernarg_segment_ptr 1
.amdhsa_system_sgpr_workgroup_id_x 1
.amdhsa_float_denorm_mode_32 3
.end_amdhsa_kernel"""

def entry(k, name):
    k(f".globl {name}\n.p2align 8\n.type {name},@function")
    k.label(name)

def common_entry(k, END):
    k(f"""
    s_load_dwordx2 s[8:9], s[0:1], {KA_WS}
    v_readfirstlane_b32 s5, v0
    s_nop 1
    s_lshr_b32 s5, s5, 6
    s_waitcnt lgkmcnt(0)
    """)

FAKE = [None]
def cnt_addr_lanes(k, vdst, vtmp):
    k(f"""
    v_and_b32 v{vdst}, 3, v0
    v_lshlrev_b32 v{vdst}, 6, v{vdst}
    v_bfe_u32 v{vtmp}, v0, 2, 1
    v_lshl_add_u32 v{vdst}, v{vtmp}, 2, v{vdst}
    """)
def ticket(k):
    k(f"""
    s_load_dwordx2 s[46:47], s[0:1], {KA_DBG}
    s_waitcnt lgkmcnt(0)
    s_cmp_lg_u32 s5, 0
    s_cbranch_scc1 L_tkm
    s_and_b32 s35, s34, 3
    s_lshl_b32 s35, s35, 6
    s_lshr_b32 s37, s34, 2
    s_lshl_b32 s37, s37, 2
    s_add_u32 s35, s35, s37
    s_mov_b64 exec, 1
    v_mov_b32 v1, s35
    v_mov_b32 v2, 1
    global_atomic_add v3, v1, v2, s[46:47] sc0 sc1
    s_waitcnt vmcnt(0)
    v_readfirstlane_b32 s4, v3
    s_nop 1
    s_cmp_lt_u32 s4, 32
    s_cbranch_scc1 L_tkok
    v_mov_b32 v1, 24
    global_atomic_add v3, v1, v2, s[46:47] sc0 sc1
    s_waitcnt vmcnt(0)
    v_readfirstlane_b32 s35, v3
    s_mov_b64 exec, 0xff
    """)
    cnt_addr_lanes(k, 1, 2)
    k(f"""
    s_mov_b32 s37, 0
L_ovf_spin:
    global_load_dword v3, v1, s[46:47] sc1
    s_add_u32 s37, s37, 1
    s_cmp_gt_u32 s37, {C.SPIN}
    s_cbranch_scc1 L_ovf_fail
    s_waitcnt vmcnt(0)
    s_mov_b32 s38, 0
    """)
    for x in range(8):
        k(f"v_readlane_b32 s{48+x}, v3, {x}")
    k("s_nop 1")
    for x in range(8):
        k(f"s_add_u32 s38, s38, s{48+x}")
    k(f"""
    s_cmp_lt_u32 s38, 256
    s_cbranch_scc1 L_ovf_spin
    """)
    for x in range(8):
        k(f"""
        s_min_u32 s39, s{48+x}, 32
        s_sub_u32 s38, 32, s39
        s_cmp_lt_u32 s35, s38
        s_cbranch_scc0 L_ovf_n{x}
        s_mov_b32 s34, {x}
        s_add_u32 s4, s39, s35
        s_branch L_tkok
L_ovf_n{x}:
        s_sub_u32 s35, s35, s38
        """)
    k(f"""
L_ovf_fail:
    s_waitcnt vmcnt(0)
    s_mov_b32 s4, 255
L_tkok:
    s_mov_b64 exec, 1
    v_mov_b32 v1, 0
    v_mov_b32 v2, s4
    v_mov_b32 v3, s34
    ds_write_b64 v1, v[2:3]
    s_waitcnt lgkmcnt(0)
    s_mov_b64 exec, -1
L_tkm:
    s_barrier
    v_mov_b32 v1, 0
    ds_read_b64 v[2:3], v1
    s_waitcnt lgkmcnt(0)
    v_readfirstlane_b32 s4, v2
    v_readfirstlane_b32 s34, v3
    s_barrier
    """)

CODEPF = [4]
SWAPR = [0]
TLBPF = [0]
ROLES = ['R', 'T3q', 'T3v', 'TW', 'T5', 'TA', 'T4', 'T6']
def emit_roles(k, use_flags=True, stamp=0):
    errs = []
    def role(label, fn):
        n0 = len(k.lines)
        k.label(label)
        fn()
        errs.extend(check(k.lines[n0:], label))
    def R():
        roleR.emit_R_prologue(k, 6)
        roleR.emit_R_mode(k, 'L_R_slow', SWAPR[0])
        roleR.emit_R_loop(k, True, use_flags, stamp)
        k.label('L_R_slow')
        roleR.emit_R_loop(k, False, use_flags, 0)
    role('ROLE_R', R)
    role('ROLE_T3q', lambda: rolesG.emit_T3(k, False))
    role('ROLE_T3v', lambda: rolesG.emit_T3(k, True))
    role('ROLE_TW', lambda: rolesG.emit_TW(k))
    role('ROLE_T5', lambda: rolesG.emit_T5(k))
    role('ROLE_TA', lambda: rolesA.emit_TA(k))
    role('ROLE_T4', lambda: rolesA.emit_T4(k))
    role('ROLE_T6', lambda: rolesA.emit_T6(k))
    return errs

def build(mode, stamp=0, diag=False):
    DIAGON[0] = diag
    k = Asm()
    kernels = []
    launches = [] if mode == 'concurrent' else [("k0_kernel", 256, 1024)]
    if mode == 'serial':
        seq = [('TA', 8), ('TW', 2), ('T3', 48), ('R', 256), ('T4', 16), ('T5', 16), ('T6', 4)]
        for l in range(2):
            for r, n in seq:
                launches.append((f"s{r}{l}_kernel", n, 163840))
    else:
        launches.append((KNAME, 256, 163840))
    hdr = [f"; @launch grid=({g},1,1) block=(256,1,1) lds={lds}" for n, g, lds in launches]
    k.lines.extend(hdr)
    k('.amdgcn_target "amdgcn-amd-amdhsa--gfx950"\n.text')
    errs = []
    if mode == 'serial':
        k.label("CODE_BEGIN")
        for (name, g, lds) in launches[1:]:
            r = name[1:-8]; l = int(name[-8])
            entry(k, name)
            k(f"s_cmp_ge_u32 s2, {g}\ns_cbranch_scc1 L_exit_{name}")
            common_entry(k, None)
            k(f"s_mov_b32 s6, {l}")
            if r == 'R':
                k(f"s_getreg_b32 s33, hwreg(HW_REG_XCC_ID, 0, 4)\ns_cmp_lg_u32 s33, 0\ns_cbranch_scc1 L_exit_{name}")
                ticket(k, "s_mov_b32 s33, 0", name)
                k(f"s_cmp_ge_u32 s4, 32\ns_cbranch_scc1 L_exit_{name}\ns_branch ROLE_R")
            elif r == 'T3':
                k(f"s_mov_b32 s4, s2\ns_cmp_ge_u32 s4, 32\ns_cbranch_scc1 L_v_{name}\ns_branch ROLE_T3q\nL_v_{name}:\ns_branch ROLE_T3v")
            else:
                k(f"s_mov_b32 s4, s2\ns_branch ROLE_{r}")
            k(f"L_exit_{name}:\ns_endpgm")
            kernels.append((name, 512, 256))
    else:
        name = KNAME
        k.label("CODE_BEGIN")
        entry(k, name)
        k(f"s_cmp_ge_u32 s2, 256\ns_cbranch_scc1 L_exit_m")
        common_entry(k, None)
        if CODEPF[0]:
            k(f"""
            s_cmp_eq_u32 s5, 0
            s_cbranch_scc1 L_nopf
            s_getpc_b64 s[14:15]
L_pfpc:
            s_add_u32 s14, s14, ROLE_R-L_pfpc
            s_addc_u32 s15, s15, 0
            v_subrev_u32 v1, 64, v0
            v_lshlrev_b32 v1, 7, v1
            s_mov_b32 s16, CODE_END-ROLE_R-4
            """)
            for j in range(CODEPF[0]):
                k(f"v_min_u32 v2, s16, v1\nv_and_b32 v2, -4, v2\nglobal_load_dword v255, v2, s[14:15]\nv_add_u32 v1, {192*128}, v1")
            if TLBPF[0]:
                k(f"v_and_b32 v1, 63, v0\nv_lshlrev_b32 v1, 21, v1\nglobal_load_dword v254, v1, s[8:9]")
                k(f"v_add_u32 v1, 0x8000000, v1\nv_min_u32 v1, 0x{WS_END - 4:x}, v1\nv_and_b32 v1, -4, v1\nglobal_load_dword v254, v1, s[8:9]")
            k("L_nopf:")
        k("s_getreg_b32 s34, hwreg(HW_REG_XCC_ID, 0, 4)\ns_and_b32 s34, s34, 7")
        if diag:
            k("s_memrealtime s[94:95]\ns_waitcnt lgkmcnt(0)\ns_mov_b32 s80, s94")
        if FAKE[0]: k(FAKE[0])
        ticket(k)
        if diag:
            k(f"s_lshl_b32 s92, s34, 5\ns_add_u32 s92, s92, s4\ns_lshl_b32 s92, s92, 6\ns_add_u32 s92, s92, {DIAG}\ns_add_u32 s90, s8, s92\ns_addc_u32 s91, s9, 0")
            for i in range(1, 10): k(f"s_mov_b32 s{80+i}, 0")
        k(f"""
        s_cmp_ge_u32 s4, 32
        s_cbranch_scc1 L_exit_m
        s_mov_b32 s36, 0
        s_cmp_eq_u32 s34, {1 ^ SWAPR[0]}
        s_cbranch_scc1 L_doinit
        s_mov_b32 s36, 1
        s_cmp_eq_u32 s34, 4
        s_cbranch_scc1 L_doinit
        s_mov_b32 s36, 2
        s_cmp_eq_u32 s34, 5
        s_cbranch_scc1 L_doinit
        s_mov_b32 s36, 3
        s_cmp_eq_u32 s34, 7
        s_cbranch_scc1 L_doinit
        s_branch L_noinit
L_doinit:
        s_lshl_b32 s36, s36, 5
        s_add_u32 s36, s36, s4
        """)
        n0 = len(k.lines)
        mark(k, 9)
        rolesA.emit_init(k, 36)
        mark(k, 8)
        errs += check(k.lines[n0:], 'init')
        k(f"""
L_noinit:
        s_cmp_ge_u32 s34, 2
        s_cbranch_scc1 L_d1
        s_xor_b32 s6, s34, {SWAPR[0]}
        s_branch ROLE_R
L_d1:
        s_cmp_ge_u32 s34, 6
        s_cbranch_scc1 L_d2
        s_sub_u32 s6, s34, 2
        s_lshr_b32 s6, s6, 1
        s_and_b32 s33, s34, 1
        s_cmp_lg_u32 s33, 0
        s_cbranch_scc1 L_d1b
        s_branch ROLE_T3q
L_d1b:
        s_cmp_ge_u32 s4, 16
        s_cbranch_scc1 L_d1c
        s_add_u32 s4, s4, 32
        s_branch ROLE_T3v
L_d1c:
        s_sub_u32 s4, s4, 16
        s_branch ROLE_T5
L_d2:
        s_sub_u32 s6, s34, 6
        s_cmp_ge_u32 s4, 16
        s_cbranch_scc1 L_d2b
        s_cmp_lg_u32 s6, 0
        s_cbranch_scc1 L_d2a
        """)
        rolesA.emit_l2_prefetch(k)
        k(f"""
L_d2a:
        s_branch ROLE_T4
L_d2b:
        s_cmp_ge_u32 s4, 24
        s_cbranch_scc1 L_d2c
        s_sub_u32 s4, s4, 16
        s_branch ROLE_TA
L_d2c:
        s_cmp_ge_u32 s4, 26
        s_cbranch_scc1 L_d2d
        s_sub_u32 s4, s4, 24
        s_branch ROLE_TW
L_d2d:
        s_cmp_ge_u32 s4, 30
        s_cbranch_scc1 L_exit_m
        s_sub_u32 s4, s4, 26
        s_branch ROLE_T6
L_exit_m:
        s_endpgm
        """)
        kernels.append((name, 512, 256))
    errs += emit_roles(k, True, stamp)
    k.label("CODE_END")
    k('.section .rodata,"a"')
    for name, vg, acc in kernels:
        k(".p2align 6")
        k(KD.format(name=name, vgpr=vg, acc=acc))
    k(".text")
    return k.text(), errs

if __name__ == '__main__':
    mode = sys.argv[1] if len(sys.argv) > 1 else 'concurrent'
    txt, errs = build(mode)
    for e in errs: print(e)
    open(f"mega_{mode}.s", "w").write(txt)
    import drv
    asm, co = drv.build(f"mega_{mode}.s", KNAME, 13)
    from cdna_launch import address_register_problem
    print("bytes", len(txt))
    print("check:", address_register_problem(co, KNAME))
```

```python
from fw import *
from layout import *
WOI=0; MSTG=131072; QKT=139520; KTL=143616; VTL=151808; OX=MSTG
SPIN = 1 << 18
SLOT = 0x40000
sH=4; sW=5; sS=7
sWS=8
sMBr=10; sMBw=12; sPA=14; sPA1=16
sKT=18; sVT=20; sKM=22; sVM=24
sFL=26
sMO=28; sMMB=30; sMKM=32; sMF0=34
sC=36; sT=37; sT2=38; sT3=39; sSpin=40
sP0=42
sFKv=44; sFVv=45
sM0K=46; sM0V=47
sFR=48
sSL=50; sSH=51
sMBD=52
sMF3=34
vL16=0; vMW=1; vMR=2; vQW=3; vFLG=4; vQR0=5; vQR1=6; vKR=7; vVR=8; vOW=9; vOR=10; vWO=11
vPAS=12; vPAL=13; vMBS=14; vWO2=15; vVMS=16; vSP=17; vIDX=18; vBIAS=19
aQ=20; aK=24; aV=28
vM=32; vK=96
WV=128
OPT = dict(kmflag='sc1', ackA='0', ackB='0', exp='', selpos='pre', toppos='pre')

def wreg(mu, ks, d0=0, n=8):
    if mu == 0: return a(8*ks + d0, n)
    if mu == 1: return a(128 + 8*ks + d0, n)
    return v(WV + 8*ks + d0, n)

def timeout_exit(k, code, lab):
    k.label(lab)
    k(f"""
    s_load_dwordx2 s[{sP0}:{sP0+1}], s[0:1], {KA_DBG}
    s_waitcnt lgkmcnt(0)
    s_mov_b64 exec, 1
    v_mov_b32 v32, {136 + 4*code}
    v_mov_b32 v33, s{sS}
    v_add_u32 v33, 0x10000, v33
    global_store_dword v32, v33, s[{sP0}:{sP0+1}] sc1
    s_waitcnt vmcnt(0)
    s_endpgm
    """)

def r_wait_init(k):
    lp = k.lab('Lwi'); to = k.lab('Lwito'); sk = k.lab('Lwisk')
    k(f"""
    s_load_dwordx2 s[{sP0}:{sP0+1}], s[0:1], {KA_DBG}
    s_mov_b32 s{sSpin}, 0
    s_mov_b32 s{sS}, 0
    v_mov_b32 v32, 248
    s_waitcnt lgkmcnt(0)
{lp}:
    global_load_dword v33, v32, s[{sP0}:{sP0+1}] sc1
    s_add_u32 s{sSpin}, s{sSpin}, 1
    s_cmp_gt_u32 s{sSpin}, {SPIN}
    s_cbranch_scc1 {to}
    s_waitcnt vmcnt(0)
    v_cmp_gt_u32 vcc, 1, v33
    s_cbranch_vccnz {lp}
    s_branch {sk}
    """)
    timeout_exit(k, 11, to)
    k.label(sk)

def emit_R_prologue(k, l_sgpr):
    L, I, G = 40, 41, 42
    T1, T2, T3 = 43, 44, 45
    sk = k.lab('Lws'); lp = k.lab('Lwsp'); to = k.lab('Lwsto')
    k(f"""
    s_cmp_eq_u32 s{l_sgpr}, 0
    s_cbranch_scc1 {sk}
    """)
    r_wait_init(k)
    k(f"""
    s_mov_b32 s{sSpin}, 0
    s_mov_b32 s{sS}, 0
    v_mov_b32 v2, {F_R(0)}
{lp}:
    global_load_dword v3, v2, s[{sWS}:{sWS+1}] sc1
    s_add_u32 s{sSpin}, s{sSpin}, 1
    s_cmp_gt_u32 s{sSpin}, {SPIN}
    s_cbranch_scc1 {to}
    s_waitcnt vmcnt(0)
    v_cmp_gt_u32 vcc, 1, v3
    s_cbranch_vccnz {lp}
    s_branch {sk}
    """)
    timeout_exit(k, 9, to)
    k.label(sk)
    k(f"""
    v_and_b32 v40, 63, v0
    v_and_b32 v41, 15, v40
    v_lshrrev_b32 v42, 4, v40
    v_lshlrev_b32 v{vL16}, 4, v40
    """)
    for par in (0, 1):
        k(f"""
        v_add_u32 v{T1}, {4*par}, v{G}
        v_lshlrev_b32 v{T1}, 1, v{T1}
        v_xor_b32 v{T1}, v{T1}, v{I}
        v_lshlrev_b32 v{T1}, 4, v{T1}
        v_lshlrev_b32 v{T2}, 13, v{G}
        v_add_u32 v{46+par}, v{T1}, v{T2}
        """)
    k(f"""
    v_lshrrev_b32 v{T1}, 2, v{I}
    v_lshl_add_u32 v{T1}, v{G}, 2, v{T1}
    v_and_b32 v{T2}, 7, v{T1}
    v_lshlrev_b32 v{T2}, 1, v{T2}
    v_and_b32 v{T3}, 3, v{I}
    v_lshrrev_b32 v{T3}, 1, v{T3}
    s_lshl_b32 s{sT}, s{sW}, 2
    v_add_u32 v{T3}, s{sT}, v{T3}
    """)
    for b in (0, 1):
        k(f"""
        v_add_u32 v48, {2*b}, v{T3}
        v_xor_b32 v48, v48, v{T2}
        v_lshlrev_b32 v48, 4, v48
        v_lshl_add_u32 v48, v{T1}, 8, v48
        v_and_b32 v49, 1, v{I}
        v_lshl_add_u32 v{50+b}, v49, 3, v48
        v_add_u32 v{52+b}, 0x10000, v{50+b}
        """)
    def dma_half(ka, half):
        k(f"s_load_dwordx2 s[{sP0}:{sP0+1}], s[0:1], {ka}")
        k(f"""
        s_lshl_b32 s{sT}, s{sH}, 8
        s_lshl_b32 s{sT2}, s{sW}, 19          ; w*64 rows*8192
        s_add_u32 s{sT}, s{sT}, s{sT2}
        s_add_u32 s{sT}, s{sT}, {half*256*8192}
        s_lshl_b32 s{sT3}, s{sW}, 14
        s_add_u32 s{sT3}, s{sT3}, {half*65536}
        s_waitcnt lgkmcnt(0)
        s_add_u32 s{sP0}, s{sP0}, s{sT}
        s_addc_u32 s{sP0+1}, s{sP0+1}, 0
        """)
        for u in range(16):
            k(f"s_mov_b32 m0, s{sT3}")
            k(f"s_add_u32 s{sT3}, s{sT3}, 1024")
            k(f"global_load_lds_dwordx4 v{46 + (u % 2)}, s[{sP0}:{sP0+1}]")
            k(f"s_add_u32 s{sP0}, s{sP0}, 32768\ns_addc_u32 s{sP0+1}, s{sP0+1}, 0")
    def read_half(mu, half):
        for ksl in range(8):
            ks = half*8 + ksl
            for kh in (0, 1):
                for b in (0, 1):
                    base = (50 if half == 0 else 52) + b
                    off = ksl * 8192 + kh * 4096
                    t = 56 + 2 * (2 * kh + b)
                    k(f"ds_read_b64_tr_b16 {v(t,2)}, v{base} offset:{off}")
            k("s_waitcnt lgkmcnt(0)")
            for kh in (0, 1):
                for b in (0, 1):
                    t = 56 + 2 * (2 * kh + b)
                    for j in (0, 1):
                        d = 4 * kh + b + 2 * j
                        dst = wreg(mu, ks, d, 1)
                        if mu < 2: k(f"v_accvgpr_write_b32 {dst}, v{t+j}")
                        else: k(f"v_mov_b32 {dst}, v{t+j}")
    def dma_wo(half):
        k(f"s_load_dwordx2 s[{sP0}:{sP0+1}], s[0:1], {KA_WO}")
        k(f"""
        s_lshl_b32 s{sT}, s{sH}, 17
        s_lshl_b32 s{sT2}, s{sW}, 14
        s_add_u32 s{sT}, s{sT}, s{sT2}
        s_add_u32 s{sT}, s{sT}, {half*65536}
        s_add_u32 s{sT3}, s{sT2}, {half*65536}
        s_waitcnt lgkmcnt(0)
        s_add_u32 s{sP0}, s{sP0}, s{sT}
        s_addc_u32 s{sP0+1}, s{sP0+1}, 0
        """)
        for u in range(16):
            k(f"s_mov_b32 m0, s{sT3}")
            k(f"s_add_u32 s{sT3}, s{sT3}, 1024")
            k(f"global_load_lds_dwordx4 v{64 + (u % 8)}, s[{sP0}:{sP0+1}]")
            k(f"s_add_u32 s{sP0}, s{sP0}, 1024\ns_addc_u32 s{sP0+1}, s{sP0+1}, 0")
    for u in range(8):
        k(f"v_xor_b32 v{64+u}, {u << 1}, v{L}\nv_lshlrev_b32 v{64+u}, 4, v{64+u}")
    k(f"""
    v_lshrrev_b32 v72, 2, v{I}
    v_lshl_add_u32 v72, v{G}, 2, v72           ; row_l
    v_and_b32 v73, 7, v72
    v_lshlrev_b32 v73, 1, v73                  ; swz
    v_and_b32 v74, 3, v{I}
    v_lshrrev_b32 v74, 1, v74
    s_lshl_b32 s{sT}, s{sW}, 4
    v_add_u32 v74, s{sT}, v74                  ; c0
    v_lshlrev_b32 v75, 10, v72
    v_and_b32 v76, 1, v{I}
    v_lshl_add_u32 v75, v76, 3, v75
    s_lshl_b32 s{sT}, s{sW}, 13
    v_add_u32 v77, s{sT}, v{vL16}
    """)
    def proc_wo(half):
        for ksl in range(2):
            ks = 2*half + ksl
            for cb in range(4):
                for kh in (0, 1):
                    for b in (0, 1):
                        t = 112 + 2 * (2 * kh + b)
                        k(f"v_add_u32 v78, {4*cb + 2*b}, v74")
                        k(f"v_xor_b32 v78, v78, v73")
                        k(f"v_lshl_add_u32 v78, v78, 4, v75")
                        k(f"v_add_u32 v78, {ks*32768}, v78")
                        k(f"ds_read_b64_tr_b16 {v(t,2)}, v78 offset:{kh*16*1024}")
                k("s_waitcnt lgkmcnt(0)")
                for kh in (0, 1):
                    for b in (0, 1):
                        t = 112 + 2 * (2 * kh + b)
                        for j in (0, 1):
                            d = 4 * kh + b + 2 * j
                            k(f"v_mov_b32 v{80+8*cb+d}, v{t+j}")
            k("s_barrier")
            k(f"v_add_u32 v78, {ks*32768}, v77")
            for cb in range(4):
                for hf in (0, 1):
                    k(f"ds_write_b128 v78, {v(80+8*cb+4*hf,4)} offset:{cb*2048 + hf*1024}")
            k("s_waitcnt lgkmcnt(0)")
    seq = [('w', mu, ka, h) for mu, ka in ((0, KA_WQ), (1, KA_WK), (2, KA_WV)) for h in (0, 1)] + [('o', None, None, 0), ('o', None, None, 1)]
    def issue(e):
        if e[0] == 'w': dma_half(e[2], e[3])
        else: dma_wo(e[3])
    issue(seq[0]); issue(seq[1])
    for n, e in enumerate(seq):
        k("s_waitcnt vmcnt(16)\ns_barrier" if n + 1 < len(seq) else "s_waitcnt vmcnt(0)\ns_barrier")
        if e[0] == 'w':
            read_half(e[1], e[3])
            k("s_barrier")
            if n + 2 < len(seq): issue(seq[n+2])
        else:
            proc_wo(e[3])
    k("s_barrier")
    k(f"""
    v_and_b32 v{T1}, 7, v{I}                  ; i%8
    v_lshrrev_b32 v{T2}, 1, v{G}              ; g/2
    v_and_b32 v{T3}, 1, v{G}                  ; g%2
    s_mul_i32 s{sT}, s{sW}, 2112
    s_add_u32 s{sT}, s{sT}, {MSTG}
    v_add_u32 v{vMW}, s{sT}, v{vL16}
    v_mul_u32_u24 v48, 1056, v{T1}
    v_lshl_add_u32 v48, v{G}, 4, v48
    v_add_u32 v{vMR}, {MSTG}, v48
    v_mul_u32_u24 v48, 288, v{T1}
    v_lshl_add_u32 v48, v{G}, 4, v48
    v_add_u32 v{vOR}, {OX}, v48
    v_mul_u32_u24 v48, 288, v{T1}
    v_lshl_add_u32 v48, v{G}, 3, v48
    s_lshl_b32 s{sT}, s{sW}, 6
    s_add_u32 s{sT}, s{sT}, {OX}
    v_add_u32 v{vOW}, s{sT}, v48
    s_lshl_b32 s{sT}, s{sW}, 5
    v_lshl_add_u32 v48, v{T2}, 4, v{I}
    v_add_u32 v48, s{sT}, v48                 ; f
    v_lshrrev_b32 v49, 2, v{I}
    v_add_u32 v49, v49, v{T3}
    v_and_b32 v49, 3, v49
    v_lshlrev_b32 v49, 3, v49
    v_lshl_add_u32 v49, v48, 5, v49
    v_add_u32 v{vQW}, {QKT}, v49
    v_lshlrev_b32 v49, 3, v{T3}
    v_lshl_add_u32 v{vVMS}, v48, 4, v49
    """)
    for hf, dst in ((0, vQR0), (1, vQR1)):
        k(f"""
        v_lshrrev_b32 v48, 2, v{I}
        v_lshl_add_u32 v48, v{G}, 3, v48
        v_add_u32 v48, {4*hf}, v48
        v_and_b32 v49, 3, v{I}
        v_lshl_add_u32 v49, v{G}, 1, v49
        v_add_u32 v49, {hf}, v49
        v_and_b32 v49, 3, v49
        v_lshlrev_b32 v49, 3, v49
        v_lshl_add_u32 v49, v48, 5, v49
        v_add_u32 v{dst}, {QKT}, v49
        """)
    k(f"""
    v_lshlrev_b32 v48, 9, v{G}
    v_lshl_add_u32 v48, v{I}, 4, v48
    v_add_u32 v{vKR}, {KTL}, v48
    s_lshl_b32 s{sT}, s{sW}, 11
    s_add_u32 s{sT}, s{sT}, {VTL}
    v_add_u32 v{vVR}, s{sT}, v48
    s_lshl_b32 s{sT}, s{sW}, 13
    v_add_u32 v{vWO}, s{sT}, v{vL16}
    v_add_u32 v{vWO2}, 0x10000, v{vWO}
    ; vPAS = w*65536 + h*2048 + (g/2)*512 + (n/8)*256 + (g%2)*128 + (n%8)*16
    v_lshlrev_b32 v48, 9, v{T2}
    v_lshl_add_u32 v48, v{T3}, 7, v48
    v_lshl_add_u32 v48, v{T1}, 4, v48
    v_lshrrev_b32 v49, 3, v{I}
    v_lshl_add_u32 v48, v49, 8, v48
    s_lshl_b32 s{sT}, s{sW}, 16
    s_lshl_b32 s{sT2}, s{sH}, 11
    s_add_u32 s{sT}, s{sT}, s{sT2}
    v_add_u32 v{vPAS}, s{sT}, v48
    ; vPAL = (j/8)*65536 + hg*2048 + (j%8)*256 + (4w + u4)*16
    s_lshr_b32 s{sT}, s{sH}, 3
    s_lshl_b32 s{sT}, s{sT}, 16
    s_and_b32 s{sT2}, s{sH}, 7
    s_lshl_b32 s{sT2}, s{sT2}, 8
    s_add_u32 s{sT}, s{sT}, s{sT2}
    s_lshl_b32 s{sT2}, s{sW}, 6
    s_add_u32 s{sT}, s{sT}, s{sT2}
    v_lshrrev_b32 v48, 2, v{L}                 ; hg
    v_lshlrev_b32 v48, 11, v48
    v_and_b32 v49, 3, v{L}                     ; u4
    v_lshl_add_u32 v48, v49, 4, v48
    v_add_u32 v{vPAL}, s{sT}, v48
    ; vMBS = (4rh + rho)*1024 + 2*(128wc + 64ac + 16jlo + 8nh + 4(w%2)) + 2*(32b + u4)
    s_lshr_b32 s{sT}, s{sW}, 1
    s_lshl_b32 s{sT}, s{sT}, 12                ; rh*4096
    s_lshr_b32 s{sT2}, s{sH}, 3
    s_lshl_b32 s{sT2}, s{sT2}, 8               ; 2*128*wc
    s_add_u32 s{sT}, s{sT}, s{sT2}
    s_lshr_b32 s{sT2}, s{sH}, 2
    s_and_b32 s{sT2}, s{sT2}, 1
    s_lshl_b32 s{sT2}, s{sT2}, 7               ; 2*64*ac
    s_add_u32 s{sT}, s{sT}, s{sT2}
    s_and_b32 s{sT2}, s{sH}, 3
    s_lshl_b32 s{sT2}, s{sT2}, 4               ; 2*8*(j%4) = 2*(16jlo + 8nh)
    s_add_u32 s{sT}, s{sT}, s{sT2}
    s_and_b32 s{sT2}, s{sW}, 1
    s_lshl_b32 s{sT2}, s{sT2}, 3               ; 2*4*(w%2)
    s_add_u32 s{sT}, s{sT}, s{sT2}
    v_lshrrev_b32 v50, 2, v{I}                 ; hq = (l%16)/4
    v_lshlrev_b32 v48, 10, v50
    v_lshl_add_u32 v48, v49, 1, v48            ; hq*1024 + 2*u4
    v_lshl_add_u32 v48, v{G}, 6, v48           ; + 2*32*b  (b = l/16)
    v_add_u32 v{vMBS}, s{sT}, v48
    v_mov_b32 v{vIDX}, 0x44444444
    v_mov_b32 v48, 0xeeeeeeee
    v_cmp_lt_u32 vcc, 7, v{I}
    s_nop 1
    v_cndmask_b32 v{vIDX}, v{vIDX}, v48, vcc
    v_mov_b32 v{vBIAS}, 0
    v_mov_b32 v48, 0xff800000
    v_cmp_gt_u32 vcc, 2, v{G}
    s_nop 1
    v_cndmask_b32 v{vBIAS}, v{vBIAS}, v48, vcc
    """)
    def base(dst, off_fn, extra_code):
        k(f"s_mul_i32 s{sT2}, s{l_sgpr}, {off_fn(1) - off_fn(0)}")
        k(f"s_add_u32 s{sT2}, s{sT2}, {off_fn(0)}")
        k(extra_code)
        k(f"s_add_u32 s{sT2}, s{sT2}, s{sT}")
        k(f"s_add_u32 s{dst}, s{sWS}, s{sT2}\ns_addc_u32 s{dst+1}, s{sWS+1}, 0")
    base(sMBr, MB, f"s_lshl_b32 s{sT}, s{sW}, 11")
    base(sMBw, MB, f"s_mov_b32 s{sT}, 8192")
    k(f"s_mov_b32 s{sMBD}, 8192")
    base(sPA, PA, f"s_mov_b32 s{sT}, 0")
    base(sPA1, PA, f"s_mov_b32 s{sT}, 32768")
    base(sKT, KT, f"s_lshl_b32 s{sT}, s{sH}, 13\ns_lshl_b32 s{sT3}, s{sW}, 11\ns_add_u32 s{sT}, s{sT}, s{sT3}")
    base(sVT, VT, f"s_lshl_b32 s{sT}, s{sH}, 13\ns_lshl_b32 s{sT3}, s{sW}, 11\ns_add_u32 s{sT}, s{sT}, s{sT3}")
    base(sKM, KM, f"s_lshl_b32 s{sT}, s{sH}, 11")
    base(sVM, VM, f"s_lshl_b32 s{sT}, s{sH}, 11")
    base(sFL, F_T3, f"s_lshl_b32 s{sT}, s{sH}, 7")
    base(sFR, F_R, f"s_lshl_b32 s{sT}, s{sH}, 6")
    k(f"""
    s_mov_b32 s{sMO}, 0x00ff00ff
    s_mov_b32 s{sMO+1}, 0x00ff00ff
    s_mov_b32 s{sMMB}, 0x55555555
    s_mov_b32 s{sMMB+1}, 0
    s_mov_b32 s{sMKM}, 0xff00ff00
    s_mov_b32 s{sMKM+1}, 0xff00ff00
    s_mov_b32 s{sMF0}, 0xf0f0f0f0
    s_mov_b32 s{sMF0+1}, 0xf0f0f0f0
    s_mov_b32 s{sC}, 0x3e0293ee
    s_mov_b32 s{sSL}, 0x00003f80
    s_mov_b32 s{sSH}, 0x3f800000
    s_lshl_b32 s{sM0K}, s{sW}, 11
    s_add_u32 s{sM0V}, s{sM0K}, {VTL}
    s_add_u32 s{sM0K}, s{sM0K}, {KTL}
    s_mov_b32 s{sS}, 0
    s_mov_b32 s{sFKv}, 0
    s_mov_b32 s{sFVv}, 0
    """)

def emit_R_mode(k, slow_label, swap=0):
    lp = k.lab('Lmd'); fast = k.lab('Lmdf'); to = k.lab('Lmdto')
    k(f"""
    s_load_dwordx2 s[{sP0}:{sP0+1}], s[0:1], {KA_DBG}
    v_and_b32 v32, 63, v{vL16}
    v_lshrrev_b32 v32, 4, v{vL16}            ; lane
    v_and_b32 v33, 3, v32
    v_lshlrev_b32 v33, 6, v33
    v_bfe_u32 v34, v32, 2, 1
    v_lshl_add_u32 v33, v34, 2, v33
    s_mov_b32 s{sSpin}, 0
    s_mov_b32 s{sS}, 0
    s_waitcnt lgkmcnt(0)
{lp}:
    global_load_dword v34, v33, s[{sP0}:{sP0+1}] sc1
    s_add_u32 s{sSpin}, s{sSpin}, 1
    s_cmp_gt_u32 s{sSpin}, {SPIN}
    s_cbranch_scc1 {to}
    s_waitcnt vmcnt(0)
    v_readlane_b32 s{sT2}, v34, 0
    v_readlane_b32 s{sT3}, v34, 1
    s_nop 1
    s_cmp_eq_u32 s6, {swap}
    s_cselect_b32 s{sT}, s{sT2}, s{sT3}
    s_cmp_ge_u32 s{sT}, 32
    s_cbranch_scc1 {fast}
    s_mov_b32 s{sT}, 0
    """)
    for x in range(8):
        k(f"v_readlane_b32 s{sT2}, v34, {x}\ns_nop 1\ns_add_u32 s{sT}, s{sT}, s{sT2}")
    k(f"""
    s_cmp_lt_u32 s{sT}, 256
    s_cbranch_scc1 {lp}
    s_branch {slow_label}
    """)
    timeout_exit(k, 12, to)
    k.label(fast)

NST = 15
STNAMES = []
def emit_R_loop(k, fast, use_flags, stamp=False):
    st = "" if fast else "sc1"
    STN = [0]
    def ST(name):
        if stamp == 2 and name in OPT.get('stamps', name):
            i = STN[0]; STN[0] += 1
            assert i < 15
            STNAMES.append(name)
            k(f"s_memtime s[{54+2*i}:{55+2*i}]")
    def ST_collect():
        if stamp == 2:
            n = STN[0]
            k("s_waitcnt lgkmcnt(0)")
            for i in range(n):
                prev = "s53" if i == 0 else f"s{54+2*(i-1)}"
                k(f"s_sub_u32 s{55+2*i}, s{54+2*i}, {prev}")
            for i in range(n):
                k(f"s_add_u32 s{84+i}, s{84+i}, s{55+2*i}")
            k(f"s_mov_b32 s53, s{54+2*(n-1)}")
    TO = k.lab('Lto'); LOOP = k.lab('Lstep'); FIN = k.lab('Lfin')
    def flag_check():
        lab = k.lab('Lfs'); ok = k.lab('Lfsok')
        k(f"""
        s_mov_b64 exec, 15
        v_cmp_gt_u32 vcc, v{vSP}, v{vFLG}
        s_cbranch_vccz {ok}
        s_mov_b32 s{sSpin}, 0
{lab}:
        global_load_dword v{vFLG}, v{vL16}, s[{sFL}:{sFL+1}] sc1
        s_add_u32 s{sSpin}, s{sSpin}, 1
        {'s_add_u32 s86, s86, 1' if DIAGON[0] and not OPT.get('early') else ''}
        s_cmp_gt_u32 s{sSpin}, {SPIN}
        s_cbranch_scc1 {TO}
        s_waitcnt vmcnt(0)
        v_cmp_gt_u32 vcc, v{vSP}, v{vFLG}
        s_cbranch_vccnz {lab}
{ok}:
        s_mov_b64 exec, -1
        """)
    mark(k, 1)
    if use_flags:
        r_wait_init(k)
    if DIAGON[0]: k("s_mov_b32 s86, 0")
    if use_flags:
        k(f"v_mov_b32 v{vSP}, 1\nv_mov_b32 v{vFLG}, 0\ns_mov_b64 exec, 12\nv_mov_b32 v{vSP}, 0\ns_mov_b64 exec, -1")
        flag_check()
        k(f"v_add_u32 v{vSP}, 1, v{vSP}")
    k(f"""
    s_mov_b32 m0, s{sM0K}
    s_nop 0
    global_load_lds_dwordx4 v{vL16}, s[{sKT}:{sKT+1}] sc1
    global_load_lds_dwordx4 v{vL16}, s[{sKT}:{sKT+1}] offset:1024 sc1
    s_add_u32 s{sKT}, s{sKT}, 262144
    s_addc_u32 s{sKT+1}, s{sKT+1}, 0
    s_waitcnt vmcnt(0)
    s_barrier
    """)
    mark(k, 2)
    if DIAGON[0]: k("s_memtime s[96:97]\ns_waitcnt lgkmcnt(0)\ns_mov_b32 s89, s96")

    if stamp:
        k("s_memtime s[100:101]\ns_waitcnt lgkmcnt(0)\ns_mov_b32 s53, s100\ns_mov_b32 s99, s100")
        for i in range(NST): k(f"s_mov_b32 s{84+i}, 0")
        k("s_mov_b32 s82, 0\ns_mov_b32 s83, 0")
    def step(par):
        if OPT.get('early'):
            if par == 0: mark_val(k, 6, sS, 0); mark_val(k, 8, sS, 2)
            else: mark_val(k, 7, sS, 1); mark_val(k, 4, sS, 3)
        SEN = vM + 60
        RA = vM + 59
        def topwork():
            for r in range(aQ, aQ + 12): k(f"v_mov_b32 v{r}, 0")
            if use_flags:
                flag_check()
                k(f"v_add_u32 v{vSP}, 1, v{vSP}\nv_min_u32 v{vSP}, {NSEG}, v{vSP}")
            k(f"s_mov_b32 m0, s{sM0V}")
        if OPT['toppos'] == 'pre': topwork()
        ST('top')
        if OPT['ackB'] != 'n': k(f"s_waitcnt vmcnt({OPT['ackB']})")
        if OPT['toppos'] == 'post': topwork()
        PB = k.lab('LpollB')
        k(f"s_mov_b32 s{sSpin}, 0")
        k.label(PB)
        k(f"""
        global_load_dwordx4 {v(vM,4)}, v{vL16}, s[{sMBr}:{sMBr+1}] sc1
        global_load_dwordx4 {v(vM+4,4)}, v{vL16}, s[{sMBr}:{sMBr+1}] offset:1024 sc1
        s_add_u32 s{sSpin}, s{sSpin}, 1
        {'s_add_u32 s98, s98, 1' if stamp == 2 and False else ''}
        s_cmp_gt_u32 s{sSpin}, {SPIN}
        s_cbranch_scc1 {TO}
        s_waitcnt vmcnt(0)
        ds_write_b128 v{vMW}, {v(vM,4)}
        ds_write_b128 v{vMW}, {v(vM+4,4)} offset:1056
        v_max3_u32 v{vM+8}, v{vM}, v{vM+1}, v{vM+2}
        v_max3_u32 v{vM+9}, v{vM+3}, v{vM+4}, v{vM+5}
        v_max3_u32 v{vM+8}, v{vM+8}, v{vM+6}, v{vM+7}
        v_max_u32 v{vM+8}, v{vM+8}, v{vM+9}
        v_cmp_eq_u32 vcc, -1, v{vM+8}
        s_cbranch_vccnz {PB}
        """)
        ST('pollB')
        if not OPT.get('early'): mark_val(k, 4, sS, 33)
        if stamp: k(f"s_add_u32 s82, s82, s{sSpin}")
        if use_flags:
            skf = k.lab('Lskf')
            k(f"s_cmp_lg_u32 s{sW}, 0\ns_cbranch_scc1 {skf}\nv_mov_b32 v{vFLG}, s{sS}\ns_mov_b64 exec, 1\nglobal_store_dword v{vL16}, v{vFLG}, s[{sFR}:{sFR+1}] sc1\ns_mov_b64 exec, -1\n{skf}:")
        k(f"global_load_lds_dwordx4 v{vL16}, s[{sVT}:{sVT+1}] sc1")
        k(f"global_load_lds_dwordx4 v{vL16}, s[{sVT}:{sVT+1}] offset:1024 sc1")
        k("s_waitcnt lgkmcnt(0)\ns_barrier")
        ST('bar1')
        def mread(ks): k(f"ds_read_b128 {v(vM+4*ks,4)}, v{vMR} offset:{ks*64}")
        def smf(acc, ks, mu): k(f"v_smfmac_f32_16x16x64_bf16 {v(acc,4)}, {v(vM+4*ks,4)}, {wreg(mu,ks)}, v{vIDX}")
        for ks in range(8): mread(ks)
        side = []
        skipk = k.lab('Lskipk')
        if use_flags:
            side.append(f"s_mov_b64 exec, 15\nglobal_load_dword v{vFLG}, v{vL16}, s[{sFL}:{sFL+1}] sc1\ns_mov_b64 exec, -1")
        side.append(f"s_add_u32 s{sVT}, s{sVT}, 262144\ns_addc_u32 s{sVT+1}, s{sVT+1}, 0")
        for ks in range(16):
            k(f"s_waitcnt lgkmcnt(7)")
            smf(aQ, ks, 0)
            if ks + 8 < 16: mread(ks + 8)
            else:
                j = ks - 8; t = j // 4; kk = j % 4
                k(f"ds_read_b128 {v(vK + (t*4+kk)*4, 4)}, v{vKR} offset:{kk*2048 + t*256}")
            smf(aK, ks, 1)
            if ks >= 8 and side: k(side.pop(0))
        assert not side, side
        ST('qk')
        smf(aV, 0, 2); smf(aV, 1, 2)
        k(f"""
        v_cvt_pk_bf16_f32 v{aQ}, v{aQ}, v{aQ+1}
        v_cvt_pk_bf16_f32 v{aQ+1}, v{aQ+2}, v{aQ+3}
        v_xor_b32 v{aQ+2}, 16, v{vQW}
        v_cvt_pk_bf16_f32 v{aK}, v{aK}, v{aK+1}
        v_cvt_pk_bf16_f32 v{aK+1}, v{aK+2}, v{aK+3}
        ds_write_b64 v{vQW}, {v(aQ,2)}
        ds_write_b64 v{aQ+2}, {v(aK,2)}
        global_store_dwordx2 v{vVMS}, {v(aK,2)}, s[{sKM}:{sKM+1}] {OPT['kmflag']}
        """)
        for ks in (2, 3, 4, 5): smf(aV, ks, 2)
        k("s_waitcnt lgkmcnt(0)\ns_barrier")
        ST('bar2')
        QK = vM
        for ks in range(4):
            k(f"ds_read_b64_tr_b16 {v(QK+4*ks,2)}, v{vQR0} offset:{ks*1024}")
            k(f"ds_read_b64_tr_b16 {v(QK+4*ks+2,2)}, v{vQR1} offset:{ks*1024}")
        smf(aV, 6, 2)
        k(f"s_mov_b32 m0, s{sM0K}\ns_nop 0\nglobal_load_lds_dwordx4 v{vL16}, s[{sKT}:{sKT+1}] sc1")
        smf(aV, 7, 2)
        k(f"global_load_lds_dwordx4 v{vL16}, s[{sKT}:{sKT+1}] offset:1024 sc1")
        smf(aV, 8, 2)
        k(f"s_add_u32 s{sKT}, s{sKT}, 262144\ns_addc_u32 s{sKT+1}, s{sKT+1}, 0")
        smf(aV, 9, 2)
        for r in range(4): k(f"v_mov_b32 v{vM+32+r}, 0x3f803f80")
        def woread(slot_reg, cb, ks):
            for half in (0, 1):
                k(f"ds_read_b128 {v(slot_reg+4*half,4)}, v{vWO if ks < 2 else vWO2} offset:{(ks % 2)*32768 + cb*2048 + half*1024}")
        wo_ops = [(cb, ks) for ks in range(4) for cb in (0, 1)] + [(cb, ks) for ks in range(4) for cb in (2, 3)]
        slots = [vK, vK+16, vK+8, vK+24, vM+40, vM+48, vM+56, vM+32]
        SM = vM + 16; S0 = vM + 20; S1 = vM + 24
        for ks in range(4):
            extra = 4 if ks >= 2 else 0
            k(f"s_waitcnt lgkmcnt({8 - 2*(ks+1) + extra})")
            c = lambda r: ("0" if ks == 0 else v(r, 4))
            q = v(QK + 4*ks, 4)
            k(f"v_mfma_f32_16x16x32_bf16 {v(S0,4)}, {v(vK + ks*4,4)}, {q}, {c(S0)}")
            k(f"v_mfma_f32_16x16x32_bf16 {v(S1,4)}, {v(vK + 16 + ks*4,4)}, {q}, {c(S1)}")
            k(f"v_mfma_f32_16x16x32_bf16 {v(SM,4)}, {q}, {q}, {c(SM)}")
            if ks == 1:
                woread(slots[0], *wo_ops[0]); woread(slots[1], *wo_ops[1])
        ST('scores')
        smf(aV, 10, 2)
        smf(aV, 11, 2)
        MX = vM + 28; TMP = vM + 29; NM = vM + 30; NMM = vM + 31
        P = vM; Z = vM + 6; O0 = vM + 8; O1 = vM + 12
        ON = vM + 32
        LL = vM + 36
        def ds1(reg, addr, off): k(f"ds_read_b128 {v(reg,4)}, v{addr} offset:{off}")
        def wo1(n, half):
            cb, ks = wo_ops[n]
            ds1(slots[n % 8] + 4*half, vWO if ks < 2 else vWO2, (ks % 2)*32768 + cb*2048 + half*1024)
        k(f"""
        v_max3_f32 v{MX}, v{S0}, v{S0+1}, v{S0+2}
        s_waitcnt vmcnt({4 if use_flags else 3})
        v_max3_f32 v{NM}, v{S0+3}, v{S1}, v{S1+1}
        v_max3_f32 v{TMP}, v{SM}, v{SM+1}, v{SM+2}
        v_max3_f32 v{MX}, v{MX}, v{S1+2}, v{S1+3}
        v_max_f32 v{TMP}, v{TMP}, v{SM+3}
        """)
        ds1(aQ, vVR, 0)
        k(f"""
        v_add_f32 v{TMP}, v{TMP}, v{vBIAS}
        v_max3_f32 v{MX}, v{MX}, v{NM}, v{TMP}
        """)
        ds1(aQ+4, vVR, 256)
        k(f"v_mov_b32 v{TMP}, v{MX}")
        smf(aV, 12, 2)
        wo1(2, 0)
        k(f"""
        v_permlane32_swap_b32 v{MX}, v{TMP}
        v_max_f32 v{MX}, v{MX}, v{TMP}
        v_mov_b32 v{TMP}, v{MX}
        """)
        smf(aV, 13, 2)
        wo1(2, 1)
        k(f"""
        v_permlane16_swap_b32 v{MX}, v{TMP}
        v_max_f32 v{MX}, v{MX}, v{TMP}
        v_mul_f32 v{NM}, -v{MX}, s{sC}
        """)
        smf(aV, 14, 2)
        k(f"v_add_f32 v{NMM}, v{NM}, v{vBIAS}")
        for r in range(4): k(f"v_fma_f32 v{S0+r}, v{S0+r}, s{sC}, v{NM}")
        smf(aV, 15, 2)
        for r in range(4): k(f"v_exp_f32 v{S0+r}, v{S0+r}")
        for r in range(4): k(f"v_fma_f32 v{S1+r}, v{S1+r}, s{sC}, v{NM}")
        for r in range(4): k(f"v_exp_f32 v{S1+r}, v{S1+r}")
        for r in range(4): k(f"v_fma_f32 v{SM+r}, v{SM+r}, s{sC}, v{NMM}")
        k(f"v_cvt_pk_bf16_f32 v{P}, v{S0}, v{S0+1}\nv_cvt_pk_bf16_f32 v{P+1}, v{S0+2}, v{S0+3}")
        for r in range(4): k(f"v_exp_f32 v{SM+r}, v{SM+r}")
        k(f"""
        v_cvt_pk_bf16_f32 v{P+2}, v{S1}, v{S1+1}
        v_cvt_pk_bf16_f32 v{P+3}, v{S1+2}, v{S1+3}
        v_cvt_pk_bf16_f32 v{P+4}, v{SM}, v{SM+1}
        v_cvt_pk_bf16_f32 v{P+5}, v{SM+2}, v{SM+3}
        """)
        k("s_waitcnt lgkmcnt(2)")
        ST('softmax')
        k(f"v_mfma_f32_16x16x32_bf16 {v(LL,4)}, {v(ON,4)}, {v(P,4)}, 0")
        k(f"v_cvt_pk_bf16_f32 v{aV}, v{aV}, v{aV+1}")
        k(f"v_mfma_f32_16x16x32_bf16 {v(O1,4)}, {v(aQ+4,4)}, {v(P,4)}, 0")
        k(f"v_cvt_pk_bf16_f32 v{aV+1}, v{aV+2}, v{aV+3}")
        k(f"v_mfma_f32_16x16x32_bf16 {v(O0,4)}, {v(aQ,4)}, {v(P,4)}, 0")
        k(f"v_mov_b32 v{Z}, 0\nv_mov_b32 v{Z+1}, 0")
        k(f"v_mfma_f32_16x16x16_bf16 {v(LL,4)}, {v(ON,2)}, {v(P+4,2)}, {v(LL,4)}")
        wo1(3, 0)
        k(f"v_mfma_f32_16x16x16_bf16 {v(O1,4)}, {v(aV,2)}, {v(P+4,2)}, {v(O1,4)}")
        k(f"v_permlane32_swap_b32 v{P+4}, v{Z}\nv_permlane32_swap_b32 v{P+5}, v{Z+1}")
        wo1(3, 1); wo1(4, 0)
        k(f"v_mfma_f32_16x16x16_bf16 {v(O0,4)}, {v(aV,2)}, {v(Z,2)}, {v(O0,4)}")
        wo1(4, 1)
        k(f"v_rcp_f32 v{MX}, v{LL}")
        wo1(5, 0); wo1(5, 1); wo1(6, 0); wo1(6, 1)
        k("s_nop 1")
        ST('pv')
        for r in range(0, 8, 2): k(f"v_pk_mul_f32 v[{O0+r}:{O0+r+1}], v[{O0+r}:{O0+r+1}], v[{MX}:{MX+1}] op_sel_hi:[1,0]")
        k(f"""
        v_cvt_pk_bf16_f32 v{O0}, v{O0}, v{O0+1}
        v_cvt_pk_bf16_f32 v{O0+1}, v{O0+2}, v{O0+3}
        v_cvt_pk_bf16_f32 v{O1}, v{O1}, v{O1+1}
        v_cvt_pk_bf16_f32 v{O1+1}, v{O1+2}, v{O1+3}
        s_mov_b64 exec, s[{sMO}:{sMO+1}]
        s_waitcnt lgkmcnt(8)
        ds_write_b64 v{vOW}, {v(O0,2)}
        ds_write_b64 v{vOW}, {v(O1,2)} offset:32
        s_mov_b64 exec, -1
        global_store_dwordx2 v{vVMS}, {v(aV,2)}, s[{sVM}:{sVM+1}] {OPT['kmflag']}
        """)
        if par == 1 and use_flags:
            k(f"s_cmp_eq_u32 s{sS}, {NSEG-1}\ns_cbranch_scc1 {FIN}")
        woread(slots[7], *wo_ops[7])
        ACC = vM
        for r in range(8): k(f"v_mov_b32 v{ACC+r}, 0")
        k(f"s_waitcnt lgkmcnt(2)\ns_barrier")
        ST('bar3')
        OO = vM + 16
        for ks in range(4): k(f"ds_read_b128 {v(OO+4*ks,4)}, v{vOR} offset:{ks*64}")
        for r in range(8, 16): k(f"v_mov_b32 v{ACC+r}, 0")
        issued = ['w7', 'w7', 'o0', 'o1', 'o2', 'o3']
        def retire_until(idx):
            n = len(issued) - 1 - idx
            k(f"s_waitcnt lgkmcnt({n})")
            del issued[:idx+1]
        def cvt_store(aa):
            b = ACC + 8*aa
            for q in range(4): k(f"v_cvt_pk_bf16_f32 v{b+q}, v{b+2*q}, v{b+2*q+1}")
            for q in range(4):
                if par: k(f"v_or_b32 v{b+q}, 1, v{b+q}")
                else: k(f"v_and_b32 v{b+q}, -2, v{b+q}")
            k(f"global_store_dwordx4 v{vPAS}, {v(b,4)}, s[{sPA}:{sPA+1}] offset:{aa*1024} {st}")
        for n, (cb, ks) in enumerate(wo_ops):
            need = {f'o{ks}', f'w{n}'}
            idxs = [i for i, nme in enumerate(issued) if nme in need]
            if idxs: retire_until(max(idxs))
            k(f"v_smfmac_f32_16x16x64_bf16 {v(ACC+4*cb,4)}, {v(OO+4*ks,4)}, {v(slots[n%8],8)}, v{vIDX}")
            if n + 8 < 16:
                if len(issued) + 2 > 15: retire_until(len(issued) + 2 - 15 - 1)
                woread(slots[n % 8], *wo_ops[n + 8]); issued += [f'w{n+8}', f'w{n+8}']
            if n == 11: cvt_store(0)
        ST('wo')
        SEL = vK
        k(f"""
        s_add_u32 s{sKM}, s{sKM}, 65536
        s_addc_u32 s{sKM+1}, s{sKM+1}, 0
        s_add_u32 s{sVM}, s{sVM}, 65536
        s_addc_u32 s{sVM+1}, s{sVM+1}, 0
        s_ashr_i32 s{sT}, s{sMBD}, 31
        s_nop 1
        """)
        cvt_store(1)
        k(f"""
        s_add_u32 s{sMBr}, s{sMBr}, s{sMBD}
        s_addc_u32 s{sMBr+1}, s{sMBr+1}, s{sT}
        """)
        def selbuild():
            for d in range(4): k(f"v_mov_b32 v{SEL+d}, 0")
            for d in range(4):
                lo = (0x0001000100010001 << (2*d)); hi = (0x0001000100010001 << (2*d+1))
                k(f"s_mov_b32 s{sP0}, {hex(lo & 0xffffffff)}\ns_mov_b32 s{sP0+1}, {hex(lo & 0xffffffff)}\ns_mov_b64 exec, s[{sP0}:{sP0+1}]\nv_mov_b32 v{SEL+d}, 0x00003f80")
                k(f"s_lshl_b64 exec, exec, 1\nv_mov_b32 v{SEL+d}, 0x3f800000")
            k("s_mov_b64 exec, -1")
        if OPT['selpos'] == 'pre': selbuild()
        ST('pastore')
        if OPT['ackA'] != 'n': k(f"s_waitcnt vmcnt({OPT['ackA']})")
        if OPT['selpos'] == 'post': selbuild()
        ST('ackA')
        PAo = k.lab('LpollA'); X = OO
        k(f"s_mov_b32 s{sSpin}, 0")
        k.label(PAo)
        T0 = vM + 36; T1r = vM + 37
        ck3 = 'v_bitop3_b32' if par else 'v_or3_b32'; bo = ' bitop3:0x80' if par else ''; ck2 = 'v_and_b32' if par else 'v_or_b32'
        k(f"""
        global_load_dwordx4 {v(X,4)}, v{vPAL}, s[{sPA}:{sPA+1}] sc1
        global_load_dwordx4 {v(X+4,4)}, v{vPAL}, s[{sPA1}:{sPA1+1}] sc1
        s_add_u32 s{sSpin}, s{sSpin}, 1
        s_cmp_gt_u32 s{sSpin}, {SPIN}
        s_cbranch_scc1 {TO}
        s_waitcnt vmcnt(0)
        {ck3} v{T0}, v{X}, v{X+1}, v{X+2}{bo}
        {ck3} v{T1r}, v{X+3}, v{X+4}, v{X+5}{bo}
        {ck3} v{T0}, v{T0}, v{X+6}, v{X+7}{bo}
        {ck2} v{T0}, v{T0}, v{T1r}
        v_and_b32 v{T0}, 1, v{T0}
        v_cmp_ne_u32 vcc, {par}, v{T0}
        s_cbranch_vccnz {PAo}
        """)
        ST('pollA')
        if stamp: k(f"s_add_u32 s83, s83, s{sSpin}")
        A = X + 8
        k(f"""
        v_mfma_f32_16x16x32_bf16 {v(A,4)}, {v(SEL,4)}, {v(X,4)}, 0
        v_mfma_f32_16x16x32_bf16 {v(A,4)}, {v(SEL,4)}, {v(X+4,4)}, {v(A,4)}
        s_sub_u32 s{sMBD}, 0, s{sMBD}
        s_nop 6
        """)
        for rot in (8, 4):
            for r in range(4): k(f"v_add_f32_dpp v{A+r}, v{A+r}, v{A+r} row_ror:{rot} row_mask:0xf bank_mask:0xf")
        k(f"""
        v_cndmask_b32 v{A}, v{A}, v{A+1}, s[{sMF0}:{sMF0+1}]
        v_cndmask_b32 v{A+2}, v{A+2}, v{A+3}, s[{sMF0}:{sMF0+1}]
        v_cndmask_b32 v{A}, v{A}, v{A+2}, s[{sMKM}:{sMKM+1}]
        s_nop 1
        v_mov_b32_dpp v{A+1}, v{A} quad_perm:[1,0,3,2] row_mask:0xf bank_mask:0xf
        v_cvt_pk_bf16_f32 v{A}, v{A}, v{A+1}
        v_min_u32 v{A}, 0xfffffffe, v{A}
        s_mov_b64 exec, s[{sMMB}:{sMMB+1}]
        global_store_dword v{vMBS}, v{A}, s[{sMBw}:{sMBw+1}] {st}
        s_ashr_i32 s{sT}, s{sMBD}, 31
        s_add_u32 s{sMBw}, s{sMBw}, s{sMBD}
        s_addc_u32 s{sMBw+1}, s{sMBw+1}, s{sT}
        v_mov_b32 v{A+1}, -1
        global_store_dword v{vMBS}, v{A+1}, s[{sMBw}:{sMBw+1}] {st}
        s_mov_b64 exec, -1
        """)
        ST('reduce')
        ST_collect()
    k.label(LOOP)
    STN[0] = 0
    step(0)
    k(f"s_add_u32 s{sS}, s{sS}, 1")
    STN[0] = 0
    n0 = len(STNAMES)
    step(1)
    del STNAMES[n0:]
    k(f"s_add_u32 s{sS}, s{sS}, 1")
    mark(k, 3, 2)
    k(f"""
    s_cmp_lt_u32 s{sS}, {NSEG}
    s_cbranch_scc1 {LOOP}
    """)
    k.label(FIN)
    mark(k, 5)
    if DIAGON[0]: k("s_memtime s[96:97]\ns_waitcnt lgkmcnt(0)\ns_sub_u32 s89, s96, s89")

    diag_dump(k, 48, 49)
    if stamp:
        k(f"""
        s_memtime s[100:101]
        s_waitcnt lgkmcnt(0)
        s_sub_u32 s100, s100, s99
        s_load_dwordx2 s[{sP0}:{sP0+1}], s[0:1], {KA_DBG}
        s_waitcnt lgkmcnt(0)
        v_mov_b32 v48, 0
        v_mov_b32 v49, s100
        s_mov_b64 exec, 1
        global_store_dword v48, v49, s[{sP0}:{sP0+1}] offset:36 sc1
        s_lshl_b32 s100, s{sH}, 2
        s_add_u32 s100, s100, s{sW}
        s_lshl_b32 s100, s100, 3
        s_add_u32 s100, s100, 0xC000
        v_mov_b32 v48, s100
        v_mov_b32 v50, s82
        v_mov_b32 v51, s83
        global_store_dwordx2 v48, v[50:51], s[{sWS}:{sWS+1}] sc1
        v_mov_b32 v48, 0
        """)
        if stamp == 2:
            lb = k.lab('Lnost')
            k(f"s_or_b32 s81, s{sH}, s{sW}\ns_xor_b32 s80, s6, {int(OPT.get('stl', 0))}\ns_or_b32 s81, s81, s80\ns_cmp_lg_u32 s81, 0\ns_cbranch_scc1 {lb}")
            for i in range(NST):
                k(f"v_mov_b32 v49, s{84+i}\nglobal_store_dword v48, v49, s[{sP0}:{sP0+1}] offset:{40+4*i} sc1")
            k.label(lb)
        k("s_mov_b64 exec, -1")
    if use_flags:
        k(f"""
        s_mov_b32 s{sS}, {NSEG}
        s_waitcnt vmcnt(0) lgkmcnt(0)
        s_barrier
        v_mov_b32 v95, s{sS}
        s_mov_b64 exec, 1
        global_store_dword v{vL16}, v95, s[{sFR}:{sFR+1}] sc1
        """)
    k("s_waitcnt vmcnt(0)\ns_endpgm")
    timeout_exit(k, 0 if fast else 1, TO)
```

```python
from common import *
vL=0; vRD=1; vFLG=2; vTMP=3; vA=8; vACC=32
ONES=0x3f803f80
EXP = ['']

def lane_ids(k):
    k(f"""
    v_and_b32 v40, 63, v0
    v_and_b32 v41, 31, v40
    v_lshrrev_b32 v42, 5, v40
    v_and_b32 v43, 15, v40
    v_lshrrev_b32 v44, 4, v40
    """)

def load_W64(k, ka, row_stride, col_byte_code):
    k(f"""
    v_lshrrev_b32 v45, 3, v40
    v_mul_u32_u24 v45, {row_stride}, v45
    v_and_b32 v46, 7, v40
    v_lshl_add_u32 v45, v46, 4, v45
    ; tr read address: rows 8*kh + i/4 ; cols 16*(gamma%2) + 4*(i%4)
    v_lshrrev_b32 v46, 2, v43
    v_lshl_add_u32 v46, v42, 3, v46         ; 8kh + i/4
    v_lshlrev_b32 v46, 7, v46               ; *128
    v_and_b32 v47, 1, v44
    v_lshl_add_u32 v46, v47, 5, v46         ; + 32B*(gamma%2)
    v_and_b32 v47, 3, v43
    v_lshl_add_u32 v46, v47, 3, v46         ; + 8B*(i%4)
    s_lshl_b32 s{sT2}, s{sW}, 15
    v_add_u32 v46, s{sT2}, v46
    """)
    for rnd in range(2):
        k(f"s_load_dwordx2 s[{sP}:{sP+1}], s[0:1], {ka}")
        k(col_byte_code)
        k(f"""
        s_add_u32 s{sT}, s{sT}, {rnd*256*row_stride}
        s_lshl_b32 s{sT3}, s{sW}, 15
        s_waitcnt lgkmcnt(0)
        s_add_u32 s{sP}, s{sP}, s{sT}
        s_addc_u32 s{sP+1}, s{sP+1}, 0
        """)
        for u in range(32):
            k(f"s_mov_b32 m0, s{sT3}\ns_add_u32 s{sT3}, s{sT3}, 1024\nglobal_load_lds_dwordx4 v45, s[{sP}:{sP+1}]")
            adv(k, sP, 8*row_stride)
        k("s_waitcnt vmcnt(0)")
        n = 0
        for ksl in range(16):
            ks = rnd*16 + ksl
            for ct in range(2):
                for hf in range(2):
                    r = (ct*32 + ks)*4 + 2*hf
                    k(f"ds_read_b64_tr_b16 {a(r,2)}, v46 offset:{(16*ksl + 4*hf)*128 + ct*64}")
                    n += 1
                    if n % 8 == 0: k("s_waitcnt lgkmcnt(0)")
        k("s_waitcnt lgkmcnt(0)")

def gemm64_compute(k, hook, wA):
    def rd(ks): k(f"ds_read_b128 {v(vA + 4*(ks%4),4)}, v{vRD} offset:{ks*1024}")
    for ks in range(3): rd(ks)
    for ks in range(32):
        if ks + 3 < 32: rd(ks + 3)
        k(f"s_waitcnt lgkmcnt({min(3, 31-ks)})")
        x = v(vA + 4*(ks % 4), 4)
        for ct in range(2):
            if EXP[0] == 'half' and ct == 1 and ks > 0: continue
            if EXP[0] == 'none' and ks > 0: continue
            w = a((ct*32 + ks)*4, 4); acc = v(vACC + 16*ct, 16)
            c = "0" if ks == 0 else acc
            if wA: k(f"v_mfma_f32_32x32x16_bf16 {acc}, {w}, {x}, {c}")
            else: k(f"v_mfma_f32_32x32x16_bf16 {acc}, {x}, {w}, {c}")
        if ks < 8: hook(100 + ks)
        if ks == 12: hook(0)
        if 13 <= ks < 21: hook(10 + ks - 13)
        if ks == 24: hook(1)

def toggle32k(k):
    k(f"v_xor_b32 v{vRD}, 0x8000, v{vRD}\ns_xor_b32 s{sM0}, s{sM0}, 0x8000")
def dma_linear(k, nkb, item_stride):
    for blk in range(nkb // 4):
        k(f"s_add_u32 s{sT}, s{sM0}, {blk*4096}\ns_mov_b32 m0, s{sT}\ns_nop 0")
        for u in range(4):
            k(f"global_load_lds_dwordx4 v{vL}, s[{sIN}:{sIN+1}] offset:{u*1024} sc1")
        adv(k, sIN, 4096 if blk < nkb // 4 - 1 else item_stride - (nkb - 4) * 1024)
def dma_chunks(nkb, item_stride):
    ch = []
    for blk in range(nkb // 4):
        for u in range(4):
            c = ""
            if u == 0: c += f"s_add_u32 s{sT}, s{sM0}, {blk*4096}\ns_mov_b32 m0, s{sT}\ns_nop 0\n"
            c += f"global_load_lds_dwordx4 v{vL}, s[{sIN}:{sIN+1}] offset:{u*1024} sc1"
            if u == 3:
                n = 4096 if blk < nkb // 4 - 1 else item_stride - (nkb - 4) * 1024
                c += f"\ns_add_u32 s{sIN}, s{sIN}, {n}\ns_addc_u32 s{sIN+1}, s{sIN+1}, 0"
            ch.append(c)
    return ch
def dma32k(k): dma_linear(k, 8, 32768)

def init_bufs32k(k):
    k(f"""
    v_lshlrev_b32 v{vL}, 4, v40
    v_xor_b32 v{vRD}, 0x8000, v{vL}
    s_lshl_b32 s{sM0}, s{sW}, 13
    """)

def emit_T3(k, vtype):
    name = 'T3v' if vtype else 'T3q'
    sHH = 33; sMU = 34
    k(f"""
    s_lshr_b32 s{sMU}, s{sIDX}, 4
    s_and_b32 s{sT}, s{sIDX}, 15
    s_lshl_b32 s{sT}, s{sT}, 1
    s_lshr_b32 s{sT2}, s{sW}, 1
    s_add_u32 s{sHH}, s{sT}, s{sT2}          ; head
    """)
    lane_ids(k)
    wait_start(k, 2, 3, F_R(0), 1, GATE['T3'])
    colcode = f"s_lshl_b32 s{sT}, s{sHH}, 8\ns_and_b32 s{sT2}, s{sW}, 1\ns_lshl_b32 s{sT2}, s{sT2}, 7\ns_add_u32 s{sT}, s{sT}, s{sT2}"
    if vtype:
        load_W64(k, KA_WV, 8192, colcode)
    else:
        lq = k.lab('Lq'); le = k.lab('Le')
        k(f"s_cmp_lg_u32 s{sMU}, 0\ns_cbranch_scc1 {lq}")
        load_W64(k, KA_WQ, 8192, colcode)
        k(f"s_branch {le}")
        k.label(lq)
        load_W64(k, KA_WK, 8192, colcode)
        k.label(le)
    vCS = 64
    for r in range(4): k(f"v_mov_b32 v{vA+r}, {ONES}")
    k("s_nop 1")
    for ks in range(32):
        for ct in range(2):
            w = a((ct*32 + ks)*4, 4); acc = v(vCS + 16*ct, 16); c = "0" if ks == 0 else acc
            if not vtype: k(f"v_mfma_f32_32x32x16_bf16 {acc}, {w}, {v(vA,4)}, {c}")
            else: k(f"v_mfma_f32_32x32x16_bf16 {acc}, {v(vA,4)}, {w}, {c}")
    k.nop(12)
    k("s_barrier")
    init_bufs32k(k)
    k(f"""
    s_mul_i32 s{sT}, s{sL}, {F_TW(1)-F_TW(0)}
    s_add_u32 s{sT}, s{sT}, {F_TW(0)}
    v_and_b32 v{vFLG}, 3, v40
    v_lshlrev_b32 v{vFLG}, 2, v{vFLG}
    v_bfe_u32 v47, v40, 2, 1
    v_lshl_add_u32 v{vFLG}, v47, 6, v{vFLG}
    v_add_u32 v{vFLG}, s{sT}, v{vFLG}
    s_mov_b32 s{sFL}, s{sWS}
    s_mov_b32 s{sFL+1}, s{sWS+1}
    """)
    base(k, sOWN, F_T3, f"s_sub_u32 s{sT3}, s{sMU}, 1\ns_lshl_b32 s{sT3}, s{sT3}, 1\ns_cmp_eq_u32 s{sMU}, 0\ns_cselect_b32 s{sT3}, 4, s{sT3}\n"
                        f"s_and_b32 s{sT}, s{sW}, 1\ns_add_u32 s{sT3}, s{sT3}, s{sT}\ns_lshl_b32 s{sT3}, s{sT3}, 4\ns_lshl_b32 s{sT}, s{sHH}, 7\ns_add_u32 s{sT}, s{sT}, s{sT3}")
    base(k, sIN, X1, f"s_lshl_b32 s{sT}, s{sW}, 13")
    base(k, sAX1, ST1)
    def outbase(fn):
        base(k, sOUT, fn, f"s_lshl_b32 s{sT}, s{sHH}, 13\ns_and_b32 s{sT3}, s{sW}, 1\ns_lshl_b32 s{sT3}, s{sT3}, 12\ns_add_u32 s{sT}, s{sT}, s{sT3}")
    if vtype: outbase(VT)
    else:
        lq = k.lab('Lq'); le = k.lab('Le')
        k(f"s_cmp_lg_u32 s{sMU}, 0\ns_cbranch_scc1 {lq}")
        outbase(QT); k(f"s_branch {le}"); k.label(lq); outbase(KT); k.label(le)
    vST = 4
    vVS0 = 5; vVS1 = 6; vSC = 7
    k(f"""
    v_lshlrev_b32 v{vST}, 10, v42
    v_lshl_add_u32 v{vST}, v41, 3, v{vST}
    v_lshlrev_b32 v{vVS0}, 11, v42
    v_lshl_add_u32 v{vVS0}, v41, 4, v{vVS0}
    v_add_u32 v{vVS1}, 4096, v{vVS0}
    s_lshl_b32 s{sT}, s{sW}, 8
    s_add_u32 s{sT}, s{sT}, 65536
    v_lshlrev_b32 v{vSC}, 2, v41
    v_add_u32 v{vSC}, s{sT}, v{vSC}
    v_lshlrev_b32 v45, 4, v42
    v_add_u32 v45, s{sT}, v45
    v_mov_b32 v31, v45
    """)
    vSR = 31
    vS = 24
    RS = 96; MR = 97
    def set_need(k): k(f"s_add_u32 s{sNEED}, s{sT3}, 1")
    def item_start():
        ch = [f"global_load_dwordx2 {v(100+2*p,2)}, v{vST}, s[{sAX1}:{sAX1+1}] offset:{p*256} sc1" for p in range(4)]
        ch.append(f"s_add_u32 s{sAX1}, s{sAX1}, 2048\ns_addc_u32 s{sAX1+1}, s{sAX1+1}, 0")
        return ch
    def compute(k, hook): gemm64_compute(k, hook, not vtype)
    def epilogue(k, hook):
        k(f"""
        v_add_f32 v100, v100, v102
        v_add_f32 v101, v101, v103
        v_add_f32 v104, v104, v106
        v_add_f32 v105, v105, v107
        v_add_f32 v100, v100, v104
        v_add_f32 v101, v101, v105
        v_mov_b32 v102, v100
        v_mov_b32 v103, v101
        s_nop 1
        v_permlane32_swap_b32 v100, v102
        v_permlane32_swap_b32 v101, v103
        v_add_f32 v100, v100, v102
        v_add_f32 v101, v101, v103
        v_mul_f32 v100, 0x3b000000, v100        ; mean
        v_mul_f32 v101, 0x3b000000, v101        ; E[x^2]
        v_fma_f32 v101, -v100, v100, v101       ; var
        v_max_f32 v101, 0, v101
        v_add_f32 v101, 0x3727c5ac, v101        ; + 1e-5
        v_rsq_f32 v{RS}, v101
        s_nop 0
        v_mul_f32 v{MR}, v100, v{RS}
        """)
        if not vtype:
            for r in range(0, 32, 2):
                k(f"v_pk_mul_f32 {v(vACC+r,2)}, {v(vACC+r,2)}, {v(RS,2)} op_sel_hi:[1,0]")
            for r in range(0, 32, 2):
                k(f"v_pk_fma_f32 {v(vACC+r,2)}, {v(vCS+r,2)}, {v(RS,2)}, {v(vACC+r,2)} op_sel:[0,1,0] op_sel_hi:[1,1,1] neg_lo:[0,1,0] neg_hi:[0,1,0]")
            hook(2)
            for ct in range(2):
                for jp in range(2):
                    b = vACC + 16*ct + 8*jp; d = 100 + 4*(2*ct+jp)
                    for q in range(4): k(f"v_cvt_pk_bf16_f32 v{d+q}, v{b+2*q}, v{b+2*q+1}")
                    k("s_nop 1")
                    k(f"v_permlane32_swap_b32 v{d}, v{d+2}\nv_permlane32_swap_b32 v{d+1}, v{d+3}")
                    k(f"global_store_dwordx4 v{vL}, {v(d,4)}, s[{sOUT}:{sOUT+1}] offset:{(4*ct+2*jp)*512} sc1")
        else:
            k(f"""
            ds_write_b32 v{vSC}, v{RS}
            ds_write_b32 v{vSC}, v{MR} offset:128
            s_waitcnt lgkmcnt(0)
            """)
            for jj in range(4):
                k(f"ds_read_b128 {v(100+4*jj,4)}, v{vSR} offset:{jj*32}")
                k(f"ds_read_b128 {v(116+4*jj,4)}, v{vSR} offset:{128+jj*32}")
            k("s_waitcnt lgkmcnt(0)")
            for ct in range(2):
                cs = vCS + 16*ct
                for R in range(0, 16, 2):
                    r = vACC + 16*ct + R
                    k(f"v_pk_mul_f32 {v(r,2)}, {v(r,2)}, {v(100+R,2)}")
                for R in range(0, 16, 2):
                    r = vACC + 16*ct + R
                    k(f"v_pk_fma_f32 {v(r,2)}, {v(116+R,2)}, {v(cs,2)}, {v(r,2)} op_sel_hi:[1,0,1] neg_lo:[1,0,0] neg_hi:[1,0,0]")
            hook(2)
            for ct in range(2):
                for aa in range(2):
                    d = 132 + 4*(2*ct+aa); b0 = vACC + 16*ct + 4*aa; b1 = b0 + 8
                    k(f"v_cvt_pk_bf16_f32 v{d}, v{b0}, v{b0+1}\nv_cvt_pk_bf16_f32 v{d+1}, v{b0+2}, v{b0+3}")
                    k(f"v_cvt_pk_bf16_f32 v{d+2}, v{b1}, v{b1+1}\nv_cvt_pk_bf16_f32 v{d+3}, v{b1+2}, v{b1+3}")
                    k(f"global_store_dwordx4 v{vL}, {v(d,4)}, s[{sOUT}:{sOUT+1}] offset:{ct*2048 + aa*1024} sc1")
        adv(k, sOUT, 262144)
    def comp2(k, hook):
        compute(k, hook); k.nop(12)
    skeleton(k, name, 2, NSEG, set_need, dma32k, item_start, comp2, epilogue, vFLG, vTMP, vL, toggle32k, 4, dma_chunks(8, 32768))

def emit_TW(k):
    lane_ids(k)
    wait_start(k, 2, 3, F_R(0), 1)
    load_W64(k, KA_WOA, 1024, f"s_lshl_b32 s{sT}, s{sIDX}, 9\ns_lshl_b32 s{sT2}, s{sW}, 7\ns_add_u32 s{sT}, s{sT}, s{sT2}")
    k("s_barrier")
    init_bufs32k(k)
    k(f"""
    s_mul_i32 s{sT}, s{sL}, {F_TA(1)-F_TA(0)}
    s_add_u32 s{sT}, s{sT}, {F_TA(0)}
    v_and_b32 v{vFLG}, 3, v40
    v_lshlrev_b32 v{vFLG}, 2, v{vFLG}
    v_bfe_u32 v47, v40, 2, 3
    v_lshl_add_u32 v{vFLG}, v47, 6, v{vFLG}
    v_add_u32 v{vFLG}, s{sT}, v{vFLG}
    s_mov_b32 s{sFL}, s{sWS}
    s_mov_b32 s{sFL+1}, s{sWS+1}
    """)
    base(k, sOWN, F_TW, f"s_lshl_b32 s{sT}, s{sIDX}, 4\ns_add_u32 s{sT}, s{sT}, s{sW}\ns_lshl_b32 s{sT}, s{sT}, 2")
    base(k, sIN, OA, f"s_lshl_b32 s{sT}, s{sW}, 13")
    colx = f"s_lshl_b32 s{sT}, s{sIDX}, 14\ns_lshl_b32 s{sT3}, s{sW}, 12\ns_add_u32 s{sT}, s{sT}, s{sT3}"
    base(k, sAX1, XR, colx)
    base(k, sOUT, X1, colx)
    base(k, sAX2, ST1, f"s_lshl_b32 s{sT}, s{sIDX}, 2\ns_add_u32 s{sT}, s{sT}, s{sW}\ns_lshl_b32 s{sT}, s{sT}, 8")
    vX = 4; vSS = 5
    k(f"""
    v_lshlrev_b32 v{vX}, 4, v41
    v_lshl_add_u32 v{vX}, v42, 3, v{vX}      ; n*16 + hi*8
    v_lshlrev_b32 v{vSS}, 3, v41             ; n*8
    """)
    def set_need(k): k(f"s_add_u32 s{sNEED}, s{sT3}, 1")
    def item_start():
        ch = [f"global_load_dwordx4 {v(64+4*(2*ct+jp),4)}, v{vL}, s[{sAX1}:{sAX1+1}] offset:{(4*ct+2*jp)*512} sc1" for ct in range(2) for jp in range(2)]
        ch.append(f"s_add_u32 s{sAX1}, s{sAX1}, 32768\ns_addc_u32 s{sAX1+1}, s{sAX1+1}, 0")
        return ch
    def comp2(k, hook):
        gemm64_compute(k, hook, True); k.nop(12)
    def epilogue(k, hook):
        k("v_mov_b32 v96, 0\nv_mov_b32 v97, 0")
        k(f"s_mov_b32 s{sT}, {ONES}\ns_mov_b32 s{sT2}, 0x00003f80\ns_mov_b32 s{sT3}, 0x3f800000")
        for u in range(4):
            d = 64 + 4*u
            k(f"v_permlane32_swap_b32 v{d}, v{d+2}\nv_permlane32_swap_b32 v{d+1}, v{d+3}")
        k("s_nop 0")
        for ct in range(2):
            for jj in range(4):
                x = 64 + 2*(4*ct+jj); b = vACC + 16*ct + 4*jj
                k(f"""
                v_dot2_f32_bf16 v{b}, v{x}, s{sT2}, v{b}
                v_dot2_f32_bf16 v{b+1}, v{x}, s{sT3}, v{b+1}
                v_dot2_f32_bf16 v{b+2}, v{x+1}, s{sT2}, v{b+2}
                v_dot2_f32_bf16 v{b+3}, v{x+1}, s{sT3}, v{b+3}
                """)
        k("s_nop 1")
        for ct in range(2):
            for jj in range(4):
                x = 64 + 2*(4*ct+jj); b = vACC + 16*ct + 4*jj
                k(f"v_cvt_pk_bf16_f32 v{x}, v{b}, v{b+1}\nv_cvt_pk_bf16_f32 v{x+1}, v{b+2}, v{b+3}")
        hook(2)
        k("s_nop 0")
        for u in range(4):
            d = 64 + 4*u; ct = u // 2; jp = u % 2
            k(f"v_permlane32_swap_b32 v{d}, v{d+2}\nv_permlane32_swap_b32 v{d+1}, v{d+3}")
            k(f"s_nop 0\nglobal_store_dwordx4 v{vL}, {v(d,4)}, s[{sOUT}:{sOUT+1}] offset:{(4*ct+2*jp)*512} sc1")
        for q in range(16):
            k(f"v_dot2_f32_bf16 v96, v{64+q}, s{sT}, v96\nv_dot2_f32_bf16 v97, v{64+q}, v{64+q}, v97")
        k(f"""
        s_nop 2
        v_mov_b32 v98, v96
        v_mov_b32 v99, v97
        s_nop 1
        v_permlane32_swap_b32 v96, v98
        v_permlane32_swap_b32 v97, v99
        v_add_f32 v96, v96, v98
        v_add_f32 v97, v97, v99
        s_mov_b64 exec, 0xffffffff
        global_store_dwordx2 v{vSS}, v[96:97], s[{sAX2}:{sAX2+1}] sc1
        s_mov_b64 exec, -1
        """)
        adv(k, sAX2, 2048)
        adv(k, sOUT, 32768)
    skeleton(k, 'TW', 3, NSEG, set_need, dma32k, item_start, comp2, epilogue, vFLG, vTMP, vL, toggle32k, 5, dma_chunks(8, 32768))

def emit_T5(k):
    sKQ = 33; sNQ = 34
    k(f"s_lshr_b32 s{sKQ}, s{sIDX}, 2\ns_and_b32 s{sNQ}, s{sIDX}, 3")
    lane_ids(k)
    wait_start(k, 2, 3, F_R(0), 1, GATE['T5'])
    k(f"""
    v_lshrrev_b32 v45, 2, v40
    v_lshlrev_b32 v45, 10, v45
    v_and_b32 v46, 3, v40
    v_lshl_add_u32 v45, v46, 4, v45          ; dma lane offset: row l/4, chunk l%4
    ; tr address: row = 4*kh + i/4 ; col bytes 32*(gamma%2) + 8*(i%4)
    v_lshrrev_b32 v46, 2, v43
    v_lshl_add_u32 v46, v42, 2, v46
    v_lshlrev_b32 v46, 6, v46
    v_and_b32 v47, 1, v44
    v_lshl_add_u32 v46, v47, 5, v46
    v_and_b32 v47, 3, v43
    v_lshl_add_u32 v46, v47, 3, v46
    s_lshl_b32 s{sT2}, s{sW}, 15
    v_add_u32 v46, s{sT2}, v46
    """)
    for rnd in range(2):
        k(f"s_load_dwordx2 s[{sP}:{sP+1}], s[0:1], {KA_WO}")
        k(f"""
        s_lshl_b32 s{sT}, s{sKQ}, 20
        s_lshl_b32 s{sT2}, s{sNQ}, 8
        s_add_u32 s{sT}, s{sT}, s{sT2}
        s_lshl_b32 s{sT2}, s{sW}, 6
        s_add_u32 s{sT}, s{sT}, s{sT2}
        s_add_u32 s{sT}, s{sT}, {rnd*512*1024}
        s_lshl_b32 s{sT3}, s{sW}, 15
        s_waitcnt lgkmcnt(0)
        s_add_u32 s{sP}, s{sP}, s{sT}
        s_addc_u32 s{sP+1}, s{sP+1}, 0
        """)
        for u in range(32):
            k(f"s_mov_b32 m0, s{sT3}\ns_add_u32 s{sT3}, s{sT3}, 1024\nglobal_load_lds_dwordx4 v45, s[{sP}:{sP+1}]")
            adv(k, sP, 16*1024)
        k("s_waitcnt vmcnt(0)")
        n = 0
        for ksl in range(32):
            ks = rnd*32 + ksl
            hl = ksl // 8; u = (ksl // 2) % 4; gb = 2 * (ks % 2)
            for aa in range(2):
                row = hl*128 + 32*u + 16*aa + 4*gb
                k(f"ds_read_b64_tr_b16 {a(ks*4 + 2*aa, 2)}, v46 offset:{row*64}")
                n += 1
                if n % 8 == 0: k("s_waitcnt lgkmcnt(0)")
        k("s_waitcnt lgkmcnt(0)")
    k("s_barrier")
    k(f"""
    v_lshlrev_b32 v{vL}, 4, v40
    v_xor_b32 v{vRD}, 0x10000, v{vL}
    s_lshl_b32 s{sM0}, s{sW}, 14
    s_mul_i32 s{sT}, s{sL}, {F_T4(1)-F_T4(0)}
    s_add_u32 s{sT}, s{sT}, {F_T4(0)}
    s_lshl_b32 s{sT2}, s{sKQ}, 8
    s_add_u32 s{sT}, s{sT}, s{sT2}
    v_and_b32 v4, 1, v40                      ; h%2
    v_lshlrev_b32 v4, 3, v4
    v_bfe_u32 v47, v40, 1, 2                  ; (h%8)/2
    v_lshl_add_u32 v4, v47, 6, v4
    v_add_u32 v4, s{sT}, v4
    s_mov_b32 s{sFL}, s{sWS}
    s_mov_b32 s{sFL+1}, s{sWS+1}
    """)
    base(k, sOWN, F_T5, f"s_lshl_b32 s{sT}, s{sIDX}, 4\ns_add_u32 s{sT}, s{sT}, s{sW}\ns_lshl_b32 s{sT}, s{sT}, 2")
    base(k, sIN, OT, f"s_lshl_b32 s{sT}, s{sKQ}, 16\ns_lshl_b32 s{sT3}, s{sW}, 14\ns_add_u32 s{sT}, s{sT}, s{sT3}")
    base(k, sOUT, PT, f"s_lshl_b32 s{sT}, s{sKQ}, 15\ns_lshl_b32 s{sT3}, s{sNQ}, 13\ns_add_u32 s{sT}, s{sT}, s{sT3}\ns_lshl_b32 s{sT3}, s{sW}, 11\ns_add_u32 s{sT}, s{sT}, s{sT3}")
    def set_need(k):
        k(f"s_add_u32 s{sNEED}, s{sT3}, 1\ns_and_b32 s{sT}, s{sT3}, 1\ns_lshl_b32 s{sT}, s{sT}, 2\nv_add_u32 v{vFLG}, s{sT}, v4")
    def dma(k): dma_linear(k, 16, 262144)
    def toggle(k): k(f"v_xor_b32 v{vRD}, 0x10000, v{vRD}\ns_xor_b32 s{sM0}, s{sM0}, 0x10000")
    def comp(k, hook):
        def rd(ks): k(f"ds_read_b128 {v(vA + 4*(ks%4),4)}, v{vRD} offset:{ks*1024}")
        for ks in range(3): rd(ks)
        for ks in range(64):
            if ks + 3 < 64: rd(ks + 3)
            k(f"s_waitcnt lgkmcnt({min(3, 63-ks)})")
            acc = v(vACC, 16); c = "0" if ks == 0 else acc
            k(f"v_mfma_f32_32x32x16_bf16 {acc}, {a(ks*4,4)}, {v(vA + 4*(ks%4),4)}, {c}")
            if ks == 1: hook(100)
            if ks == 22: hook(0)
            if 23 <= ks < 55 and (ks - 23) % 2 == 0: hook(10 + (ks - 23) // 2)
            if ks == 56: hook(1)
        k.nop(12)
    def epilogue(k, hook):
        hook(2)
        for jp in range(2):
            b = vACC + 8*jp; d = 64 + 4*jp
            for q in range(4): k(f"v_cvt_pk_bf16_f32 v{d+q}, v{b+2*q}, v{b+2*q+1}")
            k("s_nop 1")
            k(f"v_permlane32_swap_b32 v{d}, v{d+2}\nv_permlane32_swap_b32 v{d+1}, v{d+3}")
            k(f"global_store_dwordx4 v{vL}, {v(d,4)}, s[{sOUT}:{sOUT+1}] offset:{jp*1024} sc1")
        adv(k, sOUT, 131072)
    skeleton(k, 'T5', 5, NSEG, set_need, dma, lambda: [], comp, epilogue, vFLG, vTMP, vL, toggle, 2, dma_chunks(16, 262144))
```

```python
from fw import *
from layout import *
SPIN = 1 << 18
SLEEP = [0]
sIDX=4; sW=5; sL=6; sS=7; sWS=8; sIN=10; sFL=12; sNEED=14; sISS=15; sSPIN=16; sT=17; sT2=18; sT3=19
sOUT=20; sAX1=22; sAX2=24; sOWN=26; sM0=28; sP=30; sTO=32
def base(k, dst, off_fn, extra=None):
    k(f"s_mul_i32 s{sT2}, s{sL}, {off_fn(1) - off_fn(0)}")
    k(f"s_add_u32 s{sT2}, s{sT2}, {off_fn(0)}")
    if extra:
        k(extra)
        k(f"s_add_u32 s{sT2}, s{sT2}, s{sT}")
    k(f"s_add_u32 s{dst}, s{sWS}, s{sT2}\ns_addc_u32 s{dst+1}, s{sWS+1}, 0")
def adv(k, pair, n):
    k(f"s_add_u32 s{pair}, s{pair}, {n}\ns_addc_u32 s{pair+1}, s{pair+1}, 0")
def timeout_block(k, lab, code):
    k.label(lab)
    k(f"""
    s_load_dwordx2 s[{sP}:{sP+1}], s[0:1], {KA_DBG}
    s_waitcnt lgkmcnt(0)
    s_mov_b64 exec, 1
    v_mov_b32 v2, {136 + 4*code}
    v_mov_b32 v3, s{sS}
    v_add_u32 v3, 0x10000, v3
    global_store_dword v2, v3, s[{sP}:{sP+1}] sc1
    s_waitcnt vmcnt(0)
    s_endpgm
    """)
def poll_block(k, vflg, vtmp, tolab, flagbase=sFL, need=sNEED):
    lab = k.lab('Lp')
    k(f"s_mov_b32 s{sSPIN}, 0")
    k.label(lab)
    k(f"""
    global_load_dword v{vtmp}, v{vflg}, s[{flagbase}:{flagbase+1}] sc1
    s_add_u32 s{sSPIN}, s{sSPIN}, 1
    s_cmp_gt_u32 s{sSPIN}, {SPIN}
    s_cbranch_scc1 {tolab}
    s_waitcnt vmcnt(0)
    v_cmp_gt_u32 vcc, s{need}, v{vtmp}
    s_cbranch_vccnz {lab}
    """)

def publish(k, vzero_lane0, vtmp, val_sgpr, wave0_only=False):
    sk = k.lab('Lpub')
    if wave0_only: k(f"s_cmp_lg_u32 s{sW}, 0\ns_cbranch_scc1 {sk}")
    k(f"""
    v_mov_b32 v{vtmp}, s{val_sgpr}
    s_mov_b64 exec, 1
    global_store_dword v{vzero_lane0}, v{vtmp}, s[{sOWN}:{sOWN+1}] sc1
    s_mov_b64 exec, -1
    """)
    mark_val(k, 4, val_sgpr, 33)
    k.label(sk)

sPEND = 35; sGO = 37
SKST = [None]
SKNAMES = []
class Stamper:
    def __init__(self, k, on):
        self.k = k; self.on = on; self.n = 0
    def __call__(self, name):
        if not self.on: return
        i = self.n; self.n += 1; SKNAMES.append(name)
        self.k(f"s_memtime s[{54+2*i}:{55+2*i}]")
    def init(self):
        if not self.on: return
        self.k("s_memtime s[100:101]\ns_waitcnt lgkmcnt(0)\ns_mov_b32 s53, s100")
        for i in range(12): self.k(f"s_mov_b32 s{84+i}, 0")
    def collect(self):
        if not self.on: return
        k = self.k; n = self.n
        k("s_waitcnt lgkmcnt(0)")
        for i in range(n):
            prev = "s53" if i == 0 else f"s{54+2*(i-1)}"
            k(f"s_sub_u32 s{55+2*i}, s{54+2*i}, {prev}")
        for i in range(n): k(f"s_add_u32 s{84+i}, s{84+i}, s{55+2*i}")
        k(f"s_mov_b32 s53, s{54+2*(n-1)}")
    def dump(self):
        if not self.on: return
        k = self.k; sk = k.lab('Lsd')
        k(f"s_load_dwordx2 s[{sP}:{sP+1}], s[0:1], {KA_DBG}\ns_waitcnt lgkmcnt(0)\ns_or_b32 s52, s{sIDX}, s{sW}\ns_or_b32 s52, s52, s{sL}\ns_cmp_lg_u32 s52, 0\ns_cbranch_scc1 {sk}\ns_mov_b64 exec, 1\nv_mov_b32 v2, 0")
        for i in range(12): k(f"v_mov_b32 v3, s{84+i}\nglobal_store_dword v2, v3, s[{sP}:{sP+1}] offset:{20+4*i if i < 11 else 68} sc1")
        k("s_mov_b64 exec, -1")
        k.label(sk)
def skeleton(k, name, code, nitems, set_need, issue_dma_, item_start, compute, epilogue, vflg, vtmp, vL16, toggle, nst, chunks):
    TO = k.lab('Lto' + name); LOOP = k.lab('Lit' + name)
    def issue_dma(k):
        mark_val(k, 6, sNEED, 33)
        issue_dma_(k)
    vpub = vtmp + 4 if False else vtmp
    mark(k, 1)
    wait_init(k, vtmp + 120, vtmp)
    k(f"s_mov_b32 s{sS}, 0\ns_mov_b32 s{sT3}, 0\ns_mov_b32 s{sPEND}, 0\ns_mov_b32 s{sGO}, 0")
    set_need(k)
    poll_block(k, vflg, vtmp, TO)
    mark(k, 2)
    issue_dma(k)
    k("s_waitcnt vmcnt(0)\ns_barrier")
    ST = Stamper(k, SKST[0] == name)
    ST.init()
    k.label(LOOP)
    toggle(k)
    k(f"s_add_u32 s{sT3}, s{sS}, 1")
    set_need(k)
    k(f"s_cmp_ge_u32 s{sT3}, {nitems}\ns_cselect_b32 s{sISS}, 1, 0")
    aux = item_start()
    pre = [f"global_load_dword v{vtmp}, v{vflg}, s[{sFL}:{sFL+1}] sc1"] + aux
    naux = sum(c.count('global_load') for c in aux)
    def hook(n):
        if n >= 100:
            j = n - 100
            if j < len(pre): k(pre[j])
            return
        if n >= 10:
            j = n - 10
            if j < len(chunks):
                sk = k.lab('Lch')
                k(f"s_cmp_eq_u32 s{sGO}, 0\ns_cbranch_scc1 {sk}")
                if j == 0: mark_val(k, 6, sNEED, 33)
                k(chunks[j])
                if j == len(chunks) - 1: k(f"s_mov_b32 s{sGO}, 0")
                k.label(sk)
            return
        sk = k.lab('Lhk')
        if n == 0:
            np_ = k.lab('Lnp')
            ST('part1')
            k(f"s_waitcnt vmcnt({naux})\ns_barrier")
            ST('h0wait')
            k(f"v_cmp_gt_u32 vcc, s{sNEED}, v{vtmp}")
            k(f"s_cmp_eq_u32 s{sPEND}, 0\ns_cbranch_scc1 {np_}")
            publish(k, vL16, vtmp, sS)
            k(f"s_mov_b32 s{sPEND}, 0")
            k.label(np_)
            k(f"s_cmp_lg_u32 s{sISS}, 0\ns_cbranch_scc1 {sk}")
            nr = k.lab('Lnr')
            k(f"s_cbranch_vccnz {nr}")
            k(f"s_mov_b32 s{sISS}, 1\ns_mov_b32 s{sGO}, 1\ns_branch {sk}")
            k.label(nr)
            k(f"global_load_dword v{vtmp}, v{vflg}, s[{sFL}:{sFL+1}] sc1")
            k.label(sk)
        elif n == 1:
            ST('part2')
            k(f"s_cmp_lg_u32 s{sISS}, 0\ns_cbranch_scc1 {sk}")
            k(f"s_waitcnt vmcnt(0)\nv_cmp_gt_u32 vcc, s{sNEED}, v{vtmp}")
            nr = k.lab('Lnr1')
            k(f"s_cbranch_vccnz {nr}")
            issue_dma(k)
            k(f"s_mov_b32 s{sISS}, 1\ns_branch {sk}")
            k.label(nr)
            k(f"global_load_dword v{vtmp}, v{vflg}, s[{sFL}:{sFL+1}] sc1")
            k.label(sk)
        else:
            k(f"s_cmp_lg_u32 s{sISS}, 0\ns_cbranch_scc1 {sk}")
            k(f"s_waitcnt vmcnt(0)\nv_cmp_gt_u32 vcc, s{sNEED}, v{vtmp}")
            nr = k.lab('Lnr2')
            k(f"s_cbranch_vccnz {nr}")
            k(f"s_mov_b32 s{sGO}, 2\ns_branch {sk}")
            k.label(nr)
            k(f"global_load_dword v{vtmp}, v{vflg}, s[{sFL}:{sFL+1}] sc1")
            k.label(sk)
    compute(k, hook)
    ST('part3')
    if naux:
        l1 = k.lab('Law'); l2 = k.lab('Law2')
        k(f"s_cmp_ge_u32 s{sT3}, {nitems}\ns_cbranch_scc1 {l1}\ns_waitcnt vmcnt({len(chunks)})\ns_branch {l2}\n{l1}:\ns_waitcnt vmcnt(0)\n{l2}:")
    epilogue(k, hook)
    ST('epi')
    k(f"s_add_u32 s{sS}, s{sS}, 1")
    late = k.lab('Llate'); join = k.lab('Ljoin'); ng2 = k.lab('Lng2'); h3 = k.lab('Lh3')
    k(f"s_cmp_lg_u32 s{sISS}, 0\ns_cbranch_scc1 {h3}\ns_cmp_eq_u32 s{sGO}, 2\ns_cbranch_scc1 {h3}")
    k(f"s_waitcnt vmcnt({nst})\nv_cmp_gt_u32 vcc, s{sNEED}, v{vtmp}\ns_cbranch_vccnz {h3}\ns_mov_b32 s{sGO}, 2")
    k.label(h3)
    k(f"s_cmp_lg_u32 s{sGO}, 2\ns_cbranch_scc1 {ng2}")
    issue_dma(k)
    k(f"s_mov_b32 s{sGO}, 0\ns_waitcnt vmcnt({len(chunks)})")
    publish(k, vL16, vtmp, sS)
    k(f"s_waitcnt vmcnt({len(chunks)//2 + 1})\ns_branch {join}")
    k.label(ng2)
    k(f"""
    s_cmp_ge_u32 s{sS}, {nitems}
    s_cbranch_scc1 {late}
    s_cmp_eq_u32 s{sISS}, 0
    s_cbranch_scc1 {late}
    s_waitcnt vmcnt({nst})
    s_mov_b32 s{sPEND}, 1
    s_branch {join}
    """)
    k.label(late)
    k("s_waitcnt vmcnt(0)")
    publish(k, vL16, vtmp, sS)
    k(f"s_cmp_ge_u32 s{sS}, {nitems}\ns_cbranch_scc1 {join}")
    poll_block(k, vflg, vtmp, TO)
    issue_dma(k)
    k(f"s_waitcnt vmcnt({len(chunks)//2})")
    k.label(join)
    ST('endwait')
    mark(k, 3, 1)
    k("s_barrier")
    ST('barrier')
    ST.collect()
    k(f"""
    s_cmp_lt_u32 s{sS}, {nitems}
    s_cbranch_scc1 {LOOP}
    """)
    ST.dump()
    mark(k, 5)
    diag_dump(k, 2, 3)
    k("s_waitcnt vmcnt(0)\ns_endpgm")
    timeout_block(k, TO, code)

NINIT = 128
def wait_init(k, vaddr, vtmp):
    to = k.lab('Lwito'); sk = k.lab('Lwisk')
    k(f"""
    s_load_dwordx2 s[{sP}:{sP+1}], s[0:1], {KA_DBG}
    s_mov_b32 s{sNEED}, 1
    s_mov_b32 s{sS}, 0
    v_mov_b32 v{vaddr}, 248
    s_waitcnt lgkmcnt(0)
    """)
    poll_block(k, vaddr, vtmp, to, flagbase=sP)
    k(f"s_branch {sk}")
    timeout_block(k, to, 10)
    k.label(sk)

GATE = dict(T3=None, T5=F_TA(0), TW=None, TA=None)
def wait_start(k, vaddr, vtmp, flag_off, need=1, gate0=None):
    sk = k.lab('Lws'); to = k.lab('Lwsto'); go = k.lab('Lwsg')
    if gate0 is None:
        k(f"s_cmp_lg_u32 s{sL}, 0\ns_cbranch_scc1 {go}\ns_branch {sk}")
        k.label(go)
    wait_init(k, vaddr, vtmp)
    k(f"v_mov_b32 v{vaddr}, {flag_off}")
    if gate0 is not None:
        k(f"s_cmp_lg_u32 s{sL}, 0\ns_cbranch_scc1 {go}\nv_mov_b32 v{vaddr}, {gate0}")
        k.label(go)
    k(f"""
    s_mov_b32 s{sFL}, s{sWS}
    s_mov_b32 s{sFL+1}, s{sWS+1}
    s_mov_b32 s{sNEED}, {need}
    s_mov_b32 s{sS}, 0
    """)
    poll_block(k, vaddr, vtmp, to)
    k(f"s_branch {sk}")
    timeout_block(k, to, 8)
    k.label(sk)
```

```python
from fw import *
from layout import *
WOI=0; MSTG=131072; QKT=139520; KTL=143616; VTL=151808; OX=MSTG
SPIN = 1 << 18
SLOT = 0x40000
sH=4; sW=5; sS=7
sWS=8
sMBr=10; sMBw=12; sPA=14; sPA1=16
sKT=18; sVT=20; sKM=22; sVM=24
sFL=26
sMO=28; sMMB=30; sMKM=32; sMF0=34
sC=36; sT=37; sT2=38; sT3=39; sSpin=40
sP0=42
sFKv=44; sFVv=45
sM0K=46; sM0V=47
sFR=48
sSL=50; sSH=51
sMBD=52
sKG=44; sKP=45
sMF3=34
vL16=0; vMW=1; vMR=2; vQW=3; vFLG=4; vQR0=5; vQR1=6; vKR=7; vVR=8; vOW=9; vOR=10; vWO=11
vPAS=12; vPAL=13; vMBS=14; vWO2=15; vVMS=16; vSP=17; vIDX=18; vBIAS=19
aQ=20; aK=24; aV=28
vM=32; vK=96
WV=128
OPT = dict(kmflag='sc1', ackA='0', ackB='0', exp='', selpos='pre', toppos='pre')

def wreg(mu, ks, d0=0, n=8):
    if mu == 0: return a(8*ks + d0, n)
    if mu == 1: return a(128 + 8*ks + d0, n)
    return v(WV + 8*ks + d0, n)

def timeout_exit(k, code, lab):
    k.label(lab)
    k(f"""
    s_load_dwordx2 s[{sP0}:{sP0+1}], s[0:1], {KA_DBG}
    s_waitcnt lgkmcnt(0)
    s_mov_b64 exec, 1
    v_mov_b32 v32, {136 + 4*code}
    v_mov_b32 v33, s{sS}
    v_add_u32 v33, 0x10000, v33
    global_store_dword v32, v33, s[{sP0}:{sP0+1}] sc1
    s_waitcnt vmcnt(0)
    s_endpgm
    """)

def r_wait_init(k):
    lp = k.lab('Lwi'); to = k.lab('Lwito'); sk = k.lab('Lwisk')
    k(f"""
    s_load_dwordx2 s[{sP0}:{sP0+1}], s[0:1], {KA_DBG}
    s_mov_b32 s{sSpin}, 0
    s_mov_b32 s{sS}, 0
    v_mov_b32 v32, 248
    s_waitcnt lgkmcnt(0)
{lp}:
    global_load_dword v33, v32, s[{sP0}:{sP0+1}] sc1
    s_add_u32 s{sSpin}, s{sSpin}, 1
    s_cmp_gt_u32 s{sSpin}, {SPIN}
    s_cbranch_scc1 {to}
    s_waitcnt vmcnt(0)
    v_cmp_gt_u32 vcc, 1, v33
    s_cbranch_vccnz {lp}
    s_branch {sk}
    """)
    timeout_exit(k, 11, to)
    k.label(sk)

def emit_R_prologue(k, l_sgpr):
    L, I, G = 40, 41, 42
    T1, T2, T3 = 43, 44, 45
    sk = k.lab('Lws'); lp = k.lab('Lwsp'); to = k.lab('Lwsto')
    k(f"""
    s_cmp_eq_u32 s{l_sgpr}, 0
    s_cbranch_scc1 {sk}
    """)
    r_wait_init(k)
    k(f"""
    s_mov_b32 s{sSpin}, 0
    s_mov_b32 s{sS}, 0
    v_mov_b32 v2, {F_R(0)}
{lp}:
    global_load_dword v3, v2, s[{sWS}:{sWS+1}] sc1
    s_add_u32 s{sSpin}, s{sSpin}, 1
    s_cmp_gt_u32 s{sSpin}, {SPIN}
    s_cbranch_scc1 {to}
    s_waitcnt vmcnt(0)
    v_cmp_gt_u32 vcc, 1, v3
    s_cbranch_vccnz {lp}
    s_branch {sk}
    """)
    timeout_exit(k, 9, to)
    k.label(sk)
    k(f"""
    v_and_b32 v40, 63, v0
    v_and_b32 v41, 15, v40
    v_lshrrev_b32 v42, 4, v40
    v_lshlrev_b32 v{vL16}, 4, v40
    """)
    for par in (0, 1):
        k(f"""
        v_add_u32 v{T1}, {4*par}, v{G}
        v_lshlrev_b32 v{T1}, 1, v{T1}
        v_xor_b32 v{T1}, v{T1}, v{I}
        v_lshlrev_b32 v{T1}, 4, v{T1}
        v_lshlrev_b32 v{T2}, 13, v{G}
        v_add_u32 v{46+par}, v{T1}, v{T2}
        """)
    k(f"""
    v_lshrrev_b32 v{T1}, 2, v{I}
    v_lshl_add_u32 v{T1}, v{G}, 2, v{T1}
    v_and_b32 v{T2}, 7, v{T1}
    v_lshlrev_b32 v{T2}, 1, v{T2}
    v_and_b32 v{T3}, 3, v{I}
    v_lshrrev_b32 v{T3}, 1, v{T3}
    s_lshl_b32 s{sT}, s{sW}, 2
    v_add_u32 v{T3}, s{sT}, v{T3}
    """)
    for b in (0, 1):
        k(f"""
        v_add_u32 v48, {2*b}, v{T3}
        v_xor_b32 v48, v48, v{T2}
        v_lshlrev_b32 v48, 4, v48
        v_lshl_add_u32 v48, v{T1}, 8, v48
        v_and_b32 v49, 1, v{I}
        v_lshl_add_u32 v{50+b}, v49, 3, v48
        v_add_u32 v{52+b}, 0x10000, v{50+b}
        """)
    def dma_half(ka, half):
        k(f"s_load_dwordx2 s[{sP0}:{sP0+1}], s[0:1], {ka}")
        k(f"""
        s_lshl_b32 s{sT}, s{sH}, 8
        s_lshl_b32 s{sT2}, s{sW}, 19          ; w*64 rows*8192
        s_add_u32 s{sT}, s{sT}, s{sT2}
        s_add_u32 s{sT}, s{sT}, {half*256*8192}
        s_lshl_b32 s{sT3}, s{sW}, 14
        s_add_u32 s{sT3}, s{sT3}, {half*65536}
        s_waitcnt lgkmcnt(0)
        s_add_u32 s{sP0}, s{sP0}, s{sT}
        s_addc_u32 s{sP0+1}, s{sP0+1}, 0
        """)
        for u in range(16):
            k(f"s_mov_b32 m0, s{sT3}")
            k(f"s_add_u32 s{sT3}, s{sT3}, 1024")
            k(f"global_load_lds_dwordx4 v{46 + (u % 2)}, s[{sP0}:{sP0+1}]")
            k(f"s_add_u32 s{sP0}, s{sP0}, 32768\ns_addc_u32 s{sP0+1}, s{sP0+1}, 0")
    def read_half(mu, half):
        for ksl in range(8):
            ks = half*8 + ksl
            for kh in (0, 1):
                for b in (0, 1):
                    base = (50 if half == 0 else 52) + b
                    off = ksl * 8192 + kh * 4096
                    t = 56 + 2 * (2 * kh + b)
                    k(f"ds_read_b64_tr_b16 {v(t,2)}, v{base} offset:{off}")
            k("s_waitcnt lgkmcnt(0)")
            for kh in (0, 1):
                for b in (0, 1):
                    t = 56 + 2 * (2 * kh + b)
                    for j in (0, 1):
                        d = 4 * kh + b + 2 * j
                        dst = wreg(mu, ks, d, 1)
                        if mu < 2: k(f"v_accvgpr_write_b32 {dst}, v{t+j}")
                        else: k(f"v_mov_b32 {dst}, v{t+j}")
    def dma_wo(half):
        k(f"s_load_dwordx2 s[{sP0}:{sP0+1}], s[0:1], {KA_WO}")
        k(f"""
        s_lshl_b32 s{sT}, s{sH}, 17
        s_lshl_b32 s{sT2}, s{sW}, 14
        s_add_u32 s{sT}, s{sT}, s{sT2}
        s_add_u32 s{sT}, s{sT}, {half*65536}
        s_add_u32 s{sT3}, s{sT2}, {half*65536}
        s_waitcnt lgkmcnt(0)
        s_add_u32 s{sP0}, s{sP0}, s{sT}
        s_addc_u32 s{sP0+1}, s{sP0+1}, 0
        """)
        for u in range(16):
            k(f"s_mov_b32 m0, s{sT3}")
            k(f"s_add_u32 s{sT3}, s{sT3}, 1024")
            k(f"global_load_lds_dwordx4 v{64 + (u % 8)}, s[{sP0}:{sP0+1}]")
            k(f"s_add_u32 s{sP0}, s{sP0}, 1024\ns_addc_u32 s{sP0+1}, s{sP0+1}, 0")
    for u in range(8):
        k(f"v_xor_b32 v{64+u}, {u << 1}, v{L}\nv_lshlrev_b32 v{64+u}, 4, v{64+u}")
    k(f"""
    v_lshrrev_b32 v72, 2, v{I}
    v_lshl_add_u32 v72, v{G}, 2, v72           ; row_l
    v_and_b32 v73, 7, v72
    v_lshlrev_b32 v73, 1, v73                  ; swz
    v_and_b32 v74, 3, v{I}
    v_lshrrev_b32 v74, 1, v74
    s_lshl_b32 s{sT}, s{sW}, 4
    v_add_u32 v74, s{sT}, v74                  ; c0
    v_lshlrev_b32 v75, 10, v72
    v_and_b32 v76, 1, v{I}
    v_lshl_add_u32 v75, v76, 3, v75
    s_lshl_b32 s{sT}, s{sW}, 13
    v_add_u32 v77, s{sT}, v{vL16}
    """)
    def proc_wo(half):
        for ksl in range(2):
            ks = 2*half + ksl
            for cb in range(4):
                for kh in (0, 1):
                    for b in (0, 1):
                        t = 112 + 2 * (2 * kh + b)
                        k(f"v_add_u32 v78, {4*cb + 2*b}, v74")
                        k(f"v_xor_b32 v78, v78, v73")
                        k(f"v_lshl_add_u32 v78, v78, 4, v75")
                        k(f"v_add_u32 v78, {ks*32768}, v78")
                        k(f"ds_read_b64_tr_b16 {v(t,2)}, v78 offset:{kh*16*1024}")
                k("s_waitcnt lgkmcnt(0)")
                for kh in (0, 1):
                    for b in (0, 1):
                        t = 112 + 2 * (2 * kh + b)
                        for j in (0, 1):
                            d = 4 * kh + b + 2 * j
                            k(f"v_mov_b32 v{80+8*cb+d}, v{t+j}")
            k("s_barrier")
            k(f"v_add_u32 v78, {ks*32768}, v77")
            for cb in range(4):
                for hf in (0, 1):
                    k(f"ds_write_b128 v78, {v(80+8*cb+4*hf,4)} offset:{cb*2048 + hf*1024}")
            k("s_waitcnt lgkmcnt(0)")
    seq = [('w', mu, ka, h) for mu, ka in ((0, KA_WQ), (1, KA_WK), (2, KA_WV)) for h in (0, 1)] + [('o', None, None, 0), ('o', None, None, 1)]
    def issue(e):
        if e[0] == 'w': dma_half(e[2], e[3])
        else: dma_wo(e[3])
    issue(seq[0]); issue(seq[1])
    for n, e in enumerate(seq):
        k("s_waitcnt vmcnt(16)\ns_barrier" if n + 1 < len(seq) else "s_waitcnt vmcnt(0)\ns_barrier")
        if e[0] == 'w':
            read_half(e[1], e[3])
            k("s_barrier")
            if n + 2 < len(seq): issue(seq[n+2])
        else:
            proc_wo(e[3])
    k("s_barrier")
    k(f"""
    v_and_b32 v{T1}, 7, v{I}                  ; i%8
    v_lshrrev_b32 v{T2}, 1, v{G}              ; g/2
    v_and_b32 v{T3}, 1, v{G}                  ; g%2
    s_mul_i32 s{sT}, s{sW}, 2112
    s_add_u32 s{sT}, s{sT}, {MSTG}
    v_add_u32 v{vMW}, s{sT}, v{vL16}
    v_mul_u32_u24 v48, 1056, v{T1}
    v_lshl_add_u32 v48, v{G}, 4, v48
    v_add_u32 v{vMR}, {MSTG}, v48
    v_mul_u32_u24 v48, 288, v{T1}
    v_lshl_add_u32 v48, v{G}, 4, v48
    v_add_u32 v{vOR}, {OX}, v48
    v_mul_u32_u24 v48, 288, v{T1}
    v_lshl_add_u32 v48, v{G}, 3, v48
    s_lshl_b32 s{sT}, s{sW}, 6
    s_add_u32 s{sT}, s{sT}, {OX}
    v_add_u32 v{vOW}, s{sT}, v48
    s_lshl_b32 s{sT}, s{sW}, 5
    v_lshl_add_u32 v48, v{T2}, 4, v{I}
    v_add_u32 v48, s{sT}, v48                 ; f
    v_lshrrev_b32 v49, 2, v{I}
    v_add_u32 v49, v49, v{T3}
    v_and_b32 v49, 3, v49
    v_lshlrev_b32 v49, 3, v49
    v_lshl_add_u32 v49, v48, 5, v49
    v_add_u32 v{vQW}, {QKT}, v49
    v_lshlrev_b32 v49, 3, v{T3}
    v_lshl_add_u32 v{vVMS}, v48, 4, v49
    """)
    for hf, dst in ((0, vQR0), (1, vQR1)):
        k(f"""
        v_lshrrev_b32 v48, 2, v{I}
        v_lshl_add_u32 v48, v{G}, 3, v48
        v_add_u32 v48, {4*hf}, v48
        v_and_b32 v49, 3, v{I}
        v_lshl_add_u32 v49, v{G}, 1, v49
        v_add_u32 v49, {hf}, v49
        v_and_b32 v49, 3, v49
        v_lshlrev_b32 v49, 3, v49
        v_lshl_add_u32 v49, v48, 5, v49
        v_add_u32 v{dst}, {QKT}, v49
        """)
    k(f"""
    v_lshlrev_b32 v48, 9, v{G}
    v_lshl_add_u32 v48, v{I}, 4, v48
    v_add_u32 v{vKR}, {KTL}, v48
    s_lshl_b32 s{sT}, s{sW}, 11
    s_add_u32 s{sT}, s{sT}, {VTL}
    v_add_u32 v{vVR}, s{sT}, v48
    s_lshl_b32 s{sT}, s{sW}, 13
    v_add_u32 v{vWO}, s{sT}, v{vL16}
    v_add_u32 v{vWO2}, 0x10000, v{vWO}
    ; vPAS = w*65536 + h*2048 + (g/2)*512 + (n/8)*256 + (g%2)*128 + (n%8)*16
    v_lshlrev_b32 v48, 9, v{T2}
    v_lshl_add_u32 v48, v{T3}, 7, v48
    v_lshl_add_u32 v48, v{T1}, 4, v48
    v_lshrrev_b32 v49, 3, v{I}
    v_lshl_add_u32 v48, v49, 8, v48
    s_lshl_b32 s{sT}, s{sW}, 16
    s_lshl_b32 s{sT2}, s{sH}, 11
    s_add_u32 s{sT}, s{sT}, s{sT2}
    v_add_u32 v{vPAS}, s{sT}, v48
    ; vPAL = (j/8)*65536 + hg*2048 + (j%8)*256 + (4w + u4)*16
    s_lshr_b32 s{sT}, s{sH}, 3
    s_lshl_b32 s{sT}, s{sT}, 16
    s_and_b32 s{sT2}, s{sH}, 7
    s_lshl_b32 s{sT2}, s{sT2}, 8
    s_add_u32 s{sT}, s{sT}, s{sT2}
    s_lshl_b32 s{sT2}, s{sW}, 6
    s_add_u32 s{sT}, s{sT}, s{sT2}
    v_lshrrev_b32 v48, 2, v{L}                 ; hg
    v_lshlrev_b32 v48, 11, v48
    v_and_b32 v49, 3, v{L}                     ; u4
    v_lshl_add_u32 v48, v49, 4, v48
    v_add_u32 v{vPAL}, s{sT}, v48
    ; vMBS = (4rh + rho)*1024 + 2*(128wc + 64ac + 16jlo + 8nh + 4(w%2)) + 2*(32b + u4)
    s_lshr_b32 s{sT}, s{sW}, 1
    s_lshl_b32 s{sT}, s{sT}, 12                ; rh*4096
    s_lshr_b32 s{sT2}, s{sH}, 3
    s_lshl_b32 s{sT2}, s{sT2}, 8               ; 2*128*wc
    s_add_u32 s{sT}, s{sT}, s{sT2}
    s_lshr_b32 s{sT2}, s{sH}, 2
    s_and_b32 s{sT2}, s{sT2}, 1
    s_lshl_b32 s{sT2}, s{sT2}, 7               ; 2*64*ac
    s_add_u32 s{sT}, s{sT}, s{sT2}
    s_and_b32 s{sT2}, s{sH}, 3
    s_lshl_b32 s{sT2}, s{sT2}, 4               ; 2*8*(j%4) = 2*(16jlo + 8nh)
    s_add_u32 s{sT}, s{sT}, s{sT2}
    s_and_b32 s{sT2}, s{sW}, 1
    s_lshl_b32 s{sT2}, s{sT2}, 3               ; 2*4*(w%2)
    s_add_u32 s{sT}, s{sT}, s{sT2}
    v_lshrrev_b32 v50, 2, v{I}                 ; hq = (l%16)/4
    v_lshlrev_b32 v48, 10, v50
    v_lshl_add_u32 v48, v49, 1, v48            ; hq*1024 + 2*u4
    v_lshl_add_u32 v48, v{G}, 6, v48           ; + 2*32*b  (b = l/16)
    v_add_u32 v{vMBS}, s{sT}, v48
    v_mov_b32 v{vIDX}, 0x44444444
    v_mov_b32 v48, 0xeeeeeeee
    v_cmp_lt_u32 vcc, 7, v{I}
    s_nop 1
    v_cndmask_b32 v{vIDX}, v{vIDX}, v48, vcc
    v_mov_b32 v{vBIAS}, 0
    v_mov_b32 v48, 0xff800000
    v_cmp_gt_u32 vcc, 2, v{G}
    s_nop 1
    v_cndmask_b32 v{vBIAS}, v{vBIAS}, v48, vcc
    """)
    def base(dst, off_fn, extra_code):
        k(f"s_mul_i32 s{sT2}, s{l_sgpr}, {off_fn(1) - off_fn(0)}")
        k(f"s_add_u32 s{sT2}, s{sT2}, {off_fn(0)}")
        k(extra_code)
        k(f"s_add_u32 s{sT2}, s{sT2}, s{sT}")
        k(f"s_add_u32 s{dst}, s{sWS}, s{sT2}\ns_addc_u32 s{dst+1}, s{sWS+1}, 0")
    base(sMBr, MB, f"s_lshl_b32 s{sT}, s{sW}, 11")
    base(sMBw, MB, f"s_mov_b32 s{sT}, 8192")
    k(f"s_mov_b32 s{sMBD}, 8192")
    base(sPA, PA, f"s_mov_b32 s{sT}, 0")
    base(sPA1, PA, f"s_mov_b32 s{sT}, 32768")
    base(sKT, KT, f"s_lshl_b32 s{sT}, s{sH}, 13\ns_lshl_b32 s{sT3}, s{sW}, 11\ns_add_u32 s{sT}, s{sT}, s{sT3}")
    base(sVT, VT, f"s_lshl_b32 s{sT}, s{sH}, 13\ns_lshl_b32 s{sT3}, s{sW}, 11\ns_add_u32 s{sT}, s{sT}, s{sT3}")
    base(sKM, KM, f"s_lshl_b32 s{sT}, s{sH}, 11")
    base(sVM, VM, f"s_lshl_b32 s{sT}, s{sH}, 11")
    base(sFL, F_T3, f"s_lshl_b32 s{sT}, s{sH}, 7")
    base(sFR, F_R, f"s_lshl_b32 s{sT}, s{sH}, 6")
    k(f"""
    s_mov_b32 s{sMO}, 0x00ff00ff
    s_mov_b32 s{sMO+1}, 0x00ff00ff
    s_mov_b32 s{sMMB}, 0x55555555
    s_mov_b32 s{sMMB+1}, 0
    s_mov_b32 s{sMKM}, 0xff00ff00
    s_mov_b32 s{sMKM+1}, 0xff00ff00
    s_mov_b32 s{sMF0}, 0xf0f0f0f0
    s_mov_b32 s{sMF0+1}, 0xf0f0f0f0
    s_mov_b32 s{sC}, 0x3e0293ee
    s_mov_b32 s{sSL}, 0x00003f80
    s_mov_b32 s{sSH}, 0x3f800000
    s_lshl_b32 s{sM0K}, s{sW}, 11
    s_add_u32 s{sM0V}, s{sM0K}, {VTL}
    s_add_u32 s{sM0K}, s{sM0K}, {KTL}
    s_mov_b32 s{sS}, 0
    s_mov_b32 s{sFKv}, 0
    s_mov_b32 s{sFVv}, 0
    """)

def emit_R_mode(k, slow_label, swap=0):
    lp = k.lab('Lmd'); fast = k.lab('Lmdf'); to = k.lab('Lmdto')
    k(f"""
    s_load_dwordx2 s[{sP0}:{sP0+1}], s[0:1], {KA_DBG}
    v_and_b32 v32, 63, v{vL16}
    v_lshrrev_b32 v32, 4, v{vL16}            ; lane
    v_and_b32 v33, 3, v32
    v_lshlrev_b32 v33, 6, v33
    v_bfe_u32 v34, v32, 2, 1
    v_lshl_add_u32 v33, v34, 2, v33
    s_mov_b32 s{sSpin}, 0
    s_mov_b32 s{sS}, 0
    s_waitcnt lgkmcnt(0)
{lp}:
    global_load_dword v34, v33, s[{sP0}:{sP0+1}] sc1
    s_add_u32 s{sSpin}, s{sSpin}, 1
    s_cmp_gt_u32 s{sSpin}, {SPIN}
    s_cbranch_scc1 {to}
    s_waitcnt vmcnt(0)
    v_readlane_b32 s{sT2}, v34, 0
    v_readlane_b32 s{sT3}, v34, 1
    s_nop 1
    s_cmp_eq_u32 s6, {swap}
    s_cselect_b32 s{sT}, s{sT2}, s{sT3}
    s_cmp_ge_u32 s{sT}, 32
    s_cbranch_scc1 {fast}
    s_mov_b32 s{sT}, 0
    """)
    for x in range(8):
        k(f"v_readlane_b32 s{sT2}, v34, {x}\ns_nop 1\ns_add_u32 s{sT}, s{sT}, s{sT2}")
    k(f"""
    s_cmp_lt_u32 s{sT}, 256
    s_cbranch_scc1 {lp}
    s_branch {slow_label}
    """)
    timeout_exit(k, 12, to)
    k.label(fast)

NST = 15
STNAMES = []
def emit_R_loop(k, fast, use_flags, stamp=False):
    st = "" if fast else "sc1"
    STN = [0]
    def ST(name):
        if stamp == 2 and name in OPT.get('stamps', name):
            i = STN[0]; STN[0] += 1
            assert i < 15
            STNAMES.append(name)
            k(f"s_memtime s[{54+2*i}:{55+2*i}]")
    def ST_collect():
        if stamp == 2:
            n = STN[0]
            k("s_waitcnt lgkmcnt(0)")
            for i in range(n):
                prev = "s53" if i == 0 else f"s{54+2*(i-1)}"
                k(f"s_sub_u32 s{55+2*i}, s{54+2*i}, {prev}")
            for i in range(n):
                k(f"s_add_u32 s{84+i}, s{84+i}, s{55+2*i}")
            k(f"s_mov_b32 s53, s{54+2*(n-1)}")
    TO = k.lab('Lto'); LOOP = k.lab('Lstep'); FIN = k.lab('Lfin')
    def flag_spin(mask):
        lab = k.lab('Lfs'); ok = k.lab('Lfsok')
        k(f"""
        s_mov_b64 exec, {mask}
        v_cmp_gt_u32 vcc, v{vSP}, v{vFLG}
        s_cbranch_vccz {ok}
        s_mov_b32 s{sSpin}, 0
{lab}:
        s_mov_b64 exec, 15
        global_load_dword v{vFLG}, v{vL16}, s[{sFL}:{sFL+1}] sc1
        s_add_u32 s{sSpin}, s{sSpin}, 1
        {'s_add_u32 s86, s86, 1' if DIAGON[0] and not OPT.get('early') else ''}
        s_cmp_gt_u32 s{sSpin}, {SPIN}
        s_cbranch_scc1 {TO}
        s_waitcnt vmcnt(0)
        s_mov_b64 exec, {mask}
        v_cmp_gt_u32 vcc, v{vSP}, v{vFLG}
        s_cbranch_vccnz {lab}
{ok}:
        """)
    def bump(mask):
        k(f"s_mov_b64 exec, {mask}\nv_add_u32 v{vSP}, 1, v{vSP}\nv_min_u32 v{vSP}, {NSEG}, v{vSP}\ns_mov_b64 exec, -1")
    def kdma():
        k(f"""
        s_mov_b32 m0, s{sM0K}
        s_nop 0
        global_load_lds_dwordx4 v{vL16}, s[{sKT}:{sKT+1}] sc1
        global_load_lds_dwordx4 v{vL16}, s[{sKT}:{sKT+1}] offset:1024 sc1
        s_add_u32 s{sKT}, s{sKT}, 262144
        s_addc_u32 s{sKT+1}, s{sKT+1}, 0
        """)
    mark(k, 1)
    if use_flags:
        r_wait_init(k)
    if DIAGON[0]: k("s_mov_b32 s86, 0")
    if use_flags:
        k(f"v_mov_b32 v{vSP}, 1\nv_mov_b32 v{vFLG}, 0\ns_mov_b32 s{sKP}, 0\ns_mov_b32 s{sKG}, 1")
        flag_spin(3)
        bump(3)
    kdma()
    k("s_waitcnt vmcnt(0)\ns_barrier")
    mark(k, 2)
    if DIAGON[0]: k("s_memtime s[96:97]\ns_waitcnt lgkmcnt(0)\ns_mov_b32 s89, s96")

    if stamp:
        k("s_memtime s[100:101]\ns_waitcnt lgkmcnt(0)\ns_mov_b32 s53, s100\ns_mov_b32 s99, s100")
        for i in range(NST): k(f"s_mov_b32 s{84+i}, 0")
        k("s_mov_b32 s82, 0\ns_mov_b32 s83, 0")
    def step(par):
        if OPT.get('early'):
            if par == 0: mark_val(k, 6, sS, 0); mark_val(k, 8, sS, 2)
            else: mark_val(k, 7, sS, 1); mark_val(k, 4, sS, 3)
        SEN = vM + 60
        RA = vM + 59
        def topwork():
            for r in range(aQ, aQ + 12): k(f"v_mov_b32 v{r}, 0")
            if use_flags:
                nk = k.lab('Lnk')
                k(f"s_cmp_eq_u32 s{sKP}, 0\ns_cbranch_scc1 {nk}")
                flag_spin(3)
                bump(3)
                kdma()
                k(f"s_waitcnt vmcnt(0)\ns_mov_b32 s{sKP}, 0")
                k.label(nk)
                flag_spin(12)
                bump(12)
                k(f"s_mov_b64 exec, 3\nv_cmp_gt_u32 vcc, v{vSP}, v{vFLG}\ns_mov_b64 exec, -1\ns_cmp_eq_u64 vcc, 0\ns_cselect_b32 s{sKG}, 1, 0")
            k(f"s_mov_b32 m0, s{sM0V}")
        if OPT['toppos'] == 'pre': topwork()
        ST('top')
        if OPT['ackB'] != 'n': k(f"s_waitcnt vmcnt({OPT['ackB']})")
        if OPT['toppos'] == 'post': topwork()
        PB = k.lab('LpollB')
        k(f"s_mov_b32 s{sSpin}, 0")
        k.label(PB)
        k(f"""
        global_load_dwordx4 {v(vM,4)}, v{vL16}, s[{sMBr}:{sMBr+1}] sc1
        global_load_dwordx4 {v(vM+4,4)}, v{vL16}, s[{sMBr}:{sMBr+1}] offset:1024 sc1
        s_add_u32 s{sSpin}, s{sSpin}, 1
        {'s_add_u32 s98, s98, 1' if stamp == 2 and False else ''}
        s_cmp_gt_u32 s{sSpin}, {SPIN}
        s_cbranch_scc1 {TO}
        s_waitcnt vmcnt(0)
        ds_write_b128 v{vMW}, {v(vM,4)}
        ds_write_b128 v{vMW}, {v(vM+4,4)} offset:1056
        v_max3_u32 v{vM+8}, v{vM}, v{vM+1}, v{vM+2}
        v_max3_u32 v{vM+9}, v{vM+3}, v{vM+4}, v{vM+5}
        v_max3_u32 v{vM+8}, v{vM+8}, v{vM+6}, v{vM+7}
        v_max_u32 v{vM+8}, v{vM+8}, v{vM+9}
        v_cmp_eq_u32 vcc, -1, v{vM+8}
        s_cbranch_vccnz {PB}
        """)
        ST('pollB')
        if not OPT.get('early'): mark_val(k, 4, sS, 33)
        if stamp: k(f"s_add_u32 s82, s82, s{sSpin}")
        if use_flags:
            skf = k.lab('Lskf')
            k(f"s_cmp_lg_u32 s{sW}, 0\ns_cbranch_scc1 {skf}\nv_mov_b32 v{vFLG}, s{sS}\ns_mov_b64 exec, 1\nglobal_store_dword v{vL16}, v{vFLG}, s[{sFR}:{sFR+1}] sc1\ns_mov_b64 exec, -1\n{skf}:")
        k(f"global_load_lds_dwordx4 v{vL16}, s[{sVT}:{sVT+1}] sc1")
        k(f"global_load_lds_dwordx4 v{vL16}, s[{sVT}:{sVT+1}] offset:1024 sc1")
        k("s_waitcnt lgkmcnt(0)\ns_barrier")
        ST('bar1')
        def mread(ks): k(f"ds_read_b128 {v(vM+4*ks,4)}, v{vMR} offset:{ks*64}")
        def smf(acc, ks, mu): k(f"v_smfmac_f32_16x16x64_bf16 {v(acc,4)}, {v(vM+4*ks,4)}, {wreg(mu,ks)}, v{vIDX}")
        for ks in range(8): mread(ks)
        side = []
        skipk = k.lab('Lskipk')
        if use_flags:
            side.append(f"s_mov_b64 exec, 15\nglobal_load_dword v{vFLG}, v{vL16}, s[{sFL}:{sFL+1}] sc1\ns_mov_b64 exec, -1")
        side.append(f"s_add_u32 s{sVT}, s{sVT}, 262144\ns_addc_u32 s{sVT+1}, s{sVT+1}, 0")
        for ks in range(16):
            k(f"s_waitcnt lgkmcnt(7)")
            smf(aQ, ks, 0)
            if ks + 8 < 16: mread(ks + 8)
            else:
                j = ks - 8; t = j // 4; kk = j % 4
                k(f"ds_read_b128 {v(vK + (t*4+kk)*4, 4)}, v{vKR} offset:{kk*2048 + t*256}")
            smf(aK, ks, 1)
            if ks >= 8 and side: k(side.pop(0))
        assert not side, side
        ST('qk')
        smf(aV, 0, 2); smf(aV, 1, 2)
        k(f"""
        v_cvt_pk_bf16_f32 v{aQ}, v{aQ}, v{aQ+1}
        v_cvt_pk_bf16_f32 v{aQ+1}, v{aQ+2}, v{aQ+3}
        v_xor_b32 v{aQ+2}, 16, v{vQW}
        v_cvt_pk_bf16_f32 v{aK}, v{aK}, v{aK+1}
        v_cvt_pk_bf16_f32 v{aK+1}, v{aK+2}, v{aK+3}
        ds_write_b64 v{vQW}, {v(aQ,2)}
        ds_write_b64 v{aQ+2}, {v(aK,2)}
        global_store_dwordx2 v{vVMS}, {v(aK,2)}, s[{sKM}:{sKM+1}] {OPT['kmflag']}
        """)
        for ks in (2, 3, 4, 5): smf(aV, ks, 2)
        k("s_waitcnt lgkmcnt(0)\ns_barrier")
        ST('bar2')
        QK = vM
        for ks in range(4):
            k(f"ds_read_b64_tr_b16 {v(QK+4*ks,2)}, v{vQR0} offset:{ks*1024}")
            k(f"ds_read_b64_tr_b16 {v(QK+4*ks+2,2)}, v{vQR1} offset:{ks*1024}")
        smf(aV, 6, 2)
        k(f"s_mov_b32 m0, s{sM0K}\ns_nop 0\nglobal_load_lds_dwordx4 v{vL16}, s[{sKT}:{sKT+1}] sc1")
        smf(aV, 7, 2)
        k(f"global_load_lds_dwordx4 v{vL16}, s[{sKT}:{sKT+1}] offset:1024 sc1")
        smf(aV, 8, 2)
        if use_flags:
            ks_ = k.lab('Lks'); kd_ = k.lab('Lkd')
            k(f"s_cmp_eq_u32 s{sKG}, 0\ns_cbranch_scc1 {ks_}\ns_add_u32 s{sKT}, s{sKT}, 262144\ns_addc_u32 s{sKT+1}, s{sKT+1}, 0")
            bump(3)
            k(f"s_branch {kd_}\n{ks_}:\ns_mov_b32 s{sKP}, 1\n{kd_}:")
        else:
            k(f"s_add_u32 s{sKT}, s{sKT}, 262144\ns_addc_u32 s{sKT+1}, s{sKT+1}, 0")
        smf(aV, 9, 2)
        for r in range(4): k(f"v_mov_b32 v{vM+32+r}, 0x3f803f80")
        def woread(slot_reg, cb, ks):
            for half in (0, 1):
                k(f"ds_read_b128 {v(slot_reg+4*half,4)}, v{vWO if ks < 2 else vWO2} offset:{(ks % 2)*32768 + cb*2048 + half*1024}")
        wo_ops = [(cb, ks) for ks in range(4) for cb in (0, 1)] + [(cb, ks) for ks in range(4) for cb in (2, 3)]
        slots = [vK, vK+16, vK+8, vK+24, vM+40, vM+48, vM+56, vM+32]
        SM = vM + 16; S0 = vM + 20; S1 = vM + 24
        for ks in range(4):
            extra = 4 if ks >= 2 else 0
            k(f"s_waitcnt lgkmcnt({8 - 2*(ks+1) + extra})")
            c = lambda r: ("0" if ks == 0 else v(r, 4))
            q = v(QK + 4*ks, 4)
            k(f"v_mfma_f32_16x16x32_bf16 {v(S0,4)}, {v(vK + ks*4,4)}, {q}, {c(S0)}")
            k(f"v_mfma_f32_16x16x32_bf16 {v(S1,4)}, {v(vK + 16 + ks*4,4)}, {q}, {c(S1)}")
            k(f"v_mfma_f32_16x16x32_bf16 {v(SM,4)}, {q}, {q}, {c(SM)}")
            if ks == 1:
                woread(slots[0], *wo_ops[0]); woread(slots[1], *wo_ops[1])
        ST('scores')
        smf(aV, 10, 2)
        smf(aV, 11, 2)
        MX = vM + 28; TMP = vM + 29; NM = vM + 30; NMM = vM + 31
        P = vM; Z = vM + 6; O0 = vM + 8; O1 = vM + 12
        ON = vM + 32
        LL = vM + 36
        def ds1(reg, addr, off): k(f"ds_read_b128 {v(reg,4)}, v{addr} offset:{off}")
        def wo1(n, half):
            cb, ks = wo_ops[n]
            ds1(slots[n % 8] + 4*half, vWO if ks < 2 else vWO2, (ks % 2)*32768 + cb*2048 + half*1024)
        k(f"""
        v_max3_f32 v{MX}, v{S0}, v{S0+1}, v{S0+2}
        s_waitcnt vmcnt({4 if use_flags else 3})
        v_max3_f32 v{NM}, v{S0+3}, v{S1}, v{S1+1}
        v_max3_f32 v{TMP}, v{SM}, v{SM+1}, v{SM+2}
        v_max3_f32 v{MX}, v{MX}, v{S1+2}, v{S1+3}
        v_max_f32 v{TMP}, v{TMP}, v{SM+3}
        """)
        ds1(aQ, vVR, 0)
        k(f"""
        v_add_f32 v{TMP}, v{TMP}, v{vBIAS}
        v_max3_f32 v{MX}, v{MX}, v{NM}, v{TMP}
        """)
        ds1(aQ+4, vVR, 256)
        k(f"v_mov_b32 v{TMP}, v{MX}")
        smf(aV, 12, 2)
        wo1(2, 0)
        k(f"""
        v_permlane32_swap_b32 v{MX}, v{TMP}
        v_max_f32 v{MX}, v{MX}, v{TMP}
        v_mov_b32 v{TMP}, v{MX}
        """)
        smf(aV, 13, 2)
        wo1(2, 1)
        k(f"""
        v_permlane16_swap_b32 v{MX}, v{TMP}
        v_max_f32 v{MX}, v{MX}, v{TMP}
        v_mul_f32 v{NM}, -v{MX}, s{sC}
        """)
        smf(aV, 14, 2)
        k(f"v_add_f32 v{NMM}, v{NM}, v{vBIAS}")
        for r in range(4): k(f"v_fma_f32 v{S0+r}, v{S0+r}, s{sC}, v{NM}")
        smf(aV, 15, 2)
        for r in range(4): k(f"v_exp_f32 v{S0+r}, v{S0+r}")
        for r in range(4): k(f"v_fma_f32 v{S1+r}, v{S1+r}, s{sC}, v{NM}")
        for r in range(4): k(f"v_exp_f32 v{S1+r}, v{S1+r}")
        for r in range(4): k(f"v_fma_f32 v{SM+r}, v{SM+r}, s{sC}, v{NMM}")
        k(f"v_cvt_pk_bf16_f32 v{P}, v{S0}, v{S0+1}\nv_cvt_pk_bf16_f32 v{P+1}, v{S0+2}, v{S0+3}")
        for r in range(4): k(f"v_exp_f32 v{SM+r}, v{SM+r}")
        k(f"""
        v_cvt_pk_bf16_f32 v{P+2}, v{S1}, v{S1+1}
        v_cvt_pk_bf16_f32 v{P+3}, v{S1+2}, v{S1+3}
        v_cvt_pk_bf16_f32 v{P+4}, v{SM}, v{SM+1}
        v_cvt_pk_bf16_f32 v{P+5}, v{SM+2}, v{SM+3}
        """)
        k("s_waitcnt lgkmcnt(2)")
        ST('softmax')
        k(f"v_mfma_f32_16x16x32_bf16 {v(LL,4)}, {v(ON,4)}, {v(P,4)}, 0")
        k(f"v_cvt_pk_bf16_f32 v{aV}, v{aV}, v{aV+1}")
        k(f"v_mfma_f32_16x16x32_bf16 {v(O1,4)}, {v(aQ+4,4)}, {v(P,4)}, 0")
        k(f"v_cvt_pk_bf16_f32 v{aV+1}, v{aV+2}, v{aV+3}")
        k(f"v_mfma_f32_16x16x32_bf16 {v(O0,4)}, {v(aQ,4)}, {v(P,4)}, 0")
        k(f"v_mov_b32 v{Z}, 0\nv_mov_b32 v{Z+1}, 0")
        k(f"v_mfma_f32_16x16x16_bf16 {v(LL,4)}, {v(ON,2)}, {v(P+4,2)}, {v(LL,4)}")
        wo1(3, 0)
        k(f"v_mfma_f32_16x16x16_bf16 {v(O1,4)}, {v(aV,2)}, {v(P+4,2)}, {v(O1,4)}")
        k(f"v_permlane32_swap_b32 v{P+4}, v{Z}\nv_permlane32_swap_b32 v{P+5}, v{Z+1}")
        wo1(3, 1); wo1(4, 0)
        k(f"v_mfma_f32_16x16x16_bf16 {v(O0,4)}, {v(aV,2)}, {v(Z,2)}, {v(O0,4)}")
        wo1(4, 1)
        k(f"v_rcp_f32 v{MX}, v{LL}")
        wo1(5, 0); wo1(5, 1); wo1(6, 0); wo1(6, 1)
        k("s_nop 1")
        ST('pv')
        for r in range(0, 8, 2): k(f"v_pk_mul_f32 v[{O0+r}:{O0+r+1}], v[{O0+r}:{O0+r+1}], v[{MX}:{MX+1}] op_sel_hi:[1,0]")
        k(f"""
        v_cvt_pk_bf16_f32 v{O0}, v{O0}, v{O0+1}
        v_cvt_pk_bf16_f32 v{O0+1}, v{O0+2}, v{O0+3}
        v_cvt_pk_bf16_f32 v{O1}, v{O1}, v{O1+1}
        v_cvt_pk_bf16_f32 v{O1+1}, v{O1+2}, v{O1+3}
        s_mov_b64 exec, s[{sMO}:{sMO+1}]
        s_waitcnt lgkmcnt(8)
        ds_write_b64 v{vOW}, {v(O0,2)}
        ds_write_b64 v{vOW}, {v(O1,2)} offset:32
        s_mov_b64 exec, -1
        global_store_dwordx2 v{vVMS}, {v(aV,2)}, s[{sVM}:{sVM+1}] {OPT['kmflag']}
        """)
        if par == 1 and use_flags:
            k(f"s_cmp_eq_u32 s{sS}, {NSEG-1}\ns_cbranch_scc1 {FIN}")
        woread(slots[7], *wo_ops[7])
        ACC = vM
        for r in range(8): k(f"v_mov_b32 v{ACC+r}, 0")
        k(f"s_waitcnt lgkmcnt(2)\ns_barrier")
        ST('bar3')
        OO = vM + 16
        for ks in range(4): k(f"ds_read_b128 {v(OO+4*ks,4)}, v{vOR} offset:{ks*64}")
        for r in range(8, 16): k(f"v_mov_b32 v{ACC+r}, 0")
        issued = ['w7', 'w7', 'o0', 'o1', 'o2', 'o3']
        def retire_until(idx):
            n = len(issued) - 1 - idx
            k(f"s_waitcnt lgkmcnt({n})")
            del issued[:idx+1]
        def cvt_store(aa):
            b = ACC + 8*aa
            for q in range(4): k(f"v_cvt_pk_bf16_f32 v{b+q}, v{b+2*q}, v{b+2*q+1}")
            for q in range(4):
                if par: k(f"v_or_b32 v{b+q}, 1, v{b+q}")
                else: k(f"v_and_b32 v{b+q}, -2, v{b+q}")
            k(f"global_store_dwordx4 v{vPAS}, {v(b,4)}, s[{sPA}:{sPA+1}] offset:{aa*1024} {st}")
        for n, (cb, ks) in enumerate(wo_ops):
            need = {f'o{ks}', f'w{n}'}
            idxs = [i for i, nme in enumerate(issued) if nme in need]
            if idxs: retire_until(max(idxs))
            k(f"v_smfmac_f32_16x16x64_bf16 {v(ACC+4*cb,4)}, {v(OO+4*ks,4)}, {v(slots[n%8],8)}, v{vIDX}")
            if n + 8 < 16:
                if len(issued) + 2 > 15: retire_until(len(issued) + 2 - 15 - 1)
                woread(slots[n % 8], *wo_ops[n + 8]); issued += [f'w{n+8}', f'w{n+8}']
            if n == 11: cvt_store(0)
        ST('wo')
        SEL = vK
        k(f"""
        s_add_u32 s{sKM}, s{sKM}, 65536
        s_addc_u32 s{sKM+1}, s{sKM+1}, 0
        s_add_u32 s{sVM}, s{sVM}, 65536
        s_addc_u32 s{sVM+1}, s{sVM+1}, 0
        s_ashr_i32 s{sT}, s{sMBD}, 31
        s_nop 1
        """)
        cvt_store(1)
        k(f"""
        s_add_u32 s{sMBr}, s{sMBr}, s{sMBD}
        s_addc_u32 s{sMBr+1}, s{sMBr+1}, s{sT}
        """)
        def selbuild():
            for d in range(4): k(f"v_mov_b32 v{SEL+d}, 0")
            for d in range(4):
                lo = (0x0001000100010001 << (2*d)); hi = (0x0001000100010001 << (2*d+1))
                k(f"s_mov_b32 s{sP0}, {hex(lo & 0xffffffff)}\ns_mov_b32 s{sP0+1}, {hex(lo & 0xffffffff)}\ns_mov_b64 exec, s[{sP0}:{sP0+1}]\nv_mov_b32 v{SEL+d}, 0x00003f80")
                k(f"s_lshl_b64 exec, exec, 1\nv_mov_b32 v{SEL+d}, 0x3f800000")
            k("s_mov_b64 exec, -1")
        if OPT['selpos'] == 'pre': selbuild()
        ST('pastore')
        if OPT['ackA'] != 'n': k(f"s_waitcnt vmcnt({OPT['ackA']})")
        if OPT['selpos'] == 'post': selbuild()
        ST('ackA')
        PAo = k.lab('LpollA'); X = OO
        k(f"s_mov_b32 s{sSpin}, 0")
        k.label(PAo)
        T0 = vM + 36; T1r = vM + 37
        ck3 = 'v_bitop3_b32' if par else 'v_or3_b32'; bo = ' bitop3:0x80' if par else ''; ck2 = 'v_and_b32' if par else 'v_or_b32'
        k(f"""
        global_load_dwordx4 {v(X,4)}, v{vPAL}, s[{sPA}:{sPA+1}] sc1
        global_load_dwordx4 {v(X+4,4)}, v{vPAL}, s[{sPA1}:{sPA1+1}] sc1
        s_add_u32 s{sSpin}, s{sSpin}, 1
        s_cmp_gt_u32 s{sSpin}, {SPIN}
        s_cbranch_scc1 {TO}
        s_waitcnt vmcnt(0)
        {ck3} v{T0}, v{X}, v{X+1}, v{X+2}{bo}
        {ck3} v{T1r}, v{X+3}, v{X+4}, v{X+5}{bo}
        {ck3} v{T0}, v{T0}, v{X+6}, v{X+7}{bo}
        {ck2} v{T0}, v{T0}, v{T1r}
        v_and_b32 v{T0}, 1, v{T0}
        v_cmp_ne_u32 vcc, {par}, v{T0}
        s_cbranch_vccnz {PAo}
        """)
        ST('pollA')
        if stamp: k(f"s_add_u32 s83, s83, s{sSpin}")
        A = X + 8
        k(f"""
        v_mfma_f32_16x16x32_bf16 {v(A,4)}, {v(SEL,4)}, {v(X,4)}, 0
        v_mfma_f32_16x16x32_bf16 {v(A,4)}, {v(SEL,4)}, {v(X+4,4)}, {v(A,4)}
        s_sub_u32 s{sMBD}, 0, s{sMBD}
        s_nop 6
        """)
        for rot in (8, 4):
            for r in range(4): k(f"v_add_f32_dpp v{A+r}, v{A+r}, v{A+r} row_ror:{rot} row_mask:0xf bank_mask:0xf")
        k(f"""
        v_cndmask_b32 v{A}, v{A}, v{A+1}, s[{sMF0}:{sMF0+1}]
        v_cndmask_b32 v{A+2}, v{A+2}, v{A+3}, s[{sMF0}:{sMF0+1}]
        v_cndmask_b32 v{A}, v{A}, v{A+2}, s[{sMKM}:{sMKM+1}]
        s_nop 1
        v_mov_b32_dpp v{A+1}, v{A} quad_perm:[1,0,3,2] row_mask:0xf bank_mask:0xf
        v_cvt_pk_bf16_f32 v{A}, v{A}, v{A+1}
        v_min_u32 v{A}, 0xfffffffe, v{A}
        s_mov_b64 exec, s[{sMMB}:{sMMB+1}]
        global_store_dword v{vMBS}, v{A}, s[{sMBw}:{sMBw+1}] {st}
        s_ashr_i32 s{sT}, s{sMBD}, 31
        s_add_u32 s{sMBw}, s{sMBw}, s{sMBD}
        s_addc_u32 s{sMBw+1}, s{sMBw+1}, s{sT}
        v_mov_b32 v{A+1}, -1
        global_store_dword v{vMBS}, v{A+1}, s[{sMBw}:{sMBw+1}] {st}
        s_mov_b64 exec, -1
        """)
        ST('reduce')
        ST_collect()
    k.label(LOOP)
    STN[0] = 0
    step(0)
    k(f"s_add_u32 s{sS}, s{sS}, 1")
    STN[0] = 0
    n0 = len(STNAMES)
    step(1)
    del STNAMES[n0:]
    k(f"s_add_u32 s{sS}, s{sS}, 1")
    mark(k, 3, 2)
    k(f"""
    s_cmp_lt_u32 s{sS}, {NSEG}
    s_cbranch_scc1 {LOOP}
    """)
    k.label(FIN)
    mark(k, 5)
    if DIAGON[0]: k("s_memtime s[96:97]\ns_waitcnt lgkmcnt(0)\ns_sub_u32 s89, s96, s89")

    diag_dump(k, 48, 49)
    if stamp:
        k(f"""
        s_memtime s[100:101]
        s_waitcnt lgkmcnt(0)
        s_sub_u32 s100, s100, s99
        s_load_dwordx2 s[{sP0}:{sP0+1}], s[0:1], {KA_DBG}
        s_waitcnt lgkmcnt(0)
        v_mov_b32 v48, 0
        v_mov_b32 v49, s100
        s_mov_b64 exec, 1
        global_store_dword v48, v49, s[{sP0}:{sP0+1}] offset:36 sc1
        s_lshl_b32 s100, s{sH}, 2
        s_add_u32 s100, s100, s{sW}
        s_lshl_b32 s100, s100, 3
        s_add_u32 s100, s100, 0xC000
        v_mov_b32 v48, s100
        v_mov_b32 v50, s82
        v_mov_b32 v51, s83
        global_store_dwordx2 v48, v[50:51], s[{sWS}:{sWS+1}] sc1
        v_mov_b32 v48, 0
        """)
        if stamp == 2:
            lb = k.lab('Lnost')
            k(f"s_or_b32 s81, s{sH}, s{sW}\ns_xor_b32 s80, s6, {int(OPT.get('stl', 0))}\ns_or_b32 s81, s81, s80\ns_cmp_lg_u32 s81, 0\ns_cbranch_scc1 {lb}")
            for i in range(NST):
                k(f"v_mov_b32 v49, s{84+i}\nglobal_store_dword v48, v49, s[{sP0}:{sP0+1}] offset:{40+4*i} sc1")
            k.label(lb)
        k("s_mov_b64 exec, -1")
    if use_flags:
        k(f"""
        s_mov_b32 s{sS}, {NSEG}
        s_waitcnt vmcnt(0) lgkmcnt(0)
        s_barrier
        v_mov_b32 v95, s{sS}
        s_mov_b64 exec, 1
        global_store_dword v{vL16}, v95, s[{sFR}:{sFR+1}] sc1
        """)
    k("s_waitcnt vmcnt(0)\ns_endpgm")
    timeout_exit(k, 0 if fast else 1, TO)
```

```python
from common import *
ONES=0x3f803f80
NINF=0xff800000
import struct, math
def f2u(x): return struct.unpack('<I', struct.pack('<f', x))[0]
CA = f2u(0.25*math.log2(math.e))
CB = f2u(128**-0.5*math.log2(math.e))

def xlane(k, op, r, tmp):
    for sw in ('32', '16'):
        k(f"v_mov_b32 v{tmp}, v{r}\ns_nop 1\nv_permlane{sw}_swap_b32 v{r}, v{tmp}\n{op} v{r}, v{r}, v{tmp}")

def emit_TA(k):
    vL=0; vRD=1; vFLG=2; vTMP=3; vA=8
    sHA=33; sC=34
    k(f"""
    s_lshl_b32 s{sHA}, s{sIDX}, 2
    s_add_u32 s{sHA}, s{sHA}, s{sW}
    v_and_b32 v40, 63, v0
    v_and_b32 v41, 15, v40        ; i / n
    v_lshrrev_b32 v42, 4, v40     ; g
    ; DMA lane offset: row l/8 (stride 3072), chunk l%8
    v_lshrrev_b32 v45, 3, v40
    v_mul_u32_u24 v45, 3072, v45
    v_and_b32 v46, 7, v40
    v_lshl_add_u32 v45, v46, 4, v45
    ; tr address: row 8g + i/4 ; bytes 32w + 8*(i%4)
    v_lshrrev_b32 v46, 2, v41
    v_lshl_add_u32 v46, v42, 3, v46
    v_lshlrev_b32 v46, 7, v46
    v_and_b32 v47, 3, v41
    v_lshl_add_u32 v46, v47, 3, v46
    s_lshl_b32 s{sT2}, s{sW}, 5
    v_add_u32 v46, s{sT2}, v46
    """)
    wait_start(k, 2, 3, F_R(0), 1)
    for mu in range(3):
        k(f"s_load_dwordx2 s[{sP}:{sP+1}], s[0:1], {KA_WQKV}")
        k(f"""
        s_lshl_b32 s{sT}, s{sIDX}, 7
        s_add_u32 s{sT}, s{sT}, {mu*1024}
        s_mul_i32 s{sT2}, s{sW}, {128*3072}
        s_add_u32 s{sT}, s{sT}, s{sT2}
        s_lshl_b32 s{sT3}, s{sW}, 14
        s_waitcnt lgkmcnt(0)
        s_add_u32 s{sP}, s{sP}, s{sT}
        s_addc_u32 s{sP+1}, s{sP+1}, 0
        """)
        for u in range(16):
            k(f"s_mov_b32 m0, s{sT3}\ns_add_u32 s{sT3}, s{sT3}, 1024\nglobal_load_lds_dwordx4 v45, s[{sP}:{sP+1}]")
            adv(k, sP, 8*3072)
        k("s_waitcnt vmcnt(0)\ns_barrier")
        n = 0
        for ks in range(16):
            for hf in range(2):
                k(f"ds_read_b64_tr_b16 {a((mu*16+ks)*4 + 2*hf, 2)}, v46 offset:{ks*4096 + hf*512}")
                n += 1
                if n % 8 == 0: k("s_waitcnt lgkmcnt(0)")
        k("s_waitcnt lgkmcnt(0)\ns_barrier")
    k(f"""
    v_lshlrev_b32 v{vL}, 4, v40
    v_lshlrev_b32 v{vRD}, 9, v42
    v_lshl_add_u32 v{vRD}, v41, 4, v{vRD}
    v_xor_b32 v{vRD}, 0x8000, v{vRD}
    s_lshl_b32 s{sM0}, s{sW}, 12
    v_and_b32 v4, 1, v40
    v_lshlrev_b32 v4, 6, v4
    v_add_u32 v4, {F_T6(0)}, v4               ; + parity*128
    s_mov_b32 s{sFL}, s{sWS}
    s_mov_b32 s{sFL+1}, s{sWS+1}
    s_mov_b32 s{sC}, {CA}
    """)
    base(k, sOWN, F_TA, f"s_lshl_b32 s{sT}, s{sIDX}, 4\ns_add_u32 s{sT}, s{sT}, s{sW}\ns_lshl_b32 s{sT}, s{sT}, 2")
    base(k, sIN, XNA, f"s_lshl_b32 s{sT}, s{sW}, 12")
    base(k, sOUT, OA, f"s_lshl_b32 s{sT}, s{sHA}, 10")
    ACC=32
    QP=56
    KP=60
    VP=66
    SP=72; SC=76
    PP=80
    LL=84; OO=88
    OP=92
    BP=96; BC=100; BP0=104
    ON=108
    MX=112; TM=113
    k(f"v_lshlrev_b32 v48, 2, v42")
    for t, B in ((0, BP), (1, BC)):
        for r in range(4):
            k(f"""
            v_add_u32 v49, {r - (16 if t == 0 else 0) + 64}, v48      ; key offset + 64
            v_add_u32 v50, 64, v41
            v_sub_u32 v49, v50, v49                ; diff
            v_and_b32 v50, 0xfffffff1, v49         ; zero iff diff in 0,2,..,14
            v_mov_b32 v{B+r}, {NINF}
            v_cmp_eq_u32 vcc, 0, v50
            s_nop 1
            v_cndmask_b32 v{B+r}, v{B+r}, 0, vcc
            """.replace(f"v_cndmask_b32 v{B+r}, v{B+r}, 0, vcc", f"v_mov_b32 v51, 0\n v_cndmask_b32 v{B+r}, v{B+r}, v51, vcc"))
    for r in range(4): k(f"v_mov_b32 v{BP0+r}, {NINF}\nv_mov_b32 v{ON+r}, {ONES}")
    for r in range(2): k(f"v_mov_b32 v{KP+r}, 0\nv_mov_b32 v{VP+r}, 0")
    def set_need(k):
        k(f"s_add_u32 s{sNEED}, s{sT3}, 1\ns_mul_i32 s{sNEED}, s{sNEED}, s{sL}\ns_and_b32 s{sT}, s{sT3}, 1\ns_lshl_b32 s{sT}, s{sT}, 7\nv_add_u32 v{vFLG}, s{sT}, v4")
    ta_chunks = []
    for ph in range(2):
        for u in range(4):
            c = ""
            if u == 0: c += f"s_add_u32 s{sT}, s{sM0}, {ph*16384}\ns_mov_b32 m0, s{sT}\ns_nop 0\n"
            c += f"global_load_lds_dwordx4 v{vL}, s[{sIN}:{sIN+1}] offset:{u*1024} sc1"
            if u == 3: c += f"\ns_add_u32 s{sIN}, s{sIN}, 16384\ns_addc_u32 s{sIN+1}, s{sIN+1}, 0"
            ta_chunks.append(c)
    def dma(k):
        for c in ta_chunks: k(c)
    def toggle(k): k(f"v_xor_b32 v{vRD}, 0x8000, v{vRD}\ns_xor_b32 s{sM0}, s{sM0}, 0x8000")
    def comp(k, hook):
        def rd(ks):
            for tt in range(2): k(f"ds_read_b128 {v(vA + 8*(ks%3) + 4*tt,4)}, v{vRD} offset:{ks*2048 + tt*256}")
        rd(0); rd(1)
        for ks in range(16):
            if ks + 2 < 16: rd(ks + 2)
            k(f"s_waitcnt lgkmcnt({2*min(2, 15-ks)})")
            for tt in range(2):
                x = v(vA + 8*(ks % 3) + 4*tt, 4)
                for mu in range(3):
                    acc = v(ACC + 8*mu + 4*tt, 4); c = "0" if ks == 0 else acc; w = a((mu*16+ks)*4, 4)
                    if mu < 2: k(f"v_mfma_f32_16x16x32_bf16 {acc}, {w}, {x}, {c}")
                    else: k(f"v_mfma_f32_16x16x32_bf16 {acc}, {x}, {w}, {c}")
            if ks == 0: hook(100)
            if ks == 5: hook(0)
            if 6 <= ks < 10: hook(10 + 2*(ks - 6)); hook(11 + 2*(ks - 6))
            if ks == 12: hook(1)
        k.nop(8)
    def epilogue(k, hook):
        for tt in range(2):
            for mu, dst in ((0, QP + 2*tt), (1, KP + 2 + 2*tt), (2, VP + 2 + 2*tt)):
                b = ACC + 8*mu + 4*tt
                k(f"v_cvt_pk_bf16_f32 v{dst}, v{b}, v{b+1}\nv_cvt_pk_bf16_f32 v{dst+1}, v{b+2}, v{b+3}")
        for tt in range(2):
            k("s_nop 1")
            k(f"v_mfma_f32_16x16x16_bf16 {v(SP,4)}, {v(KP+2*tt,2)}, {v(QP+2*tt,2)}, 0")
            k(f"v_mfma_f32_16x16x16_bf16 {v(SC,4)}, {v(KP+2+2*tt,2)}, {v(QP+2*tt,2)}, 0")
            k.nop(8)
            bp = BP0 if tt == 0 else BP
            for r in range(4): k(f"v_fma_f32 v{SP+r}, v{SP+r}, s{sC}, v{bp+r}")
            for r in range(4): k(f"v_fma_f32 v{SC+r}, v{SC+r}, s{sC}, v{BC+r}")
            k(f"""
            v_max3_f32 v{MX}, v{SP}, v{SP+1}, v{SP+2}
            v_max3_f32 v{MX}, v{MX}, v{SP+3}, v{SC}
            v_max3_f32 v{MX}, v{MX}, v{SC+1}, v{SC+2}
            v_max_f32 v{MX}, v{MX}, v{SC+3}
            """)
            xlane(k, 'v_max_f32', MX, TM)
            for r in range(8): k(f"v_sub_f32 v{SP+r}, v{SP+r}, v{MX}")
            for r in range(8): k(f"v_exp_f32 v{SP+r}, v{SP+r}")
            k("s_nop 0")
            for q in range(4): k(f"v_cvt_pk_bf16_f32 v{PP+q}, v{SP+2*q}, v{SP+2*q+1}")
            k("s_nop 1")
            k(f"v_mfma_f32_16x16x32_bf16 {v(LL,4)}, {v(ON,4)}, {v(PP,4)}, 0")
            k(f"v_mfma_f32_16x16x32_bf16 {v(OO,4)}, {v(VP+2*tt,4)}, {v(PP,4)}, 0")
            k.nop(7)
            k(f"v_rcp_f32 v{LL}, v{LL}\ns_nop 0")
            for r in range(4): k(f"v_mul_f32 v{OO+r}, v{OO+r}, v{LL}")
            k(f"v_cvt_pk_bf16_f32 v{OP+2*tt}, v{OO}, v{OO+1}\nv_cvt_pk_bf16_f32 v{OP+2*tt+1}, v{OO+2}, v{OO+3}")
        hook(2)
        k(f"""
        s_nop 1
        v_permlane16_swap_b32 v{OP}, v{OP+2}
        v_permlane16_swap_b32 v{OP+1}, v{OP+3}
        global_store_dwordx4 v{vL}, {v(OP,4)}, s[{sOUT}:{sOUT+1}] sc1
        v_mov_b32 v{KP}, v{KP+4}
        v_mov_b32 v{KP+1}, v{KP+5}
        v_mov_b32 v{VP}, v{VP+4}
        v_mov_b32 v{VP+1}, v{VP+5}
        """)
        for r in range(4): k(f"v_mov_b32 v{BP0+r}, v{BP+r}")
        adv(k, sOUT, 32768)
    skeleton(k, 'TA', 4, NSEG, set_need, dma, lambda: [], comp, epilogue, vFLG, vTMP, vL, toggle, 1, ta_chunks)

def emit_T4(k):
    sH=33; sPAR=34; sC=35
    sQ=36; sK=38; sV=40; sKM=42; sVM=44; sO=46
    vL=0; vFLG=2; vTMP=3; vQA=4; vQB=5; vKMA=6; vFLT=7; vVMA=8
    Q=16; KK=48; KM_=80; V=96; VM_=128
    SM=144; S0=148; S1=152; PT_=156; PM=160; LL=164; MX=168; TM=169
    OO=172
    OP=204
    BM=208; BD=212; ON=216
    TO = k.lab('LtoT4'); LOOP = k.lab('LitT4')
    k(f"""
    s_lshl_b32 s{sT}, s{sIDX}, 2
    s_add_u32 s{sT}, s{sT}, s{sW}
    s_lshr_b32 s{sH}, s{sT}, 1
    s_and_b32 s{sPAR}, s{sT}, 1
    v_and_b32 v240, 63, v0
    v_and_b32 v241, 15, v240      ; n / i
    v_lshrrev_b32 v242, 4, v240   ; g
    v_lshlrev_b32 v{vL}, 4, v240
    v_lshlrev_b32 v{vQA}, 9, v242
    v_lshl_add_u32 v{vQA}, v241, 4, v{vQA}      ; g*512 + n*16
    v_add_u32 v{vQB}, 4096, v{vQA}
    ; KM tr-read address: w*2048 + (8g + i/4)*16 + ((i%4)%2)*8   (+ ks*512 + hf*64)
    v_lshrrev_b32 v243, 2, v241
    v_lshl_add_u32 v243, v242, 3, v243
    v_lshlrev_b32 v243, 4, v243
    v_and_b32 v244, 1, v241
    v_lshl_add_u32 v243, v244, 3, v243
    s_lshl_b32 s{sM0}, s{sW}, 11
    v_add_u32 v{vKMA}, s{sM0}, v243
    v_and_b32 v243, 1, v242
    v_lshlrev_b32 v{vVMA}, 3, v243
    v_lshl_add_u32 v{vVMA}, v241, 4, v{vVMA}     ; i*16 + (g%2)*8
    s_mov_b32 s{sFL}, s{sWS}
    s_mov_b32 s{sFL+1}, s{sWS+1}
    s_mov_b32 s{sC}, {CB}
    s_mul_i32 s{sT}, s{sL}, {F_R(1)-F_R(0)}
    s_add_u32 s{sT}, s{sT}, {F_R(0)}
    s_lshl_b32 s{sT2}, s{sH}, 6
    s_add_u32 s{sT}, s{sT}, s{sT2}
    v_mov_b32 v{vFLG}, s{sT}
    s_mul_i32 s{sT}, s{sL}, {F_T3(1)-F_T3(0)}
    s_add_u32 s{sT}, s{sT}, {F_T3(0)}
    s_lshl_b32 s{sT2}, s{sH}, 7
    s_add_u32 s{sT}, s{sT}, s{sT2}
    v_and_b32 v244, 7, v240
    v_min_u32 v244, 5, v244
    v_lshlrev_b32 v243, 4, v244
    v_add_u32 v{vFLT}, s{sT}, v243
    """)
    base(k, sOWN, F_T4, f"s_lshl_b32 s{sT}, s{sIDX}, 4\ns_add_u32 s{sT}, s{sT}, s{sW}\ns_lshl_b32 s{sT}, s{sT}, 2")
    big = f"s_lshl_b32 s{sT}, s{sH}, 13\ns_lshl_b32 s{sT3}, s{sPAR}, 18\ns_add_u32 s{sT}, s{sT}, s{sT3}"
    small = f"s_lshl_b32 s{sT}, s{sH}, 11\ns_lshl_b32 s{sT3}, s{sPAR}, 16\ns_add_u32 s{sT}, s{sT}, s{sT3}"
    base(k, sQ, QT, big); base(k, sK, KT, big); base(k, sV, VT, big); base(k, sO, OT, big)
    base(k, sKM, KM, small); base(k, sVM, VM, small)
    k(f"v_mov_b32 v243, {NINF}\nv_mov_b32 v244, 0")
    for r in range(4):
        k(f"""
        v_cmp_gt_u32 vcc, 2, v242
        s_nop 1
        v_cndmask_b32 v{BM+r}, v243, v244, vcc
        v_lshlrev_b32 v245, 2, v242
        v_add_u32 v245, {r}, v245
        v_cmp_le_u32 vcc, v245, v241
        s_nop 1
        v_cndmask_b32 v{BD+r}, v243, v244, vcc
        v_mov_b32 v{ON+r}, {ONES}
        """)
    mark(k, 1)
    wait_init(k, 243, 244)
    k(f"s_mov_b32 s{sS}, s{sPAR}")
    k.label(LOOP)
    k(f"s_add_u32 s{sNEED}, s{sS}, 1")
    poll_block(k, vFLT, vTMP, TO)
    def qaddr(ks): return (vQA, ks*2048) if ks < 2 else (vQB, (ks-2)*2048)
    for ks in range(4):
        va, off = qaddr(ks)
        for qt in range(2):
            k(f"global_load_dwordx4 {v(Q + (qt*4+ks)*4,4)}, v{va}, s[{sQ}:{sQ+1}] offset:{off + qt*256} sc1")
        for t in range(2):
            k(f"global_load_dwordx4 {v(KK + (t*4+ks)*4,4)}, v{va}, s[{sK}:{sK+1}] offset:{off + t*256} sc1")
    for ft in range(8):
        va, off = qaddr(ft // 2)
        k(f"global_load_dwordx4 {v(V + ft*4,4)}, v{va}, s[{sV}:{sV+1}] offset:{off + (ft % 2)*256} sc1")
    for p in (sQ, sK, sV): adv(k, p, 2*262144)
    poll_block(k, vFLG, vTMP, TO)
    mark(k, 2, 0)
    mark_val(k, 6, sNEED, 33)
    k(f"s_mov_b32 m0, s{sM0}\ns_nop 0")
    k(f"global_load_lds_dwordx4 v{vL}, s[{sKM}:{sKM+1}] sc1\nglobal_load_lds_dwordx4 v{vL}, s[{sKM}:{sKM+1}] offset:1024 sc1")
    for ft in range(8):
        k(f"global_load_dwordx2 {v(VM_ + ft*2,2)}, v{vVMA}, s[{sVM}:{sVM+1}] offset:{ft*256} sc1")
    for p in (sKM, sVM): adv(k, p, 2*65536)
    k("s_waitcnt vmcnt(8)")
    for ks in range(4):
        for hf in range(2):
            k(f"ds_read_b64_tr_b16 {v(KM_ + ks*4 + 2*hf,2)}, v{vKMA} offset:{ks*512 + hf*64}")
    k("s_waitcnt lgkmcnt(0)")
    for qt in range(2):
        for ks in range(4):
            q = v(Q + (qt*4+ks)*4, 4)
            c = lambda r: "0" if ks == 0 else v(r, 4)
            k(f"v_mfma_f32_16x16x32_bf16 {v(SM,4)}, {v(KM_+ks*4,4)}, {q}, {c(SM)}")
            k(f"v_mfma_f32_16x16x32_bf16 {v(S0,4)}, {v(KK+ks*4,4)}, {q}, {c(S0)}")
            if qt == 1: k(f"v_mfma_f32_16x16x32_bf16 {v(S1,4)}, {v(KK+16+ks*4,4)}, {q}, {c(S1)}")
        k.nop(8)
        n = 8 if qt == 0 else 12
        for r in range(4): k(f"v_fma_f32 v{SM+r}, v{SM+r}, s{sC}, v{BM+r}")
        if qt == 0:
            for r in range(4): k(f"v_fma_f32 v{S0+r}, v{S0+r}, s{sC}, v{BD+r}")
        else:
            for r in range(4): k(f"v_mul_f32 v{S0+r}, s{sC}, v{S0+r}")
            for r in range(4): k(f"v_fma_f32 v{S1+r}, v{S1+r}, s{sC}, v{BD+r}")
        k(f"v_max3_f32 v{MX}, v{SM}, v{SM+1}, v{SM+2}")
        i = 3
        while i < n:
            if i + 1 < n: k(f"v_max3_f32 v{MX}, v{MX}, v{SM+i}, v{SM+i+1}"); i += 2
            else: k(f"v_max_f32 v{MX}, v{MX}, v{SM+i}"); i += 1
        xlane(k, 'v_max_f32', MX, TM)
        for r in range(n): k(f"v_sub_f32 v{SM+r}, v{SM+r}, v{MX}")
        for r in range(n): k(f"v_exp_f32 v{SM+r}, v{SM+r}")
        k("s_nop 0")
        k(f"v_cvt_pk_bf16_f32 v{PM}, v{SM}, v{SM+1}\nv_cvt_pk_bf16_f32 v{PM+1}, v{SM+2}, v{SM+3}")
        k(f"v_cvt_pk_bf16_f32 v{PT_}, v{S0}, v{S0+1}\nv_cvt_pk_bf16_f32 v{PT_+1}, v{S0+2}, v{S0+3}")
        if qt == 1: k(f"v_cvt_pk_bf16_f32 v{PT_+2}, v{S1}, v{S1+1}\nv_cvt_pk_bf16_f32 v{PT_+3}, v{S1+2}, v{S1+3}")
        if qt == 0: k("s_waitcnt vmcnt(0)")
        k("s_nop 1")
        if qt == 0: k(f"v_mfma_f32_16x16x16_bf16 {v(LL,4)}, {v(ON,2)}, {v(PT_,2)}, 0")
        else: k(f"v_mfma_f32_16x16x32_bf16 {v(LL,4)}, {v(ON,4)}, {v(PT_,4)}, 0")
        for ft in range(8):
            o = v(OO + 4*ft, 4)
            if qt == 0: k(f"v_mfma_f32_16x16x16_bf16 {o}, {v(V+4*ft,2)}, {v(PT_,2)}, 0")
            else: k(f"v_mfma_f32_16x16x32_bf16 {o}, {v(V+4*ft,4)}, {v(PT_,4)}, 0")
        k(f"v_mfma_f32_16x16x16_bf16 {v(LL,4)}, {v(ON,2)}, {v(PM,2)}, {v(LL,4)}")
        for ft in range(8):
            o = v(OO + 4*ft, 4)
            k(f"v_mfma_f32_16x16x16_bf16 {o}, {v(VM_+2*ft,2)}, {v(PM,2)}, {o}")
        k(f"v_rcp_f32 v{LL}, v{LL}")
        k.nop(8)
        for u in range(4):
            b = OO + 8*u
            for r in range(8): k(f"v_mul_f32 v{b+r}, v{b+r}, v{LL}")
            d = OP
            for q in range(4): k(f"v_cvt_pk_bf16_f32 v{b+q}, v{b+2*q}, v{b+2*q+1}")
            va, off = qaddr(u)
            k(f"global_store_dwordx4 v{va}, {v(b,4)}, s[{sO}:{sO+1}] offset:{off + qt*256} sc1")
        k("s_nop 1")
    adv(k, sO, 2*262144)
    k(f"""
    s_waitcnt vmcnt(0)
    s_add_u32 s{sT}, s{sS}, 1
    v_mov_b32 v{vTMP}, s{sT}
    s_mov_b64 exec, 1
    global_store_dword v{vL}, v{vTMP}, s[{sOWN}:{sOWN+1}] sc1
    s_mov_b64 exec, -1
    """)
    mark_val(k, 4, sT, 33)
    k(f"s_add_u32 s{sS}, s{sS}, 2")
    mark(k, 3, 2)
    k(f"""
    s_cmp_lt_u32 s{sS}, {NSEG}
    s_cbranch_scc1 {LOOP}
    """)
    mark(k, 5); diag_dump(k, 2, 3)
    k("s_waitcnt vmcnt(0)\ns_endpgm")
    timeout_block(k, TO, 6)

def ln_stats(k, packed, npk, SUM, SQ, tmp, reduce_code):
    k(f"v_mov_b32 v{SUM}, 0\nv_mov_b32 v{SQ}, 0\ns_mov_b32 s{sT}, {ONES}")
    for q in range(npk):
        k(f"v_dot2_f32_bf16 v{SUM}, v{packed+q}, s{sT}, v{SUM}\nv_dot2_f32_bf16 v{SQ}, v{packed+q}, v{packed+q}, v{SQ}")
    k.nop(3)
    reduce_code()
    k(f"""
    v_mul_f32 v{SUM}, 0x3b000000, v{SUM}
    v_mul_f32 v{SQ}, 0x3b000000, v{SQ}
    v_fma_f32 v{SQ}, -v{SUM}, v{SUM}, v{SQ}
    v_max_f32 v{SQ}, 0, v{SQ}
    v_add_f32 v{SQ}, 0x3727c5ac, v{SQ}
    v_rsq_f32 v{SQ}, v{SQ}
    s_nop 0
    """)
def ln_apply(k, packed, npk, MEAN, RSTD, out, t0, t1):
    for q in range(npk):
        k(f"""
        v_lshlrev_b32 v{t0}, 16, v{packed+q}
        v_and_b32 v{t1}, 0xffff0000, v{packed+q}
        v_sub_f32 v{t0}, v{t0}, v{MEAN}
        v_sub_f32 v{t1}, v{t1}, v{MEAN}
        v_mul_f32 v{t0}, v{t0}, v{RSTD}
        v_mul_f32 v{t1}, v{t1}, v{RSTD}
        v_cvt_pk_bf16_f32 v{out+q}, v{t0}, v{t1}
        """)

OUTFLAG = ['nt']
def emit_T6(k):
    sPAR=33; sHF=34; sPT=36
    sX1=44; sXR=46; sXN=48; sOutP=50
    vL=0; vFLG=2; vTMP=3; vPA=4; vXA=5; vOA=6; vLW=7; vLR=8
    P=16
    X=144
    XN=160
    SUM=176; SQ=177; T0=178; T1=179; R4=180
    TO = k.lab('LtoT6'); LOOP = k.lab('LitT6')
    k(f"""
    s_lshr_b32 s{sPAR}, s{sIDX}, 1
    s_and_b32 s{sHF}, s{sIDX}, 1
    v_and_b32 v240, 63, v0
    v_and_b32 v241, 15, v240          ; tok
    v_lshrrev_b32 v242, 4, v240       ; l/16
    s_lshl_b32 s{sT}, s{sW}, 2
    v_add_u32 v243, s{sT}, v242       ; cg 0..15
    s_lshl_b32 s{sT}, s{sHF}, 4
    v_add_u32 v244, s{sT}, v241
    v_lshlrev_b32 v{vL}, 4, v240
    v_lshlrev_b32 v{vPA}, 12, v243
    v_lshl_add_u32 v{vPA}, v244, 4, v{vPA}
    v_lshlrev_b32 v{vXA}, 11, v243
    v_lshl_add_u32 v{vXA}, v244, 4, v{vXA}
    v_lshlrev_b32 v{vOA}, 10, v244
    v_lshl_add_u32 v{vOA}, v243, 6, v{vOA}
    s_lshl_b32 s{sT}, s{sW}, 7
    v_lshlrev_b32 v{vLR}, 3, v241
    v_add_u32 v{vLW}, s{sT}, v{vLR}
    s_mul_i32 s{sT}, s{sL}, {F_T5(1)-F_T5(0)}
    s_add_u32 s{sT}, s{sT}, {F_T5(0)}
    v_and_b32 v{vFLG}, 3, v240
    v_lshlrev_b32 v{vFLG}, 2, v{vFLG}
    v_lshrrev_b32 v245, 2, v240
    v_lshl_add_u32 v{vFLG}, v245, 6, v{vFLG}
    v_add_u32 v{vFLG}, s{sT}, v{vFLG}
    s_mov_b32 s{sFL}, s{sWS}
    s_mov_b32 s{sFL+1}, s{sWS+1}
    """)
    base(k, sOWN, F_T6, f"s_lshl_b32 s{sT}, s{sIDX}, 6")
    for kq in range(4):
        base(k, sPT + 2*kq, PT, f"s_lshl_b32 s{sT}, s{sPAR}, 17\ns_add_u32 s{sT}, s{sT}, {kq*32768}")
    base(k, sX1, X1, f"s_lshl_b32 s{sT}, s{sPAR}, 15")
    l1 = lambda l: XR(1)
    base(k, sXR, l1, f"s_lshl_b32 s{sT}, s{sPAR}, 15")
    l2 = lambda l: XNA(1)
    base(k, sXN, l2, f"s_lshl_b32 s{sT}, s{sPAR}, 15")
    k(f"""
    s_load_dwordx2 s[{sOutP}:{sOutP+1}], s[0:1], {KA_OUT}
    s_lshl_b32 s{sT}, s{sPAR}, 15
    s_waitcnt lgkmcnt(0)
    s_add_u32 s{sOutP}, s{sOutP}, s{sT}
    s_addc_u32 s{sOutP+1}, s{sOutP+1}, 0
    """)
    mark(k, 1)
    wait_init(k, 245, 246)
    k(f"s_mov_b32 s{sS}, s{sPAR}")
    k.label(LOOP)
    k(f"s_add_u32 s{sNEED}, s{sS}, 1")
    poll_block(k, vFLG, vTMP, TO)
    mark(k, 2, 0)
    mark_val(k, 6, sNEED, 33)
    for j in range(4):
        k(f"global_load_dwordx4 {v(X+4*j,4)}, v{vXA}, s[{sX1}:{sX1+1}] offset:{j*512} sc1")
    for kq in range(4):
        for j in range(4):
            k(f"global_load_dwordx4 {v(P+16*kq+4*j,4)}, v{vXA}, s[{sPT+2*kq}:{sPT+2*kq+1}] offset:{j*512} sc1")
        adv(k, sPT + 2*kq, 2*131072)
    adv(k, sX1, 2*32768)
    ACC = 96
    k(f"s_mov_b32 s{sT}, 0x00003f80\ns_mov_b32 s{sT2}, 0x3f800000")
    srcs = [X] + [P + 16*kq for kq in range(4)]
    for n, b in enumerate(srcs):
        k(f"s_waitcnt vmcnt({16 - 4*n})")
        for q in range(16):
            c0 = "0" if n == 0 else f"v{ACC+2*q}"; c1 = "0" if n == 0 else f"v{ACC+2*q+1}"
            k(f"v_dot2_f32_bf16 v{ACC+2*q}, v{b+q}, s{sT}, {c0}\nv_dot2_f32_bf16 v{ACC+2*q+1}, v{b+q}, s{sT2}, {c1}")
    k("s_nop 2")
    for q in range(16): k(f"v_cvt_pk_bf16_f32 v{X+q}, v{ACC+2*q}, v{ACC+2*q+1}")
    lo = k.lab('Lt6o'); le = k.lab('Lt6e')
    k(f"s_cmp_lg_u32 s{sL}, 0\ns_cbranch_scc1 {lo}")
    for j in range(4):
        k(f"global_store_dwordx4 v{vXA}, {v(X+4*j,4)}, s[{sXR}:{sXR+1}] offset:{j*512} sc1")
    def red():
        xlane(k, 'v_add_f32', SUM, T0); xlane(k, 'v_add_f32', SQ, T0)
        k(f"ds_write_b64 v{vLW}, v[{SUM}:{SQ}]\ns_waitcnt lgkmcnt(0)\ns_barrier")
        for w in range(4): k(f"ds_read_b64 {v(R4+2*w,2)}, v{vLR} offset:{w*128}")
        k(f"""
        s_waitcnt lgkmcnt(0)
        v_add_f32 v{R4}, v{R4}, v{R4+2}
        v_add_f32 v{R4+1}, v{R4+1}, v{R4+3}
        v_add_f32 v{R4+4}, v{R4+4}, v{R4+6}
        v_add_f32 v{R4+5}, v{R4+5}, v{R4+7}
        v_add_f32 v{SUM}, v{R4}, v{R4+4}
        v_add_f32 v{SQ}, v{R4+1}, v{R4+5}
        """)
    ln_stats(k, X, 16, SUM, SQ, T0, red)
    ln_apply(k, X, 16, SUM, SQ, XN, T0, T1)
    for j in range(4):
        k(f"global_store_dwordx4 v{vXA}, {v(XN+4*j,4)}, s[{sXN}:{sXN+1}] offset:{j*512} sc1")
    k(f"s_branch {le}")
    k.label(lo)
    for j in range(4):
        k(f"global_store_dwordx4 v{vOA}, {v(X+4*j,4)}, s[{sOutP}:{sOutP+1}] offset:{j*16} {OUTFLAG[0]}")
    k.label(le)
    adv(k, sXR, 2*32768); adv(k, sXN, 2*32768); adv(k, sOutP, 2*32768)
    k("s_waitcnt vmcnt(0)\ns_barrier")
    k(f"s_add_u32 s{sT3}, s{sS}, 1")
    publish(k, vL, vTMP, sT3, True)
    k(f"""
    s_add_u32 s{sS}, s{sS}, 2
    """)
    mark(k, 3, 2)
    k(f"""
    s_cmp_lt_u32 s{sS}, {NSEG}
    s_cbranch_scc1 {LOOP}
    """)
    mark(k, 5); diag_dump(k, 2, 3)
    k("s_waitcnt vmcnt(0)\ns_endpgm")
    timeout_block(k, TO, 7)

PF = [True]
def emit_K0(k):
    END = k.lab('Lk0e')
    vXA=4; vCA=5; vLW=6; vLR=7; X=16; XN=24; SUM=32; SQ=33; T0=34; T1=35; R4=36
    k(f"""
    s_cmp_ge_u32 s2, 256
    s_cbranch_scc1 {END}
    s_load_dwordx2 s[{sWS}:{sWS+1}], s[0:1], {KA_WS}
    s_load_dwordx2 s[10:11], s[0:1], {KA_X}
    s_load_dwordx2 s[12:13], s[0:1], {KA_MEM0}
    v_readfirstlane_b32 s{sW}, v0
    s_nop 1
    s_lshr_b32 s{sW}, s{sW}, 6
    v_and_b32 v40, 63, v0
    v_and_b32 v41, 7, v40            ; tok
    v_lshrrev_b32 v42, 3, v40
    s_lshl_b32 s{sT}, s{sW}, 3
    v_add_u32 v42, s{sT}, v42
    s_lshl_b32 s{sT}, s2, 3
    v_add_u32 v43, s{sT}, v41
    v_lshlrev_b32 v{vXA}, 10, v43
    v_lshl_add_u32 v{vXA}, v42, 5, v{vXA}
    v_lshrrev_b32 v44, 5, v43
    v_lshlrev_b32 v44, 15, v44                ; seg*32768
    v_and_b32 v45, 31, v43
    v_lshl_add_u32 v44, v45, 4, v44
    v_lshl_add_u32 v{vCA}, v42, 10, v44
    s_lshl_b32 s{sT}, s{sW}, 6
    v_lshlrev_b32 v{vLR}, 3, v41
    v_add_u32 v{vLW}, s{sT}, v{vLR}
    s_waitcnt lgkmcnt(0)
    global_load_dwordx4 {v(X,4)}, v{vXA}, s[10:11]
    global_load_dwordx4 {v(X+4,4)}, v{vXA}, s[10:11] offset:16
    CODEPF
    ; fills
    v_mov_b32 v48, -1
    v_mov_b32 v49, -1
    v_mov_b32 v50, -1
    v_mov_b32 v51, -1
    v_lshlrev_b32 v52, 4, v0                  ; tid*16
    s_lshl_b32 s{sT}, s2, 13
    s_add_u32 s{sT}, s{sT}, {PA(0)}
    v_add_u32 v53, s{sT}, v52
    global_store_dwordx4 v53, v[48:51], s[{sWS}:{sWS+1}]
    v_add_u32 v53, 4096, v53
    global_store_dwordx4 v53, v[48:51], s[{sWS}:{sWS+1}]
    s_lshr_b32 s{sT}, s2, 7
    s_mul_i32 s{sT}, s{sT}, {MB(1)-MB(0)}
    s_and_b32 s{sT2}, s2, 127
    s_lshl_b32 s{sT2}, s{sT2}, 12
    s_add_u32 s{sT}, s{sT}, s{sT2}
    s_add_u32 s{sT}, s{sT}, {MB(0)+8192}
    v_add_u32 v53, s{sT}, v52
    global_store_dwordx4 v53, v[48:51], s[{sWS}:{sWS+1}]
    """)
    nf = k.lab('Lnf'); nm = k.lab('Lnm')
    k(f"""
    s_cmp_lg_u32 s{sW}, 0
    s_cbranch_scc1 {nf}
    v_mov_b32 v54, 0
    v_lshlrev_b32 v55, 2, v40
    s_lshl_b32 s{sT}, s2, 8
    v_add_u32 v55, s{sT}, v55
    global_store_dword v55, v54, s[{sWS}:{sWS+1}]
    """)
    k.label(nf)
    k(f"""
    s_cmp_ge_u32 s2, 4
    s_cbranch_scc1 {nm}
    s_and_b32 s{sT}, s2, 1
    s_lshl_b32 s{sT}, s{sT}, 12
    v_add_u32 v56, s{sT}, v52
    global_load_dwordx4 v[60:63], v56, s[12:13]
    s_lshr_b32 s{sT}, s2, 1
    s_mul_i32 s{sT}, s{sT}, {MB(1)-MB(0)}
    s_add_u32 s{sT}, s{sT}, {MB(0)}
    v_add_u32 v56, s{sT}, v56
    s_waitcnt vmcnt(0)
    global_store_dwordx4 v56, v[60:63], s[{sWS}:{sWS+1}]
    """)
    k.label(nm)
    k(f"""
    s_waitcnt vmcnt(0)
    v_add_u32 v53, {XR(0)}, v{vCA}
    global_store_dwordx4 v53, {v(X,4)}, s[{sWS}:{sWS+1}]
    global_store_dwordx4 v53, {v(X+4,4)}, s[{sWS}:{sWS+1}] offset:512
    """)
    def red():
        for val in (SUM, SQ):
            k(f"s_nop 1\nv_add_f32_dpp v{val}, v{val}, v{val} row_ror:8 row_mask:0xf bank_mask:0xf")
            xlane(k, 'v_add_f32', val, T0)
        k(f"ds_write_b64 v{vLW}, v[{SUM}:{SQ}]\ns_waitcnt lgkmcnt(0)\ns_barrier")
        for w in range(4): k(f"ds_read_b64 {v(R4+2*w,2)}, v{vLR} offset:{w*64}")
        k(f"""
        s_waitcnt lgkmcnt(0)
        v_add_f32 v{R4}, v{R4}, v{R4+2}
        v_add_f32 v{R4+1}, v{R4+1}, v{R4+3}
        v_add_f32 v{R4+4}, v{R4+4}, v{R4+6}
        v_add_f32 v{R4+5}, v{R4+5}, v{R4+7}
        v_add_f32 v{SUM}, v{R4}, v{R4+4}
        v_add_f32 v{SQ}, v{R4+1}, v{R4+5}
        """)
    ln_stats(k, X, 8, SUM, SQ, T0, red)
    ln_apply(k, X, 8, SUM, SQ, XN, T0, T1)
    k(f"""
    v_add_u32 v53, {XNA(0)}, v{vCA}
    global_store_dwordx4 v53, {v(XN,4)}, s[{sWS}:{sWS+1}]
    global_store_dwordx4 v53, {v(XN+4,4)}, s[{sWS}:{sWS+1}] offset:512
    s_waitcnt vmcnt(0)
    """)
    k.label(END)
    k("s_endpgm")
    txt = '\n'.join(k.lines)
    if PF[0]:
        pf = f"""s_getpc_b64 s[14:15]
Lk0pc:
s_add_u32 s14, s14, CODE_BEGIN-Lk0pc
s_addc_u32 s15, s15, 0
s_lshr_b32 s{sT}, s2, 3
s_and_b32 s{sT}, s{sT}, 31
s_mul_i32 s{sT}, s{sT}, ((CODE_END-CODE_BEGIN+2047)/2048+31)/32*2048
v_mul_u32_u24 v57, ((CODE_END-CODE_BEGIN+2047)/2048+31)/32*8, v0
v_add_u32 v57, s{sT}, v57
s_mov_b32 s{sT2}, CODE_END-CODE_BEGIN-4
v_min_u32 v57, s{sT2}, v57
v_and_b32 v57, -4, v57
global_load_dword v58, v57, s[14:15]"""
    else: pf = ''
    i = k.lines.index('CODEPF')
    k.lines[i:i+1] = [l for l in pf.split('\n') if l]


def emit_init(k, s_iw):
    vXA=4; vOA=5; vLW=6; vLR=7; X=16; XN=32; SUM=48; SQ=49; T0=50; T1=51; R4=52
    sX=10; sM=12; sD=14
    k(f"""
    s_load_dwordx2 s[{sX}:{sX+1}], s[0:1], {KA_X}
    s_load_dwordx2 s[{sM}:{sM+1}], s[0:1], {KA_MEM0}
    s_load_dwordx2 s[{sD}:{sD+1}], s[0:1], {KA_DBG}
    v_and_b32 v240, 63, v0
    v_and_b32 v241, 15, v240          ; tok
    v_lshrrev_b32 v242, 4, v240
    s_lshl_b32 s{sT}, s{sW}, 2
    v_add_u32 v243, s{sT}, v242       ; cg 0..15
    s_lshl_b32 s{sT}, s{s_iw}, 4
    v_add_u32 v244, s{sT}, v241
    v_lshlrev_b32 v{vOA}, 10, v244
    v_lshl_add_u32 v{vOA}, v243, 6, v{vOA}
    v_lshrrev_b32 v245, 5, v244
    v_lshlrev_b32 v245, 15, v245
    v_and_b32 v246, 31, v244
    v_lshl_add_u32 v245, v246, 4, v245
    v_lshl_add_u32 v{vXA}, v243, 11, v245
    s_lshl_b32 s{sT}, s{sW}, 7
    v_lshlrev_b32 v{vLR}, 3, v241
    v_add_u32 v{vLW}, s{sT}, v{vLR}
    s_waitcnt lgkmcnt(0)
    """)
    for j in range(4): k(f"global_load_dwordx4 {v(X+4*j,4)}, v{vOA}, s[{sX}:{sX+1}] offset:{j*16}")
    k(f"""
    v_mov_b32 v60, -1
    v_mov_b32 v61, -1
    v_mov_b32 v62, -1
    v_mov_b32 v63, -1
    v_lshlrev_b32 v64, 4, v0                  ; tid*16
    s_lshr_b32 s{sT}, s{s_iw}, 6
    s_mul_i32 s{sT}, s{sT}, {PA(1)-PA(0)}
    s_and_b32 s{sT2}, s{s_iw}, 63
    s_lshl_b32 s{sT2}, s{sT2}, 12
    s_add_u32 s{sT}, s{sT}, s{sT2}
    s_add_u32 s{sT}, s{sT}, {PA(0)}
    v_add_u32 v65, s{sT}, v64
    global_store_dwordx4 v65, v[60:63], s[{sWS}:{sWS+1}] sc1
    """)
    nf = k.lab('Lnf'); nm = k.lab('Lnm'); ns = k.lab('Lns')
    k(f"""
    s_cmp_lg_u32 s{sW}, 0
    s_cbranch_scc1 {nf}
    v_mov_b32 v66, 0
    v_lshlrev_b32 v67, 2, v240
    s_lshl_b32 s{sT}, s{s_iw}, 8
    v_add_u32 v67, s{sT}, v67
    global_store_dword v67, v66, s[{sWS}:{sWS+1}] sc1
    """)
    k.label(nf)
    k(f"""
    s_cmp_ge_u32 s{s_iw}, 8
    s_cbranch_scc1 {nm}
    s_and_b32 s{sT}, s{s_iw}, 1
    s_lshl_b32 s{sT}, s{sT}, 12
    v_add_u32 v68, s{sT}, v64
    s_lshr_b32 s{sT}, s{s_iw}, 2
    s_mul_i32 s{sT}, s{sT}, {MB(1)-MB(0)}
    s_add_u32 s{sT}, s{sT}, {MB(0)}
    s_bitcmp1_b32 s{s_iw}, 1
    s_cbranch_scc1 {ns}
    global_load_dwordx4 v[72:75], v68, s[{sM}:{sM+1}]
    v_add_u32 v68, s{sT}, v68
    s_waitcnt vmcnt(0)
    global_store_dwordx4 v68, v[72:75], s[{sWS}:{sWS+1}] sc1
    s_branch {nm}
    """)
    k.label(ns)
    k(f"""
    s_add_u32 s{sT}, s{sT}, 8192
    v_add_u32 v68, s{sT}, v68
    global_store_dwordx4 v68, v[60:63], s[{sWS}:{sWS+1}] sc1
    """)
    k.label(nm)
    k(f"s_waitcnt vmcnt(0)")
    mark(k, 7)
    k(f"v_add_u32 v65, {XR(0)}, v{vXA}")
    for j in range(4): k(f"global_store_dwordx4 v65, {v(X+4*j,4)}, s[{sWS}:{sWS+1}] offset:{j*512} sc1")
    def red():
        xlane(k, 'v_add_f32', SUM, T0); xlane(k, 'v_add_f32', SQ, T0)
        k(f"ds_write_b64 v{vLW}, v[{SUM}:{SQ}]\ns_waitcnt lgkmcnt(0)\ns_barrier")
        for w in range(4): k(f"ds_read_b64 {v(R4+2*w,2)}, v{vLR} offset:{w*128}")
        k(f"""
        s_waitcnt lgkmcnt(0)
        v_add_f32 v{R4}, v{R4}, v{R4+2}
        v_add_f32 v{R4+1}, v{R4+1}, v{R4+3}
        v_add_f32 v{R4+4}, v{R4+4}, v{R4+6}
        v_add_f32 v{R4+5}, v{R4+5}, v{R4+7}
        v_add_f32 v{SUM}, v{R4}, v{R4+4}
        v_add_f32 v{SQ}, v{R4+1}, v{R4+5}
        """)
    ln_stats(k, X, 16, SUM, SQ, T0, red)
    ln_apply(k, X, 16, SUM, SQ, XN, T0, T1)
    k(f"v_add_u32 v65, {XNA(0)}, v{vXA}")
    for j in range(4): k(f"global_store_dwordx4 v65, {v(XN+4*j,4)}, s[{sWS}:{sWS+1}] offset:{j*512} sc1")
    sk = k.lab('Linits'); sk2 = k.lab('Linits2')
    k(f"""
    s_waitcnt vmcnt(0)
    s_barrier
    s_cmp_lg_u32 s{sW}, 0
    s_cbranch_scc1 {sk}
    s_mov_b64 exec, 1
    v_mov_b32 v66, 16
    v_mov_b32 v67, 1
    global_atomic_add v68, v66, v67, s[{sD}:{sD+1}] sc0 sc1
    s_waitcnt vmcnt(0)
    v_cmp_eq_u32 vcc, 127, v68
    s_cbranch_vccz {sk2}
    v_mov_b32 v66, 248
    global_store_dword v66, v67, s[{sD}:{sD+1}] sc1
    s_waitcnt vmcnt(0)
{sk2}:
    s_mov_b64 exec, -1
    """)
    k.label(sk)

def emit_l2_prefetch(k):
    k(f"""
    s_load_dwordx2 s[10:11], s[0:1], {KA_WQKV}
    s_load_dwordx2 s[12:13], s[0:1], {KA_WOA}
    s_lshl_b32 s{sT}, s{sIDX}, 2
    s_add_u32 s{sT}, s{sT}, s{sW}              ; wave 0..63
    v_and_b32 v4, 63, v0
    v_lshlrev_b32 v4, 6, v4                    ; lane*64
    s_mul_i32 s{sT2}, s{sT}, 24576
    v_add_u32 v5, s{sT2}, v4
    s_lshl_b32 s{sT2}, s{sT}, 13
    v_add_u32 v6, s{sT2}, v4
    s_waitcnt lgkmcnt(0)
    """)
    for j in range(6):
        k(f"global_load_dword v{8+j}, v5, s[10:11]\nv_add_u32 v5, 4096, v5")
    for j in range(2):
        k(f"global_load_dword v{16+j}, v6, s[12:13]\nv_add_u32 v6, 4096, v6")
    k("s_waitcnt vmcnt(0)")
```

```python
from common import *
vL=0; vRD=1; vFLG=2; vTMP=3; vA=8; vACC=32
ONES=0x3f803f80
EXP = ['']

def lane_ids(k):
    k(f"""
    v_and_b32 v40, 63, v0
    v_and_b32 v41, 31, v40
    v_lshrrev_b32 v42, 5, v40
    v_and_b32 v43, 15, v40
    v_lshrrev_b32 v44, 4, v40
    """)

def load_W64(k, ka, row_stride, col_byte_code):
    k(f"""
    v_lshrrev_b32 v45, 3, v40
    v_mul_u32_u24 v45, {row_stride}, v45
    v_and_b32 v46, 7, v40
    v_lshl_add_u32 v45, v46, 4, v45
    ; tr read address: rows 8*kh + i/4 ; cols 16*(gamma%2) + 4*(i%4)
    v_lshrrev_b32 v46, 2, v43
    v_lshl_add_u32 v46, v42, 3, v46         ; 8kh + i/4
    v_lshlrev_b32 v46, 7, v46               ; *128
    v_and_b32 v47, 1, v44
    v_lshl_add_u32 v46, v47, 5, v46         ; + 32B*(gamma%2)
    v_and_b32 v47, 3, v43
    v_lshl_add_u32 v46, v47, 3, v46         ; + 8B*(i%4)
    s_lshl_b32 s{sT2}, s{sW}, 15
    v_add_u32 v46, s{sT2}, v46
    """)
    for rnd in range(2):
        k(f"s_load_dwordx2 s[{sP}:{sP+1}], s[0:1], {ka}")
        k(col_byte_code)
        k(f"""
        s_add_u32 s{sT}, s{sT}, {rnd*256*row_stride}
        s_lshl_b32 s{sT3}, s{sW}, 15
        s_waitcnt lgkmcnt(0)
        s_add_u32 s{sP}, s{sP}, s{sT}
        s_addc_u32 s{sP+1}, s{sP+1}, 0
        """)
        for u in range(32):
            k(f"s_mov_b32 m0, s{sT3}\ns_add_u32 s{sT3}, s{sT3}, 1024\nglobal_load_lds_dwordx4 v45, s[{sP}:{sP+1}]")
            adv(k, sP, 8*row_stride)
        k("s_waitcnt vmcnt(0)")
        n = 0
        for ksl in range(16):
            ks = rnd*16 + ksl
            for ct in range(2):
                for hf in range(2):
                    r = (ct*32 + ks)*4 + 2*hf
                    k(f"ds_read_b64_tr_b16 {a(r,2)}, v46 offset:{(16*ksl + 4*hf)*128 + ct*64}")
                    n += 1
                    if n % 8 == 0: k("s_waitcnt lgkmcnt(0)")
        k("s_waitcnt lgkmcnt(0)")

def gemm64_compute(k, hook, wA):
    def rd(ks): k(f"ds_read_b128 {v(vA + 4*(ks%4),4)}, v{vRD} offset:{ks*1024}")
    for ks in range(3): rd(ks)
    for ks in range(32):
        if ks + 3 < 32: rd(ks + 3)
        k(f"s_waitcnt lgkmcnt({min(3, 31-ks)})")
        x = v(vA + 4*(ks % 4), 4)
        for ct in range(2):
            if EXP[0] == 'half' and ct == 1 and ks > 0: continue
            if EXP[0] == 'none' and ks > 0: continue
            w = a((ct*32 + ks)*4, 4); acc = v(vACC + 16*ct, 16)
            c = "0" if ks == 0 else acc
            if wA: k(f"v_mfma_f32_32x32x16_bf16 {acc}, {w}, {x}, {c}")
            else: k(f"v_mfma_f32_32x32x16_bf16 {acc}, {x}, {w}, {c}")
        if ks < 8: hook(100 + ks)
        if ks == 12: hook(0)
        if 13 <= ks < 21: hook(10 + ks - 13)
        if ks == 24: hook(1)

def dma_chunks(nkb, item_stride):
    ch = []
    half = nkb // 2
    H = 2 * nkb * 1024
    for ph in range(2):
        for blk in range(half // 4):
            for u in range(4):
                c = ""
                if u == 0: c += f"s_add_u32 s{sT}, s{sM0}, {ph*H + blk*4096}\ns_mov_b32 m0, s{sT}\ns_nop 0\n"
                c += f"global_load_lds_dwordx4 v{vL}, s[{sIN}:{sIN+1}] offset:{u*1024} sc1"
                if u == 3:
                    if blk < half // 4 - 1: n = 4096
                    elif ph == 0: n = H - (half - 4) * 1024
                    else: n = item_stride - H - (half - 4) * 1024
                    c += f"\ns_add_u32 s{sIN}, s{sIN}, {n}\ns_addc_u32 s{sIN+1}, s{sIN+1}, 0"
                ch.append(c)
    return ch
def dma_linear(k, nkb, item_stride):
    for c in dma_chunks(nkb, item_stride): k(c)
def dma32k(k): dma_linear(k, 8, 32768)

def toggle32k(k):
    k(f"v_xor_b32 v{vRD}, 0x8000, v{vRD}\ns_xor_b32 s{sM0}, s{sM0}, 0x8000")
def init_bufs32k(k):
    k(f"""
    v_lshlrev_b32 v{vL}, 4, v40
    v_xor_b32 v{vRD}, 0x8000, v{vL}
    s_lshl_b32 s{sM0}, s{sW}, 12
    """)

def emit_T3(k, vtype):
    name = 'T3v' if vtype else 'T3q'
    sHH = 33; sMU = 34
    k(f"""
    s_lshr_b32 s{sMU}, s{sIDX}, 4
    s_and_b32 s{sT}, s{sIDX}, 15
    s_lshl_b32 s{sT}, s{sT}, 1
    s_lshr_b32 s{sT2}, s{sW}, 1
    s_add_u32 s{sHH}, s{sT}, s{sT2}          ; head
    """)
    lane_ids(k)
    wait_start(k, 2, 3, F_R(0), 1, GATE['T3'])
    colcode = f"s_lshl_b32 s{sT}, s{sHH}, 8\ns_and_b32 s{sT2}, s{sW}, 1\ns_lshl_b32 s{sT2}, s{sT2}, 7\ns_add_u32 s{sT}, s{sT}, s{sT2}"
    if vtype:
        load_W64(k, KA_WV, 8192, colcode)
    else:
        lq = k.lab('Lq'); le = k.lab('Le')
        k(f"s_cmp_lg_u32 s{sMU}, 0\ns_cbranch_scc1 {lq}")
        load_W64(k, KA_WQ, 8192, colcode)
        k(f"s_branch {le}")
        k.label(lq)
        load_W64(k, KA_WK, 8192, colcode)
        k.label(le)
    vCS = 64
    for r in range(4): k(f"v_mov_b32 v{vA+r}, {ONES}")
    k("s_nop 1")
    for ks in range(32):
        for ct in range(2):
            w = a((ct*32 + ks)*4, 4); acc = v(vCS + 16*ct, 16); c = "0" if ks == 0 else acc
            if not vtype: k(f"v_mfma_f32_32x32x16_bf16 {acc}, {w}, {v(vA,4)}, {c}")
            else: k(f"v_mfma_f32_32x32x16_bf16 {acc}, {v(vA,4)}, {w}, {c}")
    k.nop(12)
    k("s_barrier")
    init_bufs32k(k)
    k(f"""
    s_mul_i32 s{sT}, s{sL}, {F_TW(1)-F_TW(0)}
    s_add_u32 s{sT}, s{sT}, {F_TW(0)}
    v_and_b32 v{vFLG}, 3, v40
    v_lshlrev_b32 v{vFLG}, 2, v{vFLG}
    v_bfe_u32 v47, v40, 2, 1
    v_lshl_add_u32 v{vFLG}, v47, 6, v{vFLG}
    v_add_u32 v{vFLG}, s{sT}, v{vFLG}
    s_mov_b32 s{sFL}, s{sWS}
    s_mov_b32 s{sFL+1}, s{sWS+1}
    """)
    base(k, sOWN, F_T3, f"s_sub_u32 s{sT3}, s{sMU}, 1\ns_lshl_b32 s{sT3}, s{sT3}, 1\ns_cmp_eq_u32 s{sMU}, 0\ns_cselect_b32 s{sT3}, 4, s{sT3}\n"
                        f"s_and_b32 s{sT}, s{sW}, 1\ns_add_u32 s{sT3}, s{sT3}, s{sT}\ns_lshl_b32 s{sT3}, s{sT3}, 4\ns_lshl_b32 s{sT}, s{sHH}, 7\ns_add_u32 s{sT}, s{sT}, s{sT3}")
    base(k, sIN, X1, f"s_lshl_b32 s{sT}, s{sW}, 12")
    base(k, sAX1, ST1)
    def outbase(fn):
        base(k, sOUT, fn, f"s_lshl_b32 s{sT}, s{sHH}, 13\ns_and_b32 s{sT3}, s{sW}, 1\ns_lshl_b32 s{sT3}, s{sT3}, 12\ns_add_u32 s{sT}, s{sT}, s{sT3}")
    if vtype: outbase(VT)
    else:
        lq = k.lab('Lq'); le = k.lab('Le')
        k(f"s_cmp_lg_u32 s{sMU}, 0\ns_cbranch_scc1 {lq}")
        outbase(QT); k(f"s_branch {le}"); k.label(lq); outbase(KT); k.label(le)
    vST = 4
    vVS0 = 5; vVS1 = 6; vSC = 7
    k(f"""
    v_lshlrev_b32 v{vST}, 10, v42
    v_lshl_add_u32 v{vST}, v41, 3, v{vST}
    v_lshlrev_b32 v{vVS0}, 11, v42
    v_lshl_add_u32 v{vVS0}, v41, 4, v{vVS0}
    v_add_u32 v{vVS1}, 4096, v{vVS0}
    s_lshl_b32 s{sT}, s{sW}, 8
    s_add_u32 s{sT}, s{sT}, 65536
    v_lshlrev_b32 v{vSC}, 2, v41
    v_add_u32 v{vSC}, s{sT}, v{vSC}
    v_lshlrev_b32 v45, 4, v42
    v_add_u32 v45, s{sT}, v45
    v_mov_b32 v31, v45
    """)
    vSR = 31
    vS = 24
    RS = 96; MR = 97
    def set_need(k): k(f"s_add_u32 s{sNEED}, s{sT3}, 1")
    def item_start():
        ch = [f"global_load_dwordx2 {v(100+2*p,2)}, v{vST}, s[{sAX1}:{sAX1+1}] offset:{p*256} sc1" for p in range(4)]
        ch.append(f"s_add_u32 s{sAX1}, s{sAX1}, 2048\ns_addc_u32 s{sAX1+1}, s{sAX1+1}, 0")
        return ch
    def compute(k, hook): gemm64_compute(k, hook, not vtype)
    def epilogue(k, hook):
        k(f"""
        v_add_f32 v100, v100, v102
        v_add_f32 v101, v101, v103
        v_add_f32 v104, v104, v106
        v_add_f32 v105, v105, v107
        v_add_f32 v100, v100, v104
        v_add_f32 v101, v101, v105
        v_mov_b32 v102, v100
        v_mov_b32 v103, v101
        s_nop 1
        v_permlane32_swap_b32 v100, v102
        v_permlane32_swap_b32 v101, v103
        v_add_f32 v100, v100, v102
        v_add_f32 v101, v101, v103
        v_mul_f32 v100, 0x3b000000, v100        ; mean
        v_mul_f32 v101, 0x3b000000, v101        ; E[x^2]
        v_fma_f32 v101, -v100, v100, v101       ; var
        v_max_f32 v101, 0, v101
        v_add_f32 v101, 0x3727c5ac, v101        ; + 1e-5
        v_rsq_f32 v{RS}, v101
        s_nop 0
        v_mul_f32 v{MR}, v100, v{RS}
        """)
        if not vtype:
            for r in range(0, 32, 2):
                k(f"v_pk_mul_f32 {v(vACC+r,2)}, {v(vACC+r,2)}, {v(RS,2)} op_sel_hi:[1,0]")
            for r in range(0, 32, 2):
                k(f"v_pk_fma_f32 {v(vACC+r,2)}, {v(vCS+r,2)}, {v(RS,2)}, {v(vACC+r,2)} op_sel:[0,1,0] op_sel_hi:[1,1,1] neg_lo:[0,1,0] neg_hi:[0,1,0]")
            hook(2)
            for ct in range(2):
                for jp in range(2):
                    b = vACC + 16*ct + 8*jp; d = 100 + 4*(2*ct+jp)
                    for q in range(4): k(f"v_cvt_pk_bf16_f32 v{d+q}, v{b+2*q}, v{b+2*q+1}")
                    k("s_nop 1")
                    k(f"v_permlane32_swap_b32 v{d}, v{d+2}\nv_permlane32_swap_b32 v{d+1}, v{d+3}")
                    k(f"global_store_dwordx4 v{vL}, {v(d,4)}, s[{sOUT}:{sOUT+1}] offset:{(4*ct+2*jp)*512} sc1")
        else:
            k(f"""
            ds_write_b32 v{vSC}, v{RS}
            ds_write_b32 v{vSC}, v{MR} offset:128
            s_waitcnt lgkmcnt(0)
            """)
            for jj in range(4):
                k(f"ds_read_b128 {v(100+4*jj,4)}, v{vSR} offset:{jj*32}")
                k(f"ds_read_b128 {v(116+4*jj,4)}, v{vSR} offset:{128+jj*32}")
            k("s_waitcnt lgkmcnt(0)")
            for ct in range(2):
                cs = vCS + 16*ct
                for R in range(0, 16, 2):
                    r = vACC + 16*ct + R
                    k(f"v_pk_mul_f32 {v(r,2)}, {v(r,2)}, {v(100+R,2)}")
                for R in range(0, 16, 2):
                    r = vACC + 16*ct + R
                    k(f"v_pk_fma_f32 {v(r,2)}, {v(116+R,2)}, {v(cs,2)}, {v(r,2)} op_sel_hi:[1,0,1] neg_lo:[1,0,0] neg_hi:[1,0,0]")
            hook(2)
            for ct in range(2):
                for aa in range(2):
                    d = 132 + 4*(2*ct+aa); b0 = vACC + 16*ct + 4*aa; b1 = b0 + 8
                    k(f"v_cvt_pk_bf16_f32 v{d}, v{b0}, v{b0+1}\nv_cvt_pk_bf16_f32 v{d+1}, v{b0+2}, v{b0+3}")
                    k(f"v_cvt_pk_bf16_f32 v{d+2}, v{b1}, v{b1+1}\nv_cvt_pk_bf16_f32 v{d+3}, v{b1+2}, v{b1+3}")
                    k(f"global_store_dwordx4 v{vL}, {v(d,4)}, s[{sOUT}:{sOUT+1}] offset:{ct*2048 + aa*1024} sc1")
        adv(k, sOUT, 262144)
    def comp2(k, hook):
        compute(k, hook); k.nop(12)
    skeleton(k, name, 2, NSEG, set_need, dma32k, item_start, comp2, epilogue, vFLG, vTMP, vL, toggle32k, 4, dma_chunks(8, 32768))

def emit_TW(k):
    lane_ids(k)
    wait_start(k, 2, 3, F_R(0), 1)
    load_W64(k, KA_WOA, 1024, f"s_lshl_b32 s{sT}, s{sIDX}, 9\ns_lshl_b32 s{sT2}, s{sW}, 7\ns_add_u32 s{sT}, s{sT}, s{sT2}")
    k("s_barrier")
    init_bufs32k(k)
    k(f"""
    s_mul_i32 s{sT}, s{sL}, {F_TA(1)-F_TA(0)}
    s_add_u32 s{sT}, s{sT}, {F_TA(0)}
    v_and_b32 v{vFLG}, 3, v40
    v_lshlrev_b32 v{vFLG}, 2, v{vFLG}
    v_bfe_u32 v47, v40, 2, 3
    v_lshl_add_u32 v{vFLG}, v47, 6, v{vFLG}
    v_add_u32 v{vFLG}, s{sT}, v{vFLG}
    s_mov_b32 s{sFL}, s{sWS}
    s_mov_b32 s{sFL+1}, s{sWS+1}
    """)
    base(k, sOWN, F_TW, f"s_lshl_b32 s{sT}, s{sIDX}, 4\ns_add_u32 s{sT}, s{sT}, s{sW}\ns_lshl_b32 s{sT}, s{sT}, 2")
    base(k, sIN, OA, f"s_lshl_b32 s{sT}, s{sW}, 12")
    colx = f"s_lshl_b32 s{sT}, s{sIDX}, 14\ns_lshl_b32 s{sT3}, s{sW}, 12\ns_add_u32 s{sT}, s{sT}, s{sT3}"
    base(k, sAX1, XR, colx)
    base(k, sOUT, X1, colx)
    base(k, sAX2, ST1, f"s_lshl_b32 s{sT}, s{sIDX}, 2\ns_add_u32 s{sT}, s{sT}, s{sW}\ns_lshl_b32 s{sT}, s{sT}, 8")
    vX = 4; vSS = 5
    k(f"""
    v_lshlrev_b32 v{vX}, 4, v41
    v_lshl_add_u32 v{vX}, v42, 3, v{vX}      ; n*16 + hi*8
    v_lshlrev_b32 v{vSS}, 3, v41             ; n*8
    """)
    def set_need(k): k(f"s_add_u32 s{sNEED}, s{sT3}, 1")
    def item_start():
        ch = [f"global_load_dwordx4 {v(64+4*(2*ct+jp),4)}, v{vL}, s[{sAX1}:{sAX1+1}] offset:{(4*ct+2*jp)*512} sc1" for ct in range(2) for jp in range(2)]
        ch.append(f"s_add_u32 s{sAX1}, s{sAX1}, 32768\ns_addc_u32 s{sAX1+1}, s{sAX1+1}, 0")
        return ch
    def comp2(k, hook):
        gemm64_compute(k, hook, True); k.nop(12)
    def epilogue(k, hook):
        k("v_mov_b32 v96, 0\nv_mov_b32 v97, 0")
        k(f"s_mov_b32 s{sT}, {ONES}\ns_mov_b32 s{sT2}, 0x00003f80\ns_mov_b32 s{sT3}, 0x3f800000")
        for u in range(4):
            d = 64 + 4*u
            k(f"v_permlane32_swap_b32 v{d}, v{d+2}\nv_permlane32_swap_b32 v{d+1}, v{d+3}")
        k("s_nop 0")
        for ct in range(2):
            for jj in range(4):
                x = 64 + 2*(4*ct+jj); b = vACC + 16*ct + 4*jj
                k(f"""
                v_dot2_f32_bf16 v{b}, v{x}, s{sT2}, v{b}
                v_dot2_f32_bf16 v{b+1}, v{x}, s{sT3}, v{b+1}
                v_dot2_f32_bf16 v{b+2}, v{x+1}, s{sT2}, v{b+2}
                v_dot2_f32_bf16 v{b+3}, v{x+1}, s{sT3}, v{b+3}
                """)
        k("s_nop 1")
        for ct in range(2):
            for jj in range(4):
                x = 64 + 2*(4*ct+jj); b = vACC + 16*ct + 4*jj
                k(f"v_cvt_pk_bf16_f32 v{x}, v{b}, v{b+1}\nv_cvt_pk_bf16_f32 v{x+1}, v{b+2}, v{b+3}")
        hook(2)
        k("s_nop 0")
        for u in range(4):
            d = 64 + 4*u; ct = u // 2; jp = u % 2
            k(f"v_permlane32_swap_b32 v{d}, v{d+2}\nv_permlane32_swap_b32 v{d+1}, v{d+3}")
            k(f"s_nop 0\nglobal_store_dwordx4 v{vL}, {v(d,4)}, s[{sOUT}:{sOUT+1}] offset:{(4*ct+2*jp)*512} sc1")
        for q in range(16):
            k(f"v_dot2_f32_bf16 v96, v{64+q}, s{sT}, v96\nv_dot2_f32_bf16 v97, v{64+q}, v{64+q}, v97")
        k(f"""
        s_nop 2
        v_mov_b32 v98, v96
        v_mov_b32 v99, v97
        s_nop 1
        v_permlane32_swap_b32 v96, v98
        v_permlane32_swap_b32 v97, v99
        v_add_f32 v96, v96, v98
        v_add_f32 v97, v97, v99
        s_mov_b64 exec, 0xffffffff
        global_store_dwordx2 v{vSS}, v[96:97], s[{sAX2}:{sAX2+1}] sc1
        s_mov_b64 exec, -1
        """)
        adv(k, sAX2, 2048)
        adv(k, sOUT, 32768)
    skeleton(k, 'TW', 3, NSEG, set_need, dma32k, item_start, comp2, epilogue, vFLG, vTMP, vL, toggle32k, 5, dma_chunks(8, 32768))

def emit_T5(k):
    sKQ = 33; sNQ = 34
    k(f"s_lshr_b32 s{sKQ}, s{sIDX}, 2\ns_and_b32 s{sNQ}, s{sIDX}, 3")
    lane_ids(k)
    wait_start(k, 2, 3, F_R(0), 1, GATE['T5'])
    k(f"""
    v_lshrrev_b32 v45, 2, v40
    v_lshlrev_b32 v45, 10, v45
    v_and_b32 v46, 3, v40
    v_lshl_add_u32 v45, v46, 4, v45          ; dma lane offset: row l/4, chunk l%4
    ; tr address: row = 4*kh + i/4 ; col bytes 32*(gamma%2) + 8*(i%4)
    v_lshrrev_b32 v46, 2, v43
    v_lshl_add_u32 v46, v42, 2, v46
    v_lshlrev_b32 v46, 6, v46
    v_and_b32 v47, 1, v44
    v_lshl_add_u32 v46, v47, 5, v46
    v_and_b32 v47, 3, v43
    v_lshl_add_u32 v46, v47, 3, v46
    s_lshl_b32 s{sT2}, s{sW}, 15
    v_add_u32 v46, s{sT2}, v46
    """)
    for rnd in range(2):
        k(f"s_load_dwordx2 s[{sP}:{sP+1}], s[0:1], {KA_WO}")
        k(f"""
        s_lshl_b32 s{sT}, s{sKQ}, 20
        s_lshl_b32 s{sT2}, s{sNQ}, 8
        s_add_u32 s{sT}, s{sT}, s{sT2}
        s_lshl_b32 s{sT2}, s{sW}, 6
        s_add_u32 s{sT}, s{sT}, s{sT2}
        s_add_u32 s{sT}, s{sT}, {rnd*512*1024}
        s_lshl_b32 s{sT3}, s{sW}, 15
        s_waitcnt lgkmcnt(0)
        s_add_u32 s{sP}, s{sP}, s{sT}
        s_addc_u32 s{sP+1}, s{sP+1}, 0
        """)
        for u in range(32):
            k(f"s_mov_b32 m0, s{sT3}\ns_add_u32 s{sT3}, s{sT3}, 1024\nglobal_load_lds_dwordx4 v45, s[{sP}:{sP+1}]")
            adv(k, sP, 16*1024)
        k("s_waitcnt vmcnt(0)")
        n = 0
        for ksl in range(32):
            ks = rnd*32 + ksl
            hl = ksl // 8; u = (ksl // 2) % 4; gb = 2 * (ks % 2)
            for aa in range(2):
                row = hl*128 + 32*u + 16*aa + 4*gb
                k(f"ds_read_b64_tr_b16 {a(ks*4 + 2*aa, 2)}, v46 offset:{row*64}")
                n += 1
                if n % 8 == 0: k("s_waitcnt lgkmcnt(0)")
        k("s_waitcnt lgkmcnt(0)")
    k("s_barrier")
    k(f"""
    v_lshlrev_b32 v{vL}, 4, v40
    v_xor_b32 v{vRD}, 0x10000, v{vL}
    s_lshl_b32 s{sM0}, s{sW}, 13
    s_mul_i32 s{sT}, s{sL}, {F_T4(1)-F_T4(0)}
    s_add_u32 s{sT}, s{sT}, {F_T4(0)}
    s_lshl_b32 s{sT2}, s{sKQ}, 8
    s_add_u32 s{sT}, s{sT}, s{sT2}
    v_and_b32 v4, 1, v40                      ; h%2
    v_lshlrev_b32 v4, 3, v4
    v_bfe_u32 v47, v40, 1, 2                  ; (h%8)/2
    v_lshl_add_u32 v4, v47, 6, v4
    v_add_u32 v4, s{sT}, v4
    s_mov_b32 s{sFL}, s{sWS}
    s_mov_b32 s{sFL+1}, s{sWS+1}
    """)
    base(k, sOWN, F_T5, f"s_lshl_b32 s{sT}, s{sIDX}, 4\ns_add_u32 s{sT}, s{sT}, s{sW}\ns_lshl_b32 s{sT}, s{sT}, 2")
    base(k, sIN, OT, f"s_lshl_b32 s{sT}, s{sKQ}, 16\ns_lshl_b32 s{sT3}, s{sW}, 13\ns_add_u32 s{sT}, s{sT}, s{sT3}")
    base(k, sOUT, PT, f"s_lshl_b32 s{sT}, s{sKQ}, 15\ns_lshl_b32 s{sT3}, s{sNQ}, 13\ns_add_u32 s{sT}, s{sT}, s{sT3}\ns_lshl_b32 s{sT3}, s{sW}, 11\ns_add_u32 s{sT}, s{sT}, s{sT3}")
    def set_need(k):
        k(f"s_add_u32 s{sNEED}, s{sT3}, 1\ns_and_b32 s{sT}, s{sT3}, 1\ns_lshl_b32 s{sT}, s{sT}, 2\nv_add_u32 v{vFLG}, s{sT}, v4")
    def dma(k): dma_linear(k, 16, 262144)
    def toggle(k): k(f"v_xor_b32 v{vRD}, 0x10000, v{vRD}\ns_xor_b32 s{sM0}, s{sM0}, 0x10000")
    def comp(k, hook):
        def rd(ks): k(f"ds_read_b128 {v(vA + 4*(ks%4),4)}, v{vRD} offset:{ks*1024}")
        for ks in range(3): rd(ks)
        for ks in range(64):
            if ks + 3 < 64: rd(ks + 3)
            k(f"s_waitcnt lgkmcnt({min(3, 63-ks)})")
            acc = v(vACC, 16); c = "0" if ks == 0 else acc
            k(f"v_mfma_f32_32x32x16_bf16 {acc}, {a(ks*4,4)}, {v(vA + 4*(ks%4),4)}, {c}")
            if ks == 1: hook(100)
            if ks == 22: hook(0)
            if 23 <= ks < 55 and (ks - 23) % 2 == 0: hook(10 + (ks - 23) // 2)
            if ks == 56: hook(1)
        k.nop(12)
    def epilogue(k, hook):
        hook(2)
        for jp in range(2):
            b = vACC + 8*jp; d = 64 + 4*jp
            for q in range(4): k(f"v_cvt_pk_bf16_f32 v{d+q}, v{b+2*q}, v{b+2*q+1}")
            k("s_nop 1")
            k(f"v_permlane32_swap_b32 v{d}, v{d+2}\nv_permlane32_swap_b32 v{d+1}, v{d+3}")
            k(f"global_store_dwordx4 v{vL}, {v(d,4)}, s[{sOUT}:{sOUT+1}] offset:{jp*1024} sc1")
        adv(k, sOUT, 131072)
    skeleton(k, 'T5', 5, NSEG, set_need, dma, lambda: [], comp, epilogue, vFLG, vTMP, vL, toggle, 2, dma_chunks(16, 262144))
```

```python
import sys, mega
from layout import *
import common
name = "interleave_layers__sliding_local_dilated__memory_aug_recurrent_mem_tr__prompt"
mode = sys.argv[1] if len(sys.argv) > 1 else 'concurrent'
dst = sys.argv[2] if len(sys.argv) > 2 else f"cdna_kernels/{name}.s"
for a_ in sys.argv[3:]:
    kk, vv = a_.split('=')
    if kk == 'swapr': mega.SWAPR[0] = int(vv)
    if kk == 'tlb': mega.TLBPF[0] = int(vv)
    if kk in ('T5g', 'T3g'):
        common.GATE[kk[:2]] = eval(vv)
    if kk == 'early': mega.EARLY[0] = int(vv)
    if kk == 'pf': mega.CODEPF[0] = int(vv)
    if kk == 'out': mega.rolesA.OUTFLAG[0] = vv.replace('none', '')
txt, errs = mega.build(mode)
assert not errs, errs
hdr = """; Pipelined multi-role persistent kernel (hand-written generator output).
; kernarg: x, wqkv, wo, B_x(unused), mem0, Wq, Wk, Wv, Wo, seg_len(=32), out, debug, ws
"""
open(dst, "w").write(hdr + txt)
print("written", dst, len(hdr + txt))
```

```python
import sys
from fw import *
from layout import *
import common as C
import roleR4 as roleR, rolesG, rolesA

KNAME = "interleave_layers__sliding_local_dilated__memory_aug_recurrent_mem_tr__prompt_kernel"
KD = """.amdhsa_kernel {name}
.amdhsa_next_free_vgpr {vgpr}
.amdhsa_next_free_sgpr 102
.amdhsa_accum_offset {acc}
.amdhsa_group_segment_fixed_size 0
.amdhsa_kernarg_size 104
.amdhsa_user_sgpr_count 2
.amdhsa_user_sgpr_kernarg_segment_ptr 1
.amdhsa_system_sgpr_workgroup_id_x 1
.amdhsa_float_denorm_mode_32 3
.end_amdhsa_kernel"""

def entry(k, name):
    k(f".globl {name}\n.p2align 8\n.type {name},@function")
    k.label(name)

def common_entry(k, END):
    k(f"""
    s_load_dwordx2 s[8:9], s[0:1], {KA_WS}
    v_readfirstlane_b32 s5, v0
    s_nop 1
    s_lshr_b32 s5, s5, 6
    s_waitcnt lgkmcnt(0)
    """)

FAKE = [None]
def cnt_addr_lanes(k, vdst, vtmp):
    k(f"""
    v_and_b32 v{vdst}, 3, v0
    v_lshlrev_b32 v{vdst}, 6, v{vdst}
    v_bfe_u32 v{vtmp}, v0, 2, 1
    v_lshl_add_u32 v{vdst}, v{vtmp}, 2, v{vdst}
    """)
def ticket(k):
    k(f"""
    s_cmp_lg_u32 s5, 0
    s_cbranch_scc1 L_tkm
    s_and_b32 s35, s34, 3
    s_lshl_b32 s35, s35, 6
    s_lshr_b32 s37, s34, 2
    s_lshl_b32 s37, s37, 2
    s_add_u32 s35, s35, s37
    s_mov_b64 exec, 1
    v_mov_b32 v1, s35
    v_mov_b32 v2, 1
    global_atomic_add v3, v1, v2, s[46:47] sc0 sc1
    s_waitcnt vmcnt(0)
    v_readfirstlane_b32 s4, v3
    s_nop 1
    s_cmp_lt_u32 s4, 32
    s_cbranch_scc1 L_tkok
    v_mov_b32 v1, 24
    global_atomic_add v3, v1, v2, s[46:47] sc0 sc1
    s_waitcnt vmcnt(0)
    v_readfirstlane_b32 s35, v3
    s_mov_b64 exec, 0xff
    """)
    cnt_addr_lanes(k, 1, 2)
    k(f"""
    s_mov_b32 s37, 0
L_ovf_spin:
    global_load_dword v3, v1, s[46:47] sc1
    s_add_u32 s37, s37, 1
    s_cmp_gt_u32 s37, {C.SPIN}
    s_cbranch_scc1 L_ovf_fail
    s_waitcnt vmcnt(0)
    s_mov_b32 s38, 0
    """)
    for x in range(8):
        k(f"v_readlane_b32 s{48+x}, v3, {x}")
    k("s_nop 1")
    for x in range(8):
        k(f"s_add_u32 s38, s38, s{48+x}")
    k(f"""
    s_cmp_lt_u32 s38, 256
    s_cbranch_scc1 L_ovf_spin
    """)
    for x in range(8):
        k(f"""
        s_min_u32 s39, s{48+x}, 32
        s_sub_u32 s38, 32, s39
        s_cmp_lt_u32 s35, s38
        s_cbranch_scc0 L_ovf_n{x}
        s_mov_b32 s34, {x}
        s_add_u32 s4, s39, s35
        s_branch L_tkok
L_ovf_n{x}:
        s_sub_u32 s35, s35, s38
        """)
    k(f"""
L_ovf_fail:
    s_waitcnt vmcnt(0)
    s_mov_b32 s4, 255
L_tkok:
    s_mov_b64 exec, 1
    v_mov_b32 v1, 0
    v_mov_b32 v2, s4
    v_mov_b32 v3, s34
    ds_write_b64 v1, v[2:3]
    s_waitcnt lgkmcnt(0)
    s_mov_b64 exec, -1
L_tkm:
    s_barrier
    v_mov_b32 v1, 0
    ds_read_b64 v[2:3], v1
    s_waitcnt lgkmcnt(0)
    v_readfirstlane_b32 s4, v2
    v_readfirstlane_b32 s34, v3
    s_barrier
    """)

CODEPF = [4]
SWAPR = [0]
TLBPF = [0]
EARLY = [1]
ROLES = ['R', 'T3q', 'T3v', 'TW', 'T5', 'TA', 'T4', 'T6']
def emit_roles(k, use_flags=True, stamp=0):
    errs = []
    def role(label, fn):
        n0 = len(k.lines)
        k.label(label)
        fn()
        errs.extend(check(k.lines[n0:], label))
    def R():
        roleR.emit_R_prologue(k, 6)
        roleR.emit_R_mode(k, 'L_R_slow', SWAPR[0])
        roleR.emit_R_loop(k, True, use_flags, stamp)
        k.label('L_R_slow')
        roleR.emit_R_loop(k, False, use_flags, 0)
    role('ROLE_R', R)
    role('ROLE_T3q', lambda: rolesG.emit_T3(k, False))
    role('ROLE_T3v', lambda: rolesG.emit_T3(k, True))
    role('ROLE_TW', lambda: rolesG.emit_TW(k))
    role('ROLE_T5', lambda: rolesG.emit_T5(k))
    role('ROLE_TA', lambda: rolesA.emit_TA(k))
    role('ROLE_T4', lambda: rolesA.emit_T4(k))
    role('ROLE_T6', lambda: rolesA.emit_T6(k))
    return errs

def build(mode, stamp=0, diag=False):
    DIAGON[0] = diag
    k = Asm()
    kernels = []
    launches = [] if mode == 'concurrent' else [("k0_kernel", 256, 1024)]
    if mode == 'serial':
        seq = [('TA', 8), ('TW', 2), ('T3', 48), ('R', 256), ('T4', 16), ('T5', 16), ('T6', 4)]
        for l in range(2):
            for r, n in seq:
                launches.append((f"s{r}{l}_kernel", n, 163840))
    else:
        launches.append((KNAME, 256, 163840))
    hdr = [f"; @launch grid=({g},1,1) block=(256,1,1) lds={lds}" for n, g, lds in launches]
    k.lines.extend(hdr)
    k('.amdgcn_target "amdgcn-amd-amdhsa--gfx950"\n.text')
    errs = []
    if mode == 'serial':
        k.label("CODE_BEGIN")
        for (name, g, lds) in launches[1:]:
            r = name[1:-8]; l = int(name[-8])
            entry(k, name)
            k(f"s_cmp_ge_u32 s2, {g}\ns_cbranch_scc1 L_exit_{name}")
            common_entry(k, None)
            k(f"s_mov_b32 s6, {l}")
            if r == 'R':
                k(f"s_getreg_b32 s33, hwreg(HW_REG_XCC_ID, 0, 4)\ns_cmp_lg_u32 s33, 0\ns_cbranch_scc1 L_exit_{name}")
                ticket(k, "s_mov_b32 s33, 0", name)
                k(f"s_cmp_ge_u32 s4, 32\ns_cbranch_scc1 L_exit_{name}\ns_branch ROLE_R")
            elif r == 'T3':
                k(f"s_mov_b32 s4, s2\ns_cmp_ge_u32 s4, 32\ns_cbranch_scc1 L_v_{name}\ns_branch ROLE_T3q\nL_v_{name}:\ns_branch ROLE_T3v")
            else:
                k(f"s_mov_b32 s4, s2\ns_branch ROLE_{r}")
            k(f"L_exit_{name}:\ns_endpgm")
            kernels.append((name, 512, 256))
    else:
        name = KNAME
        k.label("CODE_BEGIN")
        entry(k, name)
        k(f"s_cmp_ge_u32 s2, 256\ns_cbranch_scc1 L_exit_m")
        if EARLY[0]:
            k(f"s_load_dwordx4 s[44:47], s[0:1], {KA_DBG}")
            k("v_readfirstlane_b32 s5, v0\ns_nop 1\ns_lshr_b32 s5, s5, 6")
            if CODEPF[0]:
                k(f"""
                s_cmp_eq_u32 s5, 0
                s_cbranch_scc1 L_nopf
                s_getpc_b64 s[14:15]
L_pfpc:
                                v_subrev_u32 v1, 64, v0
                v_lshlrev_b32 v1, 7, v1
                s_mov_b32 s16, CODE_END-L_pfpc-4
                """)
                for j in range(CODEPF[0]):
                    k(f"v_min_u32 v2, s16, v1\nv_and_b32 v2, -4, v2\nglobal_load_dword v255, v2, s[14:15]\nv_add_u32 v1, {192*128}, v1")
                k("L_nopf:")
            k("s_waitcnt lgkmcnt(0)\ns_mov_b32 s8, s46\ns_mov_b32 s9, s47\ns_mov_b32 s46, s44\ns_mov_b32 s47, s45")
        else:
            common_entry(k, None)
            if CODEPF[0]:
                k(f"""
                s_cmp_eq_u32 s5, 0
                s_cbranch_scc1 L_nopf
                s_getpc_b64 s[14:15]
L_pfpc:
                s_add_u32 s14, s14, ROLE_R-L_pfpc
                s_addc_u32 s15, s15, 0
                v_subrev_u32 v1, 64, v0
                v_lshlrev_b32 v1, 7, v1
                s_mov_b32 s16, CODE_END-ROLE_R-4
                """)
                for j in range(CODEPF[0]):
                    k(f"v_min_u32 v2, s16, v1\nv_and_b32 v2, -4, v2\nglobal_load_dword v255, v2, s[14:15]\nv_add_u32 v1, {192*128}, v1")
                k("L_nopf:")
            k(f"s_load_dwordx2 s[46:47], s[0:1], {KA_DBG}\ns_waitcnt lgkmcnt(0)")
        k("s_getreg_b32 s34, hwreg(HW_REG_XCC_ID, 0, 4)\ns_and_b32 s34, s34, 7")
        if diag:
            k("s_memrealtime s[94:95]\ns_waitcnt lgkmcnt(0)\ns_mov_b32 s80, s94")
        if FAKE[0]: k(FAKE[0])
        ticket(k)
        if diag:
            k(f"s_lshl_b32 s92, s34, 5\ns_add_u32 s92, s92, s4\ns_lshl_b32 s92, s92, 6\ns_add_u32 s92, s92, {DIAG}\ns_add_u32 s90, s8, s92\ns_addc_u32 s91, s9, 0")
            for i in range(1, 10): k(f"s_mov_b32 s{80+i}, 0")
        k(f"""
        s_cmp_ge_u32 s4, 32
        s_cbranch_scc1 L_exit_m
        s_mov_b32 s36, 0
        s_cmp_eq_u32 s34, {1 ^ SWAPR[0]}
        s_cbranch_scc1 L_doinit
        s_mov_b32 s36, 1
        s_cmp_eq_u32 s34, 4
        s_cbranch_scc1 L_doinit
        s_mov_b32 s36, 2
        s_cmp_eq_u32 s34, 5
        s_cbranch_scc1 L_doinit
        s_mov_b32 s36, 3
        s_cmp_eq_u32 s34, 7
        s_cbranch_scc1 L_doinit
        s_branch L_noinit
L_doinit:
        s_lshl_b32 s36, s36, 5
        s_add_u32 s36, s36, s4
        """)
        n0 = len(k.lines)
        mark(k, 9)
        rolesA.emit_init(k, 36)
        mark(k, 8)
        errs += check(k.lines[n0:], 'init')
        k(f"""
L_noinit:
        s_cmp_ge_u32 s34, 2
        s_cbranch_scc1 L_d1
        s_xor_b32 s6, s34, {SWAPR[0]}
        s_branch ROLE_R
L_d1:
        s_cmp_ge_u32 s34, 6
        s_cbranch_scc1 L_d2
        s_sub_u32 s6, s34, 2
        s_lshr_b32 s6, s6, 1
        s_and_b32 s33, s34, 1
        s_cmp_lg_u32 s33, 0
        s_cbranch_scc1 L_d1b
        s_branch ROLE_T3q
L_d1b:
        s_cmp_ge_u32 s4, 16
        s_cbranch_scc1 L_d1c
        s_add_u32 s4, s4, 32
        s_branch ROLE_T3v
L_d1c:
        s_sub_u32 s4, s4, 16
        s_branch ROLE_T5
L_d2:
        s_sub_u32 s6, s34, 6
        s_cmp_ge_u32 s4, 16
        s_cbranch_scc1 L_d2b
        s_cmp_lg_u32 s6, 0
        s_cbranch_scc1 L_d2a
        """)
        rolesA.emit_l2_prefetch(k)
        k(f"""
L_d2a:
        s_branch ROLE_T4
L_d2b:
        s_cmp_ge_u32 s4, 24
        s_cbranch_scc1 L_d2c
        s_sub_u32 s4, s4, 16
        s_branch ROLE_TA
L_d2c:
        s_cmp_ge_u32 s4, 26
        s_cbranch_scc1 L_d2d
        s_sub_u32 s4, s4, 24
        s_branch ROLE_TW
L_d2d:
        s_cmp_ge_u32 s4, 30
        s_cbranch_scc1 L_exit_m
        s_sub_u32 s4, s4, 26
        s_branch ROLE_T6
L_exit_m:
        s_endpgm
        """)
        kernels.append((name, 512, 256))
    errs += emit_roles(k, True, stamp)
    k.label("CODE_END")
    k('.section .rodata,"a"')
    for name, vg, acc in kernels:
        k(".p2align 6")
        k(KD.format(name=name, vgpr=vg, acc=acc))
    k(".text")
    return k.text(), errs

if __name__ == '__main__':
    mode = sys.argv[1] if len(sys.argv) > 1 else 'concurrent'
    txt, errs = build(mode)
    for e in errs: print(e)
    open(f"mega_{mode}.s", "w").write(txt)
    import drv
    asm, co = drv.build(f"mega_{mode}.s", KNAME, 13)
    from cdna_launch import address_register_problem
    print("bytes", len(txt))
    print("check:", address_register_problem(co, KNAME))
```
